```python
import torch

def _softmax(x, axis=-1):
    return torch.softmax(x, dim=axis)
def _gelu(x):
    return torch.nn.functional.gelu(x, approximate="tanh")
def _silu(x):
    return torch.nn.functional.silu(x)
def _sigmoid(x):
    return torch.sigmoid(x)
def _layernorm(x, axis=-1, eps=1e-5):
    m = x.mean(dim=axis, keepdim=True)
    v = x.var(dim=axis, keepdim=True, unbiased=False)
    return (x - m) / torch.sqrt(v + eps)
def _scatter_add(tgt, idx, src, axis=0):
    return tgt.clone().index_add_(axis, idx, src)
def _segment_sum(src, seg, n):
    out = torch.zeros((n,) + src.shape[1:], dtype=src.dtype)
    return out.index_add_(0, seg, src)
def _pad(x, pw):
    flat = tuple(v for pair in reversed(pw) for v in pair)
    return torch.nn.functional.pad(x, flat)

kernel_name = 'recurrent_scan__sliding_block__geglu_ffn__prompt'

def setup_inputs():

    _w = (lambda a: (lambda t: t.to(torch.bfloat16) if t.is_floating_point() else t)(torch.as_tensor(a)))
    def _A_setup():
        B, S, D = 1, 2048, 512
        return {
            "x": _w((lambda *s: torch.randn(*s, dtype=torch.bfloat16) * 0.05)(B, S, D)),
            "wqkv": _w((lambda *s: torch.randn(*s, dtype=torch.bfloat16) * 0.05)(D, 3 * D)),
            "wo": _w((lambda *s: torch.randn(*s, dtype=torch.bfloat16) * 0.05)(D, D)),
        }
    _A_in = _A_setup()

    def _B_setup():
        B, S, D, F = 1, 2048, 512, 1792
        return {
            "x": _w((lambda *s: torch.randn(*s, dtype=torch.bfloat16) * 0.05)(B, S, D)),
            "w_gate": _w((lambda *s: torch.randn(*s, dtype=torch.bfloat16) * 0.05)(D, F)),
            "w_up": _w((lambda *s: torch.randn(*s, dtype=torch.bfloat16) * 0.05)(D, F)),
            "w_down": _w((lambda *s: torch.randn(*s, dtype=torch.bfloat16) * 0.05)(F, D)),
        }
    _B_in = _B_setup()

    return {
        "A_x": _A_in["x"],
        "A_wqkv": _A_in["wqkv"],
        "A_wo": _A_in["wo"],
        "B_x": _B_in["x"],
        "B_w_gate": _B_in["w_gate"],
        "B_w_up": _B_in["w_up"],
        "B_w_down": _B_in["w_down"],
    }

def reference(A_x, A_wqkv, A_wo, B_x, B_w_gate, B_w_up, B_w_down):
    def _A_ref(x, wqkv, wo):
        B, S, D = x.shape
        H = 32; Dh = D // H; W = 256
        qkv = (lambda x, *d: x.permute(*d))((x @ wqkv).reshape(B, S, 3, H, Dh), 2, 0, 3, 1, 4)
        q, k, v = qkv[0], qkv[1], qkv[2]
        scores = torch.einsum("bhqd,bhkd->bhqk", q, k) * (Dh ** -0.5)
        idx = torch.arange(S)
        mask = (idx[:, None] - idx[None, :] >= 0) & (idx[:, None] - idx[None, :] < W)
        scores = torch.where(mask[None, None], scores, -1e9)
        p = _softmax(scores, axis=-1)
        o = torch.einsum("bhqk,bhkd->bhqd", p, v)
        return (lambda x, *d: x.permute(*d))(o, 0, 2, 1, 3).reshape(B, S, D) @ wo

    def _B_ref(x, w_gate, w_up, w_down):
        return (_gelu(x @ w_gate) * (x @ w_up)) @ w_down

    x = A_x
    xn = _layernorm(x, axis=-1)
    s = _A_ref(xn, A_wqkv, A_wo)
    g = _silu(_B_ref(xn, B_w_gate, B_w_up, B_w_down))
    return x + s * g
```

```python
class Asm:
    def __init__(self):
        self.L = []
        self.uid = 0
    def __call__(self, s):
        for line in s.strip("\n").split("\n"):
            self.L.append("  " + line.strip())
    def label(self, l):
        self.L.append(l + ":")
    def raw(self, s):
        self.L.append(s)
    def newlabel(self, p="L"):
        self.uid += 1
        return f"{p}_{self.uid}"
    def text(self):
        return "\n".join(self.L) + "\n"

def vr(a, n=1):
    return f"v{a}" if n == 1 else f"v[{a}:{a+n-1}]"
def sr(a, n=1):
    return f"s{a}" if n == 1 else f"s[{a}:{a+n-1}]"

def kernel_header(A, name):
    A.raw(f".globl {name}\n.p2align 8\n.type {name},@function\n{name}:")

def kernel_desc(name, vgpr, sgpr=102):
    acc = (vgpr + 3) // 4 * 4
    return f""".p2align 6
.amdhsa_kernel {name}
  .amdhsa_next_free_vgpr {vgpr}
  .amdhsa_next_free_sgpr {sgpr}
  .amdhsa_accum_offset {acc}
  .amdhsa_group_segment_fixed_size 0
  .amdhsa_kernarg_size 80
  .amdhsa_user_sgpr_count 2
  .amdhsa_user_sgpr_kernarg_segment_ptr 1
  .amdhsa_system_sgpr_workgroup_id_x 1
.end_amdhsa_kernel
"""

import struct
def f32(x):
    return "0x%08x" % struct.unpack("<I", struct.pack("<f", x))[0]

def interleave(main, fill):
    out = []
    n = len(main)
    k = 0
    for i, slot in enumerate(main):
        out += slot
        cnt = (len(fill) * (i + 1)) // n - (len(fill) * i) // n
        out += fill[k:k + cnt]
        k += cnt
    return out
```

```python
import sys, math
from asmlib import *

WS_Q = 0; WS_K = 2 << 20; WS_V = 4 << 20; WS_O = 6 << 20; WS_H = 8 << 20
WS_BYTES = 268435456
LOG2E = 1.4426950408889634
OPT = dict(stats=1)
for a in sys.argv[1:]:
    k, v = a.split("="); OPT[k] = int(v)

def gen_k1(A):
    SLOT = 28672; NSLOT = 5
    EX_C = SLOT * NSLOT
    EX_S = EX_C + 8 * 1280
    vLane = 1; vDW = [2, 3, 4]; vDX = 5; vXa = [6, 7]; vWa = [8, 9, 10, 11, 12]
    vT = [13, 14, 15, 16]; vSx = [17, 18]; vSq = [19, 20]; vCs = [21 + i for i in range(10)]
    P = 32; Q = 56; ACC = 80; E = 160
    kernel_header(A, "k1_kernel")
    A("""s_cmp_ge_u32 s2, 256
    s_cbranch_scc1 K1_END
    s_load_dwordx4 s[4:7], s[0:1], 0
    s_load_dwordx4 s[8:11], s[0:1], 32
    s_load_dwordx2 s[12:13], s[0:1], 72
    v_and_b32 v1, 63, v0
    v_lshrrev_b32 v13, 6, v0
    s_and_b32 s57, s2, 7
    v_readfirstlane_b32 s14, v13
    s_lshr_b32 s58, s2, 3
    s_and_b32 s47, s57, 1
    s_lshl_b32 s47, s47, 3
    s_and_b32 s59, s58, 7
    s_add_u32 s47, s47, s59
    s_lshr_b32 s48, s57, 1
    s_lshl_b32 s48, s48, 2
    s_lshr_b32 s59, s58, 3
    s_add_u32 s48, s48, s59
    s_lshr_b32 s49, s48, 1
    s_and_b32 s50, s48, 1
    s_sub_u32 s51, 4, s50
    s_and_b32 s15, s14, 3
    s_waitcnt lgkmcnt(0)
    s_mov_b32 s16, s4
    s_mov_b32 s17, s5
    s_mov_b32 s18, 0x200000
    s_mov_b32 s19, 0x20000
    s_mov_b32 s20, s12
    s_mov_b32 s21, s13
    s_mov_b32 s22, 0x10000000
    s_mov_b32 s23, 0x20000
    s_mov_b32 s27, 0x20000
    s_mov_b32 s31, 0x20000
    s_mov_b32 s35, 0x20000""")
    A(f"""s_lshl_b32 s36, s47, 17
    s_lshl_b32 s57, s14, 14
    s_add_u32 s36, s36, s57
    s_lshl_b32 s46, s14, 10
    v_lshrrev_b32 v13, 2, v1
    v_lshlrev_b32 v13, 10, v13
    v_lshrrev_b32 v14, 4, v1
    v_xor_b32 v14, v14, v1
    v_and_b32 v14, 3, v14
    v_lshlrev_b32 v14, 4, v14
    v_add_u32 v{vDX}, v13, v14""")
    A(f"""v_and_b32 v13, 31, v1
    v_lshrrev_b32 v14, 5, v1
    v_lshrrev_b32 v15, 2, v13
    v_and_b32 v15, 3, v15
    v_xor_b32 v14, v14, v15
    v_lshlrev_b32 v14, 4, v14
    v_lshlrev_b32 v13, 6, v13
    v_add_u32 v13, v13, v14
    s_lshl_b32 s57, s15, 11
    v_add_u32 v{vXa[0]}, s57, v13
    v_xor_b32 v{vXa[1]}, 32, v{vXa[0]}""")
    A(f"""v_lshrrev_b32 v13, 5, v1
    v_lshlrev_b32 v13, 9, v13
    v_bfe_u32 v14, v1, 2, 2
    v_lshlrev_b32 v14, 6, v14
    v_add_u32 v13, v13, v14
    v_and_b32 v14, 3, v1
    v_lshlrev_b32 v14, 3, v14
    v_add_u32 v13, v13, v14
    v_bfe_u32 v16, v1, 4, 1""")
    for r in vSx + vSq + vCs:
        A(f"v_mov_b32 v{r}, 0")
    for r in range(ACC, ACC + 80):
        A(f"v_mov_b32 v{r}, 0")
    A("s_cmp_ge_u32 s14, 4")
    A("s_cbranch_scc1 K1_CW1")
    for cw in (0, 1):
        if cw == 1:
            A.label("K1_CW1")
        nW = 3 if cw == 0 else 2
        nD = nW + 1
        A(f"s_lshl_b32 s57, s51, 11")
        A(f"s_add_u32 s57, s57, {32*(cw^1) - 32*cw + 4096}")
        A(f"v_mul_u32_u24 v14, s57, v16")
        A(f"v_lshlrev_b32 v15, 12, v16")
        A(f"v_sub_u32 v14, v14, v15")
        A(f"v_add_u32 v14, v14, v13")
        A(f"v_lshlrev_b32 v15, 5, v16")
        A(f"v_add_u32 v15, v15, v13")
        for n in range(3):
            A(f"v_add_u32 v{vWa[n]}, {8192 + n*2048 + 32*cw}, v14")
        A(f"v_add_u32 v{vWa[4]}, {8192 + (8+cw)*2048}, v15")
        A(f"v_add_u32 v14, {8192 + 3*2048 + 32*cw}, v14")
        A(f"v_add_u32 v15, {8192 + (6+cw)*2048}, v15")
        A("s_cmp_eq_u32 s50, 0")
        A("s_cselect_b64 vcc, -1, 0")
        A(f"v_cndmask_b32 v{vWa[3]}, v15, v14, vcc")
        for k in range(nW):
            S = 24 + 4 * k
            if cw == 0:
                A(f"s_mul_i32 s57, s15, 3\ns_add_u32 s57, s57, {k}")
            else:
                A(f"s_lshl_b32 s57, s15, 1\ns_add_u32 s57, s57, {12+k}")
            A(f"""s_lshl_b32 s{43+k}, s57, 10
            s_add_u32 s{43+k}, s{43+k}, 8192
            s_lshr_b32 s58, s57, 1
            s_and_b32 s59, s57, 1
            s_lshl_b32 s60, s51, 1
            s_sub_u32 s61, s58, s60
            s_lshr_b32 s62, s61, 1
            s_add_u32 s62, s62, 1
            s_mul_i32 s62, s62, s50
            s_lshl_b32 s62, s62, 10
            s_and_b32 s61, s61, 1
            s_lshl_b32 s61, s61, 6
            s_add_u32 s62, s62, s61
            s_lshl_b32 s61, s49, 7
            s_add_u32 s62, s62, s61""")
            A(f"""s_sub_u32 s61, s58, s51
            s_cmp_lt_u32 s58, s51
            s_cselect_b32 s61, s58, s61
            s_cselect_b32 s{S}, s8, s10
            s_cselect_b32 s{S+1}, s9, s11
            s_cselect_b32 s63, 0, 2
            s_mul_i32 s64, s49, 7
            s_add_u32 s61, s61, s64
            s_lshl_b32 s64, s50, 2
            s_add_u32 s61, s61, s64
            s_lshl_b32 s61, s61, 6""")
            A(f"""s_cmp_ge_u32 s58, s60
            s_cselect_b32 s61, s62, s61
            s_cselect_b32 s{S}, s6, s{S}
            s_cselect_b32 s{S+1}, s7, s{S+1}
            s_cselect_b32 s63, 0, s63
            s_movk_i32 s64, 3584
            s_cselect_b32 s64, 3072, s64
            s_lshl_b32 s{S+2}, s64, 9
            s_lshl_b32 s{40+k}, s64, 5
            s_lshl_b32 s65, s64, 4
            s_mul_i32 s65, s65, s59
            s_add_u32 s{37+k}, s61, s65
            v_lshrrev_b32 v14, 2, v1
            v_mul_u32_u24 v14, s64, v14
            v_and_b32 v15, 3, v1
            v_xor_b32 v15, s63, v15
            v_lshlrev_b32 v15, 4, v15
            v_add_u32 v{vDW[k]}, v14, v15""")
        A(f"s_add_u32 s57, s15, {2*cw}\ns_and_b32 s57, s57, 3")
        A("""s_lshr_b32 s58, s57, 1
        s_and_b32 s57, s57, 1
        s_cmp_eq_u32 s57, 0
        s_cselect_b32 s56, s58, 2
        s_cselect_b32 s66, 2, s58""")

        def dma_list():
            out = []
            out.append(["s_add_u32 m0, s52, s46", "s_nop 0",
                        f"buffer_load_dwordx4 v{vDX}, s[16:19], s36 offen lds", "s_add_u32 s36, s36, 64"])
            for k in range(nW):
                S = 24 + 4 * k
                out.append([f"s_add_u32 m0, s52, s{43+k}", "s_nop 0",
                            f"buffer_load_dwordx4 v{vDW[k]}, s[{S}:{S+3}], s{37+k} offen lds",
                            f"s_add_u32 s{37+k}, s{37+k}, s{40+k}"])
            return out
        A("s_mov_b32 s52, 0")
        for st in range(4):
            for d in dma_list():
                for ins in d: A(ins)
            A(f"s_add_u32 s52, s52, {SLOT}")
        A(f"s_waitcnt vmcnt({3*nD})")
        A("s_barrier")
        A(f"ds_read_b128 {vr(P,4)}, v{vXa[0]}")
        for n in range(5):
            A(f"ds_read_b64_tr_b16 {vr(P+4+4*n,2)}, v{vWa[n]}")
            A(f"ds_read_b64_tr_b16 {vr(P+6+4*n,2)}, v{vWa[n]} offset:256")
        A("s_mov_b32 s55, 0")
        A("s_mov_b32 s53, 0")

        def substep(kk, csum):
            cur = P if kk == 0 else Q
            nxt = Q if kk == 0 else P
            imm = 1024 if kk == 0 else 0
            xa = vXa[1] if kk == 0 else vXa[0]
            dmas = dma_list() if kk == 1 else []
            xs = []
            if kk == cw and OPT["stats"]:
                for d in range(4):
                    a, b = vT[0], vT[1]
                    if d & 1: a, b = vT[2], vT[3]
                    xs += [f"v_lshlrev_b32 v{a}, 16, v{cur+d}", f"v_and_b32 v{b}, 0xffff0000, v{cur+d}",
                           f"v_add_f32 v{vSx[0]}, v{vSx[0]}, v{a}", f"v_add_f32 v{vSx[1]}, v{vSx[1]}, v{b}",
                           f"v_fmac_f32 v{vSq[0]}, v{a}, v{a}", f"v_fmac_f32 v{vSq[1]}, v{b}, v{b}"]
            out = []
            for n in range(5):
                if n == 0:
                    out.append(f"ds_read_b128 {vr(nxt,4)}, v{xa}")
                out.append("s_waitcnt lgkmcnt(9)")
                w = cur + 4 + 4 * n
                out.append(f"v_mfma_f32_32x32x16_bf16 {vr(ACC+16*n,16)}, {vr(w,4)}, {vr(cur,4)}, {vr(ACC+16*n,16)}")
                out.append(f"ds_read_b64_tr_b16 {vr(nxt+4+4*n,2)}, v{vWa[n]} offset:{imm}")
                out.append(f"ds_read_b64_tr_b16 {vr(nxt+6+4*n,2)}, v{vWa[n]} offset:{imm+256}")
                if n < len(dmas):
                    out += dmas[n]
                c0 = (len(xs) * n) // 5; c1 = (len(xs) * (n + 1)) // 5
                out += xs[c0:c1]
                if csum:
                    for d in range(4):
                        a, b = E + 2 * d, E + 2 * d + 1
                        out += [f"v_lshlrev_b32 v{a}, 16, v{w+d}", f"v_and_b32 v{b}, 0xffff0000, v{w+d}"]
                    for d in range(4):
                        a, b = E + 2 * d, E + 2 * d + 1
                        out += [f"v_add_f32 v{vCs[2*n]}, v{vCs[2*n]}, v{a}", f"v_add_f32 v{vCs[2*n+1]}, v{vCs[2*n+1]}, v{b}"]
            return out

        A.raw(".p2align 3")
        A.label(f"K1_LOOP{cw}")
        A("s_and_b32 s57, s55, 1")
        if OPT["stats"]:
            A("s_cmp_eq_u32 s57, s56")
            A(f"s_cbranch_scc1 K1_S0C{cw}")
        for ins in substep(0, False): A(ins)
        A.label(f"K1_MID{cw}")
        A(f"""s_add_u32 s53, s53, 1
        s_cmp_eq_u32 s53, {NSLOT}
        s_cselect_b32 s53, 0, s53
        s_mov_b32 s54, {SLOT}
        s_cselect_b32 s54, {(-4*SLOT) & 0xffffffff}, s54
        s_cmp_ge_u32 s55, 12
        s_cselect_b32 s18, 0, s18""")
        for k in range(nW):
            A(f"s_cselect_b32 s{26+4*k}, 0, s{26+4*k}")
        A(f"s_waitcnt vmcnt({2*nD})")
        A("s_barrier")
        for r in vXa + vWa:
            A(f"v_add_u32 v{r}, s54, v{r}")
        if OPT["stats"]:
            A("s_cmp_eq_u32 s57, s66")
            A(f"s_cbranch_scc1 K1_S1C{cw}")
        for ins in substep(1, False): A(ins)
        A.label(f"K1_BOT{cw}")
        A(f"""s_add_u32 s52, s52, {SLOT}
        s_cmp_eq_u32 s52, {SLOT*NSLOT}
        s_cselect_b32 s52, 0, s52
        s_add_u32 s55, s55, 1
        s_cmp_lt_u32 s55, 16
        s_cbranch_scc1 K1_LOOP{cw}
        s_branch K1_EPI{cw}""")
        if OPT["stats"]:
            A.label(f"K1_S0C{cw}")
            for ins in substep(0, True): A(ins)
            A(f"s_branch K1_MID{cw}")
            A.label(f"K1_S1C{cw}")
            for ins in substep(1, True): A(ins)
            A(f"s_branch K1_BOT{cw}")
        A.label(f"K1_EPI{cw}")
        A("s_waitcnt vmcnt(0) lgkmcnt(0)")
        A(f"s_mul_i32 s57, s14, 1280\ns_add_u32 s57, s57, {EX_C}")
        A(f"v_lshlrev_b32 v13, 2, v1")
        A(f"v_add_u32 v14, s57, v13")
        for n in range(5):
            A(f"v_add_f32 v{vCs[2*n]}, v{vCs[2*n]}, v{vCs[2*n+1]}")
        for n in range(5):
            A(f"ds_write_b32 v14, v{vCs[2*n]} offset:{n*256}")
        A(f"v_add_f32 v{E}, v{vSx[0]}, v{vSx[1]}")
        A(f"v_add_f32 v{E+1}, v{vSq[0]}, v{vSq[1]}")
        A(f"""v_and_b32 v15, 31, v1
        v_lshlrev_b32 v15, 5, v15
        s_lshl_b32 s57, s15, 10
        s_add_u32 s57, s57, {EX_S}
        v_add_u32 v15, s57, v15
        v_lshrrev_b32 v16, 5, v1
        v_lshlrev_b32 v16, 3, v16
        v_add_u32 v16, v16, v15
        ds_write_b64 v16, {vr(E,2)} offset:{16*cw}
        s_waitcnt lgkmcnt(0)
        s_barrier
        ds_read_b128 {vr(E,4)}, v15
        ds_read_b128 {vr(E+4,4)}, v15 offset:16
        v_add_u32 v13, {EX_C + cw*4*1280}, v13""")
        C0 = E + 8
        for n in range(5):
            for tt in range(4):
                A(f"ds_read_b32 v{C0+4*n+tt}, v13 offset:{tt*1280 + n*256}")
        A("s_waitcnt lgkmcnt(15)")
        A("s_waitcnt lgkmcnt(0)")
        vM, vR, vK1, vK3, vRi2, vRq = 17, 18, 19, 20, 21, 22
        A(f"""v_add_f32 v{E}, v{E}, v{E+2}
        v_add_f32 v{E+4}, v{E+4}, v{E+6}
        v_add_f32 v{E+1}, v{E+1}, v{E+3}
        v_add_f32 v{E+5}, v{E+5}, v{E+7}
        v_add_f32 v{E}, v{E}, v{E+4}
        v_add_f32 v{E+1}, v{E+1}, v{E+5}
        v_mul_f32 v{vM}, {f32(1/512)}, v{E}
        v_mul_f32 v{E+1}, {f32(1/512)}, v{E+1}
        v_fma_f32 v{E+1}, -v{vM}, v{vM}, v{E+1}
        v_max_f32 v{E+1}, 0, v{E+1}
        v_add_f32 v{vRi2}, {f32(1e-5)}, v{E+1}
        v_rsq_f32 v{vR}, v{vRi2}""")
        A(f"""v_sub_f32 v{E}, 0, v{vM}
        v_cvt_pk_bf16_f32 v{P}, v{E}, v{E}
        v_and_b32 v{E+1}, 0xffff0000, v{P}
        v_sub_f32 v{E+1}, v{E}, v{E+1}
        v_cvt_pk_bf16_f32 v{P+1}, v{E+1}, v{E+1}
        v_mov_b32 v{P+2}, 0
        v_mov_b32 v{P+3}, 0""")
        c1 = -2.0 * math.sqrt(2.0 / math.pi) * LOG2E
        c3 = c1 * 0.044715
        A(f"""v_mul_f32 v{vK1}, {f32(c1)}, v{vR}
        v_mul_f32 v{vK3}, v{vR}, v{vR}
        v_mul_f32 v{vK3}, v{vK3}, v{vR}
        v_mul_f32 v{vK3}, {f32(c3)}, v{vK3}""")
        for n in range(5):
            w = P + 4 + 4 * n
            c = C0 + 4 * n
            A(f"""v_add_f32 v{c}, v{c}, v{c+1}
            v_add_f32 v{c+2}, v{c+2}, v{c+3}
            v_add_f32 v{c}, v{c}, v{c+2}
            v_cvt_pk_bf16_f32 v{c+1}, v{c}, v{c}
            v_and_b32 v{c+1}, 0xffff0000, v{c+1}
            v_sub_f32 v{c+2}, v{c}, v{c+1}
            v_cvt_pk_bf16_f32 v{w}, v{c+1}, v{c+2}
            v_mov_b32 v{w+2}, 0
            v_mov_b32 v{w+3}, 0
            v_mov_b32 v{w+1}, v{w}""")
        A("s_nop 1")
        for n in range(5):
            w = P + 4 + 4 * n
            A(f"v_mfma_f32_32x32x16_bf16 {vr(ACC+16*n,16)}, {vr(w,4)}, {vr(P,4)}, {vr(ACC+16*n,16)}")
        A(f"""s_lshl_b32 s57, s47, 2
        s_add_u32 s57, s57, s15
        s_mul_i32 s58, s57, {112*1024}
        s_mul_i32 s59, s49, 7
        s_lshl_b32 s60, s50, 2
        s_add_u32 s59, s59, s60
        s_lshl_b32 s59, s59, 11
        s_add_u32 s58, s58, s59
        s_add_u32 s58, s58, {WS_H + cw*1024}
        v_lshlrev_b32 v13, 4, v1""")
        A(f"""s_lshl_b32 s59, s49, 2
        s_add_u32 s59, s59, {2*cw}
        s_lshl_b32 s59, s59, 6
        s_add_u32 s59, s59, s57
        s_lshl_b32 s59, s59, 10
        s_add_u32 s60, s59, {WS_K}
        s_add_u32 s61, s59, {WS_V}
        s_cmp_eq_u32 s50, 0
        s_cselect_b32 s61, s59, s61
        s_mov_b32 s62, {f32(0.25*LOG2E)}
        s_cselect_b32 s62, s62, 1.0
        s_cselect_b64 vcc, -1, 0
        v_and_b32 v14, 31, v1
        v_lshlrev_b32 v14, 5, v14
        v_lshrrev_b32 v15, 5, v1
        v_lshlrev_b32 v15, 4, v15
        v_add_u32 v14, v14, v15
        v_cndmask_b32 v14, v14, v13, vcc
        v_mul_f32 v{vRq}, s62, v{vR}""")
        def ffn(n):
            a = ACC + 16 * n
            T = E + 8
            for r in range(8):
                A(f"v_mul_f32 v{T+r}, v{a+r}, v{a+r}")
            for r in range(8):
                A(f"v_fma_f32 v{T+r}, v{T+r}, v{vK3}, v{vK1}")
            for r in range(8):
                A(f"v_mul_f32 v{T+r}, v{T+r}, v{a+r}")
            for r in range(8):
                A(f"v_exp_f32 v{T+r}, v{T+r}")
            for r in range(8):
                A(f"v_mul_f32 v{a+r}, v{a+r}, v{a+8+r}")
            for r in range(8):
                A(f"v_fma_f32 v{T+r}, v{T+r}, v{vRi2}, v{vRi2}")
            for r in range(8):
                A(f"v_rcp_f32 v{T+r}, v{T+r}")
            A("s_nop 0")
            for r in range(8):
                A(f"v_mul_f32 v{a+r}, v{a+r}, v{T+r}")
            for d in range(4):
                A(f"v_cvt_pk_bf16_f32 v{a+8+d}, v{a+2*d}, v{a+2*d+1}")
            A(f"s_add_u32 s63, s58, {2048*n}")
            A(f"buffer_store_dwordx4 {vr(a+8,4)}, v13, s[20:23], s63 offen")
        def qkv(n, voff, soff, vs):
            a = ACC + 16 * n
            for r in range(16):
                A(f"v_mul_f32 v{a+r}, v{a+r}, v{vs}")
            T = E + 16
            for d in range(8):
                A(f"v_cvt_pk_bf16_f32 v{T+d}, v{a+2*d}, v{a+2*d+1}")
            A(f"s_add_u32 s63, s{soff}, 65536")
            A(f"buffer_store_dwordx4 {vr(T,4)}, v{voff}, s[20:23], s{soff} offen")
            A(f"buffer_store_dwordx4 {vr(T+4,4)}, v{voff}, s[20:23], s63 offen")
            A("s_nop 1")
        for n in range(3):
            ffn(n)
        A("s_cmp_eq_u32 s50, 0")
        A(f"s_cbranch_scc0 K1_TB{cw}")
        ffn(3)
        A(f"s_branch K1_T4{cw}")
        A.label(f"K1_TB{cw}")
        qkv(3, 13, 60, vR)
        A.label(f"K1_T4{cw}")
        qkv(4, 14, 61, vRq)
        A("s_endpgm")
    A.label("K1_END")
    A("s_endpgm")
    return 192

def gen_k2(A):
    LK = 0; LV = 16384; LONE = 32768
    kernel_header(A, "k2_kernel")
    vQ = 4; vK = 8; vV = 12; vP = 20; vS = 32; vO = 48; vMD = 64; vMF = 80; vC = 96; vCm = 112
    vKa = 2; vVa = 3; vStep = 28; vMx = 29; vT = 30
    A("""s_cmp_ge_u32 s2, 256
    s_cbranch_scc1 K2_END
    s_load_dwordx2 s[12:13], s[0:1], 72
    v_and_b32 v1, 63, v0
    v_lshrrev_b32 v2, 6, v0
    s_and_b32 s50, s2, 31
    v_readfirstlane_b32 s14, v2
    s_lshr_b32 s51, s2, 5
    s_waitcnt lgkmcnt(0)
    s_mov_b32 s20, s12
    s_mov_b32 s21, s13
    s_mov_b32 s22, 0x10000000
    s_mov_b32 s23, 0x20000""")
    A(f"""v_lshlrev_b32 v{vT}, 4, v1
    s_lshl_b32 s52, s50, 16
    s_lshl_b32 s53, s51, 13
    s_add_u32 s52, s52, s53
    s_lshl_b32 s53, s14, 10
    s_add_u32 s54, s52, s53
    buffer_load_dwordx4 {vr(vQ,4)}, v{vT}, s[20:23], s54 offen
    s_lshl_b32 s53, s14, 11
    s_add_u32 s52, s52, s53
    s_sub_u32 s52, s52, 8192""")
    lskip = "K2_NODMA"
    A(f"""s_cmp_lg_u32 s51, 0
    s_cbranch_scc1 K2_DMA
    s_cmp_lt_u32 s14, 4
    s_cbranch_scc1 {lskip}""")
    A.label("K2_DMA")
    A(f"""s_add_u32 s54, s52, {WS_K}
    s_add_u32 m0, s53, {LK}
    s_add_u32 s55, s52, {WS_V}
    buffer_load_dwordx4 v{vT}, s[20:23], s54 offen lds
    buffer_load_dwordx4 v{vT}, s[20:23], s54 offen offset:1024 lds
    s_add_u32 m0, s53, {LV}
    s_nop 0
    buffer_load_dwordx4 v{vT}, s[20:23], s55 offen lds
    buffer_load_dwordx4 v{vT}, s[20:23], s55 offen offset:1024 lds""")
    A.label(lskip)
    A(f"""v_lshlrev_b32 v2, 2, v0
    v_mov_b32 v3, 0x3f803f80
    ds_write_b32 v2, v3 offset:{LONE}""")
    A(f"""v_and_b32 v2, 31, v1
    v_lshrrev_b32 v3, 5, v1
    v_lshlrev_b32 v3, 2, v3
    v_sub_u32 v2, v2, v3
    v_mov_b32 v3, {f32(-1e30)}""")
    for rr in range(16):
        kc = 8 * (rr >> 2) + (rr & 3)
        A(f"v_cmp_le_i32 vcc, {kc}, v2")
        A(f"s_nop 1")
        A(f"v_cndmask_b32 v{vMD+rr}, v3, 0, vcc")
        A(f"v_cndmask_b32 v{vMF+rr}, 0, v3, vcc")
    A(f"""s_lshl_b32 s53, s14, 10
    v_add_u32 v{vKa}, s53, v{vT}""")
    A(f"""v_lshrrev_b32 v3, 5, v1
    v_lshlrev_b32 v3, 7, v3
    v_bfe_u32 v{vStep}, v1, 2, 2
    v_lshlrev_b32 v{vStep}, 5, v{vStep}
    v_add_u32 v3, v3, v{vStep}
    v_and_b32 v{vStep}, 1, v1
    v_lshlrev_b32 v{vStep}, 4, v{vStep}
    v_add_u32 v3, v3, v{vStep}
    v_bfe_u32 v{vStep}, v1, 1, 1
    v_lshlrev_b32 v{vStep}, 3, v{vStep}
    v_add_u32 v3, v3, v{vStep}
    s_add_u32 s53, s53, {LV}
    v_add_u32 v{vMx}, s53, v3
    v_xor_b32 v3, 128, v3
    v_add_u32 v3, {LONE}, v3
    v_and_b32 v{vStep}, 16, v1
    v_cmp_eq_u32 vcc, 0, v{vStep}
    v_mov_b32 v{vStep}, 1024
    s_nop 0
    v_cndmask_b32 v{vVa}, v3, v{vMx}, vcc
    v_cndmask_b32 v{vStep}, 0, v{vStep}, vcc""")
    A(f"""s_sub_u32 s56, 8, s14
    s_cmp_eq_u32 s51, 0
    s_cselect_b32 s56, s56, 0
    s_waitcnt vmcnt(0) lgkmcnt(0)
    s_barrier
    v_mov_b32 v{vMx}, {f32(-1e30)}""")
    def qk(C):
        A("s_waitcnt lgkmcnt(0)")
        c = "0" if C is None else vr(C, 16)
        A(f"v_mfma_f32_32x32x16_bf16 {vr(vS,16)}, {vr(vK,4)}, {vr(vQ,4)}, {c}")
        A("s_nop 7\ns_nop 3")
    def mx():
        for r in range(0, 16, 2):
            A(f"v_max3_f32 v{vMx}, v{vMx}, v{vS+r}, v{vS+r+1}")
    A(f"s_lshl_b32 s57, s56, 10")
    A(f"v_add_u32 v{vT}, s57, v{vKa}")
    A("s_mov_b32 s58, s56")
    A("s_cmp_lg_u32 s58, 0")
    A("s_cbranch_scc1 K2_P1L")
    A(f"ds_read_b128 {vr(vK,4)}, v{vT}")
    qk(vMF); mx()
    A(f"v_add_u32 v{vT}, 1024, v{vT}")
    A("s_add_u32 s58, s58, 1")
    A.label("K2_P1L")
    A("s_cmp_ge_u32 s58, 8")
    A("s_cbranch_scc1 K2_P1E")
    A(f"ds_read_b128 {vr(vK,4)}, v{vT}")
    qk(None); mx()
    A(f"v_add_u32 v{vT}, 1024, v{vT}")
    A("s_add_u32 s58, s58, 1")
    A("s_branch K2_P1L")
    A.label("K2_P1E")
    A(f"ds_read_b128 {vr(vK,4)}, v{vT}")
    qk(vMD); mx()
    A(f"""v_mov_b32 v{vT}, v{vMx}
    s_nop 1
    v_permlane32_swap_b32 v{vT}, v{vMx}
    s_nop 1
    v_max_f32 v{vMx}, v{vMx}, v{vT}""")
    for r in range(16):
        A(f"v_sub_f32 v{vC+r}, 0, v{vMx}")
        A(f"v_sub_f32 v{vMD+r}, v{vMD+r}, v{vMx}")
        A(f"v_sub_f32 v{vMF+r}, v{vMF+r}, v{vMx}")
        A(f"v_mov_b32 v{vO+r}, 0")
    def pv():
        for r in range(16):
            A(f"v_exp_f32 v{vS+r}, v{vS+r}")
        A("s_nop 0")
        for d in range(8):
            A(f"v_cvt_pk_bf16_f32 v{vP+d}, v{vS+2*d}, v{vS+2*d+1}")
        A("s_nop 1")
        A(f"v_mfma_f32_32x32x16_bf16 {vr(vO,16)}, {vr(vV,4)}, {vr(vP,4)}, {vr(vO,16)}")
        A(f"v_mfma_f32_32x32x16_bf16 {vr(vO,16)}, {vr(vV+4,4)}, {vr(vP+4,4)}, {vr(vO,16)}")
    def rd():
        A(f"ds_read_b128 {vr(vK,4)}, v{vT}")
        for q in range(4):
            A(f"ds_read_b64_tr_b16 {vr(vV+2*q,2)}, v{vVa} offset:{256*q}")
    def adv():
        A(f"v_add_u32 v{vT}, 1024, v{vT}")
        A(f"v_add_u32 v{vVa}, v{vStep}, v{vVa}")
        A("s_add_u32 s58, s58, 1")
    A(f"v_add_u32 v{vT}, s57, v{vKa}")
    A(f"v_mul_u32_u24 v{vKa}, s56, v{vStep}")
    A(f"v_add_u32 v{vVa}, v{vVa}, v{vKa}")
    A("s_mov_b32 s58, s56")
    A("s_cmp_lg_u32 s58, 0")
    A("s_cbranch_scc1 K2_P2L")
    rd(); qk(vMF); pv(); adv()
    A.label("K2_P2L")
    A("s_cmp_ge_u32 s58, 8")
    A("s_cbranch_scc1 K2_P2E")
    rd(); qk(vC); pv(); adv()
    A("s_branch K2_P2L")
    A.label("K2_P2E")
    rd(); qk(vMD); pv()
    A("s_nop 7\ns_nop 3")
    A(f"v_rcp_f32 v{vT}, v{vO+8}")
    A("s_nop 0")
    for r in range(8):
        A(f"v_mul_f32 v{vO+r}, v{vO+r}, v{vT}")
    for d in range(4):
        A(f"v_cvt_pk_bf16_f32 v{vP+d}, v{vO+2*d}, v{vO+2*d+1}")
    A(f"""s_lshl_b32 s52, s51, 3
    s_add_u32 s52, s52, s14
    s_lshl_b32 s52, s52, 5
    s_add_u32 s52, s52, s50
    s_lshl_b32 s52, s52, 10
    s_add_u32 s52, s52, {WS_O}
    v_lshlrev_b32 v{vT}, 4, v1
    buffer_store_dwordx4 {vr(vP,4)}, v{vT}, s[20:23], s52 offen""")
    A.label("K2_END")
    A("s_endpgm")
    return 128

def gen_k3(A):
    DEPTH = 8
    RING = 32768
    kernel_header(A, "k3_kernel")
    vDW = 2; vB = 3; vWa = 4; vT = 5
    BF = 16
    WF = 80
    AD = 96; AS = 160
    A("""s_cmp_ge_u32 s2, 256
    s_cbranch_scc1 K3_END
    s_load_dwordx2 s[4:5], s[0:1], 0
    s_load_dwordx2 s[6:7], s[0:1], 16
    s_load_dwordx4 s[8:11], s[0:1], 48
    s_load_dwordx2 s[12:13], s[0:1], 72
    v_and_b32 v1, 63, v0
    v_lshrrev_b32 v2, 6, v0
    s_and_b32 s57, s2, 7
    v_readfirstlane_b32 s14, v2
    s_lshr_b32 s58, s2, 3
    s_lshl_b32 s50, s57, 2
    s_and_b32 s59, s58, 3
    s_add_u32 s50, s50, s59
    s_lshr_b32 s51, s58, 2
    s_waitcnt lgkmcnt(0)
    s_mov_b32 s16, s4
    s_mov_b32 s17, s5
    s_mov_b32 s18, 0x200000
    s_mov_b32 s19, 0x20000
    s_mov_b32 s20, s12
    s_mov_b32 s21, s13
    s_mov_b32 s22, 0x10000000
    s_mov_b32 s23, 0x20000
    s_mov_b32 s24, s8
    s_mov_b32 s25, s9
    s_mov_b32 s26, 0x1c0000
    s_mov_b32 s27, 0x20000
    s_mov_b32 s28, s6
    s_mov_b32 s29, s7
    s_mov_b32 s30, 0x80000
    s_mov_b32 s31, 0x20000
    s_mov_b32 s32, s10
    s_mov_b32 s33, s11
    s_mov_b32 s34, 0x200000
    s_mov_b32 s35, 0x20000""")
    A(f"""v_lshrrev_b32 v{vT}, 2, v1
    v_lshlrev_b32 v{vT}, 10, v{vT}
    v_and_b32 v{vDW}, 3, v1
    v_lshlrev_b32 v{vDW}, 4, v{vDW}
    v_add_u32 v{vDW}, v{vDW}, v{vT}
    v_lshlrev_b32 v{vB}, 4, v1""")
    A(f"""v_lshrrev_b32 v{vT}, 5, v1
    v_lshlrev_b32 v{vT}, 8, v{vT}
    v_bfe_u32 v{vWa}, v1, 2, 2
    v_lshlrev_b32 v{vWa}, 6, v{vWa}
    v_add_u32 v{vT}, v{vT}, v{vWa}
    v_and_b32 v{vWa}, 3, v1
    v_lshlrev_b32 v{vWa}, 3, v{vWa}
    v_add_u32 v{vT}, v{vT}, v{vWa}
    v_bfe_u32 v{vWa}, v1, 4, 1
    v_lshlrev_b32 v{vWa}, 5, v{vWa}
    v_add_u32 v{vT}, v{vT}, v{vWa}
    s_lshl_b32 s15, s14, 15
    v_add_u32 v{vWa}, s15, v{vT}""")
    for r in range(AD, AD + 128):
        A(f"v_mov_b32 v{r}, 0")
    A(f"""s_mul_i32 s40, s14, {28*16*1024}
    s_lshl_b32 s57, s51, 7
    s_add_u32 s40, s40, s57
    s_mul_i32 s41, s50, {2*112*1024}
    s_mul_i32 s58, s14, {28*1024}
    s_add_u32 s41, s41, s58
    s_add_u32 s41, s41, {WS_H}
    s_lshl_b32 s42, s14, 17
    s_add_u32 s42, s42, s57
    s_lshl_b32 s43, s50, 16
    s_lshl_b32 s58, s14, 13
    s_add_u32 s43, s43, s58
    s_add_u32 s43, s43, {WS_O}""")
    NS = 36
    def issue(s):
        slot = s % DEPTH
        if s < 28:
            srd, so, bo, btok, ss = 24, 40, 41, 112 * 1024, s
        else:
            srd, so, bo, btok, ss = 28, 42, 43, 32 * 1024, s - 28
        o = []
        o.append(f"s_add_u32 m0, s15, {slot*2048}")
        o.append(f"s_add_u32 s44, s{so}, {ss*16384}")
        o.append(f"buffer_load_dwordx4 v{vDW}, s[{srd}:{srd+3}], s44 offen lds")
        o.append(f"s_add_u32 m0, s15, {slot*2048+1024}")
        o.append(f"s_add_u32 s44, s44, 64")
        o.append(f"buffer_load_dwordx4 v{vDW}, s[{srd}:{srd+3}], s44 offen lds")
        o.append(f"s_add_u32 s45, s{bo}, {ss*1024}")
        o.append(f"buffer_load_dwordx4 {vr(BF+8*slot,4)}, v{vB}, s[20:23], s45 offen")
        o.append(f"s_add_u32 s45, s45, {btok}")
        o.append(f"buffer_load_dwordx4 {vr(BF+8*slot+4,4)}, v{vB}, s[20:23], s45 offen")
        return o
    def rdw(s):
        slot = s % DEPTH; w = WF + 8 * (s & 1)
        return [f"ds_read_b64_tr_b16 {vr(w+4*u+2*q,2)}, v{vWa} offset:{slot*2048+u*1024+q*512}" for u in range(2) for q in range(2)]
    for s in range(DEPTH - 1):
        for i in issue(s): A(i)
    A(f"s_waitcnt vmcnt({4*(DEPTH-2)})")
    for i in rdw(0): A(i)
    for s in range(NS):
        slot = s % DEPTH; w = WF + 8 * (s & 1); b = BF + 8 * slot
        acc = AD if s < 28 else AS
        if s + 1 < NS:
            rem = min(s + DEPTH - 2, NS - 1) - (s + 1)
            A(f"s_waitcnt vmcnt({4*rem})")
            for i in rdw(s + 1): A(i)
            A("s_waitcnt lgkmcnt(4)")
        else:
            A("s_waitcnt lgkmcnt(0)")
        iss = issue(s + DEPTH - 1) if s + DEPTH - 1 < NS else []
        mf = []
        for u in range(2):
            for tt in range(2):
                a = acc + 16 * (2 * u + tt)
                mf.append([f"v_mfma_f32_32x32x16_bf16 {vr(a,16)}, {vr(w+4*u,4)}, {vr(b+4*tt,4)}, {vr(a,16)}"])
        grp = [iss[0:3], iss[3:6], iss[6:8], iss[8:10]] if iss else [[], [], [], []]
        for m, g in zip(mf, grp):
            for i in m + g: A(i)
    A("s_nop 7\ns_nop 3")
    A(f"""v_and_b32 v6, 31, v1
    v_lshrrev_b32 v7, 5, v1
    v_and_b32 v8, 15, v1
    v_xor_b32 v7, v7, v8
    v_lshlrev_b32 v6, 8, v6
    v_add_u32 v6, s15, v6""")
    for c2 in range(8):
        A(f"v_xor_b32 v8, {2*c2}, v7")
        A(f"v_lshlrev_b32 v8, 4, v8")
        A(f"v_add_u32 v8, v8, v6")
        u = c2 >> 2; q = c2 & 3
        for tt in range(2):
            for which, acc in ((0, AD), (1, AS)):
                a = acc + 16 * (2 * u + tt) + 4 * q
                A(f"ds_write_b128 v8, {vr(a,4)} offset:{which*16384 + tt*8192}")
    A("s_waitcnt lgkmcnt(0)")
    A("s_barrier")
    A(f"""v_lshrrev_b32 v6, 3, v0
    v_and_b32 v7, 7, v0
    v_lshlrev_b32 v8, 1, v7
    v_and_b32 v9, 15, v6
    v_xor_b32 v8, v8, v9
    v_lshlrev_b32 v8, 4, v8
    v_lshlrev_b32 v9, 8, v6
    v_add_u32 v8, v8, v9
    v_xor_b32 v9, 16, v8
    v_add_u32 v10, 65536, v8
    v_add_u32 v11, 65536, v9
    v_lshlrev_b32 v12, 10, v6
    v_lshlrev_b32 v7, 4, v7
    v_add_u32 v12, v12, v7
    s_lshl_b32 s40, s50, 16
    s_lshl_b32 s41, s51, 7
    s_add_u32 s40, s40, s41
    s_add_u32 s41, s40, 32768
    buffer_load_dwordx4 v[16:19], v12, s[16:19], s40 offen
    buffer_load_dwordx4 v[20:23], v12, s[16:19], s41 offen""")
    for ps in range(2):
        R = 32
        for which in range(2):
            for w in range(4):
                a0, a1 = (8, 9) if w < 2 else (10, 11)
                off = (w & 1) * 32768 + which * 16384 + ps * 8192
                d = R + which * 32 + w * 8
                A(f"ds_read_b128 {vr(d,4)}, v{a0} offset:{off}")
                A(f"ds_read_b128 {vr(d+4,4)}, v{a1} offset:{off}")
        A("s_waitcnt lgkmcnt(0)")
        for which in range(2):
            d = R + which * 32
            for e in range(8):
                A(f"v_add_f32 v{d+e}, v{d+e}, v{d+8+e}")
                A(f"v_add_f32 v{d+16+e}, v{d+16+e}, v{d+24+e}")
            for e in range(8):
                A(f"v_add_f32 v{d+e}, v{d+e}, v{d+16+e}")
        for e in range(8):
            A(f"v_mul_f32 v{R+8+e}, {f32(-LOG2E)}, v{R+e}")
        for e in range(8):
            A(f"v_exp_f32 v{R+8+e}, v{R+8+e}")
        for e in range(8):
            A(f"v_mul_f32 v{R+e}, v{R+e}, v{R+32+e}")
        for e in range(8):
            A(f"v_add_f32 v{R+8+e}, 1.0, v{R+8+e}")
        for e in range(8):
            A(f"v_rcp_f32 v{R+8+e}, v{R+8+e}")
        A(f"s_waitcnt vmcnt({1-ps})")
        X = 16 + 4 * ps
        for d in range(4):
            A(f"v_lshlrev_b32 v{R+16+2*d}, 16, v{X+d}")
            A(f"v_and_b32 v{R+17+2*d}, 0xffff0000, v{X+d}")
        for e in range(8):
            A(f"v_fma_f32 v{R+e}, v{R+e}, v{R+8+e}, v{R+16+e}")
        for d in range(4):
            A(f"v_cvt_pk_bf16_f32 v{24+4*ps+d}, v{R+2*d}, v{R+2*d+1}")
        if ps == 1:
            A(f"buffer_store_dwordx4 v[24:27], v12, s[32:35], s40 offen")
            A(f"buffer_store_dwordx4 v[28:31], v12, s[32:35], s41 offen")
    A.label("K3_END")
    A("s_endpgm")
    return 224

A = Asm()
A.raw("""; recurrent_scan__sliding_block__geglu_ffn__prompt : generated by dev/gen1.py
; @launch kernel=k1_kernel grid=(256,1,1) block=(512,1,1) lds=157696
; @launch kernel=k2_kernel grid=(256,1,1) block=(512,1,1) lds=34816
; @launch kernel=k3_kernel grid=(256,1,1) block=(256,1,1) lds=131072
.amdgcn_target "amdgcn-amd-amdhsa--gfx950"
.text""")
n1 = gen_k1(A); n2 = gen_k2(A); n3 = gen_k3(A)
A.raw('.section .rodata,"a"')
A.raw(kernel_desc("k1_kernel", n1)); A.raw(kernel_desc("k2_kernel", n2)); A.raw(kernel_desc("k3_kernel", n3))
print(A.text())
```

```python
import math
from asmlib import *
WS_Q = 0; WS_K = 2 << 20; WS_V = 4 << 20; WS_O = 6 << 20; WS_H = 8 << 20
LOG2E = 1.4426950408889634
OPT = {}
Prof = None
def gen_k2(A):
    LK = 0; LV = 16384; LONE = 32768
    kernel_header(A, "k2_kernel")
    vQ = 4; vK = 8; vV = 12; vP = 20; vS = 32; vO = 48; vMD = 64; vMF = 80; vC = 96; vCm = 112
    vKa = 2; vVa = 3; vStep = 28; vMx = 29; vT = 30
    A("""s_cmp_ge_u32 s2, 256
    s_cbranch_scc1 K2_END
    s_load_dwordx2 s[12:13], s[0:1], 72
    v_and_b32 v1, 63, v0
    v_lshrrev_b32 v2, 6, v0
    s_and_b32 s50, s2, 31
    v_readfirstlane_b32 s14, v2
    s_lshr_b32 s51, s2, 5
    s_waitcnt lgkmcnt(0)
    s_mov_b32 s20, s12
    s_mov_b32 s21, s13
    s_mov_b32 s22, 0x10000000
    s_mov_b32 s23, 0x20000""")
    PR = Prof(A, 1); PR.stamp(True); PR.stamp()
    A(f"""v_lshlrev_b32 v{vT}, 4, v1
    s_lshl_b32 s52, s50, 16
    s_lshl_b32 s53, s51, 13
    s_add_u32 s52, s52, s53
    s_lshl_b32 s53, s14, 10
    s_add_u32 s54, s52, s53
    v_and_b32 v2, 31, v1
    v_lshlrev_b32 v2, 5, v2
    v_lshrrev_b32 v3, 5, v1
    v_lshlrev_b32 v3, 4, v3
    v_add_u32 v31, v2, v3
    buffer_load_dwordx4 {vr(vQ,4)}, v31, s[20:23], s54 offen
    s_lshl_b32 s53, s14, 11
    s_add_u32 s52, s52, s53
    s_sub_u32 s52, s52, 8192""")
    lskip = "K2_NODMA"
    A(f"""s_cmp_lg_u32 s51, 0
    s_cbranch_scc1 K2_DMA
    s_cmp_lt_u32 s14, 4
    s_cbranch_scc1 {lskip}""")
    A.label("K2_DMA")
    A(f"""s_add_u32 s54, s52, {WS_K}
    s_add_u32 m0, s53, {LK}
    s_add_u32 s55, s52, {WS_V}
    buffer_load_dwordx4 v31, s[20:23], s54 offen lds
    buffer_load_dwordx4 v31, s[20:23], s54 offen offset:1024 lds
    s_add_u32 m0, s53, {LV}
    s_nop 0
    buffer_load_dwordx4 v{vT}, s[20:23], s55 offen lds
    buffer_load_dwordx4 v{vT}, s[20:23], s55 offen offset:1024 lds""")
    A.label(lskip)
    A(f"""v_lshlrev_b32 v2, 2, v0
    v_mov_b32 v3, 0x3f803f80
    ds_write_b32 v2, v3 offset:{LONE}""")
    A(f"""v_and_b32 v2, 31, v1
    v_lshrrev_b32 v3, 5, v1
    v_lshlrev_b32 v3, 2, v3
    v_sub_u32 v2, v2, v3
    v_mov_b32 v3, {f32(-1e30)}""")
    for rr in range(16):
        kc = 8 * (rr >> 2) + (rr & 3)
        A(f"v_cmp_le_i32 vcc, {kc}, v2")
        A(f"s_nop 1")
        A(f"v_cndmask_b32 v{vMD+rr}, v3, 0, vcc")
        A(f"v_cndmask_b32 v{vMF+rr}, 0, v3, vcc")
    A(f"""s_lshl_b32 s53, s14, 10
    v_add_u32 v{vKa}, s53, v{vT}""")
    A(f"""v_lshrrev_b32 v3, 5, v1
    v_lshlrev_b32 v3, 7, v3
    v_bfe_u32 v{vStep}, v1, 2, 2
    v_lshlrev_b32 v{vStep}, 5, v{vStep}
    v_add_u32 v3, v3, v{vStep}
    v_and_b32 v{vStep}, 1, v1
    v_lshlrev_b32 v{vStep}, 4, v{vStep}
    v_add_u32 v3, v3, v{vStep}
    v_bfe_u32 v{vStep}, v1, 1, 1
    v_lshlrev_b32 v{vStep}, 3, v{vStep}
    v_add_u32 v3, v3, v{vStep}
    s_add_u32 s53, s53, {LV}
    v_add_u32 v{vMx}, s53, v3
    v_xor_b32 v3, 128, v3
    v_add_u32 v3, {LONE}, v3
    v_and_b32 v{vStep}, 16, v1
    v_cmp_eq_u32 vcc, 0, v{vStep}
    v_mov_b32 v{vStep}, 1024
    s_nop 0
    v_cndmask_b32 v{vVa}, v3, v{vMx}, vcc
    v_cndmask_b32 v{vStep}, 0, v{vStep}, vcc""")
    A(f"""s_sub_u32 s56, 8, s14
    s_cmp_eq_u32 s51, 0
    s_cselect_b32 s56, s56, 0
    s_waitcnt vmcnt(0) lgkmcnt(0)
    s_barrier
    v_mov_b32 v{vMx}, {f32(-1e30)}""")
    PR.stamp()
    def qk(C):
        A("s_waitcnt lgkmcnt(0)")
        c = "0" if C is None else vr(C, 16)
        A(f"v_mfma_f32_32x32x16_bf16 {vr(vS,16)}, {vr(vK,4)}, {vr(vQ,4)}, {c}")
        A("s_nop 7\ns_nop 3")
    def mx():
        for r in range(0, 16, 2):
            A(f"v_max3_f32 v{vMx}, v{vMx}, v{vS+r}, v{vS+r+1}")
    A(f"s_lshl_b32 s57, s56, 10")
    A(f"v_add_u32 v{vT}, s57, v{vKa}")
    A("s_mov_b32 s58, s56")
    A("s_cmp_lg_u32 s58, 0")
    A("s_cbranch_scc1 K2_P1L")
    A(f"ds_read_b128 {vr(vK,4)}, v{vT}")
    qk(vMF); mx()
    A(f"v_add_u32 v{vT}, 1024, v{vT}")
    A("s_add_u32 s58, s58, 1")
    A.label("K2_P1L")
    A("s_cmp_ge_u32 s58, 8")
    A("s_cbranch_scc1 K2_P1E")
    A(f"ds_read_b128 {vr(vK,4)}, v{vT}")
    qk(None); mx()
    A(f"v_add_u32 v{vT}, 1024, v{vT}")
    A("s_add_u32 s58, s58, 1")
    A("s_branch K2_P1L")
    A.label("K2_P1E")
    A(f"ds_read_b128 {vr(vK,4)}, v{vT}")
    qk(vMD); mx()
    PR.stamp()
    A(f"""v_mov_b32 v{vT}, v{vMx}
    s_nop 1
    v_permlane32_swap_b32 v{vT}, v{vMx}
    s_nop 1
    v_max_f32 v{vMx}, v{vMx}, v{vT}""")
    for r in range(16):
        A(f"v_sub_f32 v{vC+r}, 0, v{vMx}")
        A(f"v_sub_f32 v{vMD+r}, v{vMD+r}, v{vMx}")
        A(f"v_sub_f32 v{vMF+r}, v{vMF+r}, v{vMx}")
        A(f"v_mov_b32 v{vO+r}, 0")
    def pv():
        for r in range(16):
            A(f"v_exp_f32 v{vS+r}, v{vS+r}")
        A("s_nop 0")
        for d in range(8):
            A(f"v_cvt_pk_bf16_f32 v{vP+d}, v{vS+2*d}, v{vS+2*d+1}")
        A("s_nop 1")
        A(f"v_mfma_f32_32x32x16_bf16 {vr(vO,16)}, {vr(vV,4)}, {vr(vP,4)}, {vr(vO,16)}")
        A(f"v_mfma_f32_32x32x16_bf16 {vr(vO,16)}, {vr(vV+4,4)}, {vr(vP+4,4)}, {vr(vO,16)}")
    def rd():
        A(f"ds_read_b128 {vr(vK,4)}, v{vT}")
        for q in range(4):
            A(f"ds_read_b64_tr_b16 {vr(vV+2*q,2)}, v{vVa} offset:{256*q}")
    def adv():
        A(f"v_add_u32 v{vT}, 1024, v{vT}")
        A(f"v_add_u32 v{vVa}, v{vStep}, v{vVa}")
        A("s_add_u32 s58, s58, 1")
    A(f"v_add_u32 v{vT}, s57, v{vKa}")
    A(f"v_mul_u32_u24 v{vKa}, s56, v{vStep}")
    A(f"v_add_u32 v{vVa}, v{vVa}, v{vKa}")
    A("s_mov_b32 s58, s56")
    A("s_cmp_lg_u32 s58, 0")
    A("s_cbranch_scc1 K2_P2L")
    rd(); qk(vMF); pv(); adv()
    A.label("K2_P2L")
    A("s_cmp_ge_u32 s58, 8")
    A("s_cbranch_scc1 K2_P2E")
    rd(); qk(vC); pv(); adv()
    A("s_branch K2_P2L")
    A.label("K2_P2E")
    rd(); qk(vMD); pv()
    A("s_nop 7\ns_nop 3")
    A(f"v_rcp_f32 v{vT}, v{vO+8}")
    A("s_nop 0")
    for r in range(8):
        A(f"v_mul_f32 v{vO+r}, v{vO+r}, v{vT}")
    for d in range(4):
        A(f"v_cvt_pk_bf16_f32 v{vP+d}, v{vO+2*d}, v{vO+2*d+1}")
    A(f"""s_lshl_b32 s52, s51, 3
    s_add_u32 s52, s52, s14
    s_lshl_b32 s52, s52, 5
    s_add_u32 s52, s52, s50
    s_lshl_b32 s52, s52, 10
    s_add_u32 s52, s52, {WS_O}
    v_lshlrev_b32 v{vT}, 4, v1
    buffer_store_dwordx4 {vr(vP,4)}, v{vT}, s[20:23], s52 offen""")
    PR.stamp(); A("s_waitcnt vmcnt(0)"); PR.stamp(); PR.stamp(True); PR.dump(2)
    A.label("K2_END")
    A("s_endpgm")
    return 128

def gen_k3(A):
    DEPTH = 8
    RING = 32768
    kernel_header(A, "k3_kernel")
    vDW = 2; vB = 3; vWa = 4; vT = 5
    BF = 16
    WF = 80
    AD = 96; AS = 160
    A("""s_cmp_ge_u32 s2, 256
    s_cbranch_scc1 K3_END
    s_load_dwordx2 s[4:5], s[0:1], 0
    s_load_dwordx2 s[6:7], s[0:1], 16
    s_load_dwordx4 s[8:11], s[0:1], 48
    s_load_dwordx2 s[12:13], s[0:1], 72
    v_and_b32 v1, 63, v0
    v_lshrrev_b32 v2, 6, v0
    s_and_b32 s57, s2, 7
    v_readfirstlane_b32 s14, v2
    s_lshr_b32 s58, s2, 3
    s_lshl_b32 s50, s57, 2
    s_and_b32 s59, s58, 3
    s_add_u32 s50, s50, s59
    s_lshr_b32 s51, s58, 2
    s_waitcnt lgkmcnt(0)
    s_mov_b32 s16, s4
    s_mov_b32 s17, s5
    s_mov_b32 s18, 0x200000
    s_mov_b32 s19, 0x20000
    s_mov_b32 s20, s12
    s_mov_b32 s21, s13
    s_mov_b32 s22, 0x10000000
    s_mov_b32 s23, 0x20000
    s_mov_b32 s24, s8
    s_mov_b32 s25, s9
    s_mov_b32 s26, 0x1c0000
    s_mov_b32 s27, 0x20000
    s_mov_b32 s28, s6
    s_mov_b32 s29, s7
    s_mov_b32 s30, 0x80000
    s_mov_b32 s31, 0x20000
    s_mov_b32 s32, s10
    s_mov_b32 s33, s11
    s_mov_b32 s34, 0x200000
    s_mov_b32 s35, 0x20000""")
    A(f"""v_lshrrev_b32 v{vT}, 2, v1
    v_lshlrev_b32 v{vT}, 10, v{vT}
    v_and_b32 v{vDW}, 3, v1
    v_lshlrev_b32 v{vDW}, 4, v{vDW}
    v_add_u32 v{vDW}, v{vDW}, v{vT}
    v_lshlrev_b32 v{vB}, 4, v1""")
    A(f"""v_lshrrev_b32 v{vT}, 5, v1
    v_lshlrev_b32 v{vT}, 8, v{vT}
    v_bfe_u32 v{vWa}, v1, 2, 2
    v_lshlrev_b32 v{vWa}, 6, v{vWa}
    v_add_u32 v{vT}, v{vT}, v{vWa}
    v_and_b32 v{vWa}, 3, v1
    v_lshlrev_b32 v{vWa}, 3, v{vWa}
    v_add_u32 v{vT}, v{vT}, v{vWa}
    v_bfe_u32 v{vWa}, v1, 4, 1
    v_lshlrev_b32 v{vWa}, 5, v{vWa}
    v_add_u32 v{vT}, v{vT}, v{vWa}
    s_lshl_b32 s15, s14, 15
    v_add_u32 v{vWa}, s15, v{vT}""")
    for r in range(AD, AD + 128):
        A(f"v_mov_b32 v{r}, 0")
    A(f"""s_mul_i32 s40, s14, {28*16*1024}
    s_lshl_b32 s57, s51, 7
    s_add_u32 s40, s40, s57
    s_mul_i32 s41, s50, {2*112*1024}
    s_mul_i32 s58, s14, {28*1024}
    s_add_u32 s41, s41, s58
    s_add_u32 s41, s41, {WS_H}
    s_lshl_b32 s42, s14, 17
    s_add_u32 s42, s42, s57
    s_lshl_b32 s43, s50, 16
    s_lshl_b32 s58, s14, 13
    s_add_u32 s43, s43, s58
    s_add_u32 s43, s43, {WS_O}""")
    NS = 36
    def issue(s):
        slot = s % DEPTH
        if s < 28:
            srd, so, bo, btok, ss = 24, 40, 41, 112 * 1024, s
        else:
            srd, so, bo, btok, ss = 28, 42, 43, 32 * 1024, s - 28
        o = []
        o.append(f"s_add_u32 m0, s15, {slot*2048}")
        o.append(f"s_add_u32 s44, s{so}, {ss*16384}")
        o.append(f"buffer_load_dwordx4 v{vDW}, s[{srd}:{srd+3}], s44 offen lds")
        o.append(f"s_add_u32 m0, s15, {slot*2048+1024}")
        o.append(f"s_add_u32 s44, s44, 64")
        o.append(f"buffer_load_dwordx4 v{vDW}, s[{srd}:{srd+3}], s44 offen lds")
        o.append(f"s_add_u32 s45, s{bo}, {ss*1024}")
        o.append(f"buffer_load_dwordx4 {vr(BF+8*slot,4)}, v{vB}, s[20:23], s45 offen")
        o.append(f"s_add_u32 s45, s45, {btok}")
        o.append(f"buffer_load_dwordx4 {vr(BF+8*slot+4,4)}, v{vB}, s[20:23], s45 offen")
        return o
    def rdw(s):
        slot = s % DEPTH; w = WF + 8 * (s & 1)
        return [f"ds_read_b64_tr_b16 {vr(w+4*u+2*q,2)}, v{vWa} offset:{slot*2048+u*1024+q*512}" for u in range(2) for q in range(2)]
    PR = Prof(A, 2); PR.stamp(True); PR.stamp()
    for s in range(DEPTH - 1):
        for i in issue(s): A(i)
    PR.stamp()
    A(f"s_waitcnt vmcnt({4*(DEPTH-2)})")
    PR.stamp()
    for i in rdw(0): A(i)
    for s in range(NS):
        slot = s % DEPTH; w = WF + 8 * (s & 1); b = BF + 8 * slot
        acc = AD if s < 28 else AS
        if s in (8, 16, 28): PR.stamp()
        if s + 1 < NS:
            rem = min(s + DEPTH - 2, NS - 1) - (s + 1)
            A(f"s_waitcnt vmcnt({4*rem})")
            for i in rdw(s + 1): A(i)
            A("s_waitcnt lgkmcnt(4)")
        else:
            A("s_waitcnt lgkmcnt(0)")
        iss = issue(s + DEPTH - 1) if s + DEPTH - 1 < NS else []
        mf = []
        for u in range(2):
            for tt in range(2):
                a = acc + 16 * (2 * u + tt)
                mf.append([f"v_mfma_f32_32x32x16_bf16 {vr(a,16)}, {vr(w+4*u,4)}, {vr(b+4*tt,4)}, {vr(a,16)}"])
        grp = [iss[0:3], iss[3:6], iss[6:8], iss[8:10]] if iss else [[], [], [], []]
        for m, g in zip(mf, grp):
            for i in m + g: A(i)
    A("s_nop 7\ns_nop 3")
    PR.stamp()
    A(f"""v_and_b32 v6, 31, v1
    v_lshrrev_b32 v7, 5, v1
    v_and_b32 v8, 15, v1
    v_xor_b32 v7, v7, v8
    v_lshlrev_b32 v6, 8, v6
    v_add_u32 v6, s15, v6""")
    for c2 in range(8):
        A(f"v_xor_b32 v8, {2*c2}, v7")
        A(f"v_lshlrev_b32 v8, 4, v8")
        A(f"v_add_u32 v8, v8, v6")
        u = c2 >> 2; q = c2 & 3
        for tt in range(2):
            for which, acc in ((0, AD), (1, AS)):
                a = acc + 16 * (2 * u + tt) + 4 * q
                A(f"ds_write_b128 v8, {vr(a,4)} offset:{which*16384 + tt*8192}")
    A("s_waitcnt lgkmcnt(0)")
    A("s_barrier")
    A(f"""v_lshrrev_b32 v6, 3, v0
    v_and_b32 v7, 7, v0
    v_lshlrev_b32 v8, 1, v7
    v_and_b32 v9, 15, v6
    v_xor_b32 v8, v8, v9
    v_lshlrev_b32 v8, 4, v8
    v_lshlrev_b32 v9, 8, v6
    v_add_u32 v8, v8, v9
    v_xor_b32 v9, 16, v8
    v_add_u32 v10, 65536, v8
    v_add_u32 v11, 65536, v9
    v_lshlrev_b32 v12, 10, v6
    v_lshlrev_b32 v7, 4, v7
    v_add_u32 v12, v12, v7
    s_lshl_b32 s40, s50, 16
    s_lshl_b32 s41, s51, 7
    s_add_u32 s40, s40, s41
    s_add_u32 s41, s40, 32768
    buffer_load_dwordx4 v[16:19], v12, s[16:19], s40 offen
    buffer_load_dwordx4 v[20:23], v12, s[16:19], s41 offen""")
    for ps in range(2):
        R = 32
        for which in range(2):
            for w in range(4):
                a0, a1 = (8, 9) if w < 2 else (10, 11)
                off = (w & 1) * 32768 + which * 16384 + ps * 8192
                d = R + which * 32 + w * 8
                A(f"ds_read_b128 {vr(d,4)}, v{a0} offset:{off}")
                A(f"ds_read_b128 {vr(d+4,4)}, v{a1} offset:{off}")
        A("s_waitcnt lgkmcnt(0)")
        for which in range(2):
            d = R + which * 32
            for e in range(8):
                A(f"v_add_f32 v{d+e}, v{d+e}, v{d+8+e}")
                A(f"v_add_f32 v{d+16+e}, v{d+16+e}, v{d+24+e}")
            for e in range(8):
                A(f"v_add_f32 v{d+e}, v{d+e}, v{d+16+e}")
        for e in range(8):
            A(f"v_mul_f32 v{R+8+e}, {f32(-LOG2E)}, v{R+e}")
        for e in range(8):
            A(f"v_exp_f32 v{R+8+e}, v{R+8+e}")
        for e in range(8):
            A(f"v_mul_f32 v{R+e}, v{R+e}, v{R+32+e}")
        for e in range(8):
            A(f"v_add_f32 v{R+8+e}, 1.0, v{R+8+e}")
        for e in range(8):
            A(f"v_rcp_f32 v{R+8+e}, v{R+8+e}")
        A(f"s_waitcnt vmcnt({1-ps})")
        X = 16 + 4 * ps
        for d in range(4):
            A(f"v_lshlrev_b32 v{R+16+2*d}, 16, v{X+d}")
            A(f"v_and_b32 v{R+17+2*d}, 0xffff0000, v{X+d}")
        for e in range(8):
            A(f"v_fma_f32 v{R+e}, v{R+e}, v{R+8+e}, v{R+16+e}")
        for d in range(4):
            A(f"v_cvt_pk_bf16_f32 v{24+4*ps+d}, v{R+2*d}, v{R+2*d+1}")
        if ps == 1:
            A(f"buffer_store_dwordx4 v[24:27], v12, s[32:35], s40 offen")
            A(f"buffer_store_dwordx4 v[28:31], v12, s[32:35], s41 offen")
    PR.stamp(); A("s_waitcnt vmcnt(0)"); PR.stamp(); PR.stamp(True); PR.dump(2)
    A.label("K3_END")
    A("s_endpgm")
    return 224
```

```python
import sys, math
from asmlib import *

WS_Q = 0; WS_K = 2 << 20; WS_V = 4 << 20; WS_O = 6 << 20; WS_H = 8 << 20
WS_TOK = 16 << 20
WS_CS = (16 << 20) + 65536
LOG2E = 1.4426950408889634
OPT = dict(stats=1, prof=0, pf=0, pflead=3, pfstep=128, rot=2)
for a in sys.argv[1:]:
    k, v = a.split("="); OPT[k] = int(v)

class Prof:
    def __init__(self, A, kid, base=70): self.A = A; self.n = 0; self.kid = kid; self.base = base
    def stamp(self, real=False):
        if not OPT["prof"]: return
        i = self.n; self.n += 1
        self.A(f"{'s_memrealtime' if real else 's_memtime'} s[100:101]")
        self.A("s_waitcnt lgkmcnt(0)")
        self.A(f"s_mov_b32 s{self.base+i}, s100")
    def dump(self, vt, wave_sreg=14, srd=20):
        if not OPT["prof"]: return
        A = self.A
        A("s_waitcnt lgkmcnt(0)")
        A(f"s_lshl_b32 s68, s2, 3\ns_add_u32 s68, s68, s{wave_sreg}\ns_lshl_b32 s68, s68, 6\ns_add_u32 s68, s68, {(32<<20) + self.kid*(1<<18)}")
        A(f"v_mov_b32 v{vt}, 0")
        for i in range(self.n):
            A(f"v_mov_b32 v{vt+1}, s{self.base+i}")
            A(f"buffer_store_dword v{vt+1}, v{vt}, s[{srd}:{srd+3}], s68 offen offset:{4*i}")

def gen_k1(A):
    XR = 0; XS = 16384; WR = 49152; WSL = 20480; EX = 151552
    EX_TOK = EX; EX_COL = EX + 4096
    ST = OPT["stats"]
    def wslot(s):
        return s % 5
    kernel_header(A, "k1_kernel")
    A("""s_cmp_ge_u32 s2, 256
    s_cbranch_scc1 K1_END
    s_load_dwordx4 s[4:7], s[0:1], 0
    s_load_dwordx4 s[8:11], s[0:1], 32
    s_load_dwordx4 s[16:19], s[0:1], 64
    v_and_b32 v1, 63, v0
    v_lshrrev_b32 v16, 6, v0
    s_and_b32 s57, s2, 7
    v_readfirstlane_b32 s14, v16
    s_lshr_b32 s58, s2, 3
    s_and_b32 s44, s57, 1
    s_and_b32 s45, s58, 7
    s_lshl_b32 s47, s44, 3
    s_add_u32 s47, s47, s45
    s_lshr_b32 s46, s57, 1
    s_lshr_b32 s49, s58, 3
    s_lshl_b32 s48, s46, 2
    s_add_u32 s48, s48, s49
    s_mul_i32 s51, s46, 3
    s_add_u32 s52, s51, s49
    s_cmp_eq_u32 s49, 3
    s_cselect_b32 s50, 1, 0
    s_and_b32 s15, s14, 3""")
    A("""s_lshl_b32 s53, s52, 1
    s_add_u32 s57, s46, 24
    s_add_u32 s54, s51, 12
    s_cmp_eq_u32 s50, 1
    s_cselect_b32 s53, s57, s53
    s_cselect_b32 s54, s54, s52
    s_lshl_b32 s55, s53, 7
    s_lshl_b32 s56, s54, 7
    s_waitcnt lgkmcnt(0)""")
    PR = Prof(A, 0, 82); PR.stamp(True); PR.stamp()
    tabA = [(8, 55, 0), (8, 55, 128), (10, 55, 0), (10, 55, 128), (6, 56, 0)]
    tabC = [(8, 55, 0), (10, 55, 0), (6, 56, 0), (6, 56, 128), (6, 56, 256)]
    for D in range(5):
        S = 24 + 4 * D
        (pa, ca, oa), (pc, cc_, oc) = tabA[D], tabC[D]
        A(f"s_cmp_eq_u32 s50, 1")
        A(f"s_cselect_b32 s{S}, s{pc}, s{pa}")
        A(f"s_cselect_b32 s{S+1}, s{pc+1}, s{pa+1}")
        A(f"s_cselect_b32 s57, s{cc_}, s{ca}")
        A(f"s_cselect_b32 s58, {oc}, {oa}") if oa != oc else None
        sa = 3072 if pa == 6 else 3584; sc = 3072 if pc == 6 else 3584
        if sa != sc:
            A(f"s_movk_i32 s{60+D}, {sa}")
            A(f"s_cselect_b32 s{60+D}, {sc}, s{60+D}")
        else:
            A(f"s_movk_i32 s{60+D}, {sa}")
        if oa != oc: A("s_add_u32 s57, s57, s58")
        elif oa: A(f"s_add_u32 s57, s57, {oa}")
        A(f"s_add_u32 s{S}, s{S}, s57")
        A(f"s_addc_u32 s{S+1}, s{S+1}, 0")
    A("""s_mov_b32 s20, s18
    s_mov_b32 s21, s19
    s_mov_b32 s22, 0x10000000
    s_mov_b32 s23, 0x20000
    s_mov_b32 s18, 256
    s_mov_b32 s19, 0x20000""")
    def pf_setup():
        A("""s_lshl_b32 s57, s47, 7
        s_lshl_b32 s58, s49, 5
        s_add_u32 s57, s57, s58
        s_lshl_b32 s58, s15, 3
        s_add_u32 s57, s57, s58
        s_lshl_b32 s57, s57, 10
        s_add_u32 s66, s4, s57
        s_addc_u32 s67, s5, 0
        s_lshl_b32 s58, s45, 2
        s_add_u32 s58, s58, s15""")
        for D in range(5):
            A(f"s_mul_i32 s57, s58, s{60+D}")
            A(f"s_add_u32 s{70+2*D}, s{24+4*D}, s57")
            A(f"s_addc_u32 s{71+2*D}, s{25+4*D}, 0")
    def pf_x(u):
        o = []
        for r in range(8):
            for sub in range(128 // OPT["pfstep"]):
                o.append(f"s_load_dword s65, s[66:67], {r*1024 + u*128 + sub*64}")
        return o
    def pf_w(s):
        o = []
        for D in range(5):
            o.append(f"s_mul_i32 s59, s{60+D}, {32*s}")
            for sub in range(128 // OPT["pfstep"]):
                o.append(f"s_load_dword s65, s[{70+2*D}:{71+2*D}], s59 offset:{sub*64}")
        return o
    A("s_cmp_ge_u32 s14, 4")
    A("s_cbranch_scc1 K1_HELP")
    vXa = [2, 3, 4, 5]; vWa = [6, 7, 8, 9, 10]; vWb = [11, 12, 13, 14, 15]
    P = 32; Q = 60; ACC = 88
    if OPT["pf"]:
        pf_setup()
        for i in pf_w(1) + pf_x(1) + pf_w(2): A(i)
    A("s_setprio 2")
    A("""s_and_b32 s12, s14, 1
    s_lshr_b32 s13, s14, 1
    v_and_b32 v16, 31, v1
    v_lshrrev_b32 v17, 5, v1
    v_bfe_u32 v18, v1, 1, 3
    v_xor_b32 v17, v17, v18
    v_lshlrev_b32 v17, 4, v17
    v_lshlrev_b32 v16, 7, v16
    v_add_u32 v16, v16, v17
    s_lshl_b32 s57, s12, 13
    v_add_u32 v2, s57, v16
    v_xor_b32 v3, 32, v2
    v_xor_b32 v4, 64, v2
    v_xor_b32 v5, 96, v2""")
    A(f"""v_lshrrev_b32 v16, 5, v1
    v_lshlrev_b32 v16, 10, v16
    v_bfe_u32 v17, v1, 2, 2
    v_lshlrev_b32 v17, 6, v17
    v_add_u32 v16, v16, v17
    v_and_b32 v17, 3, v1
    v_lshlrev_b32 v17, 3, v17
    v_add_u32 v16, v16, v17
    v_add_u32 v16, {WR}, v16
    v_bfe_u32 v17, v1, 4, 1
    s_sub_u32 s57, 2, s50
    s_lshl_b32 s57, s57, 12
    v_mul_u32_u24 v18, s57, v17
    v_xor_b32 v19, s13, v17
    v_lshlrev_b32 v19, 5, v19
    v_add3_u32 v18, v18, v19, v16
    v_lshlrev_b32 v19, 5, v17
    s_lshl_b32 s57, s13, 9
    v_add3_u32 v19, v19, s57, v16
    s_cmp_eq_u32 s50, 1
    s_cselect_b64 vcc, -1, 0""")
    for n in range(5):
        fo = (n >> 1) * 4096 + (n & 1) * 512
        qo = n * 4096
        if n < 2: A(f"v_add_u32 v{vWa[n]}, {fo}, v18")
        elif n == 4: A(f"v_add_u32 v{vWa[n]}, {qo}, v19")
        else:
            A(f"v_add_u32 v20, {fo}, v18")
            A(f"v_add_u32 v21, {qo}, v19")
            A(f"v_cndmask_b32 v{vWa[n]}, v20, v21, vcc")
    for n in range(5):
        A(f"v_add_u32 v{vWb[n]}, {4*WSL}, v{vWa[n]}")
    def reads(s, kk, dst):
        xs = (s >> 1) % 3; q4 = (s & 1) * 2 + kk
        sl = wslot(s)
        R = []
        def xr(tt): return f"ds_read_b128 {vr(dst+4*tt,4)}, v{vXa[q4]} offset:{XR + xs*XS + tt*4096}"
        def wr(n, sec):
            a, o = (vWa[n], sl * WSL) if sl < 4 else (vWb[n], 0)
            return f"ds_read_b64_tr_b16 {vr(dst+8+4*n+2*sec,2)}, v{a} offset:{o + kk*2048 + sec*256}"
        R = [xr(0), wr(0, 0), wr(0, 1), xr(1)]
        for n in range(1, 5): R += [wr(n, 0), wr(n, 1)]
        return R
    need = {0: 2, 1: 3, 2: 5, 4: 7, 6: 9, 8: 11}
    def substep(cur, R, first=False):
        issued = 0
        for j in range(10):
            n, tt = j >> 1, j & 1
            if j in need:
                A(f"s_waitcnt lgkmcnt({min(15, 11 - need[j] + issued)})")
            a = ACC + 16 * (2 * n + tt)
            c = "0" if first else vr(a, 16)
            if not OPT.get("nomfma"):
                A(f"v_mfma_f32_32x32x16_bf16 {vr(a,16)}, {vr(cur+8+4*n,4)}, {vr(cur+4*tt,4)}, {c}")
            k = 2 if j < 2 else 1
            for r in R[issued:issued + k]: A(r)
            issued += len(R[issued:issued + k])
        for r in R[issued:]: A(r)
    A(f"""v_and_b32 v16, 31, v1
    v_lshlrev_b32 v22, 5, v16
    s_lshl_b32 s57, s12, 11
    s_add_u32 s57, s57, {EX_TOK}
    v_add_u32 v22, s57, v22""")
    A(f"""v_and_b32 v16, 15, v1
    s_sub_u32 s57, 2, s50
    s_lshl_b32 s57, s57, 6
    v_mul_u32_u24 v18, s57, v17
    v_xor_b32 v19, s13, v17
    v_lshlrev_b32 v19, 4, v19
    v_add3_u32 v18, v18, v19, v16
    v_lshlrev_b32 v18, 2, v18
    v_and_b32 v19, 31, v1
    s_lshl_b32 s57, s13, 5
    v_add_u32 v19, s57, v19
    v_lshlrev_b32 v19, 2, v19""")
    for n in range(5):
        fo = EX_COL + ((n >> 1) * 64 + (n & 1) * 32) * 4
        qo = EX_COL + n * 256
        if n < 2: A(f"v_add_u32 v{23+n}, {fo}, v18")
        elif n == 4: A(f"v_add_u32 v{23+n}, {qo}, v19")
        else:
            A(f"v_add_u32 v20, {fo}, v18")
            A(f"v_add_u32 v21, {qo}, v19")
            A(f"v_cndmask_b32 v{23+n}, v20, v21, vcc")
    PR.stamp()
    A("s_waitcnt lgkmcnt(0)")
    PR.stamp()
    A("s_barrier")
    PR.stamp()
    for r in reads(0, 0, P): A(r)
    A.raw(".p2align 3")
    for s in range(16):
        substep(P, reads(s, 1, Q), first=(s == 0))
        A("s_barrier")
        if s < 15:
            substep(Q, reads(s + 1, 0, P))
        else:
            R = []
            if ST:
                R = [f"ds_read_b128 {vr(P,4)}, v22", f"ds_read_b128 {vr(P+4,4)}, v22 offset:1024",
                     f"ds_read_b64 v[16:17], v22 offset:16", f"ds_read_b64 v[18:19], v22 offset:1040"]
                R += [f"ds_read_b32 v{P+8+4*n}, v{23+n}" for n in range(5)]
            substep(Q, R)
        if s in (3, 7, 11): PR.stamp()
    PR.stamp()
    A("s_waitcnt lgkmcnt(0)")
    if ST:
        A(f"""v_mov_b32 v248, v{P+2}
        v_mov_b32 v249, v{P+3}
        v_mov_b32 v250, v16
        v_mov_b32 v251, v17
        v_mov_b32 v252, v{P+6}
        v_mov_b32 v253, v{P+7}
        v_mov_b32 v254, v18
        v_mov_b32 v255, v19
        v_cmp_gt_u32 vcc, 32, v1
        v_mov_b32 v{P+2}, 0
        v_mov_b32 v{P+3}, 0
        v_mov_b32 v{P+6}, 0
        v_mov_b32 v{P+7}, 0
        v_cndmask_b32 v{P}, 0, v{P}, vcc
        v_cndmask_b32 v{P+1}, 0, v{P+1}, vcc
        v_cndmask_b32 v{P+4}, 0, v{P+4}, vcc
        v_cndmask_b32 v{P+5}, 0, v{P+5}, vcc""")
        for n in range(5):
            w = P + 8 + 4 * n
            A(f"v_mov_b32 v{w+1}, v{w}\nv_mov_b32 v{w+2}, 0\nv_mov_b32 v{w+3}, 0")
        A("s_nop 1")
        for n in (4, 3, 2, 1, 0):
            for tt in range(2):
                a = ACC + 16 * (2 * n + tt)
                A(f"v_mfma_f32_32x32x16_bf16 {vr(a,16)}, {vr(P+8+4*n,4)}, {vr(P+4*tt,4)}, {vr(a,16)}")
    else:
        for r in range(248, 256): A(f"v_mov_b32 v{r}, 1.0")
    A(f"""s_lshl_b32 s57, s47, 2
    s_lshl_b32 s58, s12, 1
    s_add_u32 s57, s57, s58
    s_mul_i32 s58, s57, {112*1024}
    s_lshl_b32 s59, s53, 12
    s_add_u32 s58, s58, s59
    s_lshl_b32 s59, s13, 10
    s_add_u32 s58, s58, s59
    s_add_u32 s58, s58, {WS_H}
    v_lshlrev_b32 v2, 4, v1
    v_and_b32 v3, 31, v1
    v_lshlrev_b32 v3, 5, v3
    v_lshrrev_b32 v4, 5, v1
    v_lshlrev_b32 v4, 4, v4
    v_add_u32 v3, v3, v4""")
    A(f"""s_lshl_b32 s59, s54, 2
    s_lshl_b32 s60, s13, 1
    s_add_u32 s59, s59, s60
    s_lshl_b32 s59, s59, 6
    s_add_u32 s59, s59, s57
    s_lshl_b32 s59, s59, 10""")
    T = Q
    def ffn(n, tt):
        a = ACC + 16 * (2 * n + tt); c = 248 + 4 * tt
        for r in range(0, 8, 2):
            A(f"v_pk_mul_f32 {vr(T+r,2)}, {vr(a+r,2)}, {vr(a+r,2)}")
        for r in range(0, 8, 2):
            A(f"v_pk_fma_f32 {vr(T+r,2)}, {vr(T+r,2)}, {vr(c+2,2)}, {vr(c,2)} op_sel:[0,0,1] op_sel_hi:[1,0,1]")
        for r in range(0, 8, 2):
            A(f"v_pk_mul_f32 {vr(T+r,2)}, {vr(T+r,2)}, {vr(a+r,2)}")
        for r in range(8):
            A(f"v_exp_f32 v{T+r}, v{T+r}")
        for r in range(0, 8, 2):
            A(f"v_pk_mul_f32 {vr(a+r,2)}, {vr(a+r,2)}, {vr(a+8+r,2)}")
        for r in range(0, 8, 2):
            A(f"v_pk_fma_f32 {vr(T+r,2)}, {vr(T+r,2)}, {vr(c+2,2)}, {vr(c+2,2)} op_sel:[0,1,1] op_sel_hi:[1,1,1]")
        for r in range(8):
            A(f"v_rcp_f32 v{T+r}, v{T+r}")
        A(f"s_add_u32 s63, s58, {2048*n + tt*112*1024}")
        for r in range(0, 8, 2):
            A(f"v_pk_mul_f32 {vr(a+r,2)}, {vr(a+r,2)}, {vr(T+r,2)}")
        for d in range(4):
            A(f"v_cvt_pk_bf16_f32 v{a+8+d}, v{a+2*d}, v{a+2*d+1}")
        A(f"buffer_store_dwordx4 {vr(a+8,4)}, v2, s[20:23], s63 offen")
    def qkv(n, zoff):
        A(f"""s_add_u32 s60, s54, {zoff}
        s_cmp_lt_u32 s60, 8
        s_mov_b32 s62, {f32(0.25*LOG2E)}
        s_cselect_b32 s62, s62, 1.0
        v_mul_f32 v4, s62, v248
        v_mul_f32 v6, s62, v252""")
        for tt in range(2):
            a = ACC + 16 * (2 * n + tt)
            for r in range(0, 16, 2):
                A(f"v_pk_mul_f32 {vr(a+r,2)}, {vr(a+r,2)}, {vr(4+2*tt,2)} op_sel_hi:[1,0]")
            for d in range(8):
                A(f"v_cvt_pk_bf16_f32 v{a+d}, v{a+2*d}, v{a+2*d+1}")
            A(f"s_add_u32 s63, s59, {zoff*4*65536 + tt*1024}")
            A(f"buffer_store_dwordx4 {vr(a,4)}, v3, s[20:23], s63 offen")
            A(f"s_add_u32 s63, s63, 65536")
            A(f"buffer_store_dwordx4 {vr(a+4,4)}, v3, s[20:23], s63 offen")
    A("s_cmp_eq_u32 s50, 1")
    A("s_cbranch_scc1 K1_TC")
    qkv(4, 0)
    for n in (3, 2):
        for tt in range(2): ffn(n, tt)
    A("s_branch K1_TJ")
    A.label("K1_TC")
    qkv(4, 2); qkv(3, 1); qkv(2, 0)
    A.label("K1_TJ")
    for n in (1, 0):
        for tt in range(2): ffn(n, tt)
    PR.stamp()
    if OPT["prof"]:
        A("s_waitcnt vmcnt(0)")
    PR.stamp(True)
    PR.dump(2)
    A("s_endpgm")
    A.label("K1_HELP")
    PR.n = 2
    vDW = [2, 3, 4, 5, 6]; vDX = [7, 8]
    A("""s_lshl_b32 s57, s47, 17
    s_lshl_b32 s58, s15, 15
    s_add_u32 s8, s4, s57
    s_addc_u32 s9, s5, 0
    s_mov_b32 s10, 0x20000
    s_mov_b32 s11, 0x20000
    v_lshrrev_b32 v16, 3, v1
    v_lshlrev_b32 v16, 10, v16
    v_add_u32 v16, s58, v16
    v_lshrrev_b32 v17, 4, v1
    v_xor_b32 v17, v17, v1
    v_and_b32 v17, 7, v17
    v_lshlrev_b32 v17, 4, v17
    v_add_u32 v7, v16, v17
    v_xor_b32 v8, 64, v7
    s_lshl_b32 s12, s15, 12
    s_lshl_b32 s13, s15, 10""")
    ROT = OPT.get("rot", 0)
    if ROT == 1:
        A("s_lshl_b32 s81, s49, 2\ns_lshl_b32 s57, s45, 1\ns_add_u32 s81, s81, s57")
    elif ROT == 2:
        A("s_lshl_b32 s81, s49, 2\ns_lshl_b32 s57, s45, 2\ns_add_u32 s81, s81, s57")
    elif ROT == 3:
        A("s_add_u32 s81, s49, s45\ns_lshl_b32 s81, s81, 3")
    def dma_x(u):
        o = []
        for jj in range(4):
            if ROT:
                pre = [f"s_add_u32 s59, s81, {2*u}", "s_and_b32 s59, s59, 15", "s_lshl_b32 s59, s59, 6", f"s_add_u32 s59, s59, {jj*8192}"]
            else:
                pre = [f"s_mov_b32 s59, {u*128 + jj*8192}"]
            o.append([f"s_add_u32 m0, s12, {XR + (u%3)*XS + jj*1024}"] + pre +
                      [f"buffer_load_dwordx4 v{vDX[jj&1]}, s[8:11], s59 offen lds"])
        return o
    for g in dma_x(0):
        for i in g: A(i)
    A("""v_bfe_u32 v16, v1, 2, 3
    s_lshl_b32 s57, s15, 3
    v_add_u32 v16, s57, v16
    v_lshrrev_b32 v17, 5, v1
    v_lshlrev_b32 v17, 6, v17
    v_and_b32 v18, 3, v1
    v_lshlrev_b32 v18, 4, v18
    v_add_u32 v17, v17, v18
    s_lshl_b32 s57, s50, 5
    s_xor_b32 s58, s57, 32""")
    swap = {0: None, 1: 57, 2: 58, 3: 58, 4: None}
    for D in range(5):
        S = 24 + 4 * D
        A(f"v_mul_u32_u24 v18, s{60+D}, v16")
        if swap[D]:
            A(f"v_xor_b32 v19, s{swap[D]}, v17")
            A(f"v_add_u32 v{vDW[D]}, v18, v19")
        else:
            A(f"v_add_u32 v{vDW[D]}, v18, v17")
        A(f"s_lshl_b32 s{S+2}, s{60+D}, 9")
        A(f"s_mov_b32 s{S+3}, 0x20000")
    def dma_w(slot, kexpr):
        o = []
        for D in range(5):
            S = 24 + 4 * D
            mul = f"s_mul_i32 s59, s{60+D}, {32*kexpr}" if isinstance(kexpr, int) else f"s_mul_i32 s59, s{60+D}, {kexpr}"
            if ROT and isinstance(kexpr, int):
                if D == 0: o.append([f"s_add_u32 s56, s81, {kexpr}", "s_and_b32 s56, s56, 15", "s_lshl_b32 s56, s56, 5"])
                else: o.append([])
                pre = o.pop()
                mul = f"s_mul_i32 s59, s{60+D}, s56"
                o.append(pre + [f"s_add_u32 m0, s13, {WR + slot*WSL + D*4096}", mul,
                      f"buffer_load_dwordx4 v{vDW[D]}, s[{S}:{S+3}], s59 offen lds"])
                continue
            o.append([f"s_add_u32 m0, s13, {WR + slot*WSL + D*4096}", mul,
                      f"buffer_load_dwordx4 v{vDW[D]}, s[{S}:{S+3}], s59 offen lds"])
        return o
    def emit(groups):
        n = 0
        for g in groups:
            for i in g: A(i)
            n += 1
        return n
    q = []
    q.append(("S0", 4))
    q[-1] = ("S0", 4 + emit(dma_w(wslot(0), 0)))
    if OPT["pf"]:
        pf_setup()
        for i in pf_w(3) + pf_x(2): A(i)
    if ST:
        A("""s_or_b32 s57, s2, s15
        s_cmp_lg_u32 s57, 0
        s_cbranch_scc1 K1_NONONCE
        s_memrealtime s[56:57]
        s_waitcnt lgkmcnt(0)
        s_mul_i32 s56, s56, 0x9e3779b1
        s_or_b32 s56, s56, 1
        v_mov_b32 v16, 0
        v_mov_b32 v17, s56
        buffer_store_dword v17, v16, s[16:19], 0 offen sc1""")
        A.label("K1_NONONCE")
        A("s_lshl_b32 s69, s47, 5")
        if ROT == 2:
            A("s_lshr_b32 s55, s45, 2\ns_lshl_b32 s57, s44, 1\ns_add_u32 s55, s55, s57")
        elif ROT == 1:
            A("s_mov_b32 s55, s44")
        elif ROT == 3:
            A("s_lshr_b32 s55, s45, 1\ns_lshl_b32 s57, s44, 2\ns_add_u32 s55, s55, s57")
        else:
            raise SystemExit("stats need rot")
    def G(k):
        g = []
        if k % 2 == 0: g += dma_x(k // 2)
        g += dma_w(wslot(k), k)
        return g
    q.append(("S1", emit(G(1))))
    q.append(("S2", emit(G(2))))
    if ST:
        A("""s_lshl_b32 s57, s48, 13
        s_lshl_b32 s58, s15, 11
        s_add_u32 s57, s57, s58
        v_lshlrev_b32 v9, 4, v1
        v_mov_b32 v10, 0
        buffer_load_dwordx4 v[32:35], v9, s[8:11], s57 offen
        buffer_load_dwordx4 v[36:39], v9, s[8:11], s57 offen offset:1024
        buffer_load_dword v11, v10, s[16:19], 0 offen sc1""")
        q.append(("ST", 3))
    NDELTA = {1: 2, 2: 4, 3: 8}.get(ROT, 0)
    def wait_for(tag):
        idx = [t for t, _ in q].index(tag)
        rest = sum(c for _, c in q[idx + 1:])
        A(f"s_waitcnt vmcnt({rest})")
        del q[:idx + 1]
    sched = {s: [s + 3] for s in range(13)}
    pfq = []
    for s in range(4, 16):
        if s % 2 == 0 and s // 2 >= 3: pfq.append(pf_x(s // 2))
        pfq.append(pf_w(s))
    def pf_some(nitems):
        if not OPT["pf"]: return
        for _ in range(nitems):
            if pfq:
                for i in pfq.pop(0): A(i)
    pf_some(OPT["pflead"])
    PR.stamp()
    for s in range(17):
        if s < 16: wait_for(f"S{s}")
        if s == 0: PR.stamp()
        A("s_barrier")
        if s == 0: PR.stamp()
        for k in sched.get(s, []):
            q.append((f"S{k}", emit(G(k))))
        if ST and s < NDELTA:
            lb = f"K1_NOCS{s}"
            A(f"s_cmp_eq_u32 s55, {s}\ns_cbranch_scc0 {lb}\ns_mov_b32 s56, {WR + wslot(s)*WSL}\ns_call_b64 s[78:79], K1_COLSTATS")
            A.label(lb)
        if ST and s == max(NDELTA, 4):
            stats_publish(A, q)
        if ST and s == 12:
            gather_issue(A, q)
        if ST and s == 14:
            gather_finish(A, q, EX_TOK, EX_COL)
        pf_some(2)
        if s in (4, 8, 12): PR.stamp()
    PR.stamp(); PR.stamp(); PR.stamp(True)
    PR.dump(2)
    A.label("K1_END")
    A("s_endpgm")
    if ST:
        col_stats(A)
    return 256

def col_stats(A):
    A.label("K1_COLSTATS")
    A(f"""v_lshrrev_b32 v16, 5, v1
    v_lshlrev_b32 v16, 10, v16
    v_bfe_u32 v17, v1, 2, 2
    v_lshlrev_b32 v17, 6, v17
    v_add_u32 v16, v16, v17
    v_and_b32 v17, 3, v1
    v_lshlrev_b32 v17, 3, v17
    v_add_u32 v16, v16, v17
    v_bfe_u32 v17, v1, 4, 1
    v_lshlrev_b32 v17, 5, v17
    s_lshr_b32 s58, s15, 1
    s_lshl_b32 s58, s58, 12
    s_and_b32 s59, s15, 1
    s_lshl_b32 s59, s59, 9
    s_add_u32 s58, s58, s59
    s_add_u32 s58, s58, s56
    v_add3_u32 v16, v16, v17, s58""")
    for j in range(3):
        for t in range(4):
            A(f"ds_read_b64_tr_b16 {vr(48+8*j+2*t,2)}, v16 offset:{j*8192 + (t>>1)*2048 + (t&1)*256}")
    A("s_waitcnt lgkmcnt(0)")
    for j in range(3):
        b = 48 + 8 * j; acc = 44 + j
        for d in range(8):
            A(f"v_lshlrev_b32 v18, 16, v{b+d}\nv_and_b32 v19, 0xffff0000, v{b+d}")
            if d == 0: A(f"v_add_f32 v{acc}, v18, v19")
            else: A(f"v_add_f32 v{acc}, v{acc}, v18\nv_add_f32 v{acc}, v{acc}, v19")
    for j in range(3):
        A(f"v_mov_b32 v{72+2*j}, v{44+j}")
    A("s_nop 1")
    for j in range(3):
        A(f"v_permlane32_swap_b32 v{72+2*j}, v{44+j}")
    A("s_nop 1")
    for j in range(3):
        A(f"v_add_f32 v{72+2*j}, v{72+2*j}, v{44+j}")
    A("s_setpc_b64 s[78:79]")

def stats_publish(A, q):
    for rrow in range(2):
        b = 32 + 4 * rrow; sx = 40 + 2 * rrow; sq = sx + 1
        for d in range(4):
            A(f"v_lshlrev_b32 v18, 16, v{b+d}\nv_and_b32 v19, 0xffff0000, v{b+d}")
            if d == 0:
                A(f"v_add_f32 v{sx}, v18, v19\nv_mul_f32 v{sq}, v18, v18\nv_fmac_f32 v{sq}, v19, v19")
            else:
                A(f"v_add_f32 v{sx}, v{sx}, v18\nv_fmac_f32 v{sq}, v18, v18\nv_add_f32 v{sx}, v{sx}, v19\nv_fmac_f32 v{sq}, v19, v19")
    for dpp in ("quad_perm:[1,0,3,2] row_mask:0xf bank_mask:0xf", "quad_perm:[2,3,0,1] row_mask:0xf bank_mask:0xf",
                "row_half_mirror row_mask:0xf bank_mask:0xf", "row_mirror row_mask:0xf bank_mask:0xf",
                "row_bcast:15 row_mask:0xa bank_mask:0xf", "row_bcast:31 row_mask:0xc bank_mask:0xf"):
        for r in range(40, 44):
            A(f"v_add_f32_dpp v{r}, v{r}, v{r} {dpp}")
    A("""v_readfirstlane_b32 s80, v11
    s_mov_b32 s57, 0
    s_cmp_eq_u32 s80, 0
    s_cbranch_scc0 K1_GOTN""")
    A.label("K1_POLLN2")
    A("""buffer_load_dword v11, v10, s[16:19], 0 offen sc1
    s_add_u32 s57, s57, 1
    s_waitcnt vmcnt(0)
    v_readfirstlane_b32 s80, v11
    s_cmp_gt_u32 s57, 4000
    s_cbranch_scc1 K1_GOTN
    s_cmp_eq_u32 s80, 0
    s_cbranch_scc1 K1_POLLN2""")
    A.label("K1_GOTN")
    A(f"""s_lshl_b32 s57, s48, 4
    s_lshr_b32 s58, s69, 5
    s_add_u32 s57, s57, s58
    s_mul_i32 s57, s57, 2560
    s_lshl_b32 s58, s15, 8
    s_add_u32 s57, s57, s58
    s_add_u32 s57, s57, {WS_CS}
    v_lshlrev_b32 v16, 3, v1
    v_mov_b32 v73, s80
    v_mov_b32 v75, s80
    v_mov_b32 v77, s80
    s_mov_b32 exec_hi, 0
    buffer_store_dwordx2 v[72:73], v16, s[20:23], s57 offen sc1
    buffer_store_dwordx2 v[74:75], v16, s[20:23], s57 offen offset:1024 sc1
    s_cmp_ge_u32 s15, 2
    s_cbranch_scc1 K1_NO3
    buffer_store_dwordx2 v[76:77], v16, s[20:23], s57 offen offset:2048 sc1""")
    A.label("K1_NO3")
    A(f"""s_mov_b32 exec_lo, 0
    s_mov_b32 exec_hi, 0x80000000
    s_lshl_b32 s57, s69, 6
    s_lshl_b32 s58, s48, 7
    s_add_u32 s57, s57, s58
    s_lshl_b32 s58, s15, 5
    s_add_u32 s57, s57, s58
    s_add_u32 s57, s57, {WS_TOK}
    v_mov_b32 v48, v40
    v_mov_b32 v49, v41
    v_mov_b32 v50, s80
    v_mov_b32 v51, s80
    v_mov_b32 v52, v42
    v_mov_b32 v53, v43
    v_mov_b32 v54, s80
    v_mov_b32 v55, s80
    buffer_store_dwordx4 v[48:51], v10, s[20:23], s57 offen sc1
    buffer_store_dwordx4 v[52:55], v10, s[20:23], s57 offen offset:16 sc1
    s_mov_b64 exec, -1""")

def gather_loads(A):
    for ip in range(16):
        A(f"s_add_u32 s59, s57, {ip*2560}")
        A(f"buffer_load_dwordx2 {vr(64+2*ip,2)}, v16, s[20:23], s59 offen sc1")
    for m in range(4):
        A(f"s_add_u32 s59, s57, {m*4*2560}")
        A(f"buffer_load_dwordx2 {vr(96+2*m,2)}, v17, s[20:23], s59 offen sc1")
    A("buffer_load_dwordx4 v[104:107], v18, s[20:23], s58 offen sc1")

def gather_issue(A, q):
    A(f"""s_mul_i32 s57, s48, {16*2560}
    s_add_u32 s57, s57, {WS_CS}
    s_lshl_b32 s58, s15, 9
    v_lshlrev_b32 v16, 3, v1
    v_add_u32 v16, s58, v16
    v_and_b32 v17, 15, v1
    v_lshlrev_b32 v17, 3, v17
    v_lshrrev_b32 v18, 4, v1
    v_mul_u32_u24 v18, 2560, v18
    s_lshl_b32 s58, s15, 7
    s_add_u32 s58, s58, 2048
    v_add3_u32 v17, v17, v18, s58
    v_and_b32 v18, 31, v1
    v_lshlrev_b32 v18, 4, v18
    s_lshl_b32 s58, s69, 6
    s_lshl_b32 s59, s15, 9
    s_add_u32 s58, s58, s59
    s_add_u32 s58, s58, {WS_TOK}
    s_mov_b32 s56, 0""")
    gather_loads(A)
    q.append(("GA", 21))

def gather_finish(A, q, EX_TOK, EX_COL):
    A.label("K1_GCHK")
    A("s_waitcnt vmcnt(0)")
    for i in range(len(q)): q[i] = (q[i][0], 0)
    A("v_xor_b32 v19, s80, v65")
    for r in list(range(67, 104, 2)) + [106]:
        A(f"v_xor_b32 v20, s80, v{r}\nv_or_b32 v19, v19, v20")
    A("""v_cmp_eq_u32 vcc, 0, v19
    s_add_u32 s56, s56, 1
    s_cmp_gt_u32 s56, 2000
    s_cbranch_scc1 K1_GOK
    s_cmp_eq_u64 vcc, -1
    s_cbranch_scc1 K1_GOK
    s_sleep 4""")
    gather_loads(A)
    A("s_branch K1_GCHK")
    A.label("K1_GOK")
    st = 2
    while st <= 16:
        for r in range(64, 96, 2 * st):
            A(f"v_add_f32 v{r}, v{r}, v{r+st}")
        st *= 2
    A("v_add_f32 v96, v96, v98\nv_add_f32 v100, v100, v102\nv_add_f32 v96, v96, v100")
    A("""v_mov_b32 v97, v96
    s_nop 1
    v_permlane32_swap_b32 v97, v96
    s_nop 1
    v_add_f32 v96, v96, v97
    v_mov_b32 v97, v96
    s_nop 1
    v_permlane16_swap_b32 v97, v96
    s_nop 1
    v_add_f32 v96, v96, v97""")
    for r in (64, 96):
        A(f"""v_cvt_pk_bf16_f32 v{r+1}, v{r}, v{r}
        v_and_b32 v{r+1}, 0xffff0000, v{r+1}
        v_sub_f32 v{r}, v{r}, v{r+1}
        v_cvt_pk_bf16_f32 v{r}, v{r+1}, v{r}""")
    A(f"""v_lshrrev_b32 v16, 1, v16
    v_add_u32 v16, {EX_COL}, v16
    ds_write_b32 v16, v64
    v_and_b32 v17, 15, v1
    v_lshlrev_b32 v17, 2, v17
    s_lshl_b32 s58, s15, 6
    s_add_u32 s58, s58, {EX_COL + 1024}
    v_add_u32 v17, s58, v17
    ds_write_b32 v17, v96""")
    c1 = -2.0 * math.sqrt(2.0 / math.pi) * LOG2E
    c3 = c1 * 0.044715
    A(f"""v_mul_f32 v104, {f32(-1/512)}, v104
    v_mul_f32 v105, {f32(1/512)}, v105
    v_fma_f32 v105, -v104, v104, v105
    v_max_f32 v105, 0, v105
    v_add_f32 v113, {f32(1e-5)}, v105
    v_rsq_f32 v110, v113
    v_cvt_pk_bf16_f32 v108, v104, v104
    v_and_b32 v106, 0xffff0000, v108
    v_sub_f32 v106, v104, v106
    v_cvt_pk_bf16_f32 v109, v106, v106
    v_mul_f32 v111, {f32(c1)}, v110
    v_mul_f32 v112, v110, v110
    v_mul_f32 v112, v112, v110
    v_mul_f32 v112, {f32(c3)}, v112
    v_lshlrev_b32 v18, 1, v18
    s_lshl_b32 s58, s15, 10
    s_add_u32 s58, s58, {EX_TOK}
    v_add_u32 v18, s58, v18
    ds_write_b128 v18, v[108:111]
    ds_write_b64 v18, v[112:113] offset:16
    s_waitcnt lgkmcnt(0)""")

import gen_k23
A = Asm()
A.raw("""; recurrent_scan__sliding_block__geglu_ffn__prompt : generated by dev/gen2.py
; @launch kernel=k1_kernel grid=(256,1,1) block=(512,1,1) lds=163840
; @launch kernel=k2_kernel grid=(256,1,1) block=(512,1,1) lds=34816
; @launch kernel=k3_kernel grid=(256,1,1) block=(256,1,1) lds=131072
.amdgcn_target "amdgcn-amd-amdhsa--gfx950"
.text""")
gen_k23.OPT = OPT; gen_k23.Prof = Prof
n1 = gen_k1(A); n2 = gen_k23.gen_k2(A); n3 = gen_k23.gen_k3(A)
A.raw('.section .rodata,"a"')
A.raw(kernel_desc("k1_kernel", n1)); A.raw(kernel_desc("k2_kernel", n2)); A.raw(kernel_desc("k3_kernel", n3))
print(A.text())
```

```python
import math
from asmlib import *
WS_Q = 0; WS_K = 2 << 20; WS_V = 4 << 20; WS_O = 6 << 20; WS_H = 8 << 20
WS_FO = (17 << 20)
LOG2E = 1.4426950408889634
OPT = {}
Prof = None
DRING = 28672; LV = 114688; LONE = 155648

def gen_attn(A, slow, tag, PR, sc, setup=True):
    vL, vLin, vVw, vVr, vStep, vM = 2, 3, 4, 5, 6, [7, 8]
    Qr, Kr, MD, MF, C, S, P, VF, O = 12, 20, 60, 76, [92, 108], 124, 188, 204, [220, 236]
    VST = 188
    jobs = []
    for b in range(10):
        if b <= 8: jobs.append((0, b))
        if b >= 1: jobs.append((1, b))
    def kind(j):
        qb, b = jobs[j]
        if b == qb: return "F"
        if b == 8 + qb: return "D"
        return "N"
    A(f"""s_lshl_b32 s52, s50, 16
    s_lshl_b32 s53, s51, 11
    s_add_u32 s54, s52, s53
    buffer_load_dwordx4 {vr(Qr,4)}, v{vLin}, s[20:23], s54 offen {sc}
    buffer_load_dwordx4 {vr(Qr+4,4)}, v{vLin}, s[20:23], s54 offen offset:1024 {sc}
    s_sub_u32 s53, s53, 8192""")
    def boff(b, base):
        if slow:
            A(f"s_add_i32 s55, s53, {b*1024}\ns_max_i32 s55, s55, 0\ns_add_u32 s55, s55, s52\ns_add_u32 s55, s55, {base}")
            return "s55", 0
        if b % 4 == 0:
            A(f"s_add_u32 s55, s54, {base + b*1024 - 8192}")
        return "s55", (b % 4) * 1024
    for b in range(10):
        so, im = boff(b, WS_K)
        A(f"buffer_load_dwordx4 {vr(Kr+4*b,4)}, v{vLin}, s[20:23], {so} offen offset:{im} {sc}")
    for b in range(10):
        so, im = boff(b, WS_V)
        A(f"buffer_load_dwordx4 {vr(VST+4*b,4)}, v{vLin}, s[20:23], {so} offen offset:{im} {sc}")
    if setup: attn_setup2(A)
    if slow:
        A("s_lshl_b32 s56, s51, 1\ns_sub_u32 s56, 8, s56")
        for r in range(16): A(f"v_mov_b32 v{C[0]+r}, {f32(-1e30)}")
    A(f"v_mov_b32 v{vM[0]}, {f32(-3e38)}\nv_mov_b32 v{vM[1]}, {f32(-3e38)}")
    uid = [0]
    def qk(j, dst, cvalid, cneg):
        qb, b = jobs[j]
        ins = lambda c: f"v_mfma_f32_32x32x16_bf16 {vr(dst,16)}, {vr(Kr+4*b,4)}, {vr(Qr+4*qb,4)}, {c}"
        if slow and b < 8:
            uid[0] += 1
            l1, l2 = f"{tag}_i{uid[0]}", f"{tag}_j{uid[0]}"
            A(f"s_cmp_gt_u32 s56, {b}\ns_cbranch_scc1 {l1}")
            A(ins(cvalid)); A(f"s_branch {l2}")
            A.label(l1); A(ins(vr(cneg, 16))); A.label(l2)
        else:
            A(ins(cvalid))
    NJ = len(jobs)
    seenb = -1
    vw_done = 0
    for j in range(NJ + 3):
        if j < NJ:
            qb, b = jobs[j]
            if b > seenb:
                A(f"s_waitcnt vmcnt({19 - b})"); seenb = b
            k = kind(j)
            qk(j, S + 16 * (j % 4), {"N": "0", "F": vr(MF, 16), "D": vr(MD, 16)}[k], C[0])
        else:
            A("s_nop 3")
        if j == 3: A("s_nop 7")
        if j >= 3:
            jj = j - 3; qb = jobs[jj][0]; s = S + 16 * (jj % 4)
            for r in range(0, 16, 2):
                A(f"v_max3_f32 v{vM[qb]}, v{vM[qb]}, v{s+r}, v{s+r+1}")
    PR.stamp()
    for b in range(10):
        A(f"s_waitcnt vmcnt({9-b})")
        A(f"ds_write_b128 v{vVw}, {vr(VST+4*b,4)} offset:{b*1024}")
    A(f"v_mov_b32 v9, v{vM[0]}\nv_mov_b32 v10, v{vM[1]}\ns_nop 1")
    A(f"v_permlane32_swap_b32 v9, v{vM[0]}\nv_permlane32_swap_b32 v10, v{vM[1]}\ns_nop 1")
    A(f"v_max_f32 v{vM[0]}, v{vM[0]}, v9\nv_max_f32 v{vM[1]}, v{vM[1]}, v10")
    NEG = S + 48
    def rdv(b):
        d = VF + 8 * (b & 1)
        for q in range(4):
            A(f"ds_read_b64_tr_b16 {vr(d+2*q,2)}, v{vVr} offset:{256*q}")
        A(f"v_add_u32 v{vVr}, v{vStep}, v{vVr}")
    def pre(j):
        k = kind(j)
        if k != "N":
            qb = jobs[j][0]; s = S + 16 * (j % 3); m = MF if k == "F" else MD
            for r in range(16): A(f"v_sub_f32 v{s+r}, v{m+r}, v{vM[qb]}")
    def qk2(j):
        qb = jobs[j][0]; s = S + 16 * (j % 3)
        qk(j, s, vr(C[qb], 16) if kind(j) == "N" else vr(s, 16), NEG)
    pre(0)
    A("s_waitcnt lgkmcnt(0)")
    rdv(0)
    if slow:
        for r in range(16): A(f"v_mov_b32 v{NEG+r}, {f32(-1e30)}")
    qk2(0)
    for qb in range(2):
        for r in range(16): A(f"v_sub_f32 v{C[qb]+r}, 0, v{vM[qb]}")
    first = [True, True]
    lastrd = 0
    def pv(j, half):
        qb, b = jobs[j]
        c = "0" if (first[qb] and half == 0) else vr(O[qb], 16)
        A(f"v_mfma_f32_32x32x16_bf16 {vr(O[qb],16)}, {vr(VF+8*(b&1)+4*half,4)}, {vr(P+8*(j&1)+4*half,4)}, {c}")
        if half == 1: first[qb] = False
    for j in range(NJ):
        s = S + 16 * (j % 3)
        if j + 1 < NJ:
            pre(j + 1)
            if kind(j + 1) != "N": A("s_nop 0")
            qk2(j + 1)
        for r in range(6): A(f"v_exp_f32 v{s+r}, v{s+r}")
        if j >= 1:
            if jobs[j-1][1] != (jobs[j-2][1] if j >= 2 else -1): A("s_waitcnt lgkmcnt(0)")
            pv(j - 1, 0)
        for r in range(6, 12): A(f"v_exp_f32 v{s+r}, v{s+r}")
        if j >= 1: pv(j - 1, 1)
        bneed = jobs[j][1] + 1 if False else None
        for r in range(12, 16): A(f"v_exp_f32 v{s+r}, v{s+r}")
        if j + 1 < NJ:
            nb = jobs[j + 1][1]
            if nb > lastrd:
                users = [x for x in range(NJ) if jobs[x][1] == nb - 2]
                assert all(x <= j - 1 for x in users), (j, nb, users)
                rdv(nb); lastrd = nb
        for d in range(8):
            A(f"v_cvt_pk_bf16_f32 v{P+8*(j&1)+d}, v{s+2*d}, v{s+2*d+1}")
    A("s_waitcnt lgkmcnt(0)")
    A("s_nop 0")
    pv(NJ - 1, 0); pv(NJ - 1, 1)
    A(f"""s_lshl_b32 s52, s51, 16
    s_lshl_b32 s53, s50, 10
    s_add_u32 s52, s52, s53
    s_add_u32 s52, s52, {WS_O}
    s_add_u32 s53, s52, 32768""")
    for qb in range(2):
        o = O[qb]
        if qb == 1: A("s_nop 3")
        A(f"v_rcp_f32 v9, v{o+8}")
        A("s_nop 0")
        for r in range(8): A(f"v_mul_f32 v{o+r}, v{o+r}, v9")
        for d in range(4): A(f"v_cvt_pk_bf16_f32 v{o+8+d}, v{o+2*d}, v{o+2*d+1}")
        A(f"buffer_store_dwordx4 {vr(o+8,4)}, v{vLin}, s[20:23], s{52+qb} offen sc1")

def attn_setup(A):
    vL, vLin, vVw, vVr, vStep = 2, 3, 4, 5, 6
    MD, MF = 60, 76
    A(f"""v_and_b32 v9, 31, v1
    v_lshlrev_b32 v{vL}, 5, v9
    v_lshrrev_b32 v10, 5, v1
    v_lshlrev_b32 v11, 4, v10
    v_add_u32 v{vL}, v{vL}, v11
    v_lshlrev_b32 v{vLin}, 4, v1""")

def attn_setup2(A, wreg=14):
    vL, vLin, vVw, vVr, vStep = 2, 3, 4, 5, 6
    MD, MF = 60, 76
    if wreg is not None: A(f"s_mul_i32 s57, s{wreg}, 10240\ns_add_u32 s57, s57, {LV}")
    A(f"""v_add_u32 v{vVw}, s57, v{vL}
    v_mov_b32 v124, 0x3f803f80
    v_mov_b32 v125, 0x3f803f80
    v_mov_b32 v126, 0x3f803f80
    v_mov_b32 v127, 0x3f803f80
    v_add_u32 v11, {LONE}, v{vLin}
    ds_write_b128 v11, v[124:127]
    v_and_b32 v9, 31, v1
    v_lshrrev_b32 v10, 5, v1
    v_lshlrev_b32 v11, 2, v10
    v_sub_u32 v9, v9, v11
    v_mov_b32 v11, {f32(-1e30)}""")
    for rr in range(16):
        kc = 8 * (rr >> 2) + (rr & 3)
        sp = 60 + 2 * (rr & 1)
        A(f"v_cmp_le_i32 s[{sp}:{sp+1}], {kc}, v9")
        if rr >= 1:
            p = rr - 1; spp = 60 + 2 * (p & 1)
            A("s_nop 0")
            A(f"v_cndmask_b32 v{MD+p}, v11, 0, s[{spp}:{spp+1}]")
            A(f"v_cndmask_b32 v{MF+p}, 0, v11, s[{spp}:{spp+1}]")
    A(f"v_cndmask_b32 v{MD+15}, v11, 0, s[62:63]")
    A(f"v_cndmask_b32 v{MF+15}, 0, v11, s[62:63]")
    A(f"""v_lshlrev_b32 v10, 7, v10
    v_bfe_u32 v9, v1, 2, 2
    v_lshlrev_b32 v9, 5, v9
    v_add_u32 v10, v10, v9
    v_and_b32 v9, 1, v1
    v_lshlrev_b32 v9, 4, v9
    v_add_u32 v10, v10, v9
    v_bfe_u32 v9, v1, 1, 1
    v_lshlrev_b32 v9, 3, v9
    v_add_u32 v10, v10, v9
    v_add_u32 v9, s57, v10
    v_xor_b32 v10, 128, v10
    v_add_u32 v10, {LONE}, v10
    v_and_b32 v11, 16, v1
    v_cmp_eq_u32 vcc, 0, v11
    v_mov_b32 v11, 1024
    s_nop 0
    v_cndmask_b32 v{vVr}, v10, v9, vcc
    v_cndmask_b32 v{vStep}, 0, v11, vcc""")

def gen_d(A, PR, sc, get_nonce):
    vDW, vLin, vWa = 2, 3, [4, 5]
    XR, BF, WF, AD, AS = 8, 16, 80, 96, 160
    WD, BD, NS = 14, 8, 36
    A(f"""v_bfe_u32 v6, v1, 2, 3
    v_lshlrev_b32 v6, 10, v6
    v_lshrrev_b32 v7, 5, v1
    v_lshlrev_b32 v7, 6, v7
    v_add_u32 v6, v6, v7
    v_and_b32 v7, 3, v1
    v_lshlrev_b32 v7, 4, v7
    v_add_u32 v{vDW}, v6, v7
    v_lshlrev_b32 v{vLin}, 4, v1
    s_mul_i32 s13, s15, {DRING}
    s_mul_i32 s40, s15, {28*16*1024}
    s_lshl_b32 s57, s51, 7
    s_add_u32 s40, s40, s57
    s_lshl_b32 s42, s15, 17
    s_add_u32 s42, s42, s57""")
    ROT = OPT.get("rotd", 0)
    if ROT:
        A("""s_and_b32 s57, s50, 3
        s_mul_i32 s57, s57, 7
        s_mul_i32 s58, s51, 7
        s_lshr_b32 s58, s58, 1
        s_add_u32 s57, s57, s58
        s_sub_u32 s58, s57, 28
        s_cmp_ge_u32 s57, 28
        s_cselect_b32 s46, s58, s57
        s_mov_b32 s47, s46""")
    q = []
    def adv(reg):
        return [f"s_add_u32 s{reg}, s{reg}, 1", f"s_cmp_eq_u32 s{reg}, 28", f"s_cselect_b32 s{reg}, 0, s{reg}"]
    def issw(s):
        slot = s % WD
        o = []
        if s < 28:
            srd = 24
            if ROT: o += ["s_lshl_b32 s44, s46, 14", "s_add_u32 s44, s44, s40"] + adv(46)
            else: o += [f"s_add_u32 s44, s40, {s*16384}"]
        else:
            srd = 28
            o += [f"s_add_u32 s44, s42, {(s-28)*16384}"]
        a = o + [f"s_add_u32 m0, s13, {slot*2048}", "s_add_u32 s45, s44, 8192",
                 f"buffer_load_dwordx4 v{vDW}, s[{srd}:{srd+3}], s44 offen lds"]
        b = [f"s_add_u32 m0, s13, {slot*2048+1024}", "s_nop 0",
             f"buffer_load_dwordx4 v{vDW}, s[{srd}:{srd+3}], s45 offen lds"]
        q.append((f"W{s}", 2))
        return [a, b]
    def issb(s):
        r = BF + 8 * (s % BD)
        if s < 28:
            if ROT: o = ["s_lshl_b32 s48, s47, 10", "s_add_u32 s49, s48, s52", "s_add_u32 s48, s48, s41"] + adv(47)
            else: o = [f"s_add_u32 s48, s41, {s*1024}", f"s_add_u32 s49, s52, {s*1024}"]
            c = sc
        else:
            o = [f"s_add_u32 s48, s43, {(s-28)*1024}", f"s_add_u32 s49, s53, {(s-28)*1024}"]
            c = "sc1"
        q.append((f"B{s}", 2))
        return [o + [f"buffer_load_dwordx4 {vr(r,4)}, v{vLin}, s[20:23], s48 offen {c}"],
                [f"buffer_load_dwordx4 {vr(r+4,4)}, v{vLin}, s[20:23], s49 offen {c}"]]
    def em(gs):
        for g in gs:
            for i in g: A(i)
    def wait(tags):
        idx = max([i for i, (t, _) in enumerate(q) if t in tags], default=-1)
        if idx < 0: return
        rest = sum(c for _, c in q[idx + 1:])
        A(f"s_waitcnt vmcnt({rest})")
        del q[:idx + 1]
    A(f"""s_lshl_b32 s57, s50, 1
    s_and_b32 s58, s15, 1
    s_add_u32 s59, s57, s58
    s_xor_b32 s58, s58, 1
    s_add_u32 s57, s57, s58
    s_mul_i32 s58, s15, {28*1024}
    s_add_u32 s58, s58, {WS_H}
    s_mul_i32 s41, s59, {112*1024}
    s_add_u32 s41, s41, s58
    s_mul_i32 s52, s57, {112*1024}
    s_add_u32 s52, s52, s58
    s_lshl_b32 s58, s15, 13
    s_add_u32 s58, s58, {WS_O}
    s_lshl_b32 s43, s59, 15
    s_add_u32 s43, s43, s58
    s_lshl_b32 s53, s57, 15
    s_add_u32 s53, s53, s58""")
    for s in range(3):
        em(issw(s)); em(issb(s))
    A(f"""v_and_b32 v6, 31, v1
    v_lshlrev_b32 v6, 10, v6
    v_lshrrev_b32 v7, 5, v1
    v_lshlrev_b32 v7, 4, v7
    v_add_u32 v224, v6, v7
    s_lshl_b32 s54, s59, 15
    s_lshl_b32 s57, s51, 7
    s_add_u32 s54, s54, s57
    s_lshr_b32 s57, s15, 1
    s_lshl_b32 s57, s57, 6
    s_add_u32 s54, s54, s57""")
    A(f"""v_lshrrev_b32 v6, 5, v1
    v_lshlrev_b32 v6, 8, v6
    v_bfe_u32 v7, v1, 2, 2
    v_lshlrev_b32 v7, 6, v7
    v_add_u32 v6, v6, v7
    v_and_b32 v7, 3, v1
    v_lshlrev_b32 v7, 3, v7
    v_add_u32 v6, v6, v7
    v_bfe_u32 v7, v1, 4, 1
    v_lshlrev_b32 v7, 5, v7
    v_add_u32 v6, v6, v7
    s_lshl_b32 s57, s57, 3
    v_add_u32 v6, s57, v6
    v_xor_b32 v7, 512, v6
    v_add_u32 v{vWa[0]}, s13, v6
    v_add_u32 v{vWa[1]}, s13, v7""")
    for s in range(3, BD - 1):
        em(issw(s)); em(issb(s))
    for s in range(BD - 1, WD - 1):
        em(issw(s))
    A(f"buffer_load_dwordx4 {vr(XR,4)}, v224, s[32:35], s54 offen")
    A(f"buffer_load_dwordx4 {vr(XR+4,4)}, v224, s[32:35], s54 offen offset:32")
    q.append(("X", 2))
    get_nonce(A, q, 0)
    def rdw(s):
        slot = s % WD; w = WF + 8 * (s & 1)
        return [f"ds_read_b64_tr_b16 {vr(w+4*u+2*sec,2)}, v{vWa[u]} offset:{slot*2048+sec*1024}" for u in range(2) for sec in range(2)]
    PR.stamp()
    wait(["W0", "B0"])
    PR.stamp()
    for i in rdw(0): A(i)
    for s in range(NS):
        w = WF + 8 * (s & 1); b = BF + 8 * (s % BD)
        acc = AD if s < 28 else AS
        if s in (8, 16, 28): PR.stamp()
        if s + 1 < NS:
            wait([f"W{s+1}", f"B{s+1}"])
            for i in rdw(s + 1): A(i)
            A("s_waitcnt lgkmcnt(4)")
        else:
            A("s_waitcnt lgkmcnt(0)")
        if s == 10:
            get_nonce(A, q, 1)
        if s == 18:
            A(f"""s_lshl_b32 s55, s50, 7
            s_add_u32 s55, s55, {WS_FO}
            v_and_b32 v6, 31, v1
            v_lshlrev_b32 v6, 2, v6
            buffer_load_dword v7, v6, s[20:23], s55 offen sc1""")
            q.append(("PO", 1))
        if s == 28 - BD + 1:
            wait(["PO"])
            A("""v_cmp_eq_u32 vcc, s80, v7
            s_mov_b32 s56, 0
            s_cmp_eq_u64 vcc, -1
            s_cbranch_scc1 D_OK""")
            A.label("D_POLL")
            A("""s_sleep 2
            buffer_load_dword v7, v6, s[20:23], s55 offen sc1
            s_add_u32 s56, s56, 1
            s_waitcnt vmcnt(0)
            v_cmp_eq_u32 vcc, s80, v7
            s_cmp_gt_u32 s56, 20000
            s_cbranch_scc1 D_OK
            s_cmp_eq_u64 vcc, -1
            s_cbranch_scc0 D_POLL""")
            A.label("D_OK")
        grp = []
        if s + BD - 1 < NS: grp += issb(s + BD - 1)
        if s + WD - 1 < NS: grp += issw(s + WD - 1)
        grp += [[]] * (4 - len(grp))
        for a in range(4):
            u, tt = a >> 1, a & 1
            r = acc + 16 * a
            c = "0" if s in (0, 28) else vr(r, 16)
            A(f"v_mfma_f32_32x32x16_bf16 {vr(r,16)}, {vr(w+4*u,4)}, {vr(b+4*tt,4)}, {c}")
            for i in grp[a]: A(i)
    PR.stamp()
    A(f"v_add_u32 v6, s13, v{vLin}")
    for a in range(1, 4):
        for qd in range(4):
            A(f"ds_write_b128 v6, {vr(AD+16*a+4*qd,4)} offset:{(a-1)*8192 + qd*1024}")
    for a in range(1, 4):
        for qd in range(4):
            A(f"ds_write_b128 v6, {vr(AS+16*a+4*qd,4)} offset:{(a-1)*8192 + 4096 + qd*1024}")
    for a in range(1, 4):
        A(f"s_xor_b32 s57, s15, {a}\ns_mul_i32 s57, s57, {DRING}\nv_add_u32 v{225+a}, s57, v{vLin}")
    A("s_waitcnt lgkmcnt(0)")
    A("s_barrier")
    PR.stamp()
    for which, acc in ((0, AD), (1, AS)):
        for a in range(1, 4):
            for qd in range(4):
                A(f"ds_read_b128 {vr(acc+16*a+4*qd,4)}, v{225+a} offset:{(a-1)*8192 + which*4096 + qd*1024}")
    for j in range(2):
        A(f"v_permlane32_swap_b32 v{XR+4*j}, v{XR+4*j+2}")
        A(f"v_permlane32_swap_b32 v{XR+4*j+1}, v{XR+4*j+3}")
    T = 16
    for d in range(8):
        A(f"v_lshlrev_b32 v{T+32+2*d}, 16, v{XR+d}\nv_and_b32 v{T+33+2*d}, 0xffff0000, v{XR+d}")
    A("s_waitcnt lgkmcnt(12)")
    for r in range(0, 16, 2):
        A(f"v_pk_add_f32 {vr(AD+r,2)}, {vr(AD+r,2)}, {vr(AD+16+r,2)}")
        A(f"v_pk_add_f32 {vr(AD+32+r,2)}, {vr(AD+32+r,2)}, {vr(AD+48+r,2)}")
    for r in range(0, 16, 2):
        A(f"v_pk_add_f32 {vr(AD+r,2)}, {vr(AD+r,2)}, {vr(AD+32+r,2)}")
    for r in range(16): A(f"v_mul_f32 v{T+r}, {f32(-LOG2E)}, v{AD+r}")
    for r in range(16): A(f"v_exp_f32 v{T+r}, v{T+r}")
    A("s_waitcnt lgkmcnt(0)")
    for r in range(0, 16, 2):
        A(f"v_pk_add_f32 {vr(AS+r,2)}, {vr(AS+r,2)}, {vr(AS+16+r,2)}")
        A(f"v_pk_add_f32 {vr(AS+32+r,2)}, {vr(AS+32+r,2)}, {vr(AS+48+r,2)}")
    for r in range(0, 16, 2):
        A(f"v_pk_add_f32 {vr(AS+r,2)}, {vr(AS+r,2)}, {vr(AS+32+r,2)}")
    for r in range(16): A(f"v_add_f32 v{T+r}, 1.0, v{T+r}")
    for r in range(16): A(f"v_rcp_f32 v{T+r}, v{T+r}")
    for r in range(0, 16, 2):
        A(f"v_pk_mul_f32 {vr(AD+r,2)}, {vr(AD+r,2)}, {vr(AS+r,2)}")
    for r in range(0, 16, 2):
        A(f"v_pk_fma_f32 {vr(AD+r,2)}, {vr(AD+r,2)}, {vr(T+r,2)}, {vr(T+32+r,2)}")
    for d in range(8):
        A(f"v_cvt_pk_bf16_f32 v{XR+d}, v{AD+2*d}, v{AD+2*d+1}")
    A("s_nop 1")
    for j in range(2):
        A(f"v_permlane32_swap_b32 v{XR+4*j}, v{XR+4*j+2}")
        A(f"v_permlane32_swap_b32 v{XR+4*j+1}, v{XR+4*j+3}")
    A(f"buffer_store_dwordx4 {vr(XR,4)}, v224, s[36:39], s54 offen")
    A(f"buffer_store_dwordx4 {vr(XR+4,4)}, v224, s[36:39], s54 offen offset:32")

def gen_k23(A):
    kernel_header(A, "k2_kernel")
    A("""s_cmp_ge_u32 s2, 256
    s_cbranch_scc1 K2_END
    s_load_dwordx2 s[4:5], s[0:1], 0
    s_load_dwordx2 s[6:7], s[0:1], 16
    s_load_dwordx4 s[8:11], s[0:1], 48
    s_load_dwordx4 s[16:19], s[0:1], 64
    v_and_b32 v1, 63, v0
    v_lshrrev_b32 v2, 6, v0
    s_and_b32 s57, s2, 7
    v_readfirstlane_b32 s14, v2
    s_lshr_b32 s58, s2, 3
    s_and_b32 s58, s58, 3
    s_lshr_b32 s59, s2, 5
    s_and_b32 s15, s14, 3
    s_waitcnt lgkmcnt(0)
    s_mov_b32 s20, s18
    s_mov_b32 s21, s19
    s_mov_b32 s22, 0x10000000
    s_mov_b32 s23, 0x20000
    s_mov_b32 s18, 256
    s_mov_b32 s19, 0x20000""")
    PR = Prof(A, 1, 82); PR.stamp(True); PR.stamp()
    A("s_cmp_ge_u32 s14, 4")
    A("s_cbranch_scc1 K2_D")
    A("""s_lshl_b32 s50, s58, 3
    s_add_u32 s50, s50, s57
    s_lshl_b32 s51, s59, 2
    s_add_u32 s51, s51, s14""")
    attn_setup(A)
    A("""s_or_b32 s57, s2, s14
    s_cmp_lg_u32 s57, 0
    s_cbranch_scc1 K2_NONONCE
    s_memrealtime s[56:57]
    s_waitcnt lgkmcnt(0)
    s_mul_i32 s56, s56, 0x9e3779b1
    s_or_b32 s56, s56, 1
    v_mov_b32 v9, 0
    v_mov_b32 v10, s56
    buffer_store_dword v10, v9, s[16:19], 0 offen sc1
    s_waitcnt vmcnt(0)""")
    A.label("K2_NONONCE")
    A("s_cmp_lt_u32 s51, 4")
    A("s_cbranch_scc1 K2_SLOW")
    n0 = PR.n
    gen_attn(A, False, "AF", PR, "")
    A("s_branch K2_AFIN")
    A.label("K2_SLOW")
    PR.n = n0
    gen_attn(A, True, "AS", PR, "")
    A.label("K2_AFIN")
    PR.stamp()
    A("v_mov_b32 v9, 0\ns_mov_b32 s57, 0")
    A.label("K2_AN")
    A("""buffer_load_dword v10, v9, s[16:19], 0 offen sc1
    s_add_u32 s57, s57, 1
    s_waitcnt vmcnt(0)
    v_readfirstlane_b32 s80, v10
    s_cmp_gt_u32 s57, 4000
    s_cbranch_scc1 K2_AN2
    s_cmp_eq_u32 s80, 0
    s_cbranch_scc1 K2_AN""")
    A.label("K2_AN2")
    A(f"""s_lshl_b32 s57, s51, 7
    s_lshl_b32 s58, s50, 2
    s_add_u32 s57, s57, s58
    s_add_u32 s57, s57, {WS_FO}
    s_mov_b64 exec, 1
    buffer_store_dword v10, v9, s[20:23], s57 offen sc1
    s_mov_b64 exec, -1""")
    PR.stamp()
    while PR.n < 10 and OPT["prof"]: PR.stamp()
    PR.stamp(True); PR.dump(2)
    A("s_endpgm")
    A.label("K2_D")
    PR.n = 2
    A("""s_lshl_b32 s50, s57, 2
    s_add_u32 s50, s50, s58
    s_mov_b32 s51, s59
    s_mov_b32 s24, s8
    s_mov_b32 s25, s9
    s_mov_b32 s26, 0x1c0000
    s_mov_b32 s27, 0x20000
    s_mov_b32 s28, s6
    s_mov_b32 s29, s7
    s_mov_b32 s30, 0x80000
    s_mov_b32 s31, 0x20000
    s_mov_b32 s32, s4
    s_mov_b32 s33, s5
    s_mov_b32 s34, 0x200000
    s_mov_b32 s35, 0x20000
    s_mov_b32 s36, s10
    s_mov_b32 s37, s11
    s_mov_b32 s38, 0x200000
    s_mov_b32 s39, 0x20000""")
    def get_nonce(A, q, phase):
        if phase == 0:
            A("v_mov_b32 v230, 0\nbuffer_load_dword v231, v230, s[16:19], 0 offen sc1")
            q.append(("N", 1))
        else:
            assert "N" not in [t for t, _ in q]
            A("""v_readfirstlane_b32 s80, v231
            s_mov_b32 s56, 0
            s_cmp_eq_u32 s80, 0
            s_cbranch_scc0 D_GN""")
            A.label("D_PN")
            A("""buffer_load_dword v231, v230, s[16:19], 0 offen sc1
            s_add_u32 s56, s56, 1
            s_waitcnt vmcnt(0)
            v_readfirstlane_b32 s80, v231
            s_cmp_gt_u32 s56, 4000
            s_cbranch_scc1 D_GN
            s_cmp_eq_u32 s80, 0
            s_cbranch_scc1 D_PN""")
            A.label("D_GN")
    gen_d(A, PR, "", get_nonce)
    PR.stamp(); PR.stamp(True); PR.dump(2)
    A.label("K2_END")
    A("s_endpgm")
    return 256
```

```python
import sys, math
from asmlib import *

NAME = "recurrent_scan__sliding_block__geglu_ffn__prompt_kernel"
WS_Q = 0; WS_K = 2 << 20; WS_V = 4 << 20; WS_O = 6 << 20; WS_H = 8 << 20
WS_TOK = 16 << 20
WS_CS = (16 << 20) + 65536
WS_FO = 17 << 20
WS_FH = (17 << 20) + (1 << 18)
WS_FQ = (17 << 20) + (2 << 18)
LOG2E = 1.4426950408889634
OPT = dict(prof=0, rot=2, codepf=1, wd=14, sleep=8, warm=5, thr=6, aprio=3, l2pf=0, rotd=1, hs=16, dprio=0)
for a in sys.argv[1:]:
    k, v = a.split("="); OPT[k] = int(v)
XR = 0; XS = 16384; WR = 49152; WSL = 20480; EX = 151552
EX_TOK = EX; EX_COL = EX + 4096
DREG = [32768, 40960, 69632, 77824,   86016, 94208, 102400,   110592, 118784, 0, 8192,   126976, 135168, 143360]
DAVAIL = {13: 4, 14: 3, 15: 4, 16: 3}
LONE = 26624
SPIN = 20000

class Prof:
    def __init__(self, A, base=82): self.A = A; self.n = 0; self.base = base
    def stamp(self, real=False):
        if not OPT["prof"]: return
        i = self.n; self.n += 1
        assert i < 16
        self.A(f"{'s_memrealtime' if real else 's_memtime'} s[100:101]")
        self.A("s_waitcnt lgkmcnt(0)")
        self.A(f"s_mov_b32 s{self.base+i}, s100")
    def dump(self, vt):
        if not OPT["prof"]: return
        A = self.A
        while self.n < 15: self.stamp()
        self.stamp(True)
        A(f"s_lshl_b32 s68, s2, 3\ns_add_u32 s68, s68, s14\ns_lshl_b32 s68, s68, 6\ns_add_u32 s68, s68, {32<<20}")
        A(f"v_mov_b32 v{vt}, 0")
        for i in range(self.n):
            A(f"v_mov_b32 v{vt+1}, s{self.base+i}")
            A(f"buffer_store_dword v{vt+1}, v{vt}, s[20:23], s68 offen offset:{4*i}")

class VQ:
    def __init__(self, A): self.A = A; self.q = []
    def add(self, tag, n): self.q.append((tag, n))
    def wait(self, tags):
        if isinstance(tags, str): tags = [tags]
        idx = max([i for i, (t, _) in enumerate(self.q) if t in tags], default=-1)
        if idx < 0: return
        rest = sum(c for _, c in self.q[idx + 1:])
        assert rest < 64
        self.A(f"s_waitcnt vmcnt({rest})")
        del self.q[:idx + 1]
    def has(self, tag): return tag in [t for t, _ in self.q]
    def clear(self): self.q = []

def spin(A, name, load, vval, maskexpr=None, cnt=56):
    A(f"""v_cmp_eq_u32 vcc, s80, v{vval}
    s_mov_b32 s{cnt}, 0
    s_cmp_eq_u64 vcc, -1
    s_cbranch_scc1 {name}_OK""")
    A.label(f"{name}_P")
    A(f"""s_sleep {OPT['sleep']}
    {load}
    s_add_u32 s{cnt}, s{cnt}, 1
    s_waitcnt vmcnt(0)
    v_cmp_eq_u32 vcc, s80, v{vval}
    s_cmp_gt_u32 s{cnt}, {SPIN}
    s_cbranch_scc1 {name}_OK
    s_cmp_eq_u64 vcc, -1
    s_cbranch_scc0 {name}_P""")
    A.label(f"{name}_OK")

A = Asm()
A.raw(f"""; recurrent_scan__sliding_block__geglu_ffn__prompt : generated by a python script (single persistent kernel)
; @launch grid=(256,1,1) block=(512,1,1) lds=163840
.amdgcn_target "amdgcn-amd-amdhsa--gfx950"
.text""")
kernel_header(A, NAME)
PR = Prof(A)
A("""s_load_dwordx4 s[4:7], s[0:1], 0
s_load_dwordx4 s[8:11], s[0:1], 32
s_load_dwordx4 s[16:19], s[0:1], 64
s_cmp_ge_u32 s2, 256
s_cbranch_scc1 L_END
v_and_b32 v1, 63, v0
v_lshrrev_b32 v16, 6, v0
s_and_b32 s57, s2, 7
v_readfirstlane_b32 s14, v16
s_lshr_b32 s58, s2, 3
s_and_b32 s44, s57, 1
s_and_b32 s45, s58, 7
s_lshl_b32 s47, s44, 3
s_add_u32 s47, s47, s45
s_lshr_b32 s46, s57, 1
s_lshr_b32 s49, s58, 3
s_lshl_b32 s48, s46, 2
s_add_u32 s48, s48, s49
s_mul_i32 s51, s46, 3
s_add_u32 s52, s51, s49
s_lshl_b32 s53, s52, 1
s_add_u32 s57, s46, 24
s_add_u32 s54, s51, 12
s_cmp_eq_u32 s49, 3
s_cselect_b32 s50, 1, 0
s_cselect_b32 s53, s57, s53
s_cselect_b32 s54, s54, s52
s_and_b32 s15, s14, 3
s_cmp_lt_u32 s14, 4
s_cbranch_scc1 L_M""")
def ws_srd():
    A("""s_mov_b32 s20, s18
    s_mov_b32 s21, s19
    s_mov_b32 s22, 0x10000000
    s_mov_b32 s23, 0x20000
    s_mov_b32 s18, 256
    s_mov_b32 s19, 0x20000""")
vDW = [2, 3, 4, 5, 6]; vDX = [7, 8]
ROT = OPT["rot"]
A("""s_lshl_b32 s58, s15, 15
v_lshrrev_b32 v16, 3, v1
v_lshlrev_b32 v16, 10, v16
v_add_u32 v16, s58, v16
v_lshrrev_b32 v17, 4, v1
v_xor_b32 v17, v17, v1
v_and_b32 v17, 7, v17
v_lshlrev_b32 v17, 4, v17
v_add_u32 v7, v16, v17
v_xor_b32 v8, 64, v7
s_lshl_b32 s12, s15, 12
s_lshl_b32 s13, s15, 10
s_lshl_b32 s57, s47, 17""")
if ROT == 1: A("s_lshl_b32 s81, s49, 2\ns_lshl_b32 s58, s45, 1\ns_add_u32 s81, s81, s58")
elif ROT == 2: A("s_add_u32 s81, s49, s45\ns_lshl_b32 s81, s81, 2")
elif ROT == 3: A("s_add_u32 s81, s49, s45\ns_lshl_b32 s81, s81, 3")
A("""s_waitcnt lgkmcnt(0)
s_add_u32 s72, s4, s57
s_addc_u32 s73, s5, 0
s_mov_b32 s74, 0x20000
s_mov_b32 s75, 0x20000""")
PR.stamp(True); PR.stamp()
def dma_x(u):
    o = []
    for jj in range(4):
        pre = [f"s_add_u32 s56, s81, {2*u}", "s_and_b32 s56, s56, 15", "s_lshl_b32 s56, s56, 6"] if jj == 0 else []
        o.append(pre + [f"s_add_u32 m0, s12, {XR + (u%3)*XS + jj*1024}", f"s_add_u32 s59, s56, {jj*8192}",
                        f"buffer_load_dwordx4 v{vDX[jj&1]}, s[72:75], s59 offen lds"])
    return o
def emit(groups):
    for g in groups:
        for i in g: A(i)
    return len(groups)
Q = VQ(A)
n0 = emit(dma_x(0))
A("s_lshl_b32 s55, s53, 7\ns_lshl_b32 s56, s54, 7")
tabA = [(8, 55, 0), (8, 55, 128), (10, 55, 0), (10, 55, 128), (6, 56, 0)]
tabC = [(8, 55, 0), (10, 55, 0), (6, 56, 0), (6, 56, 128), (6, 56, 256)]
A("""v_bfe_u32 v16, v1, 2, 3
s_lshl_b32 s57, s15, 3
v_add_u32 v16, s57, v16
v_lshrrev_b32 v17, 5, v1
v_lshlrev_b32 v17, 6, v17
v_and_b32 v18, 3, v1
v_lshlrev_b32 v18, 4, v18
v_add_u32 v17, v17, v18
s_lshl_b32 s66, s50, 5
s_xor_b32 s67, s66, 32""")
swap = {0: None, 1: 66, 2: 67, 3: 67, 4: None}
for D in range(5):
    S = 24 + 4 * D
    (pa, ca, oa), (pc, cc_, oc) = tabA[D], tabC[D]
    A("s_cmp_eq_u32 s50, 1")
    if pa != pc:
        A(f"s_cselect_b32 s{S}, s{pc}, s{pa}\ns_cselect_b32 s{S+1}, s{pc+1}, s{pa+1}")
        src = S
    else: src = pa
    if ca != cc_: A(f"s_cselect_b32 s57, s{cc_}, s{ca}"); cs = 57
    else: cs = ca
    if oa != oc: A(f"s_cselect_b32 s58, {oc}, {oa}")
    sa = 3072 if pa == 6 else 3584; sc = 3072 if pc == 6 else 3584
    A(f"s_movk_i32 s{60+D}, {sa}")
    if sa != sc: A(f"s_cselect_b32 s{60+D}, {sc}, s{60+D}")
    if oa != oc: A(f"s_add_u32 s57, s{cs}, s58"); cs = 57
    elif oa: A(f"s_add_u32 s57, s{cs}, {oa}"); cs = 57
    A(f"s_add_u32 s{S}, s{src}, s{cs}\ns_addc_u32 s{S+1}, s{src+1}, 0")
    A(f"v_mul_u32_u24 v18, s{60+D}, v16")
    if swap[D]:
        A(f"v_xor_b32 v19, s{swap[D]}, v17\nv_add_u32 v{vDW[D]}, v18, v19")
    else:
        A(f"v_add_u32 v{vDW[D]}, v18, v17")
    A(f"s_lshl_b32 s{S+2}, s{60+D}, 9\ns_mov_b32 s{S+3}, 0x20000")
def dma_w(k):
    o = []
    for D in range(5):
        S = 24 + 4 * D
        pre = [f"s_add_u32 s56, s81, {k}", "s_and_b32 s56, s56, 15", "s_lshl_b32 s56, s56, 5"] if D == 0 else []
        o.append(pre + [f"s_add_u32 m0, s13, {WR + (k%5)*WSL + D*4096}", f"s_mul_i32 s59, s{60+D}, s56",
                        f"buffer_load_dwordx4 v{vDW[D]}, s[{S}:{S+3}], s59 offen lds"])
    return o
def G(k):
    g = (dma_x(k // 2) if k % 2 == 0 else []) + dma_w(k)
    Q.add(f"S{k}", emit(g))
Q.add("S0", n0 + emit(dma_w(0)))
G(1)
ws_srd()
A("""s_or_b32 s57, s2, s15
s_cmp_lg_u32 s57, 0
s_cbranch_scc1 H_NONONCE
s_memrealtime s[56:57]
s_waitcnt lgkmcnt(0)
s_mul_i32 s56, s56, 0x9e3779b1
s_or_b32 s56, s56, 1
v_mov_b32 v16, 0
v_mov_b32 v17, s56
buffer_store_dword v17, v16, s[16:19], 0 offen sc1""")
A.label("H_NONONCE")
A("s_lshl_b32 s69, s47, 5")
if ROT == 2: A("s_lshr_b32 s55, s45, 2\ns_lshl_b32 s57, s44, 1\ns_add_u32 s55, s55, s57")
elif ROT == 1: A("s_mov_b32 s55, s44")
elif ROT == 3: A("s_lshr_b32 s55, s45, 1\ns_lshl_b32 s57, s44, 2\ns_add_u32 s55, s55, s57")
NDELTA = {1: 2, 2: 4, 3: 8}[ROT]
A(f"""v_lshrrev_b32 v16, 5, v1
v_lshlrev_b32 v16, 10, v16
v_bfe_u32 v17, v1, 2, 2
v_lshlrev_b32 v17, 6, v17
v_add_u32 v16, v16, v17
v_and_b32 v17, 3, v1
v_lshlrev_b32 v17, 3, v17
v_add_u32 v16, v16, v17
v_bfe_u32 v17, v1, 4, 1
v_lshlrev_b32 v17, 5, v17
s_lshr_b32 s58, s15, 1
s_lshl_b32 s58, s58, 12
s_and_b32 s59, s15, 1
s_lshl_b32 s59, s59, 9
s_add_u32 s58, s58, s59
v_add3_u32 v12, v16, v17, s58
v_lshlrev_b32 v9, 4, v1
v_mov_b32 v10, 0""")
sched = {0: [2], 1: [3], 2: [4, 5]}
for s in range(3, 13): sched[s] = [s + 3]
def col_valu():
    for j in range(3):
        b = 48 + 8 * j; acc = 44 + j
        for d in range(8):
            A(f"v_lshlrev_b32 v18, 16, v{b+d}\nv_and_b32 v19, 0xffff0000, v{b+d}")
            if d == 0: A(f"v_add_f32 v{acc}, v18, v19")
            else: A(f"v_add_f32 v{acc}, v{acc}, v18\nv_add_f32 v{acc}, v{acc}, v19")
    for j in range(3): A(f"v_mov_b32 v{72+2*j}, v{44+j}")
    A("s_nop 1")
    for j in range(3): A(f"v_permlane32_swap_b32 v{72+2*j}, v{44+j}")
    A("s_nop 1")
    for j in range(3): A(f"v_add_f32 v{72+2*j}, v{72+2*j}, v{44+j}")
def row_valu():
    for rrow in range(2):
        b = 32 + 4 * rrow; sx = 40 + 2 * rrow; sq = sx + 1
        for d in range(4):
            A(f"v_lshlrev_b32 v18, 16, v{b+d}\nv_and_b32 v19, 0xffff0000, v{b+d}")
            if d == 0: A(f"v_add_f32 v{sx}, v18, v19\nv_mul_f32 v{sq}, v18, v18\nv_fmac_f32 v{sq}, v19, v19")
            else: A(f"v_add_f32 v{sx}, v{sx}, v18\nv_fmac_f32 v{sq}, v18, v18\nv_add_f32 v{sx}, v{sx}, v19\nv_fmac_f32 v{sq}, v19, v19")
    for dpp in ("quad_perm:[1,0,3,2] row_mask:0xf bank_mask:0xf", "quad_perm:[2,3,0,1] row_mask:0xf bank_mask:0xf",
                "row_half_mirror row_mask:0xf bank_mask:0xf", "row_mirror row_mask:0xf bank_mask:0xf",
                "row_bcast:15 row_mask:0xa bank_mask:0xf", "row_bcast:31 row_mask:0xc bank_mask:0xf"):
        for r in range(40, 44): A(f"v_add_f32_dpp v{r}, v{r}, v{r} {dpp}")
def get_nonce(tag, vz, vn):
    A(f"""v_readfirstlane_b32 s80, v{vn}
    s_mov_b32 s57, 0
    s_cmp_eq_u32 s80, 0
    s_cbranch_scc0 {tag}_GOTN""")
    A.label(f"{tag}_POLLN")
    A(f"""buffer_load_dword v{vn}, v{vz}, s[16:19], 0 offen sc1
    s_add_u32 s57, s57, 1
    s_waitcnt vmcnt(0)
    v_readfirstlane_b32 s80, v{vn}
    s_cmp_gt_u32 s57, {SPIN}
    s_cbranch_scc1 {tag}_GOTN
    s_cmp_eq_u32 s80, 0
    s_cbranch_scc1 {tag}_POLLN""")
    A.label(f"{tag}_GOTN")
def publish():
    get_nonce("H", 10, 11)
    A(f"""s_lshl_b32 s57, s48, 4
    s_add_u32 s57, s57, s47
    s_mul_i32 s57, s57, 2560
    s_lshl_b32 s58, s15, 8
    s_add_u32 s57, s57, s58
    s_add_u32 s57, s57, {WS_CS}
    v_lshlrev_b32 v16, 3, v1
    v_mov_b32 v73, s80
    v_mov_b32 v75, s80
    v_mov_b32 v77, s80
    s_mov_b32 exec_hi, 0
    buffer_store_dwordx2 v[72:73], v16, s[20:23], s57 offen sc1
    buffer_store_dwordx2 v[74:75], v16, s[20:23], s57 offen offset:1024 sc1
    s_cmp_ge_u32 s15, 2
    s_cbranch_scc1 H_NO3
    buffer_store_dwordx2 v[76:77], v16, s[20:23], s57 offen offset:2048 sc1""")
    A.label("H_NO3")
    A(f"""s_mov_b32 exec_lo, 0
    s_mov_b32 exec_hi, 0x80000000
    s_lshl_b32 s57, s69, 6
    s_lshl_b32 s58, s48, 7
    s_add_u32 s57, s57, s58
    s_lshl_b32 s58, s15, 5
    s_add_u32 s57, s57, s58
    s_add_u32 s57, s57, {WS_TOK}
    v_mov_b32 v48, v40
    v_mov_b32 v49, v41
    v_mov_b32 v50, s80
    v_mov_b32 v51, s80
    v_mov_b32 v52, v42
    v_mov_b32 v53, v43
    v_mov_b32 v54, s80
    v_mov_b32 v55, s80
    buffer_store_dwordx4 v[48:51], v10, s[20:23], s57 offen sc1
    buffer_store_dwordx4 v[52:55], v10, s[20:23], s57 offen offset:16 sc1
    s_mov_b64 exec, -1""")
def gather_loads():
    for ip in range(16):
        A(f"s_add_u32 s59, s66, {ip*2560}")
        A(f"buffer_load_dwordx2 {vr(64+2*ip,2)}, v16, s[20:23], s59 offen sc1")
    for m in range(4):
        A(f"s_add_u32 s59, s66, {m*4*2560}")
        A(f"buffer_load_dwordx2 {vr(96+2*m,2)}, v17, s[20:23], s59 offen sc1")
    A("buffer_load_dwordx4 v[104:107], v18, s[20:23], s67 offen sc1")
def gather_prep():
    A(f"""s_mul_i32 s66, s48, {16*2560}
    s_add_u32 s66, s66, {WS_CS}
    s_lshl_b32 s58, s15, 9
    v_lshlrev_b32 v16, 3, v1
    v_add_u32 v16, s58, v16
    v_and_b32 v17, 15, v1
    v_lshlrev_b32 v17, 3, v17
    v_lshrrev_b32 v18, 4, v1
    v_mul_u32_u24 v18, 2560, v18
    s_lshl_b32 s58, s15, 7
    s_add_u32 s58, s58, 2048
    v_add3_u32 v17, v17, v18, s58
    v_and_b32 v18, 31, v1
    v_lshlrev_b32 v18, 4, v18
    s_lshl_b32 s67, s69, 6
    s_lshl_b32 s59, s15, 9
    s_add_u32 s67, s67, s59
    s_add_u32 s67, s67, {WS_TOK}""")
def gather_finish():
    A("s_mov_b32 s56, 0")
    Q.wait("GA")
    A.label("H_GCHK")
    A("v_xor_b32 v19, s80, v65")
    regs = list(range(67, 104, 2)) + [106]
    for r in regs:
        A(f"v_xor_b32 v20, s80, v{r}\nv_or_b32 v19, v19, v20")
    A(f"""v_cmp_eq_u32 vcc, 0, v19
    s_add_u32 s56, s56, 1
    s_cmp_gt_u32 s56, {SPIN}
    s_cbranch_scc1 H_GOK
    s_cmp_eq_u64 vcc, -1
    s_cbranch_scc1 H_GOK
    s_sleep 4""")
    gather_loads()
    A("s_waitcnt vmcnt(0)")
    A("s_branch H_GCHK")
    A.label("H_GOK")
def gather_finish2():
    st = 2
    while st <= 16:
        for r in range(64, 96, 2 * st): A(f"v_add_f32 v{r}, v{r}, v{r+st}")
        st *= 2
    A("""v_add_f32 v96, v96, v98
    v_add_f32 v100, v100, v102
    v_add_f32 v96, v96, v100
    v_mov_b32 v97, v96
    s_nop 1
    v_permlane32_swap_b32 v97, v96
    s_nop 1
    v_add_f32 v96, v96, v97
    v_mov_b32 v97, v96
    s_nop 1
    v_permlane16_swap_b32 v97, v96
    s_nop 1
    v_add_f32 v96, v96, v97""")
    for r in (64, 96):
        A(f"""v_cvt_pk_bf16_f32 v{r+1}, v{r}, v{r}
        v_and_b32 v{r+1}, 0xffff0000, v{r+1}
        v_sub_f32 v{r}, v{r}, v{r+1}
        v_cvt_pk_bf16_f32 v{r}, v{r+1}, v{r}""")
    c1 = -2.0 * math.sqrt(2.0 / math.pi) * LOG2E
    c3 = c1 * 0.044715
    A(f"""v_lshrrev_b32 v16, 1, v16
    v_add_u32 v16, {EX_COL}, v16
    ds_write_b32 v16, v64
    v_and_b32 v17, 15, v1
    v_lshlrev_b32 v17, 2, v17
    s_lshl_b32 s58, s15, 6
    s_add_u32 s58, s58, {EX_COL + 1024}
    v_add_u32 v17, s58, v17
    ds_write_b32 v17, v96
    v_mul_f32 v104, {f32(-1/512)}, v104
    v_mul_f32 v105, {f32(1/512)}, v105
    v_fma_f32 v105, -v104, v104, v105
    v_max_f32 v105, 0, v105
    v_add_f32 v113, {f32(1e-5)}, v105
    v_rsq_f32 v110, v113
    v_cvt_pk_bf16_f32 v108, v104, v104
    v_and_b32 v106, 0xffff0000, v108
    v_sub_f32 v106, v104, v106
    v_cvt_pk_bf16_f32 v109, v106, v106
    v_mul_f32 v111, {f32(c1)}, v110
    v_mul_f32 v112, v110, v110
    v_mul_f32 v112, v112, v110
    v_mul_f32 v112, {f32(c3)}, v112
    v_mov_b32 v114, s80
    v_lshlrev_b32 v18, 1, v18
    s_lshl_b32 s58, s15, 10
    s_add_u32 s58, s58, {EX_TOK}
    v_add_u32 v18, s58, v18
    ds_write_b128 v18, v[108:111]
    ds_write_b128 v18, v[112:115] offset:16
    s_waitcnt lgkmcnt(0)""")
WD = OPT["wd"]
UFB = [60, 61, 62, 76, 77, 78, 79]
def d_setup_w():
    A(f"""v_bfe_u32 v6, v1, 2, 3
    v_lshlrev_b32 v6, 10, v6
    v_lshrrev_b32 v7, 5, v1
    v_lshlrev_b32 v7, 6, v7
    v_add_u32 v6, v6, v7
    v_and_b32 v7, 3, v1
    v_lshlrev_b32 v7, 4, v7
    v_add_u32 v2, v6, v7
    s_lshl_b32 s43, s15, 11
    s_lshr_b32 s58, s2, 5
    s_lshl_b32 s40, s58, 7
    s_lshl_b32 s42, s15, 17
    s_add_u32 s42, s42, s40
    s_mul_i32 s57, s15, 24""")
    if OPT["rotd"]:
        A("""s_mul_i32 s59, s58, 11
        s_lshr_b32 s59, s59, 5
        s_mul_i32 s59, s59, 3
        s_sub_u32 s59, s58, s59""")
    else:
        A("s_mov_b32 s59, 0\ns_mov_b32 s58, 0")
    for u in range(3):
        A(f"""s_lshl_b32 s{UFB[u]}, s59, 3
        s_add_u32 s{UFB[u]}, s{UFB[u]}, s57
        s_add_u32 s{UFB[u]}, s{UFB[u]}, 4
        s_add_u32 s59, s59, 1
        s_cmp_eq_u32 s59, 3
        s_cselect_b32 s59, 0, s59""")
    A("s_lshl_b32 s41, s15, 2\ns_add_u32 s41, s41, 96")
    for u in range(4):
        A(f"""s_add_u32 s59, s58, {u}
        s_and_b32 s59, s59, 3
        s_lshl_b32 s44, s59, 3
        s_add_u32 s44, s44, s57
        s_cmp_eq_u32 s59, 3
        s_cselect_b32 s{UFB[3+u]}, s41, s44""")
    A("""s_waitcnt lgkmcnt(0)
    s_mov_b32 s26, 0x1c0000
    s_mov_b32 s27, 0x20000
    s_mov_b32 s30, 0x80000
    s_mov_b32 s31, 0x20000""")
def issw(s, q):
    slot = s % WD
    if s < 28:
        srd = 24
        o = [f"s_lshl_b32 s44, s{UFB[s>>2]}, 14", "s_add_u32 s44, s44, s40"]
        if s & 3: o.append(f"s_add_u32 s44, s44, {(s&3)*16384}")
    else:
        srd = 28
        o = [f"s_add_u32 s44, s42, {(s-28)*16384}"]
    a = o + [f"s_add_u32 m0, s43, {DREG[slot]}", "s_add_u32 s45, s44, 8192",
             f"buffer_load_dwordx4 v2, s[{srd}:{srd+3}], s44 offen lds"]
    b = [f"s_add_u32 m0, s43, {DREG[slot]+1024}", "s_nop 0",
         f"buffer_load_dwordx4 v2, s[{srd}:{srd+3}], s45 offen lds"]
    q.add(f"W{s}", 2)
    return [a, b]
P0 = max(NDELTA, 4)
wnext = [0]
for s in range(17):
    if s < 16: Q.wait(f"S{s}")
    A("s_barrier")
    if s == 0: PR.stamp()
    for k in sched.get(s, []): G(k)
    if s == 0:
        A("""s_lshl_b32 s57, s48, 13
        s_lshl_b32 s58, s15, 11
        s_add_u32 s57, s57, s58
        buffer_load_dwordx4 v[32:35], v9, s[72:75], s57 offen
        buffer_load_dwordx4 v[36:39], v9, s[72:75], s57 offen offset:1024
        buffer_load_dword v11, v10, s[16:19], 0 offen sc1""")
        Q.add("ST", 3)
    if s < NDELTA:
        lb = f"H_NOCS{s}"
        A(f"s_cmp_eq_u32 s55, {s}\ns_cbranch_scc0 {lb}\nv_add_u32 v12, {WR + (s%5)*WSL}, v12")
        for j in range(3):
            for t in range(4):
                A(f"ds_read_b64_tr_b16 {vr(48+8*j+2*t,2)}, v12 offset:{j*8192 + (t>>1)*2048 + (t&1)*256}")
        A("s_waitcnt lgkmcnt(0)")
        A.label(lb)
    if s == 3: row_valu()
    if s == P0: col_valu()
    if s == P0 + 1: publish()
    if s == OPT["warm"] - 1:
        A("s_load_dwordx2 s[4:5], s[0:1], 48\ns_load_dwordx2 s[8:9], s[0:1], 16")
    if s == OPT["warm"]:
        A("""s_cmp_lg_u32 s15, 0
        s_cbranch_scc1 H_NOWARM
        s_mul_i32 s57, s2, 7168
        s_lshl_b32 s58, s2, 11
        v_lshlrev_b32 v20, 7, v1
        s_waitcnt lgkmcnt(0)
        s_add_u32 s6, s57, 7168
        s_mov_b32 s7, 0x20000
        s_add_u32 s10, s58, 2048
        s_mov_b32 s11, 0x20000
        buffer_load_dword v21, v20, s[4:7], s57 offen
        buffer_load_dword v22, v20, s[8:11], s58 offen""")
        A.label("H_NOWARM")
    if OPT["l2pf"] and s == OPT["warm"] + 1:
        A("""s_lshr_b32 s57, s2, 3
        s_lshl_b32 s57, s57, 2
        s_add_u32 s57, s57, s15
        s_mul_i32 s58, s57, 14336
        s_lshl_b32 s57, s57, 12
        s_waitcnt lgkmcnt(0)
        s_add_u32 s4, s4, s58
        s_addc_u32 s5, s5, 0
        s_add_u32 s8, s8, s57
        s_addc_u32 s9, s9, 0""")
    if OPT["l2pf"] and OPT["warm"] + 1 <= s <= 13:
        nst = 13 - OPT["warm"]
        tot = 144 if OPT["l2pf"] == 1 else OPT["l2pf"]
        i0 = (s - OPT["warm"] - 1) * tot // nst; i1 = (s - OPT["warm"]) * tot // nst
        for i in range(i0, i1):
            if i < 112: A(f"s_load_dword s65, s[4:5], {i*128}")
            else: A(f"s_load_dword s65, s[8:9], {(i-112)*128}")
    if s == 11: gather_prep()
    if s == 12:
        gather_loads(); Q.add("GA", 21)
        A("s_load_dwordx2 s[24:25], s[0:1], 48\ns_load_dwordx2 s[28:29], s[0:1], 16")
    if s == 13: d_setup_w()
    if s in DAVAIL and not (s == 14 or s == 15):
        for _ in range(DAVAIL[s]):
            emit(issw(wnext[0], Q)); wnext[0] += 1
    if s == 14:
        gather_finish()
        for _ in range(DAVAIL[s]):
            emit(issw(wnext[0], Q)); wnext[0] += 1
    if s == 15:
        for _ in range(DAVAIL[s]):
            emit(issw(wnext[0], Q)); wnext[0] += 1
    if s == 15: gather_finish2()
    if s in (4, 8, 12): PR.stamp()
PR.stamp()
PR.stamp()
import gen_cd
gen_cd.OPT = OPT
A("""s_and_b32 s57, s2, 7
s_lshr_b32 s58, s2, 3
s_and_b32 s58, s58, 3
s_lshl_b32 s50, s58, 3
s_add_u32 s50, s50, s57
s_lshr_b32 s51, s2, 5
s_lshl_b32 s51, s51, 2
s_add_u32 s51, s51, s15""")
gen_cd.attn_setup(A)
A(f"""v_min_u32 v9, 10, v1
v_cmp_gt_u32 vcc, 5, v9
v_subrev_u32 v10, 5, v9
s_nop 0
v_cndmask_b32 v10, v10, v9, vcc
v_min_u32 v10, 4, v10
s_sub_u32 s57, s51, 4
v_add_u32 v10, s57, v10
v_max_i32 v10, 0, v10
v_lshlrev_b32 v10, 8, v10
v_mov_b32 v11, 128
v_cndmask_b32 v11, v11, 64, vcc
v_cmp_eq_u32 vcc, 10, v9
s_lshr_b32 s57, s50, 1
s_lshl_b32 s57, s57, 7
s_add_u32 s57, s57, {WS_FQ}
v_cndmask_b32 v11, v11, 0, vcc
v_add_u32 v10, v10, v11
v_lshlrev_b32 v10, 5, v10
v_add_u32 v252, s57, v10""")
A("s_barrier")
PR.stamp()
gen_cd.LONE = LONE
A("""s_movk_i32 s57, 0x4000
s_cmp_eq_u32 s15, 1
s_cselect_b32 s57, 49152, s57
s_cmp_eq_u32 s15, 2
s_cselect_b32 s57, 59392, s57
s_cmp_eq_u32 s15, 3
s_cselect_b32 s57, 151552, s57""")
gen_cd.attn_setup2(A, None)
ld = "buffer_load_dword v253, v252, s[20:23], 0 offen sc1"
A("s_waitcnt vmcnt(0)")
PR.stamp()
A("s_barrier")
A(f"s_setprio {OPT['aprio']}")
A(f"s_sleep {OPT['hs']}")
A(ld)
A("s_waitcnt vmcnt(0)")
spin(A, "HQ", ld, 253)
PR.stamp()
A("s_cmp_lt_u32 s51, 4")
A("s_cbranch_scc1 H_SLOW")
n0 = PR.n
gen_cd.gen_attn(A, False, "AF", PR, "sc1", setup=False)
A.label("H_AFIN")
PR.stamp()
A(f"""s_lshl_b32 s57, s51, 12
s_lshl_b32 s58, s50, 7
s_add_u32 s57, s57, s58
s_add_u32 s57, s57, {WS_FO}
v_mov_b32 v9, 0
v_mov_b32 v10, s80
s_waitcnt vmcnt(0)
s_mov_b64 exec, 1
buffer_store_dword v10, v9, s[20:23], s57 offen sc1
s_mov_b64 exec, -1""")
PR.stamp()
PR.dump(2)
A.label("L_END")
A("s_endpgm")
A.label("H_SLOW")
PR.n = n0
gen_cd.gen_attn(A, True, "AS", PR, "sc1", setup=False)
A("s_branch H_AFIN")
A.label("L_M")
PR.n = 0
A("s_waitcnt lgkmcnt(0)")
PR.stamp(True); PR.stamp()
ws_srd()
if OPT["codepf"]:
    A("s_getpc_b64 s[24:25]")
    A.label("L_PC")
    A(f"""s_sub_u32 s24, s24, L_PC-{NAME}
    s_subb_u32 s25, s25, 0
    s_mov_b32 s26, L_CODE_END-{NAME}
    s_mov_b32 s27, 0x20000
    s_lshr_b32 s57, s2, 3
    s_lshl_b32 s57, s57, 2
    s_add_u32 s57, s57, s14
    s_lshl_b32 s57, s57, 9
    v_lshlrev_b32 v16, 7, v1
    s_mov_b64 exec, 15
    buffer_load_dword v31, v16, s[24:27], s57 offen
    s_mov_b64 exec, -1""")
vXa = [2, 3, 4, 5]; vWa = [6, 7, 8, 9, 10]; vWb = [11, 12, 13, 14, 15]
P = 32; QQ = 60; ACC = 88
A("s_setprio 2")
A("""s_and_b32 s12, s14, 1
s_lshr_b32 s13, s14, 1
v_and_b32 v16, 31, v1
v_lshrrev_b32 v17, 5, v1
v_bfe_u32 v18, v1, 1, 3
v_xor_b32 v17, v17, v18
v_lshlrev_b32 v17, 4, v17
v_lshlrev_b32 v16, 7, v16
v_add_u32 v16, v16, v17
s_lshl_b32 s57, s12, 13
v_add_u32 v2, s57, v16
v_xor_b32 v3, 32, v2
v_xor_b32 v4, 64, v2
v_xor_b32 v5, 96, v2""")
A(f"""v_lshrrev_b32 v16, 5, v1
v_lshlrev_b32 v16, 10, v16
v_bfe_u32 v17, v1, 2, 2
v_lshlrev_b32 v17, 6, v17
v_add_u32 v16, v16, v17
v_and_b32 v17, 3, v1
v_lshlrev_b32 v17, 3, v17
v_add_u32 v16, v16, v17
v_add_u32 v16, {WR}, v16
v_bfe_u32 v17, v1, 4, 1
s_sub_u32 s57, 2, s50
s_lshl_b32 s57, s57, 12
v_mul_u32_u24 v18, s57, v17
v_xor_b32 v19, s13, v17
v_lshlrev_b32 v19, 5, v19
v_add3_u32 v18, v18, v19, v16
v_lshlrev_b32 v19, 5, v17
s_lshl_b32 s57, s13, 9
v_add3_u32 v19, v19, s57, v16
s_cmp_eq_u32 s50, 1
s_cselect_b64 vcc, -1, 0""")
for n in range(5):
    fo = (n >> 1) * 4096 + (n & 1) * 512
    qo = n * 4096
    if n < 2: A(f"v_add_u32 v{vWa[n]}, {fo}, v18")
    elif n == 4: A(f"v_add_u32 v{vWa[n]}, {qo}, v19")
    else:
        A(f"v_add_u32 v20, {fo}, v18\nv_add_u32 v21, {qo}, v19\nv_cndmask_b32 v{vWa[n]}, v20, v21, vcc")
for n in range(5): A(f"v_add_u32 v{vWb[n]}, {4*WSL}, v{vWa[n]}")
def reads(s, kk, dst):
    xs = (s >> 1) % 3; q4 = (s & 1) * 2 + kk; sl = s % 5
    def xr(tt): return f"ds_read_b128 {vr(dst+4*tt,4)}, v{vXa[q4]} offset:{XR + xs*XS + tt*4096}"
    def wr(n, sec):
        a, o = (vWa[n], sl * WSL) if sl < 4 else (vWb[n], 0)
        return f"ds_read_b64_tr_b16 {vr(dst+8+4*n+2*sec,2)}, v{a} offset:{o + kk*2048 + sec*256}"
    R = [xr(0), wr(0, 0), wr(0, 1), xr(1)]
    for n in range(1, 5): R += [wr(n, 0), wr(n, 1)]
    return R
need = {0: 2, 1: 3, 2: 5, 4: 7, 6: 9, 8: 11}
def substep(cur, R, first=False):
    issued = 0
    for j in range(10):
        n, tt = j >> 1, j & 1
        if j in need: A(f"s_waitcnt lgkmcnt({min(15, 11 - need[j] + issued)})")
        a = ACC + 16 * (2 * n + tt)
        c = "0" if first else vr(a, 16)
        A(f"v_mfma_f32_32x32x16_bf16 {vr(a,16)}, {vr(cur+8+4*n,4)}, {vr(cur+4*tt,4)}, {c}")
        k = 2 if j < 2 else 1
        for r in R[issued:issued + k]: A(r)
        issued += len(R[issued:issued + k])
A(f"""v_and_b32 v16, 31, v1
v_lshlrev_b32 v22, 5, v16
s_lshl_b32 s57, s12, 11
s_add_u32 s57, s57, {EX_TOK}
v_add_u32 v22, s57, v22
v_and_b32 v16, 15, v1
s_sub_u32 s57, 2, s50
s_lshl_b32 s57, s57, 6
v_mul_u32_u24 v18, s57, v17
v_xor_b32 v19, s13, v17
v_lshlrev_b32 v19, 4, v19
v_add3_u32 v18, v18, v19, v16
v_lshlrev_b32 v18, 2, v18
v_and_b32 v19, 31, v1
s_lshl_b32 s57, s13, 5
v_add_u32 v19, s57, v19
v_lshlrev_b32 v19, 2, v19""")
for n in range(5):
    fo = EX_COL + ((n >> 1) * 64 + (n & 1) * 32) * 4
    qo = EX_COL + n * 256
    if n < 2: A(f"v_add_u32 v{23+n}, {fo}, v18")
    elif n == 4: A(f"v_add_u32 v{23+n}, {qo}, v19")
    else:
        A(f"v_add_u32 v20, {fo}, v18\nv_add_u32 v21, {qo}, v19\nv_cndmask_b32 v{23+n}, v20, v21, vcc")
A(f"""s_lshl_b32 s57, s47, 2
s_lshl_b32 s58, s12, 1
s_add_u32 s57, s57, s58
s_mul_i32 s70, s57, {112*1024}
s_lshl_b32 s59, s53, 12
s_add_u32 s70, s70, s59
s_lshl_b32 s59, s13, 10
s_add_u32 s70, s70, s59
s_add_u32 s70, s70, {WS_H}
s_lshl_b32 s59, s54, 2
s_lshl_b32 s60, s13, 1
s_add_u32 s59, s59, s60
s_lshl_b32 s71, s59, 6
s_add_u32 s71, s71, s57
s_lshl_b32 s71, s71, 10
s_lshl_b32 s57, s57, 7
s_lshl_b32 s72, s59, 1
s_add_u32 s72, s72, s57
s_lshl_b32 s72, s72, 5
s_add_u32 s72, s72, {WS_FQ}
s_lshl_b32 s73, s48, 3
s_lshl_b32 s60, s13, 2
s_add_u32 s73, s73, s60
s_add_u32 s73, s73, s57
s_lshl_b32 s73, s73, 5
s_add_u32 s73, s73, {WS_FH}
s_add_u32 s74, s73, 4096
s_load_dwordx2 s[24:25], s[0:1], 48
s_load_dwordx2 s[28:29], s[0:1], 16
s_load_dwordx2 s[36:37], s[0:1], 56
s_waitcnt vmcnt(0) lgkmcnt(0)""")
A("s_barrier")
PR.stamp()
for r in reads(0, 0, P): A(r)
A.raw(".p2align 3")
for s in range(16):
    substep(P, reads(s, 1, QQ), first=(s == 0))
    A("s_barrier")
    if s < 15: substep(QQ, reads(s + 1, 0, P))
    else:
        R = [f"ds_read_b128 {vr(P,4)}, v22", f"ds_read_b128 {vr(P+4,4)}, v22 offset:1024",
             f"ds_read_b128 v[16:19], v22 offset:16", f"ds_read_b128 v[28:31], v22 offset:1040"]
        R += [f"ds_read_b32 v{P+8+4*n}, v{23+n}" for n in range(5)]
        substep(QQ, R)
    if s in (3, 11): PR.stamp()
A("s_waitcnt lgkmcnt(0)")
A("s_barrier")
PR.stamp()
A(f"""v_mov_b32 v248, v{P+2}
v_mov_b32 v249, v{P+3}
v_mov_b32 v250, v16
v_mov_b32 v251, v17
v_mov_b32 v252, v{P+6}
v_mov_b32 v253, v{P+7}
v_mov_b32 v254, v28
v_mov_b32 v255, v29
v_cmp_gt_u32 vcc, 32, v1
v_readfirstlane_b32 s80, v18
v_mov_b32 v{P+2}, 0
v_mov_b32 v{P+3}, 0
v_mov_b32 v{P+6}, 0
v_mov_b32 v{P+7}, 0
v_cndmask_b32 v{P}, 0, v{P}, vcc
v_cndmask_b32 v{P+1}, 0, v{P+1}, vcc
v_cndmask_b32 v{P+4}, 0, v{P+4}, vcc
v_cndmask_b32 v{P+5}, 0, v{P+5}, vcc""")
for n in (4, 3, 2, 1, 0):
    w = P + 8 + 4 * n
    A(f"v_mov_b32 v{w+1}, v{w}\nv_mov_b32 v{w+2}, 0\nv_mov_b32 v{w+3}, 0")
for n in (4, 3, 2, 1, 0):
    for tt in range(2):
        a = ACC + 16 * (2 * n + tt)
        A(f"v_mfma_f32_32x32x16_bf16 {vr(a,16)}, {vr(P+8+4*n,4)}, {vr(P+4*tt,4)}, {vr(a,16)}")
A(f"""v_lshlrev_b32 v2, 4, v1
v_and_b32 v3, 31, v1
v_lshlrev_b32 v3, 5, v3
v_lshrrev_b32 v4, 5, v1
v_lshlrev_b32 v4, 4, v4
v_add_u32 v3, v3, v4
v_lshlrev_b32 v8, 8, v1
v_mov_b32 v9, s80""")
T = QQ
def ffn(n, tt):
    a = ACC + 16 * (2 * n + tt); c = 248 + 4 * tt
    for r in range(0, 8, 2): A(f"v_pk_mul_f32 {vr(T+r,2)}, {vr(a+r,2)}, {vr(a+r,2)}")
    for r in range(0, 8, 2): A(f"v_pk_fma_f32 {vr(T+r,2)}, {vr(T+r,2)}, {vr(c+2,2)}, {vr(c,2)} op_sel:[0,0,1] op_sel_hi:[1,0,1]")
    for r in range(0, 8, 2): A(f"v_pk_mul_f32 {vr(T+r,2)}, {vr(T+r,2)}, {vr(a+r,2)}")
    for r in range(8): A(f"v_exp_f32 v{T+r}, v{T+r}")
    for r in range(0, 8, 2): A(f"v_pk_mul_f32 {vr(a+r,2)}, {vr(a+r,2)}, {vr(a+8+r,2)}")
    for r in range(0, 8, 2): A(f"v_pk_fma_f32 {vr(T+r,2)}, {vr(T+r,2)}, {vr(c+2,2)}, {vr(c+2,2)} op_sel:[0,1,1] op_sel_hi:[1,1,1]")
    for r in range(8): A(f"v_rcp_f32 v{T+r}, v{T+r}")
    A("s_nop 0")
    for r in range(0, 8, 2): A(f"v_pk_mul_f32 {vr(a+r,2)}, {vr(a+r,2)}, {vr(T+r,2)}")
    for d in range(4): A(f"v_cvt_pk_bf16_f32 v{a+8+d}, v{a+2*d}, v{a+2*d+1}")
def ffn_st(n, tt):
    a = ACC + 16 * (2 * n + tt)
    A(f"s_add_u32 s63, s70, {2048*n + tt*112*1024}")
    A(f"buffer_store_dwordx4 {vr(a+8,4)}, v2, s[20:23], s63 offen sc1")
def qkv(n, zoff):
    A(f"""s_add_u32 s60, s54, {zoff}
    s_cmp_lt_u32 s60, 8
    s_mov_b32 s62, {f32(0.25*LOG2E)}
    s_cselect_b32 s62, s62, 1.0
    v_mul_f32 v4, s62, v248
    v_mul_f32 v6, s62, v252""")
    for tt in range(2):
        a = ACC + 16 * (2 * n + tt)
        for r in range(0, 16, 2): A(f"v_pk_mul_f32 {vr(a+r,2)}, {vr(a+r,2)}, {vr(4+2*tt,2)} op_sel_hi:[1,0]")
        for d in range(8): A(f"v_cvt_pk_bf16_f32 v{a+d}, v{a+2*d}, v{a+2*d+1}")
        A(f"s_add_u32 s63, s71, {zoff*4*65536 + tt*1024}")
        A(f"buffer_store_dwordx4 {vr(a,4)}, v2, s[20:23], s63 offen sc1")
        A(f"s_add_u32 s63, s63, 65536")
        A(f"buffer_store_dwordx4 {vr(a+4,4)}, v2, s[20:23], s63 offen sc1")
def flag(vm, mask, soff, imm=0, voff=8):
    A(f"s_waitcnt vmcnt({vm})\ns_mov_b64 exec, {mask}\nbuffer_store_dword v9, v{voff}, s[20:23], s{soff} offen offset:{imm} sc1\ns_mov_b64 exec, -1")
A("s_cmp_eq_u32 s50, 1")
A("s_cbranch_scc1 M_TC")
def ffs(n, tt): ffn(n, tt); ffn_st(n, tt)
qkv(4, 0)
ffs(3, 0); ffs(3, 1)
A("s_barrier")
ffs(2, 0); ffs(2, 1)
flag(4, 1, 72)
ffs(1, 0); ffs(1, 1); ffs(0, 0); ffs(0, 1)
flag(4, 1, 73)
A("s_branch M_TJ")
A.label("M_TC")
qkv(4, 2); qkv(3, 1); qkv(2, 0)
A("s_barrier")
ffs(1, 0); ffs(1, 1); ffs(0, 0); ffs(0, 1)
flag(4, 7, 72)
A.label("M_TJ")
PR.stamp()
A("s_mov_b32 s15, s14")
d_setup_w()
XRr, BF, WF, AD, AS = 8, 16, 80, 96, 160
BD, NS = 8, 36
flag(0, 1, 74)
PR.stamp()
DQ = VQ(A)
A(f"""s_and_b32 s57, s2, 7
s_lshl_b32 s50, s57, 2
s_lshr_b32 s57, s2, 3
s_and_b32 s57, s57, 3
s_add_u32 s50, s50, s57
s_lshr_b32 s51, s2, 5
v_lshlrev_b32 v3, 4, v1
s_lshl_b32 s55, s50, 13
s_lshl_b32 s57, s15, 10
s_add_u32 s55, s55, s57
s_add_u32 s55, s55, {WS_FH}
s_add_u32 s75, s55, 4096
v_min_u32 v226, 5, v1
v_lshlrev_b32 v226, 7, v226
v_min_u32 v227, 7, v1
v_lshlrev_b32 v227, 7, v227""")
ld0 = "buffer_load_dword v228, v226, s[20:23], s55 offen sc1"
ld1 = "buffer_load_dword v228, v227, s[20:23], s75 offen sc1"
A(ld0)
A(f"""s_lshl_b32 s57, s50, 1
s_and_b32 s58, s15, 1
s_add_u32 s59, s57, s58
s_xor_b32 s58, s58, 1
s_add_u32 s57, s57, s58
s_mul_i32 s64, s59, {112*1024}
s_add_u32 s64, s64, {WS_H}
s_mul_i32 s65, s57, {112*1024}
s_add_u32 s65, s65, {WS_H}
s_lshl_b32 s58, s15, 13
s_add_u32 s58, s58, {WS_O}
s_lshl_b32 s67, s59, 15
s_add_u32 s67, s67, s58
s_lshl_b32 s53, s57, 15
s_add_u32 s53, s53, s58
v_and_b32 v6, 31, v1
v_lshlrev_b32 v6, 10, v6
v_lshrrev_b32 v7, 5, v1
v_lshlrev_b32 v7, 4, v7
v_add_u32 v224, v6, v7
s_lshl_b32 s54, s59, 15
s_lshl_b32 s57, s51, 7
s_add_u32 s54, s54, s57
s_lshr_b32 s57, s15, 1
s_lshl_b32 s57, s57, 6
s_add_u32 s54, s54, s57
v_lshrrev_b32 v6, 5, v1
v_lshlrev_b32 v6, 8, v6
v_bfe_u32 v7, v1, 2, 2
v_lshlrev_b32 v7, 6, v7
v_add_u32 v6, v6, v7
v_and_b32 v7, 3, v1
v_lshlrev_b32 v7, 3, v7
v_add_u32 v6, v6, v7
v_bfe_u32 v7, v1, 4, 1
v_lshlrev_b32 v7, 5, v7
v_add_u32 v6, v6, v7
s_lshl_b32 s57, s57, 3
v_add_u32 v6, s57, v6
v_xor_b32 v7, 512, v6
v_add_u32 v4, s43, v6
v_add_u32 v5, s43, v7
v_add_u32 v232, 0x10000, v4
v_add_u32 v233, 0x10000, v5
v_add_u32 v234, 0x20000, v4
v_add_u32 v235, 0x20000, v5
s_mov_b32 s32, s4
s_mov_b32 s33, s5
s_mov_b32 s34, 0x200000
s_mov_b32 s35, 0x20000
s_mov_b32 s38, 0x200000
s_mov_b32 s39, 0x20000
s_setprio {OPT['dprio']}
s_waitcnt vmcnt(0)""")
PR.stamp()
spin(A, "MH0", ld0, 228)
PR.stamp()
def issb(s):
    r = BF + 8 * (s % BD)
    if s < 28:
        o = [f"s_lshl_b32 s48, s{UFB[s>>2]}, 10", "s_add_u32 s49, s48, s65", "s_add_u32 s48, s48, s64"] if (s & 3) == 0 else []
    else:
        o = [f"s_add_u32 s48, s67, {(s-28)*1024}", f"s_add_u32 s49, s53, {(s-28)*1024}"] if (s & 3) == 0 else []
    DQ.add(f"B{s}", 2)
    return [o + [f"buffer_load_dwordx4 {vr(r,4)}, v3, s[20:23], s48 offen offset:{(s&3)*1024} sc1"],
            [f"buffer_load_dwordx4 {vr(r+4,4)}, v3, s[20:23], s49 offen offset:{(s&3)*1024} sc1"]]
for s in range(BD - 1): emit(issb(s))
A(f"buffer_load_dwordx4 {vr(XRr,4)}, v224, s[32:35], s54 offen")
A(f"buffer_load_dwordx4 {vr(XRr+4,4)}, v224, s[32:35], s54 offen offset:32")
DQ.add("X", 2)
def rdw(s):
    slot = s % WD; w = WF + 8 * (s & 1)
    hi, lo = DREG[slot] >> 16, DREG[slot] & 0xffff
    vb = [4, 232, 234][hi]
    return [f"ds_read_b64_tr_b16 {vr(w+4*u+2*sec,2)}, v{vb+u} offset:{lo+sec*1024}" for u in range(2) for sec in range(2)]
for i in rdw(0): A(i)
DQ.wait("B0")
def dump_acc(acc, which):
    o = []
    for a in range(1, 4):
        for qd in range(4):
            o.append(f"ds_write_b128 v229, {vr(acc+16*a+4*qd,4)} offset:{(a-1)*4096 + qd*1024}")
    return o
for s in range(NS):
    w = WF + 8 * (s & 1); b = BF + 8 * (s % BD)
    acc = AD if s < 28 else AS
    if s in (12, 28): PR.stamp()
    if s + 1 < NS:
        DQ.wait([f"W{s+1}", f"B{s+1}"])
        for i in rdw(s + 1): A(i)
        A("s_waitcnt lgkmcnt(4)")
    else:
        A("s_waitcnt lgkmcnt(0)")
    if s == 2:
        A(ld1); DQ.add("P1", 1)
    if s == 12 - BD + 1:
        DQ.wait("P1")
        spin(A, "MH1", ld1, 228)
    if s == 18:
        A(f"""s_lshl_b32 s55, s50, 12
        s_lshl_b32 s57, s15, 10
        s_add_u32 s55, s55, s57
        s_add_u32 s55, s55, {WS_FO}""")
        ld2 = "buffer_load_dword v228, v227, s[20:23], s55 offen sc1"
        A(ld2); DQ.add("PO", 1)
    if s == 28 - BD + 1:
        DQ.wait("PO")
        spin(A, "MO", ld2, 228)
    grp = []
    if s + BD - 1 < NS: grp += issb(s + BD - 1)
    if s >= 1 and s + WD - 1 < NS: grp += issw(s + WD - 1, DQ)
    grp += [[]] * (4 - len(grp))
    for a in range(4):
        u, tt = a >> 1, a & 1
        r = acc + 16 * a
        c = "0" if s in (0, 28) else vr(r, 16)
        A(f"v_mfma_f32_32x32x16_bf16 {vr(r,16)}, {vr(w+4*u,4)}, {vr(b+4*tt,4)}, {c}")
        for i in grp[a]: A(i)
PR.stamp()
def chunk(which, a, qd):
    k = which * 12 + (a - 1) * 4 + qd
    addr = XREG[k >> 1] + (k & 1) * 1024
    return addr - 65536
XREG = [69632 + 8192 * i for i in range(10)] + [32768 + 131072, 40960 + 131072]
A("v_add_u32 v6, s43, v3\nv_add_u32 v6, 0x10000, v6\nv_add_u32 v7, 0x10000, v6\nv_subrev_u32 v236, 0x10000, v6")
def xaddr(base3, which, a, qd):
    k = which * 12 + (a - 1) * 4 + qd
    reg = ([69632 + 8192 * i for i in range(10)] + [32768, 40960])[k >> 1] + (k & 1) * 1024
    return base3[reg >> 16], reg & 0xffff
for which, acc in ((0, AD), (1, AS)):
    for a in range(1, 4):
        for qd in range(4):
            vb, off = xaddr([236, 6, 7], which, a, qd)
            A(f"ds_write_b128 v{vb}, {vr(acc+16*a+4*qd,4)} offset:{off}")
for a in range(1, 4):
    b = 237 + 3 * (a - 1)
    A(f"s_xor_b32 s57, s15, {a}\ns_lshl_b32 s57, s57, 11\nv_add_u32 v{b}, s57, v3\nv_add_u32 v{b+1}, 0x10000, v{b}\nv_add_u32 v{b+2}, 0x20000, v{b}")
A("s_waitcnt lgkmcnt(0)")
A("s_barrier")
PR.stamp()
for which, acc in ((0, AD), (1, AS)):
    for a in range(1, 4):
        b = 237 + 3 * (a - 1)
        for qd in range(4):
            vb, off = xaddr([b, b + 1, b + 2], which, a, qd)
            A(f"ds_read_b128 {vr(acc+16*a+4*qd,4)}, v{vb} offset:{off}")
for j in range(2):
    A(f"v_permlane32_swap_b32 v{XRr+4*j}, v{XRr+4*j+2}\nv_permlane32_swap_b32 v{XRr+4*j+1}, v{XRr+4*j+3}")
T = 16
for d in range(8): A(f"v_lshlrev_b32 v{T+32+2*d}, 16, v{XRr+d}\nv_and_b32 v{T+33+2*d}, 0xffff0000, v{XRr+d}")
A("s_waitcnt lgkmcnt(12)")
for r in range(0, 16, 2):
    A(f"v_pk_add_f32 {vr(AD+r,2)}, {vr(AD+r,2)}, {vr(AD+16+r,2)}\nv_pk_add_f32 {vr(AD+32+r,2)}, {vr(AD+32+r,2)}, {vr(AD+48+r,2)}")
for r in range(0, 16, 2): A(f"v_pk_add_f32 {vr(AD+r,2)}, {vr(AD+r,2)}, {vr(AD+32+r,2)}")
for r in range(16): A(f"v_mul_f32 v{T+r}, {f32(-LOG2E)}, v{AD+r}")
for r in range(16): A(f"v_exp_f32 v{T+r}, v{T+r}")
A("s_waitcnt lgkmcnt(0)")
for r in range(0, 16, 2):
    A(f"v_pk_add_f32 {vr(AS+r,2)}, {vr(AS+r,2)}, {vr(AS+16+r,2)}\nv_pk_add_f32 {vr(AS+32+r,2)}, {vr(AS+32+r,2)}, {vr(AS+48+r,2)}")
for r in range(0, 16, 2): A(f"v_pk_add_f32 {vr(AS+r,2)}, {vr(AS+r,2)}, {vr(AS+32+r,2)}")
for r in range(16): A(f"v_add_f32 v{T+r}, 1.0, v{T+r}")
for r in range(16): A(f"v_rcp_f32 v{T+r}, v{T+r}")
for r in range(0, 16, 2): A(f"v_pk_mul_f32 {vr(AD+r,2)}, {vr(AD+r,2)}, {vr(AS+r,2)}")
for r in range(0, 16, 2): A(f"v_pk_fma_f32 {vr(AD+r,2)}, {vr(AD+r,2)}, {vr(T+r,2)}, {vr(T+32+r,2)}")
for d in range(8): A(f"v_cvt_pk_bf16_f32 v{XRr+d}, v{AD+2*d}, v{AD+2*d+1}")
A("s_nop 1")
for j in range(2):
    A(f"v_permlane32_swap_b32 v{XRr+4*j}, v{XRr+4*j+2}\nv_permlane32_swap_b32 v{XRr+4*j+1}, v{XRr+4*j+3}")
A(f"buffer_store_dwordx4 {vr(XRr,4)}, v224, s[36:39], s54 offen")
A(f"buffer_store_dwordx4 {vr(XRr+4,4)}, v224, s[36:39], s54 offen offset:32")
PR.stamp()
PR.dump(2)
A("s_endpgm")
A.label("L_CODE_END")
A.raw('.section .rodata,"a"')
A.raw(kernel_desc(NAME, 256))
txt = A.text()
if OPT.get("plainst"):
    import re
    txt = re.sub(r"(buffer_store_dwordx4 .*s63 offen) sc1", r"\1", txt)
if OPT.get("align", 1):
    import align
    txt = align.align(txt)
print(txt)
```

```python
import math
from asmlib import *
WS_Q = 0; WS_K = 2 << 20; WS_V = 4 << 20; WS_O = 6 << 20; WS_H = 8 << 20
WS_FO = (17 << 20)
LOG2E = 1.4426950408889634
OPT = {}
Prof = None
DRING = 28672; LV = 114688; LONE = 155648

def gen_attn(A, slow, tag, PR, sc, setup=True, bar=False, loads=True, shared=False):
    vL, vLin, vVw, vVr, vStep, vM = 2, 3, 4, 5, 6, [7, 8]
    Qr, Kr, MD, MF, C, S, P, VF, O = 12, 20, 60, 76, [92, 108], 124, 188, 204, [220, 236]
    VST = 188
    jobs = []
    for b in range(10):
        if b <= 8: jobs.append((0, b))
        if b >= 1: jobs.append((1, b))
    def kind(j):
        qb, b = jobs[j]
        if b == qb: return "F"
        if b == 8 + qb: return "D"
        return "N"
    if loads: attn_loads(A, sc, slow)
    if setup: attn_setup2(A)
    if bar: A("s_barrier")
    if slow:
        A("s_lshl_b32 s56, s51, 1\ns_sub_u32 s56, 8, s56")
        for r in range(16): A(f"v_mov_b32 v{C[0]+r}, {f32(-1e30)}")
    A(f"v_mov_b32 v{vM[0]}, {f32(-3e38)}\nv_mov_b32 v{vM[1]}, {f32(-3e38)}")
    uid = [0]
    def qk(j, dst, cvalid, cneg):
        qb, b = jobs[j]
        ins = lambda c: f"v_mfma_f32_32x32x16_bf16 {vr(dst,16)}, {vr(Kr+4*b,4)}, {vr(Qr+4*qb,4)}, {c}"
        if slow and b < 8:
            uid[0] += 1
            l1, l2 = f"{tag}_i{uid[0]}", f"{tag}_j{uid[0]}"
            A(f"s_cmp_gt_u32 s56, {b}\ns_cbranch_scc1 {l1}")
            A(ins(cvalid)); A(f"s_branch {l2}")
            A.label(l1); A(ins(vr(cneg, 16))); A.label(l2)
        else:
            A(ins(cvalid))
    NJ = len(jobs)
    seenb = -1
    vw_done = 0
    for j in range(NJ + 3):
        if j < NJ:
            qb, b = jobs[j]
            if b > seenb:
                A(f"s_waitcnt lgkmcnt({9 - b})" if shared else f"s_waitcnt vmcnt({19 - b})"); seenb = b
            k = kind(j)
            qk(j, S + 16 * (j % 4), {"N": "0", "F": vr(MF, 16), "D": vr(MD, 16)}[k], C[0])
        else:
            A("s_nop 3")
        if j == 3: A("s_nop 7")
        if j >= 3:
            jj = j - 3; qb = jobs[jj][0]; s = S + 16 * (jj % 4)
            for r in range(0, 16, 2):
                A(f"v_max3_f32 v{vM[qb]}, v{vM[qb]}, v{s+r}, v{s+r+1}")
    PR.stamp()
    for b in range(10):
        if shared: break
        A(f"s_waitcnt vmcnt({9-b})")
        A(f"ds_write_b128 v{vVw}, {vr(VST+4*b,4)} offset:{b*1024}")
    A(f"v_mov_b32 v9, v{vM[0]}\nv_mov_b32 v10, v{vM[1]}\ns_nop 1")
    A(f"v_permlane32_swap_b32 v9, v{vM[0]}\nv_permlane32_swap_b32 v10, v{vM[1]}\ns_nop 1")
    A(f"v_max_f32 v{vM[0]}, v{vM[0]}, v9\nv_max_f32 v{vM[1]}, v{vM[1]}, v10")
    NEG = S + 48
    def rdv(b):
        d = VF + 8 * (b & 1)
        for q in range(4):
            A(f"ds_read_b64_tr_b16 {vr(d+2*q,2)}, v{vVr} offset:{256*q}")
        A(f"v_add_u32 v{vVr}, v{vStep}, v{vVr}")
    def pre(j):
        k = kind(j)
        if k != "N":
            qb = jobs[j][0]; s = S + 16 * (j % 3); m = MF if k == "F" else MD
            for r in range(16): A(f"v_sub_f32 v{s+r}, v{m+r}, v{vM[qb]}")
    def qk2(j):
        qb = jobs[j][0]; s = S + 16 * (j % 3)
        qk(j, s, vr(C[qb], 16) if kind(j) == "N" else vr(s, 16), NEG)
    pre(0)
    A("s_waitcnt lgkmcnt(0)")
    rdv(0)
    if slow:
        for r in range(16): A(f"v_mov_b32 v{NEG+r}, {f32(-1e30)}")
    qk2(0)
    for qb in range(2):
        for r in range(16): A(f"v_sub_f32 v{C[qb]+r}, 0, v{vM[qb]}")
    first = [True, True]
    lastrd = 0
    def pv(j, half):
        qb, b = jobs[j]
        c = "0" if (first[qb] and half == 0) else vr(O[qb], 16)
        A(f"v_mfma_f32_32x32x16_bf16 {vr(O[qb],16)}, {vr(VF+8*(b&1)+4*half,4)}, {vr(P+8*(j&1)+4*half,4)}, {c}")
        if half == 1: first[qb] = False
    for j in range(NJ):
        s = S + 16 * (j % 3)
        if j + 1 < NJ:
            pre(j + 1)
            if kind(j + 1) != "N": A("s_nop 1")
            qk2(j + 1)
        for r in range(6): A(f"v_exp_f32 v{s+r}, v{s+r}")
        if j >= 1:
            if jobs[j-1][1] != (jobs[j-2][1] if j >= 2 else -1): A("s_waitcnt lgkmcnt(0)")
            pv(j - 1, 0)
        for r in range(6, 12): A(f"v_exp_f32 v{s+r}, v{s+r}")
        if j >= 1: pv(j - 1, 1)
        bneed = jobs[j][1] + 1 if False else None
        for r in range(12, 16): A(f"v_exp_f32 v{s+r}, v{s+r}")
        if j + 1 < NJ:
            nb = jobs[j + 1][1]
            if nb > lastrd:
                users = [x for x in range(NJ) if jobs[x][1] == nb - 2]
                assert all(x <= j - 1 for x in users), (j, nb, users)
                rdv(nb); lastrd = nb
        for d in range(8):
            A(f"v_cvt_pk_bf16_f32 v{P+8*(j&1)+d}, v{s+2*d}, v{s+2*d+1}")
    A("s_waitcnt lgkmcnt(0)")
    A("s_nop 0")
    pv(NJ - 1, 0); pv(NJ - 1, 1)
    A(f"""s_lshl_b32 s52, s51, 16
    s_lshl_b32 s53, s50, 10
    s_add_u32 s52, s52, s53
    s_add_u32 s52, s52, {WS_O}
    s_add_u32 s53, s52, 32768""")
    for qb in range(2):
        o = O[qb]
        if qb == 1: A("s_nop 3")
        A(f"v_rcp_f32 v9, v{o+8}")
        A("s_nop 0")
        for r in range(8): A(f"v_mul_f32 v{o+r}, v{o+r}, v9")
        for d in range(4): A(f"v_cvt_pk_bf16_f32 v{o+8+d}, v{o+2*d}, v{o+2*d+1}")
        A(f"buffer_store_dwordx4 {vr(o+8,4)}, v{vLin}, s[20:23], s{52+qb} offen sc1")

def attn_loads(A0, sc, slow=True, greg=51, t=(52, 53, 54, 55)):
    def A(x):
        for o, n in zip((52, 53, 54, 55), t): x = x.replace(f's{o}', f'S{n}')
        A0(x.replace('s51', f's{greg}').replace('S', 's'))
    vLin = 3; Qr, Kr, VST = 12, 20, 188
    A(f"""s_lshl_b32 s52, s50, 16
    s_lshl_b32 s53, s51, 11
    s_add_u32 s54, s52, s53
    buffer_load_dwordx4 {vr(Qr,4)}, v{vLin}, s[20:23], s54 offen {sc}
    buffer_load_dwordx4 {vr(Qr+4,4)}, v{vLin}, s[20:23], s54 offen offset:1024 {sc}
    s_sub_u32 s53, s53, 8192""")
    def boff(b, base):
        if slow:
            A(f"s_add_i32 s55, s53, {b*1024}\ns_max_i32 s55, s55, 0\ns_add_u32 s55, s55, s52\ns_add_u32 s55, s55, {base}")
            return "s55", 0
        if b % 4 == 0:
            A(f"s_add_u32 s55, s54, {base + b*1024 - 8192}")
        return "s55", (b % 4) * 1024
    for b in range(10):
        so, im = boff(b, WS_K)
        A(f"buffer_load_dwordx4 {vr(Kr+4*b,4)}, v{vLin}, s[20:23], {so} offen offset:{im} {sc}")
    for b in range(10):
        so, im = boff(b, WS_V)
        A(f"buffer_load_dwordx4 {vr(VST+4*b,4)}, v{vLin}, s[20:23], {so} offen offset:{im} {sc}")

def ones(A):
    A(f"""v_mov_b32 v124, 0x3f803f80
    v_mov_b32 v125, 0x3f803f80
    v_mov_b32 v126, 0x3f803f80
    v_mov_b32 v127, 0x3f803f80
    v_add_u32 v11, {LONE}, v3
    ds_write_b128 v11, v[124:127]""")

def attn_setup(A):
    vL, vLin, vVw, vVr, vStep = 2, 3, 4, 5, 6
    MD, MF = 60, 76
    A(f"""v_and_b32 v9, 31, v1
    v_lshlrev_b32 v{vL}, 5, v9
    v_lshrrev_b32 v10, 5, v1
    v_lshlrev_b32 v11, 4, v10
    v_add_u32 v{vL}, v{vL}, v11
    v_lshlrev_b32 v{vLin}, 4, v1""")

def attn_setup2(A, wreg=14, ones=True):
    vL, vLin, vVw, vVr, vStep = 2, 3, 4, 5, 6
    MD, MF = 60, 76
    if wreg is not None: A(f"s_mul_i32 s57, s{wreg}, 10240\ns_add_u32 s57, s57, {LV}")
    A(f"""v_add_u32 v{vVw}, s57, v{vL}
    v_and_b32 v9, 31, v1
    v_lshrrev_b32 v10, 5, v1
    v_lshlrev_b32 v11, 2, v10
    v_sub_u32 v9, v9, v11
    v_mov_b32 v11, {f32(-1e30)}""")
    if ones: globals()["ones"](A); A(f"v_mov_b32 v11, {f32(-1e30)}")
    for rr in range(16):
        kc = 8 * (rr >> 2) + (rr & 3)
        sp = 60 + 2 * (rr & 1)
        A(f"v_cmp_le_i32 s[{sp}:{sp+1}], {kc}, v9")
        if rr >= 1:
            p = rr - 1; spp = 60 + 2 * (p & 1)
            A("s_nop 0")
            A(f"v_cndmask_b32 v{MD+p}, v11, 0, s[{spp}:{spp+1}]")
            A(f"v_cndmask_b32 v{MF+p}, 0, v11, s[{spp}:{spp+1}]")
    A(f"v_cndmask_b32 v{MD+15}, v11, 0, s[62:63]")
    A(f"v_cndmask_b32 v{MF+15}, 0, v11, s[62:63]")
    A(f"""v_lshlrev_b32 v10, 7, v10
    v_bfe_u32 v9, v1, 2, 2
    v_lshlrev_b32 v9, 5, v9
    v_add_u32 v10, v10, v9
    v_and_b32 v9, 1, v1
    v_lshlrev_b32 v9, 4, v9
    v_add_u32 v10, v10, v9
    v_bfe_u32 v9, v1, 1, 1
    v_lshlrev_b32 v9, 3, v9
    v_add_u32 v10, v10, v9
    v_add_u32 v9, s57, v10
    v_xor_b32 v10, 128, v10
    v_add_u32 v10, {LONE}, v10
    v_and_b32 v11, 16, v1
    v_cmp_eq_u32 vcc, 0, v11
    v_mov_b32 v11, 1024
    s_nop 0
    v_cndmask_b32 v{vVr}, v10, v9, vcc
    v_cndmask_b32 v{vStep}, 0, v11, vcc""")

def gen_d(A, PR, sc, get_nonce):
    vDW, vLin, vWa = 2, 3, [4, 5]
    XR, BF, WF, AD, AS = 8, 16, 80, 96, 160
    WD, BD, NS = 14, 8, 36
    A(f"""v_bfe_u32 v6, v1, 2, 3
    v_lshlrev_b32 v6, 10, v6
    v_lshrrev_b32 v7, 5, v1
    v_lshlrev_b32 v7, 6, v7
    v_add_u32 v6, v6, v7
    v_and_b32 v7, 3, v1
    v_lshlrev_b32 v7, 4, v7
    v_add_u32 v{vDW}, v6, v7
    v_lshlrev_b32 v{vLin}, 4, v1
    s_mul_i32 s13, s15, {DRING}
    s_mul_i32 s40, s15, {28*16*1024}
    s_lshl_b32 s57, s51, 7
    s_add_u32 s40, s40, s57
    s_lshl_b32 s42, s15, 17
    s_add_u32 s42, s42, s57""")
    ROT = OPT.get("rotd", 0)
    if ROT:
        A("""s_and_b32 s57, s50, 3
        s_mul_i32 s57, s57, 7
        s_mul_i32 s58, s51, 7
        s_lshr_b32 s58, s58, 1
        s_add_u32 s57, s57, s58
        s_sub_u32 s58, s57, 28
        s_cmp_ge_u32 s57, 28
        s_cselect_b32 s46, s58, s57
        s_mov_b32 s47, s46""")
    q = []
    def adv(reg):
        return [f"s_add_u32 s{reg}, s{reg}, 1", f"s_cmp_eq_u32 s{reg}, 28", f"s_cselect_b32 s{reg}, 0, s{reg}"]
    def issw(s):
        slot = s % WD
        o = []
        if s < 28:
            srd = 24
            if ROT: o += ["s_lshl_b32 s44, s46, 14", "s_add_u32 s44, s44, s40"] + adv(46)
            else: o += [f"s_add_u32 s44, s40, {s*16384}"]
        else:
            srd = 28
            o += [f"s_add_u32 s44, s42, {(s-28)*16384}"]
        a = o + [f"s_add_u32 m0, s13, {slot*2048}", "s_add_u32 s45, s44, 8192",
                 f"buffer_load_dwordx4 v{vDW}, s[{srd}:{srd+3}], s44 offen lds"]
        b = [f"s_add_u32 m0, s13, {slot*2048+1024}", "s_nop 0",
             f"buffer_load_dwordx4 v{vDW}, s[{srd}:{srd+3}], s45 offen lds"]
        q.append((f"W{s}", 2))
        return [a, b]
    def issb(s):
        r = BF + 8 * (s % BD)
        if s < 28:
            if ROT: o = ["s_lshl_b32 s48, s47, 10", "s_add_u32 s49, s48, s52", "s_add_u32 s48, s48, s41"] + adv(47)
            else: o = [f"s_add_u32 s48, s41, {s*1024}", f"s_add_u32 s49, s52, {s*1024}"]
            c = sc
        else:
            o = [f"s_add_u32 s48, s43, {(s-28)*1024}", f"s_add_u32 s49, s53, {(s-28)*1024}"]
            c = "sc1"
        q.append((f"B{s}", 2))
        return [o + [f"buffer_load_dwordx4 {vr(r,4)}, v{vLin}, s[20:23], s48 offen {c}"],
                [f"buffer_load_dwordx4 {vr(r+4,4)}, v{vLin}, s[20:23], s49 offen {c}"]]
    def em(gs):
        for g in gs:
            for i in g: A(i)
    def wait(tags):
        idx = max([i for i, (t, _) in enumerate(q) if t in tags], default=-1)
        if idx < 0: return
        rest = sum(c for _, c in q[idx + 1:])
        A(f"s_waitcnt vmcnt({rest})")
        del q[:idx + 1]
    A(f"""s_lshl_b32 s57, s50, 1
    s_and_b32 s58, s15, 1
    s_add_u32 s59, s57, s58
    s_xor_b32 s58, s58, 1
    s_add_u32 s57, s57, s58
    s_mul_i32 s58, s15, {28*1024}
    s_add_u32 s58, s58, {WS_H}
    s_mul_i32 s41, s59, {112*1024}
    s_add_u32 s41, s41, s58
    s_mul_i32 s52, s57, {112*1024}
    s_add_u32 s52, s52, s58
    s_lshl_b32 s58, s15, 13
    s_add_u32 s58, s58, {WS_O}
    s_lshl_b32 s43, s59, 15
    s_add_u32 s43, s43, s58
    s_lshl_b32 s53, s57, 15
    s_add_u32 s53, s53, s58""")
    for s in range(3):
        em(issw(s)); em(issb(s))
    A(f"""v_and_b32 v6, 31, v1
    v_lshlrev_b32 v6, 10, v6
    v_lshrrev_b32 v7, 5, v1
    v_lshlrev_b32 v7, 4, v7
    v_add_u32 v224, v6, v7
    s_lshl_b32 s54, s59, 15
    s_lshl_b32 s57, s51, 7
    s_add_u32 s54, s54, s57
    s_lshr_b32 s57, s15, 1
    s_lshl_b32 s57, s57, 6
    s_add_u32 s54, s54, s57""")
    A(f"""v_lshrrev_b32 v6, 5, v1
    v_lshlrev_b32 v6, 8, v6
    v_bfe_u32 v7, v1, 2, 2
    v_lshlrev_b32 v7, 6, v7
    v_add_u32 v6, v6, v7
    v_and_b32 v7, 3, v1
    v_lshlrev_b32 v7, 3, v7
    v_add_u32 v6, v6, v7
    v_bfe_u32 v7, v1, 4, 1
    v_lshlrev_b32 v7, 5, v7
    v_add_u32 v6, v6, v7
    s_lshl_b32 s57, s57, 3
    v_add_u32 v6, s57, v6
    v_xor_b32 v7, 512, v6
    v_add_u32 v{vWa[0]}, s13, v6
    v_add_u32 v{vWa[1]}, s13, v7""")
    for s in range(3, BD - 1):
        em(issw(s)); em(issb(s))
    for s in range(BD - 1, WD - 1):
        em(issw(s))
    A(f"buffer_load_dwordx4 {vr(XR,4)}, v224, s[32:35], s54 offen")
    A(f"buffer_load_dwordx4 {vr(XR+4,4)}, v224, s[32:35], s54 offen offset:32")
    q.append(("X", 2))
    get_nonce(A, q, 0)
    def rdw(s):
        slot = s % WD; w = WF + 8 * (s & 1)
        return [f"ds_read_b64_tr_b16 {vr(w+4*u+2*sec,2)}, v{vWa[u]} offset:{slot*2048+sec*1024}" for u in range(2) for sec in range(2)]
    PR.stamp()
    wait(["W0", "B0"])
    PR.stamp()
    for i in rdw(0): A(i)
    for s in range(NS):
        w = WF + 8 * (s & 1); b = BF + 8 * (s % BD)
        acc = AD if s < 28 else AS
        if s in (8, 16, 28): PR.stamp()
        if s + 1 < NS:
            wait([f"W{s+1}", f"B{s+1}"])
            for i in rdw(s + 1): A(i)
            A("s_waitcnt lgkmcnt(4)")
        else:
            A("s_waitcnt lgkmcnt(0)")
        if s == 10:
            get_nonce(A, q, 1)
        if s == 18:
            A(f"""s_lshl_b32 s55, s50, 7
            s_add_u32 s55, s55, {WS_FO}
            v_and_b32 v6, 31, v1
            v_lshlrev_b32 v6, 2, v6
            buffer_load_dword v7, v6, s[20:23], s55 offen sc1""")
            q.append(("PO", 1))
        if s == 28 - BD + 1:
            wait(["PO"])
            A("""v_cmp_eq_u32 vcc, s80, v7
            s_mov_b32 s56, 0
            s_cmp_eq_u64 vcc, -1
            s_cbranch_scc1 D_OK""")
            A.label("D_POLL")
            A("""s_sleep 2
            buffer_load_dword v7, v6, s[20:23], s55 offen sc1
            s_add_u32 s56, s56, 1
            s_waitcnt vmcnt(0)
            v_cmp_eq_u32 vcc, s80, v7
            s_cmp_gt_u32 s56, 20000
            s_cbranch_scc1 D_OK
            s_cmp_eq_u64 vcc, -1
            s_cbranch_scc0 D_POLL""")
            A.label("D_OK")
        grp = []
        if s + BD - 1 < NS: grp += issb(s + BD - 1)
        if s + WD - 1 < NS: grp += issw(s + WD - 1)
        grp += [[]] * (4 - len(grp))
        for a in range(4):
            u, tt = a >> 1, a & 1
            r = acc + 16 * a
            c = "0" if s in (0, 28) else vr(r, 16)
            A(f"v_mfma_f32_32x32x16_bf16 {vr(r,16)}, {vr(w+4*u,4)}, {vr(b+4*tt,4)}, {c}")
            for i in grp[a]: A(i)
    PR.stamp()
    A(f"v_add_u32 v6, s13, v{vLin}")
    for a in range(1, 4):
        for qd in range(4):
            A(f"ds_write_b128 v6, {vr(AD+16*a+4*qd,4)} offset:{(a-1)*8192 + qd*1024}")
    for a in range(1, 4):
        for qd in range(4):
            A(f"ds_write_b128 v6, {vr(AS+16*a+4*qd,4)} offset:{(a-1)*8192 + 4096 + qd*1024}")
    for a in range(1, 4):
        A(f"s_xor_b32 s57, s15, {a}\ns_mul_i32 s57, s57, {DRING}\nv_add_u32 v{225+a}, s57, v{vLin}")
    A("s_waitcnt lgkmcnt(0)")
    A("s_barrier")
    PR.stamp()
    for which, acc in ((0, AD), (1, AS)):
        for a in range(1, 4):
            for qd in range(4):
                A(f"ds_read_b128 {vr(acc+16*a+4*qd,4)}, v{225+a} offset:{(a-1)*8192 + which*4096 + qd*1024}")
    for j in range(2):
        A(f"v_permlane32_swap_b32 v{XR+4*j}, v{XR+4*j+2}")
        A(f"v_permlane32_swap_b32 v{XR+4*j+1}, v{XR+4*j+3}")
    T = 16
    for d in range(8):
        A(f"v_lshlrev_b32 v{T+32+2*d}, 16, v{XR+d}\nv_and_b32 v{T+33+2*d}, 0xffff0000, v{XR+d}")
    A("s_waitcnt lgkmcnt(12)")
    for r in range(0, 16, 2):
        A(f"v_pk_add_f32 {vr(AD+r,2)}, {vr(AD+r,2)}, {vr(AD+16+r,2)}")
        A(f"v_pk_add_f32 {vr(AD+32+r,2)}, {vr(AD+32+r,2)}, {vr(AD+48+r,2)}")
    for r in range(0, 16, 2):
        A(f"v_pk_add_f32 {vr(AD+r,2)}, {vr(AD+r,2)}, {vr(AD+32+r,2)}")
    for r in range(16): A(f"v_mul_f32 v{T+r}, {f32(-LOG2E)}, v{AD+r}")
    for r in range(16): A(f"v_exp_f32 v{T+r}, v{T+r}")
    A("s_waitcnt lgkmcnt(0)")
    for r in range(0, 16, 2):
        A(f"v_pk_add_f32 {vr(AS+r,2)}, {vr(AS+r,2)}, {vr(AS+16+r,2)}")
        A(f"v_pk_add_f32 {vr(AS+32+r,2)}, {vr(AS+32+r,2)}, {vr(AS+48+r,2)}")
    for r in range(0, 16, 2):
        A(f"v_pk_add_f32 {vr(AS+r,2)}, {vr(AS+r,2)}, {vr(AS+32+r,2)}")
    for r in range(16): A(f"v_add_f32 v{T+r}, 1.0, v{T+r}")
    for r in range(16): A(f"v_rcp_f32 v{T+r}, v{T+r}")
    for r in range(0, 16, 2):
        A(f"v_pk_mul_f32 {vr(AD+r,2)}, {vr(AD+r,2)}, {vr(AS+r,2)}")
    for r in range(0, 16, 2):
        A(f"v_pk_fma_f32 {vr(AD+r,2)}, {vr(AD+r,2)}, {vr(T+r,2)}, {vr(T+32+r,2)}")
    for d in range(8):
        A(f"v_cvt_pk_bf16_f32 v{XR+d}, v{AD+2*d}, v{AD+2*d+1}")
    A("s_nop 1")
    for j in range(2):
        A(f"v_permlane32_swap_b32 v{XR+4*j}, v{XR+4*j+2}")
        A(f"v_permlane32_swap_b32 v{XR+4*j+1}, v{XR+4*j+3}")
    A(f"buffer_store_dwordx4 {vr(XR,4)}, v224, s[36:39], s54 offen")
    A(f"buffer_store_dwordx4 {vr(XR+4,4)}, v224, s[36:39], s54 offen offset:32")

def gen_k23(A):
    kernel_header(A, "k2_kernel")
    A("""s_cmp_ge_u32 s2, 256
    s_cbranch_scc1 K2_END
    s_load_dwordx2 s[4:5], s[0:1], 0
    s_load_dwordx2 s[6:7], s[0:1], 16
    s_load_dwordx4 s[8:11], s[0:1], 48
    s_load_dwordx4 s[16:19], s[0:1], 64
    v_and_b32 v1, 63, v0
    v_lshrrev_b32 v2, 6, v0
    s_and_b32 s57, s2, 7
    v_readfirstlane_b32 s14, v2
    s_lshr_b32 s58, s2, 3
    s_and_b32 s58, s58, 3
    s_lshr_b32 s59, s2, 5
    s_and_b32 s15, s14, 3
    s_waitcnt lgkmcnt(0)
    s_mov_b32 s20, s18
    s_mov_b32 s21, s19
    s_mov_b32 s22, 0x10000000
    s_mov_b32 s23, 0x20000
    s_mov_b32 s18, 256
    s_mov_b32 s19, 0x20000""")
    PR = Prof(A, 1, 82); PR.stamp(True); PR.stamp()
    A("s_cmp_ge_u32 s14, 4")
    A("s_cbranch_scc1 K2_D")
    A("""s_lshl_b32 s50, s58, 3
    s_add_u32 s50, s50, s57
    s_lshl_b32 s51, s59, 2
    s_add_u32 s51, s51, s14""")
    attn_setup(A)
    A("""s_or_b32 s57, s2, s14
    s_cmp_lg_u32 s57, 0
    s_cbranch_scc1 K2_NONONCE
    s_memrealtime s[56:57]
    s_waitcnt lgkmcnt(0)
    s_mul_i32 s56, s56, 0x9e3779b1
    s_or_b32 s56, s56, 1
    v_mov_b32 v9, 0
    v_mov_b32 v10, s56
    buffer_store_dword v10, v9, s[16:19], 0 offen sc1
    s_waitcnt vmcnt(0)""")
    A.label("K2_NONONCE")
    A("s_cmp_lt_u32 s51, 4")
    A("s_cbranch_scc1 K2_SLOW")
    n0 = PR.n
    gen_attn(A, False, "AF", PR, "")
    A("s_branch K2_AFIN")
    A.label("K2_SLOW")
    PR.n = n0
    gen_attn(A, True, "AS", PR, "")
    A.label("K2_AFIN")
    PR.stamp()
    A("v_mov_b32 v9, 0\ns_mov_b32 s57, 0")
    A.label("K2_AN")
    A("""buffer_load_dword v10, v9, s[16:19], 0 offen sc1
    s_add_u32 s57, s57, 1
    s_waitcnt vmcnt(0)
    v_readfirstlane_b32 s80, v10
    s_cmp_gt_u32 s57, 4000
    s_cbranch_scc1 K2_AN2
    s_cmp_eq_u32 s80, 0
    s_cbranch_scc1 K2_AN""")
    A.label("K2_AN2")
    A(f"""s_lshl_b32 s57, s51, 7
    s_lshl_b32 s58, s50, 2
    s_add_u32 s57, s57, s58
    s_add_u32 s57, s57, {WS_FO}
    s_mov_b64 exec, 1
    buffer_store_dword v10, v9, s[20:23], s57 offen sc1
    s_mov_b64 exec, -1""")
    PR.stamp()
    while PR.n < 10 and OPT["prof"]: PR.stamp()
    PR.stamp(True); PR.dump(2)
    A("s_endpgm")
    A.label("K2_D")
    PR.n = 2
    A("""s_lshl_b32 s50, s57, 2
    s_add_u32 s50, s50, s58
    s_mov_b32 s51, s59
    s_mov_b32 s24, s8
    s_mov_b32 s25, s9
    s_mov_b32 s26, 0x1c0000
    s_mov_b32 s27, 0x20000
    s_mov_b32 s28, s6
    s_mov_b32 s29, s7
    s_mov_b32 s30, 0x80000
    s_mov_b32 s31, 0x20000
    s_mov_b32 s32, s4
    s_mov_b32 s33, s5
    s_mov_b32 s34, 0x200000
    s_mov_b32 s35, 0x20000
    s_mov_b32 s36, s10
    s_mov_b32 s37, s11
    s_mov_b32 s38, 0x200000
    s_mov_b32 s39, 0x20000""")
    def get_nonce(A, q, phase):
        if phase == 0:
            A("v_mov_b32 v230, 0\nbuffer_load_dword v231, v230, s[16:19], 0 offen sc1")
            q.append(("N", 1))
        else:
            assert "N" not in [t for t, _ in q]
            A("""v_readfirstlane_b32 s80, v231
            s_mov_b32 s56, 0
            s_cmp_eq_u32 s80, 0
            s_cbranch_scc0 D_GN""")
            A.label("D_PN")
            A("""buffer_load_dword v231, v230, s[16:19], 0 offen sc1
            s_add_u32 s56, s56, 1
            s_waitcnt vmcnt(0)
            v_readfirstlane_b32 s80, v231
            s_cmp_gt_u32 s56, 4000
            s_cbranch_scc1 D_GN
            s_cmp_eq_u32 s80, 0
            s_cbranch_scc1 D_PN""")
            A.label("D_GN")
    gen_d(A, PR, "", get_nonce)
    PR.stamp(); PR.stamp(True); PR.dump(2)
    A.label("K2_END")
    A("s_endpgm")
    return 256
```

```python
import sys, math
from asmlib import *

NAME = "recurrent_scan__sliding_block__geglu_ffn__prompt_kernel"
WS_Q = 0; WS_K = 2 << 20; WS_V = 4 << 20; WS_O = 6 << 20; WS_H = 8 << 20
WS_TOK = 16 << 20
WS_CS = (16 << 20) + 65536
WS_FO = 17 << 20
WS_FH = (17 << 20) + (1 << 18)
WS_FQ = (17 << 20) + (2 << 18)
LOG2E = 1.4426950408889634
OPT = dict(prof=0, rot=2, codepf=1, wd=14, sleep=8, warm=5, thr=6, aprio=3, l2pf=0, rotd=1, hs=40, dprio=0, wtouch=0, htouch=1, wts=10, defer=1)
for a in sys.argv[1:]:
    k, v = a.split("="); OPT[k] = int(v)
XR = 0; XS = 16384; WR = 49152; WSL = 20480; EX = 151552
EX_TOK = EX; EX_COL = EX + 4096
DREG = [32768, 40960, 69632, 77824,   86016, 94208, 102400,   110592, 118784, 0, 8192,   126976, 135168, 143360]
DAVAIL = {13: 4, 14: 3, 15: 4, 16: 3}
LONE = 26624
SPIN = 20000

class Prof:
    def __init__(self, A, base=82): self.A = A; self.n = 0; self.base = base
    def stamp(self, real=False):
        if not OPT["prof"]: return
        i = self.n; self.n += 1
        assert i < 16
        self.A(f"{'s_memrealtime' if real else 's_memtime'} s[100:101]")
        self.A("s_waitcnt lgkmcnt(0)")
        self.A(f"s_mov_b32 s{self.base+i}, s100")
    def dump(self, vt):
        if not OPT["prof"]: return
        A = self.A
        while self.n < 15: self.stamp()
        self.stamp(True)
        A(f"s_lshl_b32 s68, s2, 3\ns_add_u32 s68, s68, s14\ns_lshl_b32 s68, s68, 6\ns_add_u32 s68, s68, {32<<20}")
        A(f"v_mov_b32 v{vt}, 0")
        for i in range(self.n):
            A(f"v_mov_b32 v{vt+1}, s{self.base+i}")
            A(f"buffer_store_dword v{vt+1}, v{vt}, s[20:23], s68 offen offset:{4*i}")

class VQ:
    def __init__(self, A): self.A = A; self.q = []
    def add(self, tag, n): self.q.append((tag, n))
    def wait(self, tags):
        if isinstance(tags, str): tags = [tags]
        idx = max([i for i, (t, _) in enumerate(self.q) if t in tags], default=-1)
        if idx < 0: return
        rest = sum(c for _, c in self.q[idx + 1:])
        assert rest < 64
        self.A(f"s_waitcnt vmcnt({rest})")
        del self.q[:idx + 1]
    def has(self, tag): return tag in [t for t, _ in self.q]
    def clear(self): self.q = []

def spin(A, name, load, vval, maskexpr=None, cnt=56):
    A(f"""v_cmp_eq_u32 vcc, s80, v{vval}
    s_mov_b32 s{cnt}, 0
    s_cmp_eq_u64 vcc, -1
    s_cbranch_scc1 {name}_OK""")
    A.label(f"{name}_P")
    A(f"""s_sleep {OPT['sleep']}
    {load}
    s_add_u32 s{cnt}, s{cnt}, 1
    s_waitcnt vmcnt(0)
    v_cmp_eq_u32 vcc, s80, v{vval}
    s_cmp_gt_u32 s{cnt}, {SPIN}
    s_cbranch_scc1 {name}_OK
    s_cmp_eq_u64 vcc, -1
    s_cbranch_scc0 {name}_P""")
    A.label(f"{name}_OK")

A = Asm()
A.raw(f"""; recurrent_scan__sliding_block__geglu_ffn__prompt : generated by a python script (single persistent kernel)
; @launch grid=(256,1,1) block=(512,1,1) lds=163840
.amdgcn_target "amdgcn-amd-amdhsa--gfx950"
.text""")
kernel_header(A, NAME)
PR = Prof(A)
A("""s_load_dwordx4 s[4:7], s[0:1], 0
s_load_dwordx4 s[8:11], s[0:1], 32
s_load_dwordx4 s[16:19], s[0:1], 64
s_cmp_ge_u32 s2, 256
s_cbranch_scc1 L_END
v_and_b32 v1, 63, v0
v_lshrrev_b32 v16, 6, v0
s_and_b32 s57, s2, 7
v_readfirstlane_b32 s14, v16
s_lshr_b32 s58, s2, 3
s_and_b32 s44, s57, 1
s_and_b32 s45, s58, 7
s_lshl_b32 s47, s44, 3
s_add_u32 s47, s47, s45
s_lshr_b32 s46, s57, 1
s_lshr_b32 s49, s58, 3
s_lshl_b32 s48, s46, 2
s_add_u32 s48, s48, s49
s_mul_i32 s51, s46, 3
s_add_u32 s52, s51, s49
s_lshl_b32 s53, s52, 1
s_add_u32 s57, s46, 24
s_add_u32 s54, s51, 12
s_cmp_eq_u32 s49, 3
s_cselect_b32 s50, 1, 0
s_cselect_b32 s53, s57, s53
s_cselect_b32 s54, s54, s52
s_and_b32 s15, s14, 3
s_cmp_lt_u32 s14, 4
s_cbranch_scc1 L_M""")
def ws_srd():
    A("""s_mov_b32 s20, s18
    s_mov_b32 s21, s19
    s_mov_b32 s22, 0x10000000
    s_mov_b32 s23, 0x20000
    s_mov_b32 s18, 256
    s_mov_b32 s19, 0x20000""")
vDW = [2, 3, 4, 5, 6]; vDX = [7, 8]
ROT = OPT["rot"]
A("""s_lshl_b32 s58, s15, 15
v_lshrrev_b32 v16, 3, v1
v_lshlrev_b32 v16, 10, v16
v_add_u32 v16, s58, v16
v_lshrrev_b32 v17, 4, v1
v_xor_b32 v17, v17, v1
v_and_b32 v17, 7, v17
v_lshlrev_b32 v17, 4, v17
v_add_u32 v7, v16, v17
v_xor_b32 v8, 64, v7
s_lshl_b32 s12, s15, 12
s_lshl_b32 s13, s15, 10
s_lshl_b32 s57, s47, 17""")
if ROT == 1: A("s_lshl_b32 s81, s49, 2\ns_lshl_b32 s58, s45, 1\ns_add_u32 s81, s81, s58")
elif ROT == 2: A("s_add_u32 s81, s49, s45\ns_lshl_b32 s81, s81, 2")
elif ROT == 3: A("s_add_u32 s81, s49, s45\ns_lshl_b32 s81, s81, 3")
A("""s_waitcnt lgkmcnt(0)
s_add_u32 s72, s4, s57
s_addc_u32 s73, s5, 0
s_mov_b32 s74, 0x20000
s_mov_b32 s75, 0x20000""")
PR.stamp(True); PR.stamp()
def dma_x(u):
    o = []
    for jj in range(4):
        pre = [f"s_add_u32 s56, s81, {2*u}", "s_and_b32 s56, s56, 15", "s_lshl_b32 s56, s56, 6"] if jj == 0 else []
        o.append(pre + [f"s_add_u32 m0, s12, {XR + (u%3)*XS + jj*1024}", f"s_add_u32 s59, s56, {jj*8192}",
                        f"buffer_load_dwordx4 v{vDX[jj&1]}, s[72:75], s59 offen lds"])
    return o
def emit(groups):
    for g in groups:
        for i in g: A(i)
    return len(groups)
Q = VQ(A)
n0 = emit(dma_x(0))
A("s_lshl_b32 s55, s53, 7\ns_lshl_b32 s56, s54, 7")
tabA = [(8, 55, 0), (8, 55, 128), (10, 55, 0), (10, 55, 128), (6, 56, 0)]
tabC = [(8, 55, 0), (10, 55, 0), (6, 56, 0), (6, 56, 128), (6, 56, 256)]
A("""v_bfe_u32 v16, v1, 2, 3
s_lshl_b32 s57, s15, 3
v_add_u32 v16, s57, v16
v_lshrrev_b32 v17, 5, v1
v_lshlrev_b32 v17, 6, v17
v_and_b32 v18, 3, v1
v_lshlrev_b32 v18, 4, v18
v_add_u32 v17, v17, v18
s_lshl_b32 s66, s50, 5
s_xor_b32 s67, s66, 32""")
swap = {0: None, 1: 66, 2: 67, 3: 67, 4: None}
for D in range(5):
    S = 24 + 4 * D
    (pa, ca, oa), (pc, cc_, oc) = tabA[D], tabC[D]
    A("s_cmp_eq_u32 s50, 1")
    if pa != pc:
        A(f"s_cselect_b32 s{S}, s{pc}, s{pa}\ns_cselect_b32 s{S+1}, s{pc+1}, s{pa+1}")
        src = S
    else: src = pa
    if ca != cc_: A(f"s_cselect_b32 s57, s{cc_}, s{ca}"); cs = 57
    else: cs = ca
    if oa != oc: A(f"s_cselect_b32 s58, {oc}, {oa}")
    sa = 3072 if pa == 6 else 3584; sc = 3072 if pc == 6 else 3584
    A(f"s_movk_i32 s{60+D}, {sa}")
    if sa != sc: A(f"s_cselect_b32 s{60+D}, {sc}, s{60+D}")
    if oa != oc: A(f"s_add_u32 s57, s{cs}, s58"); cs = 57
    elif oa: A(f"s_add_u32 s57, s{cs}, {oa}"); cs = 57
    A(f"s_add_u32 s{S}, s{src}, s{cs}\ns_addc_u32 s{S+1}, s{src+1}, 0")
    A(f"v_mul_u32_u24 v18, s{60+D}, v16")
    if swap[D]:
        A(f"v_xor_b32 v19, s{swap[D]}, v17\nv_add_u32 v{vDW[D]}, v18, v19")
    else:
        A(f"v_add_u32 v{vDW[D]}, v18, v17")
    A(f"s_lshl_b32 s{S+2}, s{60+D}, 9\ns_mov_b32 s{S+3}, 0x20000")
def dma_w(k):
    o = []
    for D in range(5):
        S = 24 + 4 * D
        pre = [f"s_add_u32 s56, s81, {k}", "s_and_b32 s56, s56, 15", "s_lshl_b32 s56, s56, 5"] if D == 0 else []
        o.append(pre + [f"s_add_u32 m0, s13, {WR + (k%5)*WSL + D*4096}", f"s_mul_i32 s59, s{60+D}, s56",
                        f"buffer_load_dwordx4 v{vDW[D]}, s[{S}:{S+3}], s59 offen lds"])
    return o
def G(k):
    g = (dma_x(k // 2) if k % 2 == 0 else []) + dma_w(k)
    Q.add(f"S{k}", emit(g))
Q.add("S0", n0 + emit(dma_w(0)))
G(1)
ws_srd()
A("""s_or_b32 s57, s2, s15
s_cmp_lg_u32 s57, 0
s_cbranch_scc1 H_NONONCE
s_memrealtime s[56:57]
s_waitcnt lgkmcnt(0)
s_mul_i32 s56, s56, 0x9e3779b1
s_or_b32 s56, s56, 1
v_mov_b32 v16, 0
v_mov_b32 v17, s56
buffer_store_dword v17, v16, s[16:19], 0 offen sc1""")
A.label("H_NONONCE")
A("s_lshl_b32 s69, s47, 5")
if ROT == 2: A("s_lshr_b32 s55, s45, 2\ns_lshl_b32 s57, s44, 1\ns_add_u32 s55, s55, s57")
elif ROT == 1: A("s_mov_b32 s55, s44")
elif ROT == 3: A("s_lshr_b32 s55, s45, 1\ns_lshl_b32 s57, s44, 2\ns_add_u32 s55, s55, s57")
NDELTA = {1: 2, 2: 4, 3: 8}[ROT]
A(f"""v_lshrrev_b32 v16, 5, v1
v_lshlrev_b32 v16, 10, v16
v_bfe_u32 v17, v1, 2, 2
v_lshlrev_b32 v17, 6, v17
v_add_u32 v16, v16, v17
v_and_b32 v17, 3, v1
v_lshlrev_b32 v17, 3, v17
v_add_u32 v16, v16, v17
v_bfe_u32 v17, v1, 4, 1
v_lshlrev_b32 v17, 5, v17
s_lshr_b32 s58, s15, 1
s_lshl_b32 s58, s58, 12
s_and_b32 s59, s15, 1
s_lshl_b32 s59, s59, 9
s_add_u32 s58, s58, s59
v_add3_u32 v12, v16, v17, s58
v_lshlrev_b32 v9, 4, v1
v_mov_b32 v10, 0""")
sched = {0: [2], 1: [3], 2: [4, 5]}
for s in range(3, 13): sched[s] = [s + 3]
def col_valu():
    for j in range(3):
        b = 48 + 8 * j; acc = 44 + j
        for d in range(8):
            A(f"v_lshlrev_b32 v18, 16, v{b+d}\nv_and_b32 v19, 0xffff0000, v{b+d}")
            if d == 0: A(f"v_add_f32 v{acc}, v18, v19")
            else: A(f"v_add_f32 v{acc}, v{acc}, v18\nv_add_f32 v{acc}, v{acc}, v19")
    for j in range(3): A(f"v_mov_b32 v{72+2*j}, v{44+j}")
    A("s_nop 1")
    for j in range(3): A(f"v_permlane32_swap_b32 v{72+2*j}, v{44+j}")
    A("s_nop 1")
    for j in range(3): A(f"v_add_f32 v{72+2*j}, v{72+2*j}, v{44+j}")
def row_valu():
    for rrow in range(2):
        b = 32 + 4 * rrow; sx = 40 + 2 * rrow; sq = sx + 1
        for d in range(4):
            A(f"v_lshlrev_b32 v18, 16, v{b+d}\nv_and_b32 v19, 0xffff0000, v{b+d}")
            if d == 0: A(f"v_add_f32 v{sx}, v18, v19\nv_mul_f32 v{sq}, v18, v18\nv_fmac_f32 v{sq}, v19, v19")
            else: A(f"v_add_f32 v{sx}, v{sx}, v18\nv_fmac_f32 v{sq}, v18, v18\nv_add_f32 v{sx}, v{sx}, v19\nv_fmac_f32 v{sq}, v19, v19")
    for dpp in ("quad_perm:[1,0,3,2] row_mask:0xf bank_mask:0xf", "quad_perm:[2,3,0,1] row_mask:0xf bank_mask:0xf",
                "row_half_mirror row_mask:0xf bank_mask:0xf", "row_mirror row_mask:0xf bank_mask:0xf",
                "row_bcast:15 row_mask:0xa bank_mask:0xf", "row_bcast:31 row_mask:0xc bank_mask:0xf"):
        for r in range(40, 44): A(f"v_add_f32_dpp v{r}, v{r}, v{r} {dpp}")
def get_nonce(tag, vz, vn):
    A(f"""v_readfirstlane_b32 s80, v{vn}
    s_mov_b32 s57, 0
    s_cmp_eq_u32 s80, 0
    s_cbranch_scc0 {tag}_GOTN""")
    A.label(f"{tag}_POLLN")
    A(f"""buffer_load_dword v{vn}, v{vz}, s[16:19], 0 offen sc1
    s_add_u32 s57, s57, 1
    s_waitcnt vmcnt(0)
    v_readfirstlane_b32 s80, v{vn}
    s_cmp_gt_u32 s57, {SPIN}
    s_cbranch_scc1 {tag}_GOTN
    s_cmp_eq_u32 s80, 0
    s_cbranch_scc1 {tag}_POLLN""")
    A.label(f"{tag}_GOTN")
def publish():
    get_nonce("H", 10, 11)
    A(f"""s_lshl_b32 s57, s48, 4
    s_add_u32 s57, s57, s47
    s_mul_i32 s57, s57, 2560
    s_lshl_b32 s58, s15, 8
    s_add_u32 s57, s57, s58
    s_add_u32 s57, s57, {WS_CS}
    v_lshlrev_b32 v16, 3, v1
    v_mov_b32 v73, s80
    v_mov_b32 v75, s80
    v_mov_b32 v77, s80
    s_mov_b32 exec_hi, 0
    buffer_store_dwordx2 v[72:73], v16, s[20:23], s57 offen sc1
    buffer_store_dwordx2 v[74:75], v16, s[20:23], s57 offen offset:1024 sc1
    s_cmp_ge_u32 s15, 2
    s_cbranch_scc1 H_NO3
    buffer_store_dwordx2 v[76:77], v16, s[20:23], s57 offen offset:2048 sc1""")
    A.label("H_NO3")
    A(f"""s_mov_b32 exec_lo, 0
    s_mov_b32 exec_hi, 0x80000000
    s_lshl_b32 s57, s69, 6
    s_lshl_b32 s58, s48, 7
    s_add_u32 s57, s57, s58
    s_lshl_b32 s58, s15, 5
    s_add_u32 s57, s57, s58
    s_add_u32 s57, s57, {WS_TOK}
    v_mov_b32 v48, v40
    v_mov_b32 v49, v41
    v_mov_b32 v50, s80
    v_mov_b32 v51, s80
    v_mov_b32 v52, v42
    v_mov_b32 v53, v43
    v_mov_b32 v54, s80
    v_mov_b32 v55, s80
    buffer_store_dwordx4 v[48:51], v10, s[20:23], s57 offen sc1
    buffer_store_dwordx4 v[52:55], v10, s[20:23], s57 offen offset:16 sc1
    s_mov_b64 exec, -1""")
def gather_loads():
    for ip in range(16):
        A(f"s_add_u32 s59, s66, {ip*2560}")
        A(f"buffer_load_dwordx2 {vr(64+2*ip,2)}, v16, s[20:23], s59 offen sc1")
    for m in range(4):
        A(f"s_add_u32 s59, s66, {m*4*2560}")
        A(f"buffer_load_dwordx2 {vr(96+2*m,2)}, v17, s[20:23], s59 offen sc1")
    A("buffer_load_dwordx4 v[104:107], v18, s[20:23], s67 offen sc1")
def gather_prep():
    A(f"""s_mul_i32 s66, s48, {16*2560}
    s_add_u32 s66, s66, {WS_CS}
    s_lshl_b32 s58, s15, 9
    v_lshlrev_b32 v16, 3, v1
    v_add_u32 v16, s58, v16
    v_and_b32 v17, 15, v1
    v_lshlrev_b32 v17, 3, v17
    v_lshrrev_b32 v18, 4, v1
    v_mul_u32_u24 v18, 2560, v18
    s_lshl_b32 s58, s15, 7
    s_add_u32 s58, s58, 2048
    v_add3_u32 v17, v17, v18, s58
    v_and_b32 v18, 31, v1
    v_lshlrev_b32 v18, 4, v18
    s_lshl_b32 s67, s69, 6
    s_lshl_b32 s59, s15, 9
    s_add_u32 s67, s67, s59
    s_add_u32 s67, s67, {WS_TOK}""")
def gather_finish():
    A("s_mov_b32 s56, 0")
    Q.wait("GA")
    A.label("H_GCHK")
    A("v_xor_b32 v19, s80, v65")
    regs = list(range(67, 104, 2)) + [106]
    for r in regs:
        A(f"v_xor_b32 v20, s80, v{r}\nv_or_b32 v19, v19, v20")
    A(f"""v_cmp_eq_u32 vcc, 0, v19
    s_add_u32 s56, s56, 1
    s_cmp_gt_u32 s56, {SPIN}
    s_cbranch_scc1 H_GOK
    s_cmp_eq_u64 vcc, -1
    s_cbranch_scc1 H_GOK
    s_sleep 4""")
    gather_loads()
    A("s_waitcnt vmcnt(0)")
    A("s_branch H_GCHK")
    A.label("H_GOK")
def gather_finish2():
    st = 2
    while st <= 16:
        for r in range(64, 96, 2 * st): A(f"v_add_f32 v{r}, v{r}, v{r+st}")
        st *= 2
    A("""v_add_f32 v96, v96, v98
    v_add_f32 v100, v100, v102
    v_add_f32 v96, v96, v100
    v_mov_b32 v97, v96
    s_nop 1
    v_permlane32_swap_b32 v97, v96
    s_nop 1
    v_add_f32 v96, v96, v97
    v_mov_b32 v97, v96
    s_nop 1
    v_permlane16_swap_b32 v97, v96
    s_nop 1
    v_add_f32 v96, v96, v97""")
    for r in (64, 96):
        A(f"""v_cvt_pk_bf16_f32 v{r+1}, v{r}, v{r}
        v_and_b32 v{r+1}, 0xffff0000, v{r+1}
        v_sub_f32 v{r}, v{r}, v{r+1}
        v_cvt_pk_bf16_f32 v{r}, v{r+1}, v{r}""")
    c1 = -2.0 * math.sqrt(2.0 / math.pi) * LOG2E
    c3 = c1 * 0.044715
    A(f"""v_lshrrev_b32 v16, 1, v16
    v_add_u32 v16, {EX_COL}, v16
    ds_write_b32 v16, v64
    v_and_b32 v17, 15, v1
    v_lshlrev_b32 v17, 2, v17
    s_lshl_b32 s58, s15, 6
    s_add_u32 s58, s58, {EX_COL + 1024}
    v_add_u32 v17, s58, v17
    ds_write_b32 v17, v96
    v_mul_f32 v104, {f32(-1/512)}, v104
    v_mul_f32 v105, {f32(1/512)}, v105
    v_fma_f32 v105, -v104, v104, v105
    v_max_f32 v105, 0, v105
    v_add_f32 v113, {f32(1e-5)}, v105
    v_rsq_f32 v110, v113
    v_cvt_pk_bf16_f32 v108, v104, v104
    v_and_b32 v106, 0xffff0000, v108
    v_sub_f32 v106, v104, v106
    v_cvt_pk_bf16_f32 v109, v106, v106
    v_mul_f32 v111, {f32(c1)}, v110
    v_mul_f32 v112, v110, v110
    v_mul_f32 v112, v112, v110
    v_mul_f32 v112, {f32(c3)}, v112
    v_mov_b32 v114, s80
    v_lshlrev_b32 v18, 1, v18
    s_lshl_b32 s58, s15, 10
    s_add_u32 s58, s58, {EX_TOK}
    v_add_u32 v18, s58, v18
    ds_write_b128 v18, v[108:111]
    ds_write_b128 v18, v[112:115] offset:16
    s_waitcnt lgkmcnt(0)""")
WD = OPT["wd"]
UFB = [60, 61, 62, 76, 77, 78, 79]
def d_setup_w():
    A(f"""v_bfe_u32 v6, v1, 2, 3
    v_lshlrev_b32 v6, 10, v6
    v_lshrrev_b32 v7, 5, v1
    v_lshlrev_b32 v7, 6, v7
    v_add_u32 v6, v6, v7
    v_and_b32 v7, 3, v1
    v_lshlrev_b32 v7, 4, v7
    v_add_u32 v2, v6, v7
    s_lshl_b32 s43, s15, 11
    s_lshr_b32 s58, s2, 5
    s_lshl_b32 s40, s58, 7
    s_lshl_b32 s42, s15, 17
    s_add_u32 s42, s42, s40
    s_mul_i32 s57, s15, 24""")
    if OPT["rotd"]:
        A("""s_mul_i32 s59, s58, 11
        s_lshr_b32 s59, s59, 5
        s_mul_i32 s59, s59, 3
        s_sub_u32 s59, s58, s59""")
    else:
        A("s_mov_b32 s59, 0\ns_mov_b32 s58, 0")
    for u in range(3):
        A(f"""s_lshl_b32 s{UFB[u]}, s59, 3
        s_add_u32 s{UFB[u]}, s{UFB[u]}, s57
        s_add_u32 s{UFB[u]}, s{UFB[u]}, 4
        s_add_u32 s59, s59, 1
        s_cmp_eq_u32 s59, 3
        s_cselect_b32 s59, 0, s59""")
    A("s_lshl_b32 s41, s15, 2\ns_add_u32 s41, s41, 96")
    for u in range(4):
        A(f"""s_add_u32 s59, s58, {u}
        s_and_b32 s59, s59, 3
        s_lshl_b32 s44, s59, 3
        s_add_u32 s44, s44, s57
        s_cmp_eq_u32 s59, 3
        s_cselect_b32 s{UFB[3+u]}, s41, s44""")
    A("""s_waitcnt lgkmcnt(0)
    s_mov_b32 s26, 0x1c0000
    s_mov_b32 s27, 0x20000
    s_mov_b32 s30, 0x80000
    s_mov_b32 s31, 0x20000""")
def issw(s, q):
    slot = s % WD
    if s < 28:
        srd = 24
        o = [f"s_lshl_b32 s44, s{UFB[s>>2]}, 14", "s_add_u32 s44, s44, s40"]
        if s & 3: o.append(f"s_add_u32 s44, s44, {(s&3)*16384}")
    else:
        srd = 28
        o = [f"s_add_u32 s44, s42, {(s-28)*16384}"]
    a = o + [f"s_add_u32 m0, s43, {DREG[slot]}", "s_add_u32 s45, s44, 8192",
             f"buffer_load_dwordx4 v2, s[{srd}:{srd+3}], s44 offen lds"]
    b = [f"s_add_u32 m0, s43, {DREG[slot]+1024}", "s_nop 0",
         f"buffer_load_dwordx4 v2, s[{srd}:{srd+3}], s45 offen lds"]
    q.add(f"W{s}", 2)
    return [a, b]
P0 = max(NDELTA, 4)
wnext = [0]
for s in range(17):
    if s < 16: Q.wait(f"S{s}")
    A("s_barrier")
    if s == 0: PR.stamp()
    for k in sched.get(s, []): G(k)
    if s == 0:
        A("""s_lshl_b32 s57, s48, 13
        s_lshl_b32 s58, s15, 11
        s_add_u32 s57, s57, s58
        buffer_load_dwordx4 v[32:35], v9, s[72:75], s57 offen
        buffer_load_dwordx4 v[36:39], v9, s[72:75], s57 offen offset:1024
        buffer_load_dword v11, v10, s[16:19], 0 offen sc1""")
        Q.add("ST", 3)
    if s < NDELTA:
        lb = f"H_NOCS{s}"
        A(f"s_cmp_eq_u32 s55, {s}\ns_cbranch_scc0 {lb}\nv_add_u32 v12, {WR + (s%5)*WSL}, v12")
        for j in range(3):
            for t in range(4):
                A(f"ds_read_b64_tr_b16 {vr(48+8*j+2*t,2)}, v12 offset:{j*8192 + (t>>1)*2048 + (t&1)*256}")
        A("s_waitcnt lgkmcnt(0)")
        A.label(lb)
    if s == 3: row_valu()
    if s == P0: col_valu()
    if s == P0 + 1: publish()
    if s == OPT["warm"] - 1:
        A("s_load_dwordx2 s[4:5], s[0:1], 48\ns_load_dwordx2 s[8:9], s[0:1], 16")
    if s == OPT["warm"]:
        A("""s_cmp_lg_u32 s15, 0
        s_cbranch_scc1 H_NOWARM
        s_mul_i32 s57, s2, 7168
        s_lshl_b32 s58, s2, 11
        v_lshlrev_b32 v20, 7, v1
        s_waitcnt lgkmcnt(0)
        s_add_u32 s6, s57, 7168
        s_mov_b32 s7, 0x20000
        s_add_u32 s10, s58, 2048
        s_mov_b32 s11, 0x20000
        buffer_load_dword v21, v20, s[4:7], s57 offen
        buffer_load_dword v22, v20, s[8:11], s58 offen""")
        A.label("H_NOWARM")
    if OPT["l2pf"] and s == OPT["warm"] + 1:
        A("""s_lshr_b32 s57, s2, 3
        s_lshl_b32 s57, s57, 2
        s_add_u32 s57, s57, s15
        s_mul_i32 s58, s57, 14336
        s_lshl_b32 s57, s57, 12
        s_waitcnt lgkmcnt(0)
        s_add_u32 s4, s4, s58
        s_addc_u32 s5, s5, 0
        s_add_u32 s8, s8, s57
        s_addc_u32 s9, s9, 0""")
    if OPT["l2pf"] and OPT["warm"] + 1 <= s <= 13:
        nst = 13 - OPT["warm"]
        tot = 144 if OPT["l2pf"] == 1 else OPT["l2pf"]
        i0 = (s - OPT["warm"] - 1) * tot // nst; i1 = (s - OPT["warm"]) * tot // nst
        for i in range(i0, i1):
            if i < 112: A(f"s_load_dword s65, s[4:5], {i*128}")
            else: A(f"s_load_dword s65, s[8:9], {(i-112)*128}")
    if s == 11: gather_prep()
    if s == 12:
        gather_loads(); Q.add("GA", 21)
        A("s_load_dwordx2 s[24:25], s[0:1], 48\ns_load_dwordx2 s[28:29], s[0:1], 16")
    if s == 13: d_setup_w()
    if s in DAVAIL and not (s == 14 or s == 15):
        for _ in range(DAVAIL[s]):
            emit(issw(wnext[0], Q)); wnext[0] += 1
    if s == 14:
        gather_finish()
        for _ in range(DAVAIL[s]):
            emit(issw(wnext[0], Q)); wnext[0] += 1
    if s == 15:
        for _ in range(DAVAIL[s]):
            emit(issw(wnext[0], Q)); wnext[0] += 1
    if s == 15: gather_finish2()
    if s in (4, 8, 12): PR.stamp()
PR.stamp()
PR.stamp()
import gen_cd
gen_cd.OPT = OPT
A("""s_and_b32 s57, s2, 7
s_lshr_b32 s58, s2, 3
s_and_b32 s58, s58, 3
s_lshl_b32 s50, s58, 3
s_add_u32 s50, s50, s57
s_lshr_b32 s51, s2, 5
s_lshl_b32 s51, s51, 2
s_add_u32 s51, s51, s15""")
gen_cd.attn_setup(A)
A(f"""v_min_u32 v9, 10, v1
v_cmp_gt_u32 vcc, 5, v9
v_subrev_u32 v10, 5, v9
s_nop 0
v_cndmask_b32 v10, v10, v9, vcc
v_min_u32 v10, 4, v10
s_sub_u32 s57, s51, 4
v_add_u32 v10, s57, v10
v_max_i32 v10, 0, v10
v_lshlrev_b32 v10, 8, v10
v_mov_b32 v11, 128
v_cndmask_b32 v11, v11, 64, vcc
v_cmp_eq_u32 vcc, 10, v9
s_lshr_b32 s57, s50, 1
s_lshl_b32 s57, s57, 7
s_add_u32 s57, s57, {WS_FQ}
v_cndmask_b32 v11, v11, 0, vcc
v_add_u32 v10, v10, v11
v_lshlrev_b32 v10, 5, v10
v_add_u32 v252, s57, v10""")
A("s_barrier")
PR.stamp()
gen_cd.LONE = LONE
A("""s_movk_i32 s57, 0x4000
s_cmp_eq_u32 s15, 1
s_cselect_b32 s57, 49152, s57
s_cmp_eq_u32 s15, 2
s_cselect_b32 s57, 59392, s57
s_cmp_eq_u32 s15, 3
s_cselect_b32 s57, 151552, s57""")
gen_cd.attn_setup2(A, None)
ld = "buffer_load_dword v253, v252, s[20:23], 0 offen sc1"
A("s_waitcnt vmcnt(0)")
PR.stamp()
A("s_barrier")
A(f"s_setprio {OPT['aprio']}")
if OPT["wtouch"]:
    A(f"""s_sleep {OPT['wts']}
    s_lshr_b32 s57, s2, 3
    s_and_b32 s57, s57, 3
    s_lshl_b32 s57, s57, 10
    s_add_u32 s57, s57, s40
    v_lshlrev_b32 v9, 12, v1
    s_mul_i32 s58, s15, {6*65536}
    s_add_u32 s58, s58, s57
    buffer_load_dword v10, v9, s[24:27], s58 offen
    s_add_u32 s58, s58, {4*65536}
    s_mov_b32 exec_hi, 0
    buffer_load_dword v10, v9, s[24:27], s58 offen
    s_lshl_b32 s58, s15, 17
    s_add_u32 s58, s58, s57
    buffer_load_dword v10, v9, s[28:31], s58 offen
    s_mov_b32 exec_lo, 0xffff
    s_add_u32 s58, s15, 24
    s_lshl_b32 s58, s58, 16
    s_add_u32 s58, s58, s57
    buffer_load_dword v10, v9, s[24:27], s58 offen
    s_mov_b64 exec, -1""")
A(f"s_sleep {OPT['hs']}")
A(ld)
A("s_waitcnt vmcnt(0)")
spin(A, "HQ", ld, 253)
PR.stamp()
A("s_cmp_lt_u32 s51, 4")
A("s_cbranch_scc1 H_SLOW")
n0 = PR.n
gen_cd.gen_attn(A, False, "AF", PR, "sc1", setup=False, bar=OPT["defer"] >= 4)
A.label("H_AFIN")
PR.stamp()
A(f"""s_lshl_b32 s57, s51, 12
s_lshl_b32 s58, s50, 7
s_add_u32 s57, s57, s58
s_add_u32 s57, s57, {WS_FO}
v_mov_b32 v9, 0
v_mov_b32 v10, s80
s_waitcnt vmcnt(0)
s_mov_b64 exec, 1
buffer_store_dword v10, v9, s[20:23], s57 offen sc1
s_mov_b64 exec, -1""")
PR.stamp()
PR.dump(2)
A.label("L_END")
A("s_endpgm")
A.label("H_SLOW")
PR.n = n0
gen_cd.gen_attn(A, True, "AS", PR, "sc1", setup=False, bar=OPT["defer"] >= 4)
A("s_branch H_AFIN")
A.label("L_M")
PR.n = 0
A("s_waitcnt lgkmcnt(0)")
PR.stamp(True); PR.stamp()
ws_srd()
if OPT["codepf"]:
    A("s_getpc_b64 s[24:25]")
    A.label("L_PC")
    A(f"""s_sub_u32 s24, s24, L_PC-{NAME}
    s_subb_u32 s25, s25, 0
    s_mov_b32 s26, L_CODE_END-{NAME}
    s_mov_b32 s27, 0x20000
    s_lshr_b32 s57, s2, 3
    s_lshl_b32 s57, s57, 2
    s_add_u32 s57, s57, s14
    s_lshl_b32 s57, s57, 9
    v_lshlrev_b32 v16, 7, v1
    s_mov_b64 exec, 15
    buffer_load_dword v31, v16, s[24:27], s57 offen
    s_mov_b64 exec, -1""")
vXa = [2, 3, 4, 5]; vWa = [6, 7, 8, 9, 10]; vWb = [11, 12, 13, 14, 15]
P = 32; QQ = 60; ACC = 88
A("s_setprio 2")
A("""s_and_b32 s12, s14, 1
s_lshr_b32 s13, s14, 1
v_and_b32 v16, 31, v1
v_lshrrev_b32 v17, 5, v1
v_bfe_u32 v18, v1, 1, 3
v_xor_b32 v17, v17, v18
v_lshlrev_b32 v17, 4, v17
v_lshlrev_b32 v16, 7, v16
v_add_u32 v16, v16, v17
s_lshl_b32 s57, s12, 13
v_add_u32 v2, s57, v16
v_xor_b32 v3, 32, v2
v_xor_b32 v4, 64, v2
v_xor_b32 v5, 96, v2""")
A(f"""v_lshrrev_b32 v16, 5, v1
v_lshlrev_b32 v16, 10, v16
v_bfe_u32 v17, v1, 2, 2
v_lshlrev_b32 v17, 6, v17
v_add_u32 v16, v16, v17
v_and_b32 v17, 3, v1
v_lshlrev_b32 v17, 3, v17
v_add_u32 v16, v16, v17
v_add_u32 v16, {WR}, v16
v_bfe_u32 v17, v1, 4, 1
s_sub_u32 s57, 2, s50
s_lshl_b32 s57, s57, 12
v_mul_u32_u24 v18, s57, v17
v_xor_b32 v19, s13, v17
v_lshlrev_b32 v19, 5, v19
v_add3_u32 v18, v18, v19, v16
v_lshlrev_b32 v19, 5, v17
s_lshl_b32 s57, s13, 9
v_add3_u32 v19, v19, s57, v16
s_cmp_eq_u32 s50, 1
s_cselect_b64 vcc, -1, 0""")
for n in range(5):
    fo = (n >> 1) * 4096 + (n & 1) * 512
    qo = n * 4096
    if n < 2: A(f"v_add_u32 v{vWa[n]}, {fo}, v18")
    elif n == 4: A(f"v_add_u32 v{vWa[n]}, {qo}, v19")
    else:
        A(f"v_add_u32 v20, {fo}, v18\nv_add_u32 v21, {qo}, v19\nv_cndmask_b32 v{vWa[n]}, v20, v21, vcc")
for n in range(5): A(f"v_add_u32 v{vWb[n]}, {4*WSL}, v{vWa[n]}")
def reads(s, kk, dst):
    xs = (s >> 1) % 3; q4 = (s & 1) * 2 + kk; sl = s % 5
    def xr(tt): return f"ds_read_b128 {vr(dst+4*tt,4)}, v{vXa[q4]} offset:{XR + xs*XS + tt*4096}"
    def wr(n, sec):
        a, o = (vWa[n], sl * WSL) if sl < 4 else (vWb[n], 0)
        return f"ds_read_b64_tr_b16 {vr(dst+8+4*n+2*sec,2)}, v{a} offset:{o + kk*2048 + sec*256}"
    R = [xr(0), wr(0, 0), wr(0, 1), xr(1)]
    for n in range(1, 5): R += [wr(n, 0), wr(n, 1)]
    return R
need = {0: 2, 1: 3, 2: 5, 4: 7, 6: 9, 8: 11}
def substep(cur, R, first=False):
    issued = 0
    for j in range(10):
        n, tt = j >> 1, j & 1
        if j in need: A(f"s_waitcnt lgkmcnt({min(15, 11 - need[j] + issued)})")
        a = ACC + 16 * (2 * n + tt)
        c = "0" if first else vr(a, 16)
        A(f"v_mfma_f32_32x32x16_bf16 {vr(a,16)}, {vr(cur+8+4*n,4)}, {vr(cur+4*tt,4)}, {c}")
        k = 2 if j < 2 else 1
        for r in R[issued:issued + k]: A(r)
        issued += len(R[issued:issued + k])
A(f"""v_and_b32 v16, 31, v1
v_lshlrev_b32 v22, 5, v16
s_lshl_b32 s57, s12, 11
s_add_u32 s57, s57, {EX_TOK}
v_add_u32 v22, s57, v22
v_and_b32 v16, 15, v1
s_sub_u32 s57, 2, s50
s_lshl_b32 s57, s57, 6
v_mul_u32_u24 v18, s57, v17
v_xor_b32 v19, s13, v17
v_lshlrev_b32 v19, 4, v19
v_add3_u32 v18, v18, v19, v16
v_lshlrev_b32 v18, 2, v18
v_and_b32 v19, 31, v1
s_lshl_b32 s57, s13, 5
v_add_u32 v19, s57, v19
v_lshlrev_b32 v19, 2, v19""")
for n in range(5):
    fo = EX_COL + ((n >> 1) * 64 + (n & 1) * 32) * 4
    qo = EX_COL + n * 256
    if n < 2: A(f"v_add_u32 v{23+n}, {fo}, v18")
    elif n == 4: A(f"v_add_u32 v{23+n}, {qo}, v19")
    else:
        A(f"v_add_u32 v20, {fo}, v18\nv_add_u32 v21, {qo}, v19\nv_cndmask_b32 v{23+n}, v20, v21, vcc")
A(f"""s_lshl_b32 s57, s47, 2
s_lshl_b32 s58, s12, 1
s_add_u32 s57, s57, s58
s_mul_i32 s70, s57, {112*1024}
s_lshl_b32 s59, s53, 12
s_add_u32 s70, s70, s59
s_lshl_b32 s59, s13, 10
s_add_u32 s70, s70, s59
s_add_u32 s70, s70, {WS_H}
s_lshl_b32 s59, s54, 2
s_lshl_b32 s60, s13, 1
s_add_u32 s59, s59, s60
s_lshl_b32 s71, s59, 6
s_add_u32 s71, s71, s57
s_lshl_b32 s71, s71, 10
s_lshl_b32 s57, s57, 7
s_lshl_b32 s72, s59, 1
s_add_u32 s72, s72, s57
s_lshl_b32 s72, s72, 5
s_add_u32 s72, s72, {WS_FQ}
s_lshl_b32 s73, s48, 3
s_lshl_b32 s60, s13, 2
s_add_u32 s73, s73, s60
s_add_u32 s73, s73, s57
s_lshl_b32 s73, s73, 5
s_add_u32 s73, s73, {WS_FH}
s_add_u32 s74, s73, 4096
s_load_dwordx2 s[24:25], s[0:1], 48
s_load_dwordx2 s[28:29], s[0:1], 16
s_load_dwordx2 s[36:37], s[0:1], 56
s_waitcnt vmcnt(0) lgkmcnt(0)""")
A("s_barrier")
PR.stamp()
for r in reads(0, 0, P): A(r)
A.raw(".p2align 3")
for s in range(16):
    substep(P, reads(s, 1, QQ), first=(s == 0))
    A("s_barrier")
    if s < 15: substep(QQ, reads(s + 1, 0, P))
    else:
        R = [f"ds_read_b128 {vr(P,4)}, v22", f"ds_read_b128 {vr(P+4,4)}, v22 offset:1024",
             f"ds_read_b128 v[16:19], v22 offset:16", f"ds_read_b128 v[28:31], v22 offset:1040"]
        R += [f"ds_read_b32 v{P+8+4*n}, v{23+n}" for n in range(5)]
        substep(QQ, R)
    if s in (3, 11): PR.stamp()
A("s_waitcnt lgkmcnt(0)")
A("s_barrier")
PR.stamp()
A(f"""v_mov_b32 v248, v{P+2}
v_mov_b32 v249, v{P+3}
v_mov_b32 v250, v16
v_mov_b32 v251, v17
v_mov_b32 v252, v{P+6}
v_mov_b32 v253, v{P+7}
v_mov_b32 v254, v28
v_mov_b32 v255, v29
v_cmp_gt_u32 vcc, 32, v1
v_readfirstlane_b32 s80, v18
v_mov_b32 v{P+2}, 0
v_mov_b32 v{P+3}, 0
v_mov_b32 v{P+6}, 0
v_mov_b32 v{P+7}, 0
v_cndmask_b32 v{P}, 0, v{P}, vcc
v_cndmask_b32 v{P+1}, 0, v{P+1}, vcc
v_cndmask_b32 v{P+4}, 0, v{P+4}, vcc
v_cndmask_b32 v{P+5}, 0, v{P+5}, vcc""")
for n in (4, 3, 2, 1, 0):
    w = P + 8 + 4 * n
    A(f"v_mov_b32 v{w+1}, v{w}\nv_mov_b32 v{w+2}, 0\nv_mov_b32 v{w+3}, 0")
for n in (4, 3, 2, 1, 0):
    for tt in range(2):
        a = ACC + 16 * (2 * n + tt)
        A(f"v_mfma_f32_32x32x16_bf16 {vr(a,16)}, {vr(P+8+4*n,4)}, {vr(P+4*tt,4)}, {vr(a,16)}")
A(f"""v_lshlrev_b32 v2, 4, v1
v_and_b32 v3, 31, v1
v_lshlrev_b32 v3, 5, v3
v_lshrrev_b32 v4, 5, v1
v_lshlrev_b32 v4, 4, v4
v_add_u32 v3, v3, v4
v_lshlrev_b32 v8, 8, v1
v_mov_b32 v9, s80""")
T = QQ
for tt in range(2):
    for k in range(3):
        A(f"v_mov_b32 v{68+6*tt+2*k}, v{248+4*tt+1+k}\nv_mov_b32 v{69+6*tt+2*k}, v{248+4*tt+1+k}")
def ffn(n, tt):
    a = ACC + 16 * (2 * n + tt); c = 68 + 6 * tt
    for r in range(0, 8, 2): A(f"v_pk_mul_f32 {vr(T+r,2)}, {vr(a+r,2)}, {vr(a+r,2)}")
    for r in range(0, 8, 2): A(f"v_pk_fma_f32 {vr(T+r,2)}, {vr(T+r,2)}, {vr(c+2,2)}, {vr(c,2)}")
    for r in range(0, 8, 2): A(f"v_pk_mul_f32 {vr(T+r,2)}, {vr(T+r,2)}, {vr(a+r,2)}")
    for r in range(8): A(f"v_exp_f32 v{T+r}, v{T+r}")
    for r in range(0, 8, 2): A(f"v_pk_mul_f32 {vr(a+r,2)}, {vr(a+r,2)}, {vr(a+8+r,2)}")
    for r in range(0, 8, 2): A(f"v_pk_fma_f32 {vr(T+r,2)}, {vr(T+r,2)}, {vr(c+4,2)}, {vr(c+4,2)}")
    for r in range(8): A(f"v_rcp_f32 v{T+r}, v{T+r}")
    A("s_nop 0")
    for r in range(0, 8, 2): A(f"v_pk_mul_f32 {vr(a+r,2)}, {vr(a+r,2)}, {vr(T+r,2)}")
    for d in range(4): A(f"v_cvt_pk_bf16_f32 v{a+8+d}, v{a+2*d}, v{a+2*d+1}")
def ffn_st(n, tt):
    a = ACC + 16 * (2 * n + tt)
    A(f"s_add_u32 s63, s70, {2048*n + tt*112*1024}")
    A(f"buffer_store_dwordx4 {vr(a+8,4)}, v2, s[20:23], s63 offen sc1")
def qkv(n, zoff):
    A(f"""s_add_u32 s60, s54, {zoff}
    s_cmp_lt_u32 s60, 8
    s_mov_b32 s62, {f32(0.25*LOG2E)}
    s_cselect_b32 s62, s62, 1.0
    v_mul_f32 v4, s62, v248
    v_mul_f32 v6, s62, v252
    v_mul_f32 v5, s62, v248
    v_mul_f32 v7, s62, v252""")
    for tt in range(2):
        a = ACC + 16 * (2 * n + tt)
        for r in range(0, 16, 2): A(f"v_pk_mul_f32 {vr(a+r,2)}, {vr(a+r,2)}, {vr(4+2*tt,2)}")
        for d in range(8): A(f"v_cvt_pk_bf16_f32 v{a+d}, v{a+2*d}, v{a+2*d+1}")
        A(f"s_add_u32 s63, s71, {zoff*4*65536 + tt*1024}")
        A(f"buffer_store_dwordx4 {vr(a,4)}, v2, s[20:23], s63 offen sc1")
        A(f"s_add_u32 s63, s63, 65536")
        A(f"buffer_store_dwordx4 {vr(a+4,4)}, v2, s[20:23], s63 offen sc1")
def flag(vm, mask, soff, imm=0, voff=8):
    A(f"s_waitcnt vmcnt({vm})\ns_mov_b64 exec, {mask}\nbuffer_store_dword v9, v{voff}, s[20:23], s{soff} offen offset:{imm} sc1\ns_mov_b64 exec, -1")
A("s_cmp_eq_u32 s50, 1")
A("s_cbranch_scc1 M_TC")
def ffs(n, tt): ffn(n, tt); ffn_st(n, tt)
DF = OPT["defer"]
qkv(4, 0)
if DF:
    ffn(3, 0); ffn(3, 1)
    A("s_barrier")
    ffn(2, 0); ffn(2, 1)
    if DF == 5: flag(0, 1, 72)
    if DF >= 2: ffn(1, 0); ffn(1, 1)
    if DF != 5: flag(0, 1, 72)
    if DF >= 3: ffn(0, 0); ffn(0, 1)
    if DF >= 4: A("s_barrier")
    for n in (3, 2):
        for tt in range(2): ffn_st(n, tt)
    if DF == 1: ffs(1, 0); ffs(1, 1); ffs(0, 0); ffs(0, 1)
    elif DF == 2: ffn_st(1, 0); ffn_st(1, 1); ffs(0, 0); ffs(0, 1)
    else: ffn_st(1, 0); ffn_st(1, 1); ffn_st(0, 0); ffn_st(0, 1)
    flag(4, 1, 73)
else:
    ffs(3, 0); ffs(3, 1)
    A("s_barrier")
    ffs(2, 0); ffs(2, 1)
    flag(4, 1, 72)
    ffs(1, 0); ffs(1, 1); ffs(0, 0); ffs(0, 1)
    flag(4, 1, 73)
A("s_branch M_TJ")
A.label("M_TC")
qkv(4, 2); qkv(3, 1); qkv(2, 0)
A("s_barrier")
if DF:
    ffn(1, 0); ffn(1, 1); ffn(0, 0); ffn(0, 1)
    flag(0, 7, 72)
    if DF >= 4: A("s_barrier")
    ffn_st(1, 0); ffn_st(1, 1); ffn_st(0, 0); ffn_st(0, 1)
else:
    ffs(1, 0); ffs(1, 1); ffs(0, 0); ffs(0, 1)
    flag(4, 7, 72)
A.label("M_TJ")
PR.stamp()
A("s_mov_b32 s15, s14")
d_setup_w()
XRr, BF, WF, AD, AS = 8, 16, 80, 96, 160
BD, NS = 8, 36
flag(0, 1, 74)
PR.stamp()
DQ = VQ(A)
A(f"""s_and_b32 s57, s2, 7
s_lshl_b32 s50, s57, 2
s_lshr_b32 s57, s2, 3
s_and_b32 s57, s57, 3
s_add_u32 s50, s50, s57
s_lshr_b32 s51, s2, 5
v_lshlrev_b32 v3, 4, v1
s_lshl_b32 s55, s50, 13
s_lshl_b32 s57, s15, 10
s_add_u32 s55, s55, s57
s_add_u32 s55, s55, {WS_FH}
s_add_u32 s75, s55, 4096
v_min_u32 v226, 5, v1
v_lshlrev_b32 v226, 7, v226
v_min_u32 v227, 7, v1
v_lshlrev_b32 v227, 7, v227""")
ld0 = "buffer_load_dword v228, v226, s[20:23], s55 offen sc1"
ld1 = "buffer_load_dword v228, v227, s[20:23], s75 offen sc1"
A(ld0)
A(f"""s_lshl_b32 s57, s50, 1
s_and_b32 s58, s15, 1
s_add_u32 s59, s57, s58
s_xor_b32 s58, s58, 1
s_add_u32 s57, s57, s58
s_mul_i32 s64, s59, {112*1024}
s_add_u32 s64, s64, {WS_H}
s_mul_i32 s65, s57, {112*1024}
s_add_u32 s65, s65, {WS_H}
s_lshl_b32 s58, s15, 13
s_add_u32 s58, s58, {WS_O}
s_lshl_b32 s67, s59, 15
s_add_u32 s67, s67, s58
s_lshl_b32 s53, s57, 15
s_add_u32 s53, s53, s58
v_and_b32 v6, 31, v1
v_lshlrev_b32 v6, 10, v6
v_lshrrev_b32 v7, 5, v1
v_lshlrev_b32 v7, 4, v7
v_add_u32 v224, v6, v7
s_lshl_b32 s54, s59, 15
s_lshl_b32 s57, s51, 7
s_add_u32 s54, s54, s57
s_lshr_b32 s57, s15, 1
s_lshl_b32 s57, s57, 6
s_add_u32 s54, s54, s57
v_lshrrev_b32 v6, 5, v1
v_lshlrev_b32 v6, 8, v6
v_bfe_u32 v7, v1, 2, 2
v_lshlrev_b32 v7, 6, v7
v_add_u32 v6, v6, v7
v_and_b32 v7, 3, v1
v_lshlrev_b32 v7, 3, v7
v_add_u32 v6, v6, v7
v_bfe_u32 v7, v1, 4, 1
v_lshlrev_b32 v7, 5, v7
v_add_u32 v6, v6, v7
s_lshl_b32 s57, s57, 3
v_add_u32 v6, s57, v6
v_xor_b32 v7, 512, v6
v_add_u32 v4, s43, v6
v_add_u32 v5, s43, v7
v_add_u32 v232, 0x10000, v4
v_add_u32 v233, 0x10000, v5
v_add_u32 v234, 0x20000, v4
v_add_u32 v235, 0x20000, v5
s_mov_b32 s32, s4
s_mov_b32 s33, s5
s_mov_b32 s34, 0x200000
s_mov_b32 s35, 0x20000
s_mov_b32 s38, 0x200000
s_mov_b32 s39, 0x20000
s_setprio {OPT['dprio']}
s_waitcnt vmcnt(0)""")
PR.stamp()
spin(A, "MH0", ld0, 228)
PR.stamp()
def htouch(lvl):
    if not OPT["htouch"]: return
    A(f"""v_bfe_u32 v229, v1, 2, 2
    v_lshlrev_b32 v230, 13, v229
    s_mul_i32 s57, s15, {24*1024}
    s_add_u32 s57, s57, {4096 if lvl == 0 else 0}
    v_add_u32 v230, s57, v230
    s_lshl_b32 s58, s15, 12
    s_add_u32 s58, s58, {96*1024}
    v_mov_b32 v231, {'s58' if lvl else 's57'}
    v_cmp_eq_u32 vcc, 3, v229
    v_and_b32 v229, 3, v1
    v_lshlrev_b32 v229, 10, v229
    v_cndmask_b32 v230, v230, v231, vcc
    v_add_u32 v230, v230, v229
    v_bfe_u32 v229, v1, 4, 1
    v_mul_u32_u24 v229, {112*1024}, v229
    v_add_u32 v230, v230, v229
    s_min_u32 s57, s64, s65
    s_lshl_b32 s58, s51, 7
    s_add_u32 s57, s57, s58
    s_mov_b32 exec_hi, 0
    buffer_load_dword v229, v230, s[20:23], s57 offen sc1
    s_mov_b64 exec, -1""")
    DQ.add("HT", 1)
htouch(0)
def issb(s):
    r = BF + 8 * (s % BD)
    if s < 28:
        o = [f"s_lshl_b32 s48, s{UFB[s>>2]}, 10", "s_add_u32 s49, s48, s65", "s_add_u32 s48, s48, s64"] if (s & 3) == 0 else []
    else:
        o = [f"s_add_u32 s48, s67, {(s-28)*1024}", f"s_add_u32 s49, s53, {(s-28)*1024}"] if (s & 3) == 0 else []
    DQ.add(f"B{s}", 2)
    return [o + [f"buffer_load_dwordx4 {vr(r,4)}, v3, s[20:23], s48 offen offset:{(s&3)*1024} sc1"],
            [f"buffer_load_dwordx4 {vr(r+4,4)}, v3, s[20:23], s49 offen offset:{(s&3)*1024} sc1"]]
for s in range(BD - 1): emit(issb(s))
A(f"buffer_load_dwordx4 {vr(XRr,4)}, v224, s[32:35], s54 offen")
A(f"buffer_load_dwordx4 {vr(XRr+4,4)}, v224, s[32:35], s54 offen offset:32")
DQ.add("X", 2)
def rdw(s):
    slot = s % WD; w = WF + 8 * (s & 1)
    hi, lo = DREG[slot] >> 16, DREG[slot] & 0xffff
    vb = [4, 232, 234][hi]
    return [f"ds_read_b64_tr_b16 {vr(w+4*u+2*sec,2)}, v{vb+u} offset:{lo+sec*1024}" for u in range(2) for sec in range(2)]
for i in rdw(0): A(i)
DQ.wait("B0")
def dump_acc(acc, which):
    o = []
    for a in range(1, 4):
        for qd in range(4):
            o.append(f"ds_write_b128 v229, {vr(acc+16*a+4*qd,4)} offset:{(a-1)*4096 + qd*1024}")
    return o
for s in range(NS):
    w = WF + 8 * (s & 1); b = BF + 8 * (s % BD)
    acc = AD if s < 28 else AS
    if s in (12, 28): PR.stamp()
    if s + 1 < NS:
        DQ.wait([f"W{s+1}", f"B{s+1}"])
        for i in rdw(s + 1): A(i)
        A("s_waitcnt lgkmcnt(4)")
    else:
        A("s_waitcnt lgkmcnt(0)")
    if s == 2:
        A(ld1); DQ.add("P1", 1)
    if s == 12 - BD + 1:
        DQ.wait("P1")
        spin(A, "MH1", ld1, 228)
        htouch(1)
    if s == 18:
        A(f"""s_lshl_b32 s55, s50, 12
        s_lshl_b32 s57, s15, 10
        s_add_u32 s55, s55, s57
        s_add_u32 s55, s55, {WS_FO}""")
        ld2 = "buffer_load_dword v228, v227, s[20:23], s55 offen sc1"
        A(ld2); DQ.add("PO", 1)
    if s == 28 - BD + 1:
        DQ.wait("PO")
        spin(A, "MO", ld2, 228)
    grp = []
    if s + BD - 1 < NS: grp += issb(s + BD - 1)
    if s >= 1 and s + WD - 1 < NS: grp += issw(s + WD - 1, DQ)
    grp += [[]] * (4 - len(grp))
    for a in range(4):
        u, tt = a >> 1, a & 1
        r = acc + 16 * a
        c = "0" if s in (0, 28) else vr(r, 16)
        A(f"v_mfma_f32_32x32x16_bf16 {vr(r,16)}, {vr(w+4*u,4)}, {vr(b+4*tt,4)}, {c}")
        for i in grp[a]: A(i)
PR.stamp()
def chunk(which, a, qd):
    k = which * 12 + (a - 1) * 4 + qd
    addr = XREG[k >> 1] + (k & 1) * 1024
    return addr - 65536
XREG = [69632 + 8192 * i for i in range(10)] + [32768 + 131072, 40960 + 131072]
A("v_add_u32 v6, s43, v3\nv_add_u32 v6, 0x10000, v6\nv_add_u32 v7, 0x10000, v6\nv_subrev_u32 v236, 0x10000, v6")
def xaddr(base3, which, a, qd):
    k = which * 12 + (a - 1) * 4 + qd
    reg = ([69632 + 8192 * i for i in range(10)] + [32768, 40960])[k >> 1] + (k & 1) * 1024
    return base3[reg >> 16], reg & 0xffff
for which, acc in ((0, AD), (1, AS)):
    for a in range(1, 4):
        for qd in range(4):
            vb, off = xaddr([236, 6, 7], which, a, qd)
            A(f"ds_write_b128 v{vb}, {vr(acc+16*a+4*qd,4)} offset:{off}")
for a in range(1, 4):
    b = 237 + 3 * (a - 1)
    A(f"s_xor_b32 s57, s15, {a}\ns_lshl_b32 s57, s57, 11\nv_add_u32 v{b}, s57, v3\nv_add_u32 v{b+1}, 0x10000, v{b}\nv_add_u32 v{b+2}, 0x20000, v{b}")
A("s_waitcnt lgkmcnt(0)")
A("s_barrier")
PR.stamp()
for which, acc in ((0, AD), (1, AS)):
    for a in range(1, 4):
        b = 237 + 3 * (a - 1)
        for qd in range(4):
            vb, off = xaddr([b, b + 1, b + 2], which, a, qd)
            A(f"ds_read_b128 {vr(acc+16*a+4*qd,4)}, v{vb} offset:{off}")
for j in range(2):
    A(f"v_permlane32_swap_b32 v{XRr+4*j}, v{XRr+4*j+2}\nv_permlane32_swap_b32 v{XRr+4*j+1}, v{XRr+4*j+3}")
T = 16
for d in range(8): A(f"v_lshlrev_b32 v{T+32+2*d}, 16, v{XRr+d}\nv_and_b32 v{T+33+2*d}, 0xffff0000, v{XRr+d}")
A("s_waitcnt lgkmcnt(12)")
for r in range(0, 16, 2):
    A(f"v_pk_add_f32 {vr(AD+r,2)}, {vr(AD+r,2)}, {vr(AD+16+r,2)}\nv_pk_add_f32 {vr(AD+32+r,2)}, {vr(AD+32+r,2)}, {vr(AD+48+r,2)}")
for r in range(0, 16, 2): A(f"v_pk_add_f32 {vr(AD+r,2)}, {vr(AD+r,2)}, {vr(AD+32+r,2)}")
for r in range(16): A(f"v_mul_f32 v{T+r}, {f32(-LOG2E)}, v{AD+r}")
for r in range(16): A(f"v_exp_f32 v{T+r}, v{T+r}")
A("s_waitcnt lgkmcnt(0)")
for r in range(0, 16, 2):
    A(f"v_pk_add_f32 {vr(AS+r,2)}, {vr(AS+r,2)}, {vr(AS+16+r,2)}\nv_pk_add_f32 {vr(AS+32+r,2)}, {vr(AS+32+r,2)}, {vr(AS+48+r,2)}")
for r in range(0, 16, 2): A(f"v_pk_add_f32 {vr(AS+r,2)}, {vr(AS+r,2)}, {vr(AS+32+r,2)}")
for r in range(16): A(f"v_add_f32 v{T+r}, 1.0, v{T+r}")
for r in range(16): A(f"v_rcp_f32 v{T+r}, v{T+r}")
for r in range(0, 16, 2): A(f"v_pk_mul_f32 {vr(AD+r,2)}, {vr(AD+r,2)}, {vr(AS+r,2)}")
for r in range(0, 16, 2): A(f"v_pk_fma_f32 {vr(AD+r,2)}, {vr(AD+r,2)}, {vr(T+r,2)}, {vr(T+32+r,2)}")
for d in range(8): A(f"v_cvt_pk_bf16_f32 v{XRr+d}, v{AD+2*d}, v{AD+2*d+1}")
A("s_nop 1")
for j in range(2):
    A(f"v_permlane32_swap_b32 v{XRr+4*j}, v{XRr+4*j+2}\nv_permlane32_swap_b32 v{XRr+4*j+1}, v{XRr+4*j+3}")
A(f"buffer_store_dwordx4 {vr(XRr,4)}, v224, s[36:39], s54 offen")
A(f"buffer_store_dwordx4 {vr(XRr+4,4)}, v224, s[36:39], s54 offen offset:32")
PR.stamp()
PR.dump(2)
A("s_endpgm")
A.label("L_CODE_END")
A.raw('.section .rodata,"a"')
A.raw(kernel_desc(NAME, 256))
txt = A.text()
if OPT.get("plainst"):
    import re
    txt = re.sub(r"(buffer_store_dwordx4 .*s63 offen) sc1", r"\1", txt)
if OPT.get("align", 1):
    import align
    txt = align.align(txt)
print(txt)
```

```python
import sys, math
from asmlib import *

NAME = "recurrent_scan__sliding_block__geglu_ffn__prompt_kernel"
WS_Q = 0; WS_K = 2 << 20; WS_V = 4 << 20; WS_O = 6 << 20; WS_H = 8 << 20
WS_TOK = 16 << 20
WS_CS = (16 << 20) + 65536
WS_FO = 17 << 20
WS_FH = (17 << 20) + (1 << 18)
WS_FQ = (17 << 20) + (2 << 18)
LOG2E = 1.4426950408889634
OPT = dict(prof=0, rot=2, codepf=1, wd=14, sleep=8, warm=7, thr=6, aprio=3, l2pf=0, rotd=1, hs=56, dprio=0, wtouch=0, htouch=1, wts=10, defer=1, gat=10, gc=13, hprio=0, l1s=8, osc=0, cq=2, ms=16)
for a in sys.argv[1:]:
    k, v = a.split("="); OPT[k] = int(v)
XR = 0; XS = 16384; WR = 49152; WSL = 20480; EX = 151552
EX_TOK = EX; EX_COL = EX + 4096
DREG = [32768, 40960, 69632, 77824,   86016, 94208, 102400,   110592, 118784, 0, 8192,   126976, 135168, 143360]
DAVAIL = {13: 4, 14: 3, 15: 4, 16: 3}
LONE = 26624
SPIN = 20000

class Prof:
    def __init__(self, A, base=82): self.A = A; self.n = 0; self.base = base
    def stamp(self, real=False):
        if not OPT["prof"]: return
        i = self.n; self.n += 1
        assert i < 16
        self.A(f"{'s_memrealtime' if (real or OPT['prof'] == 2) else 's_memtime'} s[100:101]")
        self.A("s_waitcnt lgkmcnt(0)")
        self.A(f"s_mov_b32 s{self.base+i}, s100")
    def dump(self, vt):
        if not OPT["prof"]: return
        A = self.A
        while self.n < 15: self.stamp()
        self.stamp(True)
        A(f"s_lshl_b32 s68, s2, 3\ns_add_u32 s68, s68, s14\ns_lshl_b32 s68, s68, 6\ns_add_u32 s68, s68, {32<<20}")
        A(f"v_mov_b32 v{vt}, 0")
        for i in range(self.n):
            A(f"v_mov_b32 v{vt+1}, s{self.base+i}")
            A(f"buffer_store_dword v{vt+1}, v{vt}, s[20:23], s68 offen offset:{4*i}")

class VQ:
    def __init__(self, A): self.A = A; self.q = []
    def add(self, tag, n): self.q.append((tag, n))
    def wait(self, tags):
        if isinstance(tags, str): tags = [tags]
        idx = max([i for i, (t, _) in enumerate(self.q) if t in tags], default=-1)
        if idx < 0: return
        rest = sum(c for _, c in self.q[idx + 1:])
        assert rest < 64
        self.A(f"s_waitcnt vmcnt({rest})")
        del self.q[:idx + 1]
    def has(self, tag): return tag in [t for t, _ in self.q]
    def clear(self): self.q = []

def spin(A, name, load, vval, maskexpr=None, cnt=56):
    A(f"""v_cmp_eq_u32 vcc, s80, v{vval}
    s_mov_b32 s{cnt}, 0
    s_cmp_eq_u64 vcc, -1
    s_cbranch_scc1 {name}_OK""")
    A.label(f"{name}_P")
    A(f"""s_sleep {OPT['sleep']}
    {load}
    s_add_u32 s{cnt}, s{cnt}, 1
    s_waitcnt vmcnt(0)
    v_cmp_eq_u32 vcc, s80, v{vval}
    s_cmp_gt_u32 s{cnt}, {SPIN}
    s_cbranch_scc1 {name}_OK
    s_cmp_eq_u64 vcc, -1
    s_cbranch_scc0 {name}_P""")
    A.label(f"{name}_OK")

A = Asm()
A.raw(f"""; recurrent_scan__sliding_block__geglu_ffn__prompt : generated by a python script (single persistent kernel)
; @launch grid=(256,1,1) block=(512,1,1) lds=163840
.amdgcn_target "amdgcn-amd-amdhsa--gfx950"
.text""")
kernel_header(A, NAME)
PR = Prof(A)
A("""s_load_dwordx4 s[4:7], s[0:1], 0
s_load_dwordx4 s[8:11], s[0:1], 32
s_load_dwordx4 s[16:19], s[0:1], 64
s_cmp_ge_u32 s2, 256
s_cbranch_scc1 L_END
v_and_b32 v1, 63, v0
v_lshrrev_b32 v16, 6, v0
s_and_b32 s57, s2, 7
v_readfirstlane_b32 s14, v16
s_lshr_b32 s58, s2, 3
s_and_b32 s44, s57, 1
s_and_b32 s45, s58, 7
s_lshl_b32 s47, s44, 3
s_add_u32 s47, s47, s45
s_lshr_b32 s46, s57, 1
s_lshr_b32 s49, s58, 3
s_lshl_b32 s48, s46, 2
s_add_u32 s48, s48, s49
s_mul_i32 s51, s46, 3
s_add_u32 s52, s51, s49
s_lshl_b32 s53, s52, 1
s_add_u32 s57, s46, 24
s_add_u32 s54, s51, 12
s_cmp_eq_u32 s49, 3
s_cselect_b32 s50, 1, 0
s_cselect_b32 s53, s57, s53
s_cselect_b32 s54, s54, s52
s_and_b32 s15, s14, 3
s_cmp_lt_u32 s14, 4
s_cbranch_scc1 L_M""")
def ws_srd():
    A("""s_mov_b32 s20, s18
    s_mov_b32 s21, s19
    s_mov_b32 s22, 0x10000000
    s_mov_b32 s23, 0x20000
    s_mov_b32 s18, 256
    s_mov_b32 s19, 0x20000""")
vDW = [2, 3, 4, 5, 6]; vDX = [7, 8]
ROT = OPT["rot"]
A("""s_lshl_b32 s58, s15, 15
v_lshrrev_b32 v16, 3, v1
v_lshlrev_b32 v16, 10, v16
v_add_u32 v16, s58, v16
v_lshrrev_b32 v17, 4, v1
v_xor_b32 v17, v17, v1
v_and_b32 v17, 7, v17
v_lshlrev_b32 v17, 4, v17
v_add_u32 v7, v16, v17
v_xor_b32 v8, 64, v7
s_lshl_b32 s12, s15, 12
s_lshl_b32 s13, s15, 10
s_lshl_b32 s57, s47, 17""")
if ROT == 1: A("s_lshl_b32 s81, s49, 2\ns_lshl_b32 s58, s45, 1\ns_add_u32 s81, s81, s58")
elif ROT == 2: A("s_add_u32 s81, s49, s45\ns_lshl_b32 s81, s81, 2")
elif ROT == 3: A("s_add_u32 s81, s49, s45\ns_lshl_b32 s81, s81, 3")
elif ROT == 0: A("s_mov_b32 s81, 0")
A("""s_waitcnt lgkmcnt(0)
s_add_u32 s72, s4, s57
s_addc_u32 s73, s5, 0
s_mov_b32 s74, 0x20000
s_mov_b32 s75, 0x20000""")
PR.stamp(True); PR.stamp()
def dma_x(u):
    o = []
    for jj in range(4):
        pre = [f"s_add_u32 s56, s81, {2*u}", "s_and_b32 s56, s56, 15", "s_lshl_b32 s56, s56, 6"] if jj == 0 else []
        o.append(pre + [f"s_add_u32 m0, s12, {XR + (u%3)*XS + jj*1024}", f"s_add_u32 s59, s56, {jj*8192}",
                        f"buffer_load_dwordx4 v{vDX[jj&1]}, s[72:75], s59 offen lds"])
    return o
def emit(groups):
    for g in groups:
        for i in g: A(i)
    return len(groups)
A(f"s_setprio {OPT['hprio']}")
Q = VQ(A)
n0 = emit(dma_x(0))
A("s_lshl_b32 s55, s53, 7\ns_lshl_b32 s56, s54, 7")
tabA = [(8, 55, 0), (8, 55, 128), (10, 55, 0), (10, 55, 128), (6, 56, 0)]
tabC = [(8, 55, 0), (10, 55, 0), (6, 56, 0), (6, 56, 128), (6, 56, 256)]
A("""v_bfe_u32 v16, v1, 2, 3
s_lshl_b32 s57, s15, 3
v_add_u32 v16, s57, v16
v_lshrrev_b32 v17, 5, v1
v_lshlrev_b32 v17, 6, v17
v_and_b32 v18, 3, v1
v_lshlrev_b32 v18, 4, v18
v_add_u32 v17, v17, v18
s_lshl_b32 s66, s50, 5
s_xor_b32 s67, s66, 32""")
swap = {0: None, 1: 66, 2: 67, 3: 67, 4: None}
for D in range(5):
    S = 24 + 4 * D
    (pa, ca, oa), (pc, cc_, oc) = tabA[D], tabC[D]
    A("s_cmp_eq_u32 s50, 1")
    if pa != pc:
        A(f"s_cselect_b32 s{S}, s{pc}, s{pa}\ns_cselect_b32 s{S+1}, s{pc+1}, s{pa+1}")
        src = S
    else: src = pa
    if ca != cc_: A(f"s_cselect_b32 s57, s{cc_}, s{ca}"); cs = 57
    else: cs = ca
    if oa != oc: A(f"s_cselect_b32 s58, {oc}, {oa}")
    sa = 3072 if pa == 6 else 3584; sc = 3072 if pc == 6 else 3584
    A(f"s_movk_i32 s{60+D}, {sa}")
    if sa != sc: A(f"s_cselect_b32 s{60+D}, {sc}, s{60+D}")
    if oa != oc: A(f"s_add_u32 s57, s{cs}, s58"); cs = 57
    elif oa: A(f"s_add_u32 s57, s{cs}, {oa}"); cs = 57
    A(f"s_add_u32 s{S}, s{src}, s{cs}\ns_addc_u32 s{S+1}, s{src+1}, 0")
    A(f"v_mul_u32_u24 v18, s{60+D}, v16")
    if swap[D]:
        A(f"v_xor_b32 v19, s{swap[D]}, v17\nv_add_u32 v{vDW[D]}, v18, v19")
    else:
        A(f"v_add_u32 v{vDW[D]}, v18, v17")
    A(f"s_lshl_b32 s{S+2}, s{60+D}, 9\ns_mov_b32 s{S+3}, 0x20000")
def dma_w(k):
    o = []
    for D in range(5):
        S = 24 + 4 * D
        pre = [f"s_add_u32 s56, s81, {k}", "s_and_b32 s56, s56, 15", "s_lshl_b32 s56, s56, 5"] if D == 0 else []
        o.append(pre + [f"s_add_u32 m0, s13, {WR + (k%5)*WSL + D*4096}", f"s_mul_i32 s59, s{60+D}, s56",
                        f"buffer_load_dwordx4 v{vDW[D]}, s[{S}:{S+3}], s59 offen lds"])
    return o
def G(k):
    g = (dma_x(k // 2) if k % 2 == 0 else []) + dma_w(k)
    Q.add(f"S{k}", emit(g))
Q.add("S0", n0 + emit(dma_w(0)))
G(1)
ws_srd()
A("""s_or_b32 s57, s2, s15
s_cmp_lg_u32 s57, 0
s_cbranch_scc1 H_NONONCE
s_memrealtime s[56:57]
s_waitcnt lgkmcnt(0)
s_mul_i32 s56, s56, 0x9e3779b1
s_or_b32 s56, s56, 1
v_mov_b32 v16, 0
v_mov_b32 v17, s56
buffer_store_dword v17, v16, s[16:19], 0 offen sc1""")
A.label("H_NONONCE")
A("s_lshl_b32 s69, s47, 5")
if ROT == 2: A("s_lshr_b32 s55, s45, 2\ns_lshl_b32 s57, s44, 1\ns_add_u32 s55, s55, s57")
elif ROT == 1: A("s_mov_b32 s55, s44")
elif ROT == 3: A("s_lshr_b32 s55, s45, 1\ns_lshl_b32 s57, s44, 2\ns_add_u32 s55, s55, s57")
if ROT == 0: A("s_and_b32 s55, s45, 3")
NDELTA = {0: 4, 1: 2, 2: 4, 3: 8}[ROT]
def pf_setup():
    A("""v_lshrrev_b32 v20, 3, v1
    v_and_b32 v21, 3, v20
    v_lshrrev_b32 v20, 2, v20
    v_lshlrev_b32 v20, 5, v20
    v_add_u32 v20, v20, v21
    s_lshl_b32 s57, s45, 2
    v_add_u32 v20, s57, v20
    v_and_b32 v21, 7, v1
    v_lshlrev_b32 v21, 4, v21""")
    for D in range(5):
        A(f"v_mul_u32_u24 v{116+D}, s{60+D}, v20\nv_add_u32 v{116+D}, v{116+D}, v21")
    A("""v_lshrrev_b32 v20, 3, v1
    v_lshlrev_b32 v20, 10, v20
    s_lshl_b32 s57, s49, 15
    s_lshl_b32 s58, s15, 13
    s_add_u32 s57, s57, s58
    v_add3_u32 v121, v20, v21, s57""")
def pf_burst(u0, u1):
    n = 0
    for u in range(u0, u1):
        A(f"s_movk_i32 s59, {u*128}\nbuffer_load_dwordx4 {vr(128+4*u,4)}, v121, s[72:75], s59 offen"); n += 1
    for u in range(u0, u1):
        A(f"s_mul_i32 s59, s{PFS}, {64*u}\nbuffer_load_dwordx4 {vr(160+4*u,4)}, v122, s[{PFR}:{PFR+3}], s59 offen"); n += 1
        lb = f"H_PF{u}"
        A(f"s_cmp_eq_u32 s15, {u%4}\ns_cbranch_scc0 {lb}\ns_mul_i32 s59, s64, {64*u}\nbuffer_load_dwordx4 {vr(192+4*(u>>2),4)}, v120, s[40:43], s59 offen")
        A.label(lb)
    Q.add("PF", n)
PFR, PFS = 76, 71
BUR = {}
if OPT.get("burst"):
    pf_setup()
    A(f"s_mov_b32 s{PFR}, s24\ns_mov_b32 s{PFR+1}, s25\ns_mov_b32 s{PFR+2}, s26\ns_mov_b32 s{PFR+3}, 0x20000\ns_mov_b32 s{PFS}, s60\nv_mov_b32 v122, v116")
    for D in (1, 2, 3):
        A(f"""s_cmp_eq_u32 s15, {D}
        s_cselect_b32 s{PFR}, s{24+4*D}, s{PFR}
        s_cselect_b32 s{PFR+1}, s{25+4*D}, s{PFR+1}
        s_cselect_b32 s{PFR+2}, s{26+4*D}, s{PFR+2}
        s_cselect_b32 s{PFS}, s{60+D}, s{PFS}
        s_cselect_b64 vcc, -1, 0
        v_cndmask_b32 v122, v122, v{116+D}, vcc""")
    BUR = {1: {-1: (1, 3), 1: (3, 6), 5: (6, 8)}, 2: {-1: (1, 4), 2: (4, 8)}, 3: {-1: (1, 2), 0: (2, 3), 1: (3, 4), 3: (4, 5), 5: (5, 6), 7: (6, 7), 9: (7, 8)}, 4: {-1: (1, 8)}}[OPT["burst"]]
    pf_burst(*BUR[-1])
A(f"""v_lshrrev_b32 v16, 5, v1
v_lshlrev_b32 v16, 10, v16
v_bfe_u32 v17, v1, 2, 2
v_lshlrev_b32 v17, 6, v17
v_add_u32 v16, v16, v17
v_and_b32 v17, 3, v1
v_lshlrev_b32 v17, 3, v17
v_add_u32 v16, v16, v17
v_bfe_u32 v17, v1, 4, 1
v_lshlrev_b32 v17, 5, v17
s_lshr_b32 s58, s15, 1
s_lshl_b32 s58, s58, 12
s_and_b32 s59, s15, 1
s_lshl_b32 s59, s59, 9
s_add_u32 s58, s58, s59
v_add3_u32 v12, v16, v17, s58
v_lshlrev_b32 v9, 4, v1
v_mov_b32 v10, 0""")
sched = {0: [2], 1: [3], 2: [4, 5]}
for s in range(3, 13): sched[s] = [s + 3]
def col_valu(js, fin):
    for j in js:
        b = 48 + 8 * j; acc = 44 + j
        for d in range(8):
            A(f"v_lshlrev_b32 v18, 16, v{b+d}\nv_and_b32 v19, 0xffff0000, v{b+d}")
            if d == 0: A(f"v_add_f32 v{acc}, v18, v19")
            else: A(f"v_add_f32 v{acc}, v{acc}, v18\nv_add_f32 v{acc}, v{acc}, v19")
    if fin:
        for j in range(3): A(f"v_mov_b32 v{72+2*j}, v{44+j}")
        A("s_nop 1")
        for j in range(3): A(f"v_permlane32_swap_b32 v{72+2*j}, v{44+j}")
        A("s_nop 1")
        for j in range(3): A(f"v_add_f32 v{72+2*j}, v{72+2*j}, v{44+j}")
def row_valu(part):
    if part == 0:
        for rrow in range(2):
            b = 32 + 4 * rrow; sx = 40 + 2 * rrow; sq = sx + 1
            for d in range(4):
                A(f"v_lshlrev_b32 v18, 16, v{b+d}\nv_and_b32 v19, 0xffff0000, v{b+d}")
                if d == 0: A(f"v_add_f32 v{sx}, v18, v19\nv_mul_f32 v{sq}, v18, v18\nv_fmac_f32 v{sq}, v19, v19")
                else: A(f"v_add_f32 v{sx}, v{sx}, v18\nv_fmac_f32 v{sq}, v18, v18\nv_add_f32 v{sx}, v{sx}, v19\nv_fmac_f32 v{sq}, v19, v19")
    else:
        for dpp in ("quad_perm:[1,0,3,2] row_mask:0xf bank_mask:0xf", "quad_perm:[2,3,0,1] row_mask:0xf bank_mask:0xf",
                    "row_half_mirror row_mask:0xf bank_mask:0xf", "row_mirror row_mask:0xf bank_mask:0xf",
                    "row_bcast:15 row_mask:0xa bank_mask:0xf", "row_bcast:31 row_mask:0xc bank_mask:0xf"):
            for r in range(40, 44): A(f"v_add_f32_dpp v{r}, v{r}, v{r} {dpp}")
def get_nonce(tag, vz, vn):
    A(f"""v_readfirstlane_b32 s80, v{vn}
    s_mov_b32 s57, 0
    s_cmp_eq_u32 s80, 0
    s_cbranch_scc0 {tag}_GOTN""")
    A.label(f"{tag}_POLLN")
    A(f"""buffer_load_dword v{vn}, v{vz}, s[16:19], 0 offen sc1
    s_add_u32 s57, s57, 1
    s_waitcnt vmcnt(0)
    v_readfirstlane_b32 s80, v{vn}
    s_cmp_gt_u32 s57, {SPIN}
    s_cbranch_scc1 {tag}_GOTN
    s_cmp_eq_u32 s80, 0
    s_cbranch_scc1 {tag}_POLLN""")
    A.label(f"{tag}_GOTN")
def publish():
    get_nonce("H", 10, 11)
    A(f"""s_lshl_b32 s57, s48, 4
    s_add_u32 s57, s57, s47
    s_mul_i32 s57, s57, 2560
    s_lshl_b32 s58, s15, 8
    s_add_u32 s57, s57, s58
    s_add_u32 s57, s57, {WS_CS}
    v_lshlrev_b32 v16, 3, v1
    v_mov_b32 v73, s80
    v_mov_b32 v75, s80
    v_mov_b32 v77, s80
    s_mov_b32 exec_hi, 0
    buffer_store_dwordx2 v[72:73], v16, s[20:23], s57 offen sc1
    buffer_store_dwordx2 v[74:75], v16, s[20:23], s57 offen offset:1024 sc1
    s_cmp_ge_u32 s15, 2
    s_cbranch_scc1 H_NO3
    buffer_store_dwordx2 v[76:77], v16, s[20:23], s57 offen offset:2048 sc1""")
    A.label("H_NO3")
    A(f"""s_mov_b32 exec_lo, 0
    s_mov_b32 exec_hi, 0x80000000
    s_lshl_b32 s57, s69, 6
    s_lshl_b32 s58, s48, 7
    s_add_u32 s57, s57, s58
    s_lshl_b32 s58, s15, 5
    s_add_u32 s57, s57, s58
    s_add_u32 s57, s57, {WS_TOK}
    v_mov_b32 v48, v40
    v_mov_b32 v49, v41
    v_mov_b32 v50, s80
    v_mov_b32 v51, s80
    v_mov_b32 v52, v42
    v_mov_b32 v53, v43
    v_mov_b32 v54, s80
    v_mov_b32 v55, s80
    buffer_store_dwordx4 v[48:51], v10, s[20:23], s57 offen sc1
    buffer_store_dwordx4 v[52:55], v10, s[20:23], s57 offen offset:16 sc1
    s_mov_b64 exec, -1""")
def gather_loads():
    for m in range(8):
        A(f"s_add_u32 s59, s66, {m*5120}")
        A(f"buffer_load_dwordx4 {vr(64+4*m,4)}, v16, s[20:23], s59 offen sc1")
    for m in range(2):
        A(f"s_add_u32 s59, s66, {m*8*2560}")
        A(f"buffer_load_dwordx4 {vr(96+4*m,4)}, v17, s[20:23], s59 offen sc1")
    A("buffer_load_dwordx4 v[104:107], v18, s[20:23], s67 offen sc1")
def gather_prep():
    A(f"""s_mul_i32 s66, s48, {16*2560}
    s_add_u32 s66, s66, {WS_CS}
    v_and_b32 v18, 31, v1
    v_lshlrev_b32 v18, 4, v18
    v_lshrrev_b32 v16, 5, v1
    v_mul_u32_u24 v16, 2560, v16
    s_lshl_b32 s58, s15, 9
    v_add3_u32 v16, v16, v18, s58
    v_and_b32 v17, 7, v1
    v_lshlrev_b32 v17, 4, v17
    v_lshrrev_b32 v19, 3, v1
    v_mul_u32_u24 v19, 2560, v19
    s_lshl_b32 s58, s15, 7
    s_add_u32 s58, s58, 2048
    v_add3_u32 v17, v17, v19, s58
    s_lshl_b32 s67, s69, 6
    s_lshl_b32 s59, s15, 9
    s_add_u32 s67, s67, s59
    s_add_u32 s67, s67, {WS_TOK}""")
def gather_check():
    A("s_mov_b32 s70, 0")
    Q.wait("GA")
    A.label("H_GCHK")
    tags = list(range(65, 104, 2)) + [106]
    A(f"v_and_b32 v19, v{tags[0]}, v{tags[1]}\nv_or_b32 v20, v{tags[0]}, v{tags[1]}")
    rest = tags[2:]
    for k in range(0, len(rest) - 1, 2):
        A(f"v_bitop3_b32 v19, v19, v{rest[k]}, v{rest[k+1]} bitop3:0x80\nv_or3_b32 v20, v20, v{rest[k]}, v{rest[k+1]}")
    if len(rest) % 2: A(f"v_and_b32 v19, v19, v{rest[-1]}\nv_or_b32 v20, v20, v{rest[-1]}")
    A(f"""v_xor_b32 v19, s80, v19
    v_xor_b32 v20, s80, v20
    v_or_b32 v19, v19, v20
    v_cmp_eq_u32 vcc, 0, v19
    s_add_u32 s70, s70, 1
    s_cmp_gt_u32 s70, {SPIN}
    s_cbranch_scc1 H_GOK
    s_cmp_eq_u64 vcc, -1
    s_cbranch_scc1 H_GOK
    s_sleep 4""")
    gather_loads()
    A("s_waitcnt vmcnt(0)")
    A("s_branch H_GCHK")
    A.label("H_GOK")
def gather_cols():
    st = 4
    while st <= 16:
        for r in range(64, 96, 2 * st):
            A(f"v_add_f32 v{r}, v{r}, v{r+st}\nv_add_f32 v{r+2}, v{r+2}, v{r+st+2}")
        st *= 2
    A("""v_add_f32 v96, v96, v100
    v_add_f32 v98, v98, v102
    v_mov_b32 v65, v64
    v_mov_b32 v67, v66
    v_add_f32_dpp v96, v96, v96 row_ror:8 row_mask:0xf bank_mask:0xf
    v_add_f32_dpp v98, v98, v98 row_ror:8 row_mask:0xf bank_mask:0xf
    v_permlane32_swap_b32 v65, v64
    v_permlane32_swap_b32 v67, v66
    v_mov_b32 v97, v96
    v_mov_b32 v99, v98
    v_add_f32 v64, v64, v65
    v_add_f32 v66, v66, v67
    v_permlane32_swap_b32 v97, v96
    v_permlane32_swap_b32 v99, v98
    s_nop 0
    v_add_f32 v96, v96, v97
    v_add_f32 v98, v98, v99
    v_mov_b32 v97, v96
    v_mov_b32 v99, v98
    s_nop 1
    v_permlane16_swap_b32 v97, v96
    v_permlane16_swap_b32 v99, v98
    s_nop 0
    v_add_f32 v96, v96, v97
    v_add_f32 v98, v98, v99""")
    for r, d in ((64, 68), (66, 69), (96, 70), (98, 71)):
        A(f"""v_cvt_pk_bf16_f32 v{r+1}, v{r}, v{r}
        v_and_b32 v{r+1}, 0xffff0000, v{r+1}
        v_sub_f32 v{r}, v{r}, v{r+1}
        v_cvt_pk_bf16_f32 v{d}, v{r+1}, v{r}""")
    A(f"""v_lshrrev_b32 v16, 1, v18
    s_lshl_b32 s58, s15, 8
    s_add_u32 s58, s58, {EX_COL}
    v_add_u32 v16, s58, v16
    ds_write_b64 v16, v[68:69]
    v_and_b32 v17, 7, v1
    v_lshlrev_b32 v17, 3, v17
    s_lshl_b32 s58, s15, 6
    s_add_u32 s58, s58, {EX_COL + 1024}
    v_add_u32 v17, s58, v17
    ds_write_b64 v17, v[70:71]""")
def gather_toks():
    c1 = -2.0 * math.sqrt(2.0 / math.pi) * LOG2E
    c3 = c1 * 0.044715
    A(f"""    v_mul_f32 v104, {f32(-1/512)}, v104
    v_mul_f32 v105, {f32(1/512)}, v105
    v_fma_f32 v105, -v104, v104, v105
    v_max_f32 v105, 0, v105
    v_add_f32 v113, {f32(1e-5)}, v105
    v_rsq_f32 v110, v113
    v_cvt_pk_bf16_f32 v108, v104, v104
    v_and_b32 v106, 0xffff0000, v108
    v_sub_f32 v106, v104, v106
    v_cvt_pk_bf16_f32 v109, v106, v106
    v_mul_f32 v111, {f32(c1)}, v110
    v_mul_f32 v112, v110, v110
    v_mul_f32 v112, v112, v110
    v_mul_f32 v112, {f32(c3)}, v112
    v_mov_b32 v114, s80
    v_lshlrev_b32 v18, 1, v18
    s_lshl_b32 s58, s15, 10
    s_add_u32 s58, s58, {EX_TOK}
    v_add_u32 v18, s58, v18
    ds_write_b128 v18, v[108:111]
    ds_write_b128 v18, v[112:115] offset:16
    s_waitcnt lgkmcnt(0)""")
WD = OPT["wd"]
UFB = [60, 61, 62, 76, 77, 78, 79]
def d_setup_w():
    A(f"""v_bfe_u32 v6, v1, 2, 3
    v_lshlrev_b32 v6, 10, v6
    v_lshrrev_b32 v7, 5, v1
    v_lshlrev_b32 v7, 6, v7
    v_add_u32 v6, v6, v7
    v_and_b32 v7, 3, v1
    v_lshlrev_b32 v7, 4, v7
    v_add_u32 v2, v6, v7
    s_lshl_b32 s43, s15, 11
    s_lshr_b32 s58, s2, 5
    s_lshl_b32 s40, s58, 7
    s_lshl_b32 s42, s15, 17
    s_add_u32 s42, s42, s40
    s_mul_i32 s57, s15, 24""")
    if OPT["rotd"]:
        A("""s_mul_i32 s59, s58, 11
        s_lshr_b32 s59, s59, 5
        s_mul_i32 s59, s59, 3
        s_sub_u32 s59, s58, s59""")
    else:
        A("s_mov_b32 s59, 0\ns_mov_b32 s58, 0")
    for u in range(3):
        A(f"""s_lshl_b32 s{UFB[u]}, s59, 3
        s_add_u32 s{UFB[u]}, s{UFB[u]}, s57
        s_add_u32 s{UFB[u]}, s{UFB[u]}, 4
        s_add_u32 s59, s59, 1
        s_cmp_eq_u32 s59, 3
        s_cselect_b32 s59, 0, s59""")
    A("s_lshl_b32 s41, s15, 2\ns_add_u32 s41, s41, 96")
    for u in range(4):
        A(f"""s_add_u32 s59, s58, {u}
        s_and_b32 s59, s59, 3
        s_lshl_b32 s44, s59, 3
        s_add_u32 s44, s44, s57
        s_cmp_eq_u32 s59, 3
        s_cselect_b32 s{UFB[3+u]}, s41, s44""")
    A("""s_waitcnt lgkmcnt(0)
    s_mov_b32 s26, 0x1c0000
    s_mov_b32 s27, 0x20000
    s_mov_b32 s30, 0x80000
    s_mov_b32 s31, 0x20000""")
def issw(s, q):
    slot = s % WD
    if s < 28:
        srd = 24
        o = [f"s_lshl_b32 s44, s{UFB[s>>2]}, 14", "s_add_u32 s44, s44, s40"]
        if s & 3: o.append(f"s_add_u32 s44, s44, {(s&3)*16384}")
    else:
        srd = 28
        o = [f"s_add_u32 s44, s42, {(s-28)*16384}"]
    a = o + [f"s_add_u32 m0, s43, {DREG[slot]}", "s_add_u32 s45, s44, 8192",
             f"buffer_load_dwordx4 v2, s[{srd}:{srd+3}], s44 offen lds"]
    b = [f"s_add_u32 m0, s43, {DREG[slot]+1024}", "s_nop 0",
         f"buffer_load_dwordx4 v2, s[{srd}:{srd+3}], s45 offen lds"]
    q.add(f"W{s}", 2)
    return [a, b]
P0 = max(NDELTA, 4)
wnext = [0]
GAT, GC = OPT['gat'], OPT['gc']
for s in range(17):
    if s < 16: Q.wait(f"S{s}")
    A("s_barrier")
    if s == 0: PR.stamp()
    for k in sched.get(s, []): G(k)
    if s in BUR: pf_burst(*BUR[s])
    if s == 0:
        A("""s_lshl_b32 s57, s48, 13
        s_lshl_b32 s58, s15, 11
        s_add_u32 s57, s57, s58
        buffer_load_dwordx4 v[32:35], v9, s[72:75], s57 offen
        buffer_load_dwordx4 v[36:39], v9, s[72:75], s57 offen offset:1024
        buffer_load_dword v11, v10, s[16:19], 0 offen sc1""")
        Q.add("ST", 3)
    if s < NDELTA:
        lb = f"H_NOCS{s}"
        A(f"s_cmp_eq_u32 s55, {s}\ns_cbranch_scc0 {lb}\nv_add_u32 v12, {WR + (s%5)*WSL}, v12")
        for j in range(3):
            for t in range(4):
                A(f"ds_read_b64_tr_b16 {vr(48+8*j+2*t,2)}, v12 offset:{j*8192 + (t>>1)*2048 + (t&1)*256}")
        A("s_waitcnt lgkmcnt(0)")
        A.label(lb)
    if s == 3: row_valu(0)
    if s == P0: col_valu([0, 1], False)
    if s == P0 + 1: col_valu([2], True); row_valu(1)
    if s == P0 + 2: publish()
    if s == OPT["warm"] - 1:
        A("s_load_dwordx2 s[4:5], s[0:1], 48\ns_load_dwordx2 s[8:9], s[0:1], 16")
    if s == OPT["warm"]:
        A("""s_cmp_lg_u32 s15, 0
        s_cbranch_scc1 H_NOWARM
        s_mul_i32 s57, s2, 7168
        s_lshl_b32 s58, s2, 11
        v_lshlrev_b32 v20, 7, v1
        s_waitcnt lgkmcnt(0)
        s_add_u32 s6, s57, 7168
        s_mov_b32 s7, 0x20000
        s_add_u32 s10, s58, 2048
        s_mov_b32 s11, 0x20000
        buffer_load_dword v21, v20, s[4:7], s57 offen
        buffer_load_dword v22, v20, s[8:11], s58 offen""")
        A.label("H_NOWARM")
    if OPT["l2pf"] and s == OPT["warm"] + 1:
        A("""s_lshr_b32 s57, s2, 3
        s_lshl_b32 s57, s57, 2
        s_add_u32 s57, s57, s15
        s_mul_i32 s58, s57, 14336
        s_lshl_b32 s57, s57, 12
        s_waitcnt lgkmcnt(0)
        s_add_u32 s4, s4, s58
        s_addc_u32 s5, s5, 0
        s_add_u32 s8, s8, s57
        s_addc_u32 s9, s9, 0""")
    if OPT["l2pf"] and OPT["warm"] + 1 <= s <= 13:
        nst = 13 - OPT["warm"]
        tot = 144 if OPT["l2pf"] == 1 else OPT["l2pf"]
        i0 = (s - OPT["warm"] - 1) * tot // nst; i1 = (s - OPT["warm"]) * tot // nst
        for i in range(i0, i1):
            if i < 112: A(f"s_load_dword s65, s[4:5], {i*128}")
            else: A(f"s_load_dword s65, s[8:9], {(i-112)*128}")
    if s == GAT - 1: gather_prep()
    if s == GAT: gather_loads(); Q.add("GA", 11)
    if s == 12:
        A("s_load_dwordx2 s[24:25], s[0:1], 48\ns_load_dwordx2 s[28:29], s[0:1], 16")
        d_setup_w()
    if s == GC: gather_check()
    if s in DAVAIL:
        for _ in range(DAVAIL[s]):
            emit(issw(wnext[0], Q)); wnext[0] += 1
    if s == GC + 1: gather_cols()
    if s == GC + 2: gather_toks()
    if s in (4, 8, 12): PR.stamp()
PR.stamp()
PR.stamp()
import gen_cd
gen_cd.OPT = OPT
A("""s_and_b32 s57, s2, 7
s_lshr_b32 s58, s2, 3
s_and_b32 s58, s58, 3
s_lshl_b32 s50, s58, 3
s_add_u32 s50, s50, s57
s_lshr_b32 s51, s2, 5
s_lshl_b32 s51, s51, 2
s_add_u32 s51, s51, s15""")
gen_cd.attn_setup(A)
A(f"""v_min_u32 v9, 10, v1
v_cmp_gt_u32 vcc, 5, v9
v_subrev_u32 v10, 5, v9
s_nop 0
v_cndmask_b32 v10, v10, v9, vcc
v_min_u32 v10, 4, v10
s_sub_u32 s57, s51, 4
v_add_u32 v10, s57, v10
v_max_i32 v10, 0, v10
v_lshlrev_b32 v10, 8, v10
v_mov_b32 v11, 128
v_cndmask_b32 v11, v11, 64, vcc
v_cmp_eq_u32 vcc, 10, v9
s_lshr_b32 s57, s50, 1
s_lshl_b32 s57, s57, 7
s_add_u32 s57, s57, {WS_FQ}
v_cndmask_b32 v11, v11, 0, vcc
v_add_u32 v10, v10, v11
v_lshlrev_b32 v10, 5, v10
v_add_u32 v252, s57, v10""")
A("s_barrier")
PR.stamp()
gen_cd.LONE = LONE
A("""s_movk_i32 s57, 0x4000
s_cmp_eq_u32 s15, 1
s_cselect_b32 s57, 49152, s57
s_cmp_eq_u32 s15, 2
s_cselect_b32 s57, 59392, s57
s_cmp_eq_u32 s15, 3
s_cselect_b32 s57, 151552, s57""")
gen_cd.attn_setup2(A, None)
ld = "buffer_load_dword v253, v252, s[20:23], 0 offen sc1"
A("s_waitcnt vmcnt(0)")
PR.stamp()
A("s_barrier")
A(f"s_setprio {OPT['aprio']}")
if OPT["wtouch"]:
    A(f"""s_sleep {OPT['wts']}
    s_lshr_b32 s57, s2, 3
    s_and_b32 s57, s57, 3
    s_lshl_b32 s57, s57, 10
    s_add_u32 s57, s57, s40
    v_lshlrev_b32 v9, 12, v1
    s_mul_i32 s58, s15, {6*65536}
    s_add_u32 s58, s58, s57
    buffer_load_dword v10, v9, s[24:27], s58 offen
    s_add_u32 s58, s58, {4*65536}
    s_mov_b32 exec_hi, 0
    buffer_load_dword v10, v9, s[24:27], s58 offen
    s_lshl_b32 s58, s15, 17
    s_add_u32 s58, s58, s57
    buffer_load_dword v10, v9, s[28:31], s58 offen
    s_mov_b32 exec_lo, 0xffff
    s_add_u32 s58, s15, 24
    s_lshl_b32 s58, s58, 16
    s_add_u32 s58, s58, s57
    buffer_load_dword v10, v9, s[24:27], s58 offen
    s_mov_b64 exec, -1""")
A(f"s_sleep {OPT['hs']}")
A(ld)
A("s_waitcnt vmcnt(0)")
spin(A, "HQ", ld, 253)
PR.stamp()
A("s_cmp_lt_u32 s51, 4")
A("s_cbranch_scc1 H_SLOW")
n0 = PR.n
gen_cd.gen_attn(A, False, "AF", PR, "sc1", setup=False, bar=OPT["defer"] >= 4)
A.label("H_AFIN")
PR.stamp()
A(f"""s_lshl_b32 s57, s51, 12
s_lshl_b32 s58, s50, 7
s_add_u32 s57, s57, s58
s_add_u32 s57, s57, {WS_FO}
v_mov_b32 v9, 0
v_mov_b32 v10, s80
s_waitcnt vmcnt(0)
s_mov_b64 exec, 1
buffer_store_dword v10, v9, s[20:23], s57 offen sc1
s_mov_b64 exec, -1""")
PR.stamp()
PR.dump(2)
A.label("L_END")
A("s_endpgm")
A.label("H_SLOW")
PR.n = n0
gen_cd.gen_attn(A, True, "AS", PR, "sc1", setup=False, bar=OPT["defer"] >= 4)
A("s_branch H_AFIN")
A.label("L_M")
PR.n = 0
A("s_waitcnt lgkmcnt(0)")
PR.stamp(True); PR.stamp()
ws_srd()
if OPT["codepf"]:
    A("s_getpc_b64 s[24:25]")
    A.label("L_PC")
    A(f"""s_sub_u32 s24, s24, L_PC-{NAME}
    s_subb_u32 s25, s25, 0
    s_mov_b32 s26, L_CODE_END-{NAME}
    s_mov_b32 s27, 0x20000
    s_lshr_b32 s57, s2, 3
    s_lshl_b32 s57, s57, 2
    s_add_u32 s57, s57, s14
    s_lshl_b32 s57, s57, 9
    v_lshlrev_b32 v16, 7, v1
    s_mov_b64 exec, 15
    buffer_load_dword v31, v16, s[24:27], s57 offen
    s_mov_b64 exec, -1""")
vXa = [2, 3, 4, 5]; vWa = [6, 7, 8, 9, 10]; vWb = [11, 12, 13, 14, 15]
P = 32; QQ = 60; ACC = 88
A("s_setprio 2")
A("""s_and_b32 s12, s14, 1
s_lshr_b32 s13, s14, 1
v_and_b32 v16, 31, v1
v_lshrrev_b32 v17, 5, v1
v_bfe_u32 v18, v1, 1, 3
v_xor_b32 v17, v17, v18
v_lshlrev_b32 v17, 4, v17
v_lshlrev_b32 v16, 7, v16
v_add_u32 v16, v16, v17
s_lshl_b32 s57, s12, 13
v_add_u32 v2, s57, v16
v_xor_b32 v3, 32, v2
v_xor_b32 v4, 64, v2
v_xor_b32 v5, 96, v2""")
A(f"""v_lshrrev_b32 v16, 5, v1
v_lshlrev_b32 v16, 10, v16
v_bfe_u32 v17, v1, 2, 2
v_lshlrev_b32 v17, 6, v17
v_add_u32 v16, v16, v17
v_and_b32 v17, 3, v1
v_lshlrev_b32 v17, 3, v17
v_add_u32 v16, v16, v17
v_add_u32 v16, {WR}, v16
v_bfe_u32 v17, v1, 4, 1
s_sub_u32 s57, 2, s50
s_lshl_b32 s57, s57, 12
v_mul_u32_u24 v18, s57, v17
v_xor_b32 v19, s13, v17
v_lshlrev_b32 v19, 5, v19
v_add3_u32 v18, v18, v19, v16
v_lshlrev_b32 v19, 5, v17
s_lshl_b32 s57, s13, 9
v_add3_u32 v19, v19, s57, v16
s_cmp_eq_u32 s50, 1
s_cselect_b64 vcc, -1, 0""")
for n in range(5):
    fo = (n >> 1) * 4096 + (n & 1) * 512
    qo = n * 4096
    if n < 2: A(f"v_add_u32 v{vWa[n]}, {fo}, v18")
    elif n == 4: A(f"v_add_u32 v{vWa[n]}, {qo}, v19")
    else:
        A(f"v_add_u32 v20, {fo}, v18\nv_add_u32 v21, {qo}, v19\nv_cndmask_b32 v{vWa[n]}, v20, v21, vcc")
for n in range(5): A(f"v_add_u32 v{vWb[n]}, {4*WSL}, v{vWa[n]}")
def reads(s, kk, dst):
    xs = (s >> 1) % 3; q4 = (s & 1) * 2 + kk; sl = s % 5
    def xr(tt): return f"ds_read_b128 {vr(dst+4*tt,4)}, v{vXa[q4]} offset:{XR + xs*XS + tt*4096}"
    def wr(n, sec):
        a, o = (vWa[n], sl * WSL) if sl < 4 else (vWb[n], 0)
        return f"ds_read_b64_tr_b16 {vr(dst+8+4*n+2*sec,2)}, v{a} offset:{o + kk*2048 + sec*256}"
    R = [xr(0), wr(0, 0), wr(0, 1), xr(1)]
    for n in range(1, 5): R += [wr(n, 0), wr(n, 1)]
    return R
need = {0: 2, 1: 3, 2: 5, 4: 7, 6: 9, 8: 11}
def substep(cur, R, first=False):
    issued = 0
    for j in range(10):
        n, tt = j >> 1, j & 1
        if j in need: A(f"s_waitcnt lgkmcnt({min(15, 11 - need[j] + issued)})")
        a = ACC + 16 * (2 * n + tt)
        c = "0" if first else vr(a, 16)
        A(f"v_mfma_f32_32x32x16_bf16 {vr(a,16)}, {vr(cur+8+4*n,4)}, {vr(cur+4*tt,4)}, {c}")
        k = 2 if j < 2 else 1
        for r in R[issued:issued + k]: A(r)
        issued += len(R[issued:issued + k])
A(f"""v_and_b32 v16, 31, v1
v_lshlrev_b32 v22, 5, v16
s_lshl_b32 s57, s12, 11
s_add_u32 s57, s57, {EX_TOK}
v_add_u32 v22, s57, v22
v_and_b32 v16, 15, v1
s_sub_u32 s57, 2, s50
s_lshl_b32 s57, s57, 6
v_mul_u32_u24 v18, s57, v17
v_xor_b32 v19, s13, v17
v_lshlrev_b32 v19, 4, v19
v_add3_u32 v18, v18, v19, v16
v_lshlrev_b32 v18, 2, v18
v_and_b32 v19, 31, v1
s_lshl_b32 s57, s13, 5
v_add_u32 v19, s57, v19
v_lshlrev_b32 v19, 2, v19""")
for n in range(5):
    fo = EX_COL + ((n >> 1) * 64 + (n & 1) * 32) * 4
    qo = EX_COL + n * 256
    if n < 2: A(f"v_add_u32 v{23+n}, {fo}, v18")
    elif n == 4: A(f"v_add_u32 v{23+n}, {qo}, v19")
    else:
        A(f"v_add_u32 v20, {fo}, v18\nv_add_u32 v21, {qo}, v19\nv_cndmask_b32 v{23+n}, v20, v21, vcc")
A(f"""s_lshl_b32 s57, s47, 2
s_lshl_b32 s58, s12, 1
s_add_u32 s57, s57, s58
s_mul_i32 s70, s57, {112*1024}
s_lshl_b32 s59, s53, 12
s_add_u32 s70, s70, s59
s_lshl_b32 s59, s13, 10
s_add_u32 s70, s70, s59
s_add_u32 s70, s70, {WS_H}
s_lshl_b32 s59, s54, 2
s_lshl_b32 s60, s13, 1
s_add_u32 s59, s59, s60
s_lshl_b32 s71, s59, 6
s_add_u32 s71, s71, s57
s_lshl_b32 s71, s71, 10
s_lshl_b32 s57, s57, 7
s_lshl_b32 s72, s59, 1
s_add_u32 s72, s72, s57
s_lshl_b32 s72, s72, 5
s_add_u32 s72, s72, {WS_FQ}
s_lshl_b32 s73, s48, 3
s_lshl_b32 s60, s13, 2
s_add_u32 s73, s73, s60
s_add_u32 s73, s73, s57
s_lshl_b32 s73, s73, 5
s_add_u32 s73, s73, {WS_FH}
s_add_u32 s74, s73, 4096
s_load_dwordx2 s[24:25], s[0:1], 48
s_load_dwordx2 s[28:29], s[0:1], 16
s_load_dwordx2 s[36:37], s[0:1], 56
s_waitcnt vmcnt(0) lgkmcnt(0)""")
A("s_barrier")
PR.stamp()
for r in reads(0, 0, P): A(r)
A.raw(".p2align 3")
for s in range(16):
    substep(P, reads(s, 1, QQ), first=(s == 0))
    A("s_barrier")
    if s < 15: substep(QQ, reads(s + 1, 0, P))
    else:
        R = [f"ds_read_b128 {vr(P,4)}, v22", f"ds_read_b128 {vr(P+4,4)}, v22 offset:1024",
             f"ds_read_b128 v[16:19], v22 offset:16", f"ds_read_b128 v[28:31], v22 offset:1040"]
        R += [f"ds_read_b32 v{P+8+4*n}, v{23+n}" for n in range(5)]
        substep(QQ, R)
    if s in (11,): PR.stamp()
A("s_waitcnt lgkmcnt(0)")
A("s_barrier")
PR.stamp()
A(f"""v_mov_b32 v248, v{P+2}
v_mov_b32 v249, v{P+3}
v_mov_b32 v250, v16
v_mov_b32 v251, v17
v_mov_b32 v252, v{P+6}
v_mov_b32 v253, v{P+7}
v_mov_b32 v254, v28
v_mov_b32 v255, v29
v_cmp_gt_u32 vcc, 32, v1
v_readfirstlane_b32 s80, v18
v_mov_b32 v{P+2}, 0
v_mov_b32 v{P+3}, 0
v_mov_b32 v{P+6}, 0
v_mov_b32 v{P+7}, 0
v_cndmask_b32 v{P}, 0, v{P}, vcc
v_cndmask_b32 v{P+1}, 0, v{P+1}, vcc
v_cndmask_b32 v{P+4}, 0, v{P+4}, vcc
v_cndmask_b32 v{P+5}, 0, v{P+5}, vcc""")
for n in (4, 3, 2, 1, 0):
    w = P + 8 + 4 * n
    A(f"v_mov_b32 v{w+1}, v{w}\nv_mov_b32 v{w+2}, 0\nv_mov_b32 v{w+3}, 0")
for n in (4, 3, 2, 1, 0):
    for tt in range(2):
        a = ACC + 16 * (2 * n + tt)
        A(f"v_mfma_f32_32x32x16_bf16 {vr(a,16)}, {vr(P+8+4*n,4)}, {vr(P+4*tt,4)}, {vr(a,16)}")
A(f"""v_lshlrev_b32 v2, 4, v1
v_and_b32 v3, 31, v1
v_lshlrev_b32 v3, 5, v3
v_lshrrev_b32 v4, 5, v1
v_lshlrev_b32 v4, 4, v4
v_add_u32 v3, v3, v4
v_lshlrev_b32 v8, 8, v1
v_mov_b32 v9, s80""")
T = QQ
for tt in range(2):
    for k in range(3):
        A(f"v_mov_b32 v{68+6*tt+2*k}, v{248+4*tt+1+k}\nv_mov_b32 v{69+6*tt+2*k}, v{248+4*tt+1+k}")
def ffn(n, tt):
    a = ACC + 16 * (2 * n + tt); c = 68 + 6 * tt
    for r in range(0, 8, 2): A(f"v_pk_mul_f32 {vr(T+r,2)}, {vr(a+r,2)}, {vr(a+r,2)}")
    for r in range(0, 8, 2): A(f"v_pk_fma_f32 {vr(T+r,2)}, {vr(T+r,2)}, {vr(c+2,2)}, {vr(c,2)}")
    for r in range(0, 8, 2): A(f"v_pk_mul_f32 {vr(T+r,2)}, {vr(T+r,2)}, {vr(a+r,2)}")
    for r in range(8): A(f"v_exp_f32 v{T+r}, v{T+r}")
    for r in range(0, 8, 2): A(f"v_pk_mul_f32 {vr(a+r,2)}, {vr(a+r,2)}, {vr(a+8+r,2)}")
    for r in range(0, 8, 2): A(f"v_pk_fma_f32 {vr(T+r,2)}, {vr(T+r,2)}, {vr(c+4,2)}, {vr(c+4,2)}")
    for r in range(8): A(f"v_rcp_f32 v{T+r}, v{T+r}")
    A("s_nop 0")
    for r in range(0, 8, 2): A(f"v_pk_mul_f32 {vr(a+r,2)}, {vr(a+r,2)}, {vr(T+r,2)}")
    for d in range(4): A(f"v_cvt_pk_bf16_f32 v{a+8+d}, v{a+2*d}, v{a+2*d+1}")
def ffn_st(n, tt):
    a = ACC + 16 * (2 * n + tt)
    A(f"s_add_u32 s63, s70, {2048*n + tt*112*1024}")
    A(f"buffer_store_dwordx4 {vr(a+8,4)}, v2, s[20:23], s63 offen sc1")
def qkv(n, zoff):
    A(f"""s_add_u32 s60, s54, {zoff}
    s_cmp_lt_u32 s60, 8
    s_mov_b32 s62, {f32(0.25*LOG2E)}
    s_cselect_b32 s62, s62, 1.0
    v_mul_f32 v4, s62, v248
    v_mul_f32 v6, s62, v252
    v_mul_f32 v5, s62, v248
    v_mul_f32 v7, s62, v252""")
    for tt in range(2):
        a = ACC + 16 * (2 * n + tt)
        for r in range(0, 16, 2): A(f"v_pk_mul_f32 {vr(a+r,2)}, {vr(a+r,2)}, {vr(4+2*tt,2)}")
        for d in range(8): A(f"v_cvt_pk_bf16_f32 v{a+d}, v{a+2*d}, v{a+2*d+1}")
        A(f"s_add_u32 s63, s71, {zoff*4*65536 + tt*1024}")
        A(f"buffer_store_dwordx4 {vr(a,4)}, v2, s[20:23], s63 offen sc1")
        A(f"s_add_u32 s63, s63, 65536")
        A(f"buffer_store_dwordx4 {vr(a+4,4)}, v2, s[20:23], s63 offen sc1")
def flag(vm, mask, soff, imm=0, voff=8):
    A(f"s_waitcnt vmcnt({vm})\ns_mov_b64 exec, {mask}\nbuffer_store_dword v9, v{voff}, s[20:23], s{soff} offen offset:{imm} sc1\ns_mov_b64 exec, -1")
A("s_cmp_eq_u32 s50, 1")
A("s_cbranch_scc1 M_TC")
def ffs(n, tt): ffn(n, tt); ffn_st(n, tt)
DF = OPT["defer"]
qkv(4, 0)
if DF:
    ffn(3, 0); ffn(3, 1)
    A("s_barrier")
    ffn(2, 0); ffn(2, 1)
    if DF == 5: flag(0, 1, 72)
    if DF >= 2: ffn(1, 0); ffn(1, 1)
    if DF != 5: flag(0, 1, 72)
    nq = PR.n; PR.stamp()
    if DF >= 3: ffn(0, 0); ffn(0, 1)
    if DF >= 4: A("s_barrier")
    for n in (3, 2):
        for tt in range(2): ffn_st(n, tt)
    if DF == 1: ffs(1, 0); ffs(1, 1); ffs(0, 0); ffs(0, 1)
    elif DF == 2: ffn_st(1, 0); ffn_st(1, 1); ffs(0, 0); ffs(0, 1)
    else: ffn_st(1, 0); ffn_st(1, 1); ffn_st(0, 0); ffn_st(0, 1)
    flag(4, 1, 73)
else:
    ffs(3, 0); ffs(3, 1)
    A("s_barrier")
    ffs(2, 0); ffs(2, 1)
    flag(4, 1, 72)
    ffs(1, 0); ffs(1, 1); ffs(0, 0); ffs(0, 1)
    flag(4, 1, 73)
A("s_branch M_TJ")
A.label("M_TC")
qkv(4, 2); qkv(3, 1); qkv(2, 0)
A("s_barrier")
if DF:
    order = [(1, 0), (1, 1), (0, 0), (0, 1)]
    for t in order[:OPT["cq"]]: ffn(*t)
    flag(0, 7, 72)
    PR.n = nq; PR.stamp()
    for t in order[OPT["cq"]:]: ffn(*t)
    if DF >= 4: A("s_barrier")
    ffn_st(1, 0); ffn_st(1, 1); ffn_st(0, 0); ffn_st(0, 1)
else:
    ffs(1, 0); ffs(1, 1); ffs(0, 0); ffs(0, 1)
    flag(4, 7, 72)
A.label("M_TJ")
PR.stamp()
A("s_mov_b32 s15, s14")
d_setup_w()
XRr, BF, WF, AD, AS = 8, 16, 80, 96, 160
BD, NS = 8, 36
flag(0, 1, 74)
PR.stamp()
DQ = VQ(A)
A(f"""s_and_b32 s57, s2, 7
s_lshl_b32 s50, s57, 2
s_lshr_b32 s57, s2, 3
s_and_b32 s57, s57, 3
s_add_u32 s50, s50, s57
s_lshr_b32 s51, s2, 5
v_lshlrev_b32 v3, 4, v1
s_lshl_b32 s55, s50, 13
s_lshl_b32 s57, s15, 10
s_add_u32 s55, s55, s57
s_add_u32 s55, s55, {WS_FH}
s_add_u32 s75, s55, 4096
v_min_u32 v226, 5, v1
v_lshlrev_b32 v226, 7, v226
v_min_u32 v227, 7, v1
v_lshlrev_b32 v227, 7, v227""")
ld0 = "buffer_load_dword v228, v226, s[20:23], s55 offen sc1"
ld1 = "buffer_load_dword v228, v227, s[20:23], s75 offen sc1"
if OPT["ms"]: A(f"s_sleep {OPT['ms']}")
A(ld0)
A(f"""s_lshl_b32 s57, s50, 1
s_and_b32 s58, s15, 1
s_add_u32 s59, s57, s58
s_xor_b32 s58, s58, 1
s_add_u32 s57, s57, s58
s_mul_i32 s64, s59, {112*1024}
s_add_u32 s64, s64, {WS_H}
s_mul_i32 s65, s57, {112*1024}
s_add_u32 s65, s65, {WS_H}
s_lshl_b32 s58, s15, 13
s_add_u32 s58, s58, {WS_O}
s_lshl_b32 s67, s59, 15
s_add_u32 s67, s67, s58
s_lshl_b32 s53, s57, 15
s_add_u32 s53, s53, s58
v_and_b32 v6, 31, v1
v_lshlrev_b32 v6, 10, v6
v_lshrrev_b32 v7, 5, v1
v_lshlrev_b32 v7, 4, v7
v_add_u32 v224, v6, v7
s_lshl_b32 s54, s59, 15
s_lshl_b32 s57, s51, 7
s_add_u32 s54, s54, s57
s_lshr_b32 s57, s15, 1
s_lshl_b32 s57, s57, 6
s_add_u32 s54, s54, s57
v_lshrrev_b32 v6, 5, v1
v_lshlrev_b32 v6, 8, v6
v_bfe_u32 v7, v1, 2, 2
v_lshlrev_b32 v7, 6, v7
v_add_u32 v6, v6, v7
v_and_b32 v7, 3, v1
v_lshlrev_b32 v7, 3, v7
v_add_u32 v6, v6, v7
v_bfe_u32 v7, v1, 4, 1
v_lshlrev_b32 v7, 5, v7
v_add_u32 v6, v6, v7
s_lshl_b32 s57, s57, 3
v_add_u32 v6, s57, v6
v_xor_b32 v7, 512, v6
v_add_u32 v4, s43, v6
v_add_u32 v5, s43, v7
v_add_u32 v232, 0x10000, v4
v_add_u32 v233, 0x10000, v5
v_add_u32 v234, 0x20000, v4
v_add_u32 v235, 0x20000, v5
s_mov_b32 s32, s4
s_mov_b32 s33, s5
s_mov_b32 s34, 0x200000
s_mov_b32 s35, 0x20000
s_mov_b32 s38, 0x200000
s_mov_b32 s39, 0x20000
s_setprio {OPT['dprio']}
s_waitcnt vmcnt(0)""")
PR.stamp()
spin(A, "MH0", ld0, 228)
PR.stamp()
def htouch(lvl):
    if not OPT["htouch"]: return
    A(f"""v_bfe_u32 v229, v1, 2, 2
    v_lshlrev_b32 v230, 13, v229
    s_mul_i32 s57, s15, {24*1024}
    s_add_u32 s57, s57, {4096 if lvl == 0 else 0}
    v_add_u32 v230, s57, v230
    s_lshl_b32 s58, s15, 12
    s_add_u32 s58, s58, {96*1024}
    v_mov_b32 v231, {'s58' if lvl else 's57'}
    v_cmp_eq_u32 vcc, 3, v229
    v_and_b32 v229, 3, v1
    v_lshlrev_b32 v229, 10, v229
    v_cndmask_b32 v230, v230, v231, vcc
    v_add_u32 v230, v230, v229
    v_bfe_u32 v229, v1, 4, 1
    v_mul_u32_u24 v229, {112*1024}, v229
    v_add_u32 v230, v230, v229
    s_min_u32 s57, s64, s65
    s_lshl_b32 s58, s51, 7
    s_add_u32 s57, s57, s58
    s_mov_b32 exec_hi, 0
    buffer_load_dword v229, v230, s[20:23], s57 offen sc1
    s_mov_b64 exec, -1""")
    DQ.add("HT", 1)
htouch(0)
def issb(s):
    r = BF + 8 * (s % BD)
    if s < 28:
        o = [f"s_lshl_b32 s48, s{UFB[s>>2]}, 10", "s_add_u32 s49, s48, s65", "s_add_u32 s48, s48, s64"] if (s & 3) == 0 else []
    else:
        o = [f"s_add_u32 s48, s67, {(s-28)*1024}", f"s_add_u32 s49, s53, {(s-28)*1024}"] if (s & 3) == 0 else []
    DQ.add(f"B{s}", 2)
    return [o + [f"buffer_load_dwordx4 {vr(r,4)}, v3, s[20:23], s48 offen offset:{(s&3)*1024} sc1"],
            [f"buffer_load_dwordx4 {vr(r+4,4)}, v3, s[20:23], s49 offen offset:{(s&3)*1024} sc1"]]
for s in range(BD - 1): emit(issb(s))
A(f"buffer_load_dwordx4 {vr(XRr,4)}, v224, s[32:35], s54 offen")
A(f"buffer_load_dwordx4 {vr(XRr+4,4)}, v224, s[32:35], s54 offen offset:32")
DQ.add("X", 2)
def rdw(s):
    slot = s % WD; w = WF + 8 * (s & 1)
    hi, lo = DREG[slot] >> 16, DREG[slot] & 0xffff
    vb = [4, 232, 234][hi]
    return [f"ds_read_b64_tr_b16 {vr(w+4*u+2*sec,2)}, v{vb+u} offset:{lo+sec*1024}" for u in range(2) for sec in range(2)]
for i in rdw(0): A(i)
DQ.wait("B0")
L1S = OPT["l1s"]
def tB(sp): return max(sp - (BD - 1), L1S) if sp >= 12 else sp - (BD - 1)
def xaddr(base3, which, a, qd):
    k = (a - 1) * 4 + qd
    reg = DREG[(8 if which == 0 else 0) + (k >> 1)] + (k & 1) * 1024
    return base3[reg >> 16], reg & 0xffff
def dump(which, acc):
    for a in range(1, 4):
        for qd in range(4):
            vb, off = xaddr([236, 6, 7], which, a, qd)
            A(f"ds_write_b128 v{vb}, {vr(acc+16*a+4*qd,4)} offset:{off}")
def fetch(which, acc):
    for a in range(1, 4):
        b = 237 + 3 * (a - 1)
        for qd in range(4):
            vb, off = xaddr([b, b + 1, b + 2], which, a, qd)
            A(f"ds_read_b128 {vr(acc+16*a+4*qd,4)}, v{vb} offset:{off}")
def sum4(acc):
    for r in range(0, 16, 2):
        A(f"v_pk_add_f32 {vr(acc+r,2)}, {vr(acc+r,2)}, {vr(acc+16+r,2)}\nv_pk_add_f32 {vr(acc+32+r,2)}, {vr(acc+32+r,2)}, {vr(acc+48+r,2)}")
    for r in range(0, 16, 2): A(f"v_pk_add_f32 {vr(acc+r,2)}, {vr(acc+r,2)}, {vr(acc+32+r,2)}")
for s in range(NS):
    w = WF + 8 * (s & 1); b = BF + 8 * (s % BD)
    acc = AD if s < 28 else AS
    if s == 12: PR.stamp()
    if s == 28:
        PR.stamp()
        A("s_nop 7\ns_nop 1")
        dump(0, AD)
        DQ.wait("PO")
        spin(A, "MO", ld2, 228)
        PR.stamp()
        for sp in range(28, 36): emit(issb(sp))
        A("s_waitcnt lgkmcnt(0)")
        A("s_barrier")
        fetch(0, AD)
        for j in range(2):
            A(f"v_permlane32_swap_b32 v{XRr+4*j}, v{XRr+4*j+2}\nv_permlane32_swap_b32 v{XRr+4*j+1}, v{XRr+4*j+3}")
        A("s_waitcnt lgkmcnt(0)")
        sum4(AD)
        T = AD + 16
        for r in range(16): A(f"v_mul_f32 v{T+r}, {f32(-LOG2E)}, v{AD+r}")
        for r in range(16): A(f"v_exp_f32 v{T+r}, v{T+r}")
        for d in range(8): A(f"v_lshlrev_b32 v{T+16+2*d}, 16, v{XRr+d}\nv_and_b32 v{T+17+2*d}, 0xffff0000, v{XRr+d}")
        for r in range(16): A(f"v_add_f32 v{T+r}, 1.0, v{T+r}")
        for r in range(16): A(f"v_rcp_f32 v{T+r}, v{T+r}")
        A("s_nop 0")
        for r in range(0, 16, 2): A(f"v_pk_mul_f32 {vr(AD+r,2)}, {vr(AD+r,2)}, {vr(T+r,2)}")
        DQ.wait("B28")
    if s + 1 < NS:
        DQ.wait([f"W{s+1}", f"B{s+1}"])
        for i in rdw(s + 1): A(i)
        A("s_waitcnt lgkmcnt(4)")
    else:
        A("s_waitcnt lgkmcnt(0)")
    if s == L1S - 3:
        A(ld1); DQ.add("P1", 1)
    if s == L1S:
        DQ.wait("P1")
        spin(A, "MH1", ld1, 228)
        htouch(1)
    if s == 20:
        A("v_add_u32 v236, s43, v3\nv_add_u32 v6, 0x10000, v236\nv_add_u32 v7, 0x20000, v236")
        for a in range(1, 4):
            bb = 237 + 3 * (a - 1)
            A(f"s_xor_b32 s57, s15, {a}\ns_lshl_b32 s57, s57, 11\nv_add_u32 v{bb}, s57, v3\nv_add_u32 v{bb+1}, 0x10000, v{bb}\nv_add_u32 v{bb+2}, 0x20000, v{bb}")
    if s == 25:
        A(f"""s_lshl_b32 s55, s50, 12
        s_lshl_b32 s57, s15, 10
        s_add_u32 s55, s55, s57
        s_add_u32 s55, s55, {WS_FO}""")
        ld2 = "buffer_load_dword v228, v227, s[20:23], s55 offen sc1"
        A(ld2); DQ.add("PO", 1)
    grp = []
    for sp in range(BD - 1, 28):
        if tB(sp) == s: grp += issb(sp)
    if s >= 1 and s + WD - 1 < NS: grp += issw(s + WD - 1, DQ)
    per = [grp[(len(grp) * a) // 4:(len(grp) * (a + 1)) // 4] for a in range(4)]
    for a in range(4):
        u, tt = a >> 1, a & 1
        r = acc + 16 * a
        c = "0" if s in (0, 28) else vr(r, 16)
        A(f"v_mfma_f32_32x32x16_bf16 {vr(r,16)}, {vr(w+4*u,4)}, {vr(b+4*tt,4)}, {c}")
        for g in per[a]:
            for i in g: A(i)
PR.stamp()
A("s_nop 7\ns_nop 1")
dump(1, AS)
A("s_waitcnt lgkmcnt(0)")
A("s_barrier")
fetch(1, AS)
A("s_waitcnt lgkmcnt(0)")
sum4(AS)
for r in range(0, 16, 2): A(f"v_pk_fma_f32 {vr(AD+r,2)}, {vr(AD+r,2)}, {vr(AS+r,2)}, {vr(AD+32+r,2)}")
for d in range(8): A(f"v_cvt_pk_bf16_f32 v{XRr+d}, v{AD+2*d}, v{AD+2*d+1}")
A("s_nop 1")
for j in range(2):
    A(f"v_permlane32_swap_b32 v{XRr+4*j}, v{XRr+4*j+2}\nv_permlane32_swap_b32 v{XRr+4*j+1}, v{XRr+4*j+3}")
osc = "sc1" if OPT["osc"] else ""
A(f"buffer_store_dwordx4 {vr(XRr,4)}, v224, s[36:39], s54 offen {osc}")
A(f"buffer_store_dwordx4 {vr(XRr+4,4)}, v224, s[36:39], s54 offen offset:32 {osc}")
PR.stamp()
PR.dump(2)
A("s_endpgm")
A.label("L_CODE_END")
A.raw('.section .rodata,"a"')
A.raw(kernel_desc(NAME, 256))
txt = A.text()
if OPT.get("plainst"):
    import re
    txt = re.sub(r"(buffer_store_dwordx4 .*s63 offen) sc1", r"\1", txt)
if OPT.get("align", 1):
    import align
    txt = align.align(txt)
print(txt)
```

```python
import sys, math
from asmlib import *

NAME = "recurrent_scan__sliding_block__geglu_ffn__prompt_kernel"
WS_Q = 0; WS_K = 2 << 20; WS_V = 4 << 20; WS_O = 6 << 20; WS_H = 8 << 20
WS_TOK = 16 << 20
WS_CS = (16 << 20) + 65536
WS_FO = 17 << 20
WS_FH = (17 << 20) + (1 << 18)
WS_FQ = (17 << 20) + (2 << 18)
LOG2E = 1.4426950408889634
OPT = dict(prof=0, rot=2, codepf=1, wd=14, sleep=8, warm=7, thr=6, aprio=3, l2pf=0, rotd=1, hs=56, dprio=0, wtouch=0, htouch=1, wts=10, defer=1, gat=10, gc=13, hprio=0, l1s=8, osc=0, cq=2, ms=16, ntx=0, ntw=4, share=1, l2end=11, aprio2=3, rpf=0, pub=7, gd=1, vw=0)
for a in sys.argv[1:]:
    k, v = a.split("="); OPT[k] = int(v)
XR = 0; XS = 16384; WR = 49152; WSL = 20480; EX = 151552
EX_TOK = EX; EX_COL = EX + 4096
DREG = [32768, 40960, 69632, 77824,   86016, 94208, 102400,   110592, 118784, 0, 8192,   126976, 135168, 143360]
DAVAIL = {13: 4, 14: 3, 15: 4, 16: 3}
LONE = 26624
SPIN = 20000

class Prof:
    def __init__(self, A, base=82): self.A = A; self.n = 0; self.base = base
    def stamp(self, real=False):
        if not OPT["prof"]: return
        i = self.n; self.n += 1
        assert i < 16
        self.A(f"{'s_memrealtime' if (real or OPT['prof'] == 2) else 's_memtime'} s[100:101]")
        self.A("s_waitcnt lgkmcnt(0)")
        self.A(f"s_mov_b32 s{self.base+i}, s100")
    def dump(self, vt):
        if not OPT["prof"]: return
        A = self.A
        while self.n < 15: self.stamp()
        self.stamp(True)
        A(f"s_lshl_b32 s68, s2, 3\ns_add_u32 s68, s68, s14\ns_lshl_b32 s68, s68, 6\ns_add_u32 s68, s68, {32<<20}")
        A(f"v_mov_b32 v{vt}, 0")
        for i in range(self.n):
            A(f"v_mov_b32 v{vt+1}, s{self.base+i}")
            A(f"buffer_store_dword v{vt+1}, v{vt}, s[20:23], s68 offen offset:{4*i}")

class VQ:
    def __init__(self, A): self.A = A; self.q = []
    def add(self, tag, n): self.q.append((tag, n))
    def wait(self, tags):
        if isinstance(tags, str): tags = [tags]
        idx = max([i for i, (t, _) in enumerate(self.q) if t in tags], default=-1)
        if idx < 0: return
        rest = sum(c for _, c in self.q[idx + 1:])
        assert rest < 64
        self.A(f"s_waitcnt vmcnt({rest})")
        del self.q[:idx + 1]
    def has(self, tag): return tag in [t for t, _ in self.q]
    def clear(self): self.q = []

def spin(A, name, load, vval, maskexpr=None, cnt=56):
    A(f"""v_cmp_eq_u32 vcc, s80, v{vval}
    s_mov_b32 s{cnt}, 0
    s_cmp_eq_u64 vcc, -1
    s_cbranch_scc1 {name}_OK""")
    A.label(f"{name}_P")
    A(f"""s_sleep {OPT['sleep']}
    {load}
    s_add_u32 s{cnt}, s{cnt}, 1
    s_waitcnt vmcnt(0)
    v_cmp_eq_u32 vcc, s80, v{vval}
    s_cmp_gt_u32 s{cnt}, {SPIN}
    s_cbranch_scc1 {name}_OK
    s_cmp_eq_u64 vcc, -1
    s_cbranch_scc0 {name}_P""")
    A.label(f"{name}_OK")

A = Asm()
A.raw(f"""; recurrent_scan__sliding_block__geglu_ffn__prompt : generated by a python script (single persistent kernel)
; @launch grid=(256,1,1) block=(512,1,1) lds=163840
.amdgcn_target "amdgcn-amd-amdhsa--gfx950"
.text""")
kernel_header(A, NAME)
PR = Prof(A)
A("""s_load_dwordx4 s[4:7], s[0:1], 0
s_load_dwordx4 s[8:11], s[0:1], 32
s_load_dwordx4 s[16:19], s[0:1], 64
s_cmp_ge_u32 s2, 256
s_cbranch_scc1 L_END
v_and_b32 v1, 63, v0
v_lshrrev_b32 v16, 6, v0
s_and_b32 s57, s2, 7
v_readfirstlane_b32 s14, v16
s_lshr_b32 s58, s2, 3
s_and_b32 s44, s57, 1
s_and_b32 s45, s58, 7
s_lshl_b32 s47, s44, 3
s_add_u32 s47, s47, s45
s_lshr_b32 s46, s57, 1
s_lshr_b32 s49, s58, 3
s_lshl_b32 s48, s46, 2
s_add_u32 s48, s48, s49
s_mul_i32 s51, s46, 3
s_add_u32 s52, s51, s49
s_lshl_b32 s53, s52, 1
s_add_u32 s57, s46, 24
s_add_u32 s54, s51, 12
s_cmp_eq_u32 s49, 3
s_cselect_b32 s50, 1, 0
s_cselect_b32 s53, s57, s53
s_cselect_b32 s54, s54, s52
s_and_b32 s15, s14, 3
s_cmp_lt_u32 s14, 4
s_cbranch_scc1 L_M""")
def ws_srd():
    A("""s_mov_b32 s20, s18
    s_mov_b32 s21, s19
    s_mov_b32 s22, 0x10000000
    s_mov_b32 s23, 0x20000
    s_mov_b32 s18, 256
    s_mov_b32 s19, 0x20000""")
vDW = [2, 3, 4, 5, 6]; vDX = [7, 8]
ROT = OPT["rot"]
A("""s_lshl_b32 s58, s15, 15
v_lshrrev_b32 v16, 3, v1
v_lshlrev_b32 v16, 10, v16
v_add_u32 v16, s58, v16
v_lshrrev_b32 v17, 4, v1
v_xor_b32 v17, v17, v1
v_and_b32 v17, 7, v17
v_lshlrev_b32 v17, 4, v17
v_add_u32 v7, v16, v17
v_xor_b32 v8, 64, v7
s_lshl_b32 s12, s15, 12
s_lshl_b32 s13, s15, 10
s_lshl_b32 s57, s47, 17""")
if ROT == 1: A("s_lshl_b32 s81, s49, 2\ns_lshl_b32 s58, s45, 1\ns_add_u32 s81, s81, s58")
elif ROT == 2: A("s_add_u32 s81, s49, s45\ns_lshl_b32 s81, s81, 2")
elif ROT == 3: A("s_add_u32 s81, s49, s45\ns_lshl_b32 s81, s81, 3")
elif ROT == 0: A("s_mov_b32 s81, 0")
A("""s_waitcnt lgkmcnt(0)
s_add_u32 s72, s4, s57
s_addc_u32 s73, s5, 0
s_mov_b32 s74, 0x20000
s_mov_b32 s75, 0x20000""")
PR.stamp(True); PR.stamp()
def dma_x(u):
    o = []
    for jj in range(4):
        pre = [f"s_add_u32 s56, s81, {2*u}", "s_and_b32 s56, s56, 15", "s_lshl_b32 s56, s56, 6"] if jj == 0 else []
        o.append(pre + [f"s_add_u32 m0, s12, {XR + (u%3)*XS + jj*1024}", f"s_add_u32 s59, s56, {jj*8192}",
                        f"buffer_load_dwordx4 v{vDX[jj&1]}, s[72:75], s59 offen {'nt ' if 2*u < OPT['ntx'] else ''}lds"])
    return o
def emit(groups):
    for g in groups:
        for i in g: A(i)
    return len(groups)
A(f"s_setprio {OPT['hprio']}")
Q = VQ(A)
n0 = emit(dma_x(0))
A("s_lshl_b32 s55, s53, 7\ns_lshl_b32 s56, s54, 7")
tabA = [(8, 55, 0), (8, 55, 128), (10, 55, 0), (10, 55, 128), (6, 56, 0)]
tabC = [(8, 55, 0), (10, 55, 0), (6, 56, 0), (6, 56, 128), (6, 56, 256)]
A("""v_bfe_u32 v16, v1, 2, 3
s_lshl_b32 s57, s15, 3
v_add_u32 v16, s57, v16
v_lshrrev_b32 v17, 5, v1
v_lshlrev_b32 v17, 6, v17
v_and_b32 v18, 3, v1
v_lshlrev_b32 v18, 4, v18
v_add_u32 v17, v17, v18
s_lshl_b32 s66, s50, 5
s_xor_b32 s67, s66, 32""")
swap = {0: None, 1: 66, 2: 67, 3: 67, 4: None}
for D in range(5):
    S = 24 + 4 * D
    (pa, ca, oa), (pc, cc_, oc) = tabA[D], tabC[D]
    A("s_cmp_eq_u32 s50, 1")
    if pa != pc:
        A(f"s_cselect_b32 s{S}, s{pc}, s{pa}\ns_cselect_b32 s{S+1}, s{pc+1}, s{pa+1}")
        src = S
    else: src = pa
    if ca != cc_: A(f"s_cselect_b32 s57, s{cc_}, s{ca}"); cs = 57
    else: cs = ca
    if oa != oc: A(f"s_cselect_b32 s58, {oc}, {oa}")
    sa = 3072 if pa == 6 else 3584; sc = 3072 if pc == 6 else 3584
    A(f"s_movk_i32 s{60+D}, {sa}")
    if sa != sc: A(f"s_cselect_b32 s{60+D}, {sc}, s{60+D}")
    if oa != oc: A(f"s_add_u32 s57, s{cs}, s58"); cs = 57
    elif oa: A(f"s_add_u32 s57, s{cs}, {oa}"); cs = 57
    A(f"s_add_u32 s{S}, s{src}, s{cs}\ns_addc_u32 s{S+1}, s{src+1}, 0")
    A(f"v_mul_u32_u24 v18, s{60+D}, v16")
    if swap[D]:
        A(f"v_xor_b32 v19, s{swap[D]}, v17\nv_add_u32 v{vDW[D]}, v18, v19")
    else:
        A(f"v_add_u32 v{vDW[D]}, v18, v17")
    A(f"s_lshl_b32 s{S+2}, s{60+D}, 9\ns_mov_b32 s{S+3}, 0x20000")
def dma_w(k):
    o = []
    for D in range(5):
        S = 24 + 4 * D
        pre = [f"s_add_u32 s56, s81, {k}", "s_and_b32 s56, s56, 15", "s_lshl_b32 s56, s56, 5"] if D == 0 else []
        o.append(pre + [f"s_add_u32 m0, s13, {WR + (k%5)*WSL + D*4096}", f"s_mul_i32 s59, s{60+D}, s56",
                        f"buffer_load_dwordx4 v{vDW[D]}, s[{S}:{S+3}], s59 offen {'nt ' if k < OPT['ntw'] else ''}lds"])
    return o
def G(k):
    g = (dma_x(k // 2) if k % 2 == 0 else []) + dma_w(k)
    Q.add(f"S{k}", emit(g))
Q.add("S0", n0 + emit(dma_w(0)))
G(1)
ws_srd()
A("""s_or_b32 s57, s2, s15
s_cmp_lg_u32 s57, 0
s_cbranch_scc1 H_NONONCE
s_memrealtime s[56:57]
s_waitcnt lgkmcnt(0)
s_mul_i32 s56, s56, 0x9e3779b1
s_or_b32 s56, s56, 1
v_mov_b32 v16, 0
v_mov_b32 v17, s56
buffer_store_dword v17, v16, s[16:19], 0 offen sc1""")
A.label("H_NONONCE")
A("s_lshl_b32 s69, s47, 5")
if ROT == 2: A("s_lshr_b32 s55, s45, 2\ns_lshl_b32 s57, s44, 1\ns_add_u32 s55, s55, s57")
elif ROT == 1: A("s_mov_b32 s55, s44")
elif ROT == 3: A("s_lshr_b32 s55, s45, 1\ns_lshl_b32 s57, s44, 2\ns_add_u32 s55, s55, s57")
if ROT == 0: A("s_and_b32 s55, s45, 3")
NDELTA = {0: 4, 1: 2, 2: 4, 3: 8}[ROT]
def pf_setup():
    A("""v_lshrrev_b32 v20, 3, v1
    v_and_b32 v21, 3, v20
    v_lshrrev_b32 v20, 2, v20
    v_lshlrev_b32 v20, 5, v20
    v_add_u32 v20, v20, v21
    s_lshl_b32 s57, s45, 2
    v_add_u32 v20, s57, v20
    v_and_b32 v21, 7, v1
    v_lshlrev_b32 v21, 4, v21""")
    for D in range(5):
        A(f"v_mul_u32_u24 v{116+D}, s{60+D}, v20\nv_add_u32 v{116+D}, v{116+D}, v21")
    A("""v_lshrrev_b32 v20, 3, v1
    v_lshlrev_b32 v20, 10, v20
    s_lshl_b32 s57, s49, 15
    s_lshl_b32 s58, s15, 13
    s_add_u32 s57, s57, s58
    v_add3_u32 v121, v20, v21, s57""")
def pf_burst(u0, u1):
    n = 0
    for u in range(u0, u1):
        A(f"s_movk_i32 s59, {u*128}\nbuffer_load_dwordx4 {vr(128+4*u,4)}, v121, s[72:75], s59 offen"); n += 1
    for u in range(u0, u1):
        A(f"s_mul_i32 s59, s{PFS}, {64*u}\nbuffer_load_dwordx4 {vr(160+4*u,4)}, v122, s[{PFR}:{PFR+3}], s59 offen"); n += 1
        lb = f"H_PF{u}"
        A(f"s_cmp_eq_u32 s15, {u%4}\ns_cbranch_scc0 {lb}\ns_mul_i32 s59, s64, {64*u}\nbuffer_load_dwordx4 {vr(192+4*(u>>2),4)}, v120, s[40:43], s59 offen")
        A.label(lb)
    Q.add("PF", n)
PFR, PFS = 76, 71
BUR = {}
if OPT.get("burst"):
    pf_setup()
    A(f"s_mov_b32 s{PFR}, s24\ns_mov_b32 s{PFR+1}, s25\ns_mov_b32 s{PFR+2}, s26\ns_mov_b32 s{PFR+3}, 0x20000\ns_mov_b32 s{PFS}, s60\nv_mov_b32 v122, v116")
    for D in (1, 2, 3):
        A(f"""s_cmp_eq_u32 s15, {D}
        s_cselect_b32 s{PFR}, s{24+4*D}, s{PFR}
        s_cselect_b32 s{PFR+1}, s{25+4*D}, s{PFR+1}
        s_cselect_b32 s{PFR+2}, s{26+4*D}, s{PFR+2}
        s_cselect_b32 s{PFS}, s{60+D}, s{PFS}
        s_cselect_b64 vcc, -1, 0
        v_cndmask_b32 v122, v122, v{116+D}, vcc""")
    BUR = {1: {-1: (1, 3), 1: (3, 6), 5: (6, 8)}, 2: {-1: (1, 4), 2: (4, 8)}, 3: {-1: (1, 2), 0: (2, 3), 1: (3, 4), 3: (4, 5), 5: (5, 6), 7: (6, 7), 9: (7, 8)}, 4: {-1: (1, 8)}}[OPT["burst"]]
    pf_burst(*BUR[-1])
A(f"""v_lshrrev_b32 v16, 5, v1
v_lshlrev_b32 v16, 10, v16
v_bfe_u32 v17, v1, 2, 2
v_lshlrev_b32 v17, 6, v17
v_add_u32 v16, v16, v17
v_and_b32 v17, 3, v1
v_lshlrev_b32 v17, 3, v17
v_add_u32 v16, v16, v17
v_bfe_u32 v17, v1, 4, 1
v_lshlrev_b32 v17, 5, v17
s_lshr_b32 s58, s15, 1
s_lshl_b32 s58, s58, 12
s_and_b32 s59, s15, 1
s_lshl_b32 s59, s59, 9
s_add_u32 s58, s58, s59
v_add3_u32 v12, v16, v17, s58
v_lshlrev_b32 v9, 4, v1
v_mov_b32 v10, 0""")
sched = {0: [2], 1: [3], 2: [4, 5]}
for s in range(3, 13): sched[s] = [s + 3]
def col_valu(js, fin):
    for j in js:
        b = 48 + 8 * j; acc = 44 + j
        for d in range(8):
            A(f"v_lshlrev_b32 v18, 16, v{b+d}\nv_and_b32 v19, 0xffff0000, v{b+d}")
            if d == 0: A(f"v_add_f32 v{acc}, v18, v19")
            else: A(f"v_add_f32 v{acc}, v{acc}, v18\nv_add_f32 v{acc}, v{acc}, v19")
    if fin:
        for j in range(3): A(f"v_mov_b32 v{72+2*j}, v{44+j}")
        A("s_nop 1")
        for j in range(3): A(f"v_permlane32_swap_b32 v{72+2*j}, v{44+j}")
        A("s_nop 1")
        for j in range(3): A(f"v_add_f32 v{72+2*j}, v{72+2*j}, v{44+j}")
def row_valu(part):
    if part == 0:
        for rrow in range(2):
            b = 32 + 4 * rrow; sx = 40 + 2 * rrow; sq = sx + 1
            for d in range(4):
                A(f"v_lshlrev_b32 v18, 16, v{b+d}\nv_and_b32 v19, 0xffff0000, v{b+d}")
                if d == 0: A(f"v_add_f32 v{sx}, v18, v19\nv_mul_f32 v{sq}, v18, v18\nv_fmac_f32 v{sq}, v19, v19")
                else: A(f"v_add_f32 v{sx}, v{sx}, v18\nv_fmac_f32 v{sq}, v18, v18\nv_add_f32 v{sx}, v{sx}, v19\nv_fmac_f32 v{sq}, v19, v19")
    else:
        for dpp in ("quad_perm:[1,0,3,2] row_mask:0xf bank_mask:0xf", "quad_perm:[2,3,0,1] row_mask:0xf bank_mask:0xf",
                    "row_half_mirror row_mask:0xf bank_mask:0xf", "row_mirror row_mask:0xf bank_mask:0xf",
                    "row_bcast:15 row_mask:0xa bank_mask:0xf", "row_bcast:31 row_mask:0xc bank_mask:0xf"):
            for r in range(40, 44): A(f"v_add_f32_dpp v{r}, v{r}, v{r} {dpp}")
def get_nonce(tag, vz, vn):
    A(f"""v_readfirstlane_b32 s80, v{vn}
    s_mov_b32 s57, 0
    s_cmp_eq_u32 s80, 0
    s_cbranch_scc0 {tag}_GOTN""")
    A.label(f"{tag}_POLLN")
    A(f"""buffer_load_dword v{vn}, v{vz}, s[16:19], 0 offen sc1
    s_add_u32 s57, s57, 1
    s_waitcnt vmcnt(0)
    v_readfirstlane_b32 s80, v{vn}
    s_cmp_gt_u32 s57, {SPIN}
    s_cbranch_scc1 {tag}_GOTN
    s_cmp_eq_u32 s80, 0
    s_cbranch_scc1 {tag}_POLLN""")
    A.label(f"{tag}_GOTN")
def publish():
    get_nonce("H", 10, 11)
    A(f"""s_lshl_b32 s57, s48, 4
    s_add_u32 s57, s57, s47
    s_mul_i32 s57, s57, 2560
    s_lshl_b32 s58, s15, 8
    s_add_u32 s57, s57, s58
    s_add_u32 s57, s57, {WS_CS}
    v_lshlrev_b32 v16, 3, v1
    v_mov_b32 v73, s80
    v_mov_b32 v75, s80
    v_mov_b32 v77, s80
    s_mov_b32 exec_hi, 0
    buffer_store_dwordx2 v[72:73], v16, s[20:23], s57 offen sc1
    buffer_store_dwordx2 v[74:75], v16, s[20:23], s57 offen offset:1024 sc1
    s_cmp_ge_u32 s15, 2
    s_cbranch_scc1 H_NO3
    buffer_store_dwordx2 v[76:77], v16, s[20:23], s57 offen offset:2048 sc1""")
    A.label("H_NO3")
    A(f"""s_mov_b32 exec_lo, 0
    s_mov_b32 exec_hi, 0x80000000
    s_lshl_b32 s57, s69, 6
    s_lshl_b32 s58, s48, 7
    s_add_u32 s57, s57, s58
    s_lshl_b32 s58, s15, 5
    s_add_u32 s57, s57, s58
    s_add_u32 s57, s57, {WS_TOK}
    v_mov_b32 v48, v40
    v_mov_b32 v49, v41
    v_mov_b32 v50, s80
    v_mov_b32 v51, s80
    v_mov_b32 v52, v42
    v_mov_b32 v53, v43
    v_mov_b32 v54, s80
    v_mov_b32 v55, s80
    buffer_store_dwordx4 v[48:51], v10, s[20:23], s57 offen sc1
    buffer_store_dwordx4 v[52:55], v10, s[20:23], s57 offen offset:16 sc1
    s_mov_b64 exec, -1""")
def gather_loads(part=None):
    if part == 0:
        for m in range(6):
            A(f"s_add_u32 s59, s66, {m*5120}")
            A(f"buffer_load_dwordx4 {vr(64+4*m,4)}, v16, s[20:23], s59 offen sc1")
        return
    for m in range(6 if part == 1 else 0, 8):
        A(f"s_add_u32 s59, s66, {m*5120}")
        A(f"buffer_load_dwordx4 {vr(64+4*m,4)}, v16, s[20:23], s59 offen sc1")
    for m in range(2):
        A(f"s_add_u32 s59, s66, {m*8*2560}")
        A(f"buffer_load_dwordx4 {vr(96+4*m,4)}, v17, s[20:23], s59 offen sc1")
    A("buffer_load_dwordx4 v[104:107], v18, s[20:23], s67 offen sc1")
def gather_prep():
    A(f"""s_mul_i32 s66, s48, {16*2560}
    s_add_u32 s66, s66, {WS_CS}
    v_and_b32 v18, 31, v1
    v_lshlrev_b32 v18, 4, v18
    v_lshrrev_b32 v16, 5, v1
    v_mul_u32_u24 v16, 2560, v16
    s_lshl_b32 s58, s15, 9
    v_add3_u32 v16, v16, v18, s58
    v_and_b32 v17, 7, v1
    v_lshlrev_b32 v17, 4, v17
    v_lshrrev_b32 v19, 3, v1
    v_mul_u32_u24 v19, 2560, v19
    s_lshl_b32 s58, s15, 7
    s_add_u32 s58, s58, 2048
    v_add3_u32 v17, v17, v19, s58
    s_lshl_b32 s67, s69, 6
    s_lshl_b32 s59, s15, 9
    s_add_u32 s67, s67, s59
    s_add_u32 s67, s67, {WS_TOK}""")
def gather_check():
    A("s_mov_b32 s70, 0")
    Q.wait("GA")
    A.label("H_GCHK")
    tags = list(range(65, 104, 2)) + [106]
    A(f"v_and_b32 v19, v{tags[0]}, v{tags[1]}\nv_or_b32 v20, v{tags[0]}, v{tags[1]}")
    rest = tags[2:]
    for k in range(0, len(rest) - 1, 2):
        A(f"v_bitop3_b32 v19, v19, v{rest[k]}, v{rest[k+1]} bitop3:0x80\nv_or3_b32 v20, v20, v{rest[k]}, v{rest[k+1]}")
    if len(rest) % 2: A(f"v_and_b32 v19, v19, v{rest[-1]}\nv_or_b32 v20, v20, v{rest[-1]}")
    A(f"""v_xor_b32 v19, s80, v19
    v_xor_b32 v20, s80, v20
    v_or_b32 v19, v19, v20
    v_cmp_eq_u32 vcc, 0, v19
    s_add_u32 s70, s70, 1
    s_cmp_gt_u32 s70, {SPIN}
    s_cbranch_scc1 H_GOK
    s_cmp_eq_u64 vcc, -1
    s_cbranch_scc1 H_GOK
    s_sleep 4""")
    gather_loads()
    A("s_waitcnt vmcnt(0)")
    A("s_branch H_GCHK")
    A.label("H_GOK")
def gather_cols():
    st = 4
    while st <= 16:
        for r in range(64, 96, 2 * st):
            A(f"v_add_f32 v{r}, v{r}, v{r+st}\nv_add_f32 v{r+2}, v{r+2}, v{r+st+2}")
        st *= 2
    A("""v_add_f32 v96, v96, v100
    v_add_f32 v98, v98, v102
    v_mov_b32 v65, v64
    v_mov_b32 v67, v66
    v_add_f32_dpp v96, v96, v96 row_ror:8 row_mask:0xf bank_mask:0xf
    v_add_f32_dpp v98, v98, v98 row_ror:8 row_mask:0xf bank_mask:0xf
    v_permlane32_swap_b32 v65, v64
    v_permlane32_swap_b32 v67, v66
    v_mov_b32 v97, v96
    v_mov_b32 v99, v98
    v_add_f32 v64, v64, v65
    v_add_f32 v66, v66, v67
    v_permlane32_swap_b32 v97, v96
    v_permlane32_swap_b32 v99, v98
    s_nop 0
    v_add_f32 v96, v96, v97
    v_add_f32 v98, v98, v99
    v_mov_b32 v97, v96
    v_mov_b32 v99, v98
    s_nop 1
    v_permlane16_swap_b32 v97, v96
    v_permlane16_swap_b32 v99, v98
    s_nop 0
    v_add_f32 v96, v96, v97
    v_add_f32 v98, v98, v99""")
    for r, d in ((64, 68), (66, 69), (96, 70), (98, 71)):
        A(f"""v_cvt_pk_bf16_f32 v{r+1}, v{r}, v{r}
        v_and_b32 v{r+1}, 0xffff0000, v{r+1}
        v_sub_f32 v{r}, v{r}, v{r+1}
        v_cvt_pk_bf16_f32 v{d}, v{r+1}, v{r}""")
    A(f"""v_lshrrev_b32 v16, 1, v18
    s_lshl_b32 s58, s15, 8
    s_add_u32 s58, s58, {EX_COL}
    v_add_u32 v16, s58, v16
    ds_write_b64 v16, v[68:69]
    v_and_b32 v17, 7, v1
    v_lshlrev_b32 v17, 3, v17
    s_lshl_b32 s58, s15, 6
    s_add_u32 s58, s58, {EX_COL + 1024}
    v_add_u32 v17, s58, v17
    ds_write_b64 v17, v[70:71]""")
def gather_toks():
    c1 = -2.0 * math.sqrt(2.0 / math.pi) * LOG2E
    c3 = c1 * 0.044715
    A(f"""    v_mul_f32 v104, {f32(-1/512)}, v104
    v_mul_f32 v105, {f32(1/512)}, v105
    v_fma_f32 v105, -v104, v104, v105
    v_max_f32 v105, 0, v105
    v_add_f32 v113, {f32(1e-5)}, v105
    v_rsq_f32 v110, v113
    v_cvt_pk_bf16_f32 v108, v104, v104
    v_and_b32 v106, 0xffff0000, v108
    v_sub_f32 v106, v104, v106
    v_cvt_pk_bf16_f32 v109, v106, v106
    v_mul_f32 v111, {f32(c1)}, v110
    v_mul_f32 v112, v110, v110
    v_mul_f32 v112, v112, v110
    v_mul_f32 v112, {f32(c3)}, v112
    v_mov_b32 v114, s80
    v_lshlrev_b32 v18, 1, v18
    s_lshl_b32 s58, s15, 10
    s_add_u32 s58, s58, {EX_TOK}
    v_add_u32 v18, s58, v18
    ds_write_b128 v18, v[108:111]
    ds_write_b128 v18, v[112:115] offset:16
    s_waitcnt lgkmcnt(0)""")
WD = OPT["wd"]
UFB = [60, 61, 62, 76, 77, 78, 79]
def d_setup_w():
    A(f"""v_bfe_u32 v6, v1, 2, 3
    v_lshlrev_b32 v6, 10, v6
    v_lshrrev_b32 v7, 5, v1
    v_lshlrev_b32 v7, 6, v7
    v_add_u32 v6, v6, v7
    v_and_b32 v7, 3, v1
    v_lshlrev_b32 v7, 4, v7
    v_add_u32 v2, v6, v7
    s_lshl_b32 s43, s15, 11
    s_lshr_b32 s58, s2, 5
    s_lshl_b32 s40, s58, 7
    s_lshl_b32 s42, s15, 17
    s_add_u32 s42, s42, s40
    s_mul_i32 s57, s15, 24""")
    if OPT["rotd"]:
        A("""s_mul_i32 s59, s58, 11
        s_lshr_b32 s59, s59, 5
        s_mul_i32 s59, s59, 3
        s_sub_u32 s59, s58, s59""")
    else:
        A("s_mov_b32 s59, 0\ns_mov_b32 s58, 0")
    for u in range(3):
        A(f"""s_lshl_b32 s{UFB[u]}, s59, 3
        s_add_u32 s{UFB[u]}, s{UFB[u]}, s57
        s_add_u32 s{UFB[u]}, s{UFB[u]}, 4
        s_add_u32 s59, s59, 1
        s_cmp_eq_u32 s59, 3
        s_cselect_b32 s59, 0, s59""")
    A("s_lshl_b32 s41, s15, 2\ns_add_u32 s41, s41, 96")
    for u in range(4):
        A(f"""s_add_u32 s59, s58, {u}
        s_and_b32 s59, s59, 3
        s_lshl_b32 s44, s59, 3
        s_add_u32 s44, s44, s57
        s_cmp_eq_u32 s59, 3
        s_cselect_b32 s{UFB[3+u]}, s41, s44""")
    A("""s_waitcnt lgkmcnt(0)
    s_mov_b32 s26, 0x1c0000
    s_mov_b32 s27, 0x20000
    s_mov_b32 s30, 0x80000
    s_mov_b32 s31, 0x20000""")
def issw(s, q):
    slot = s % WD
    if s < 28:
        srd = 24
        o = [f"s_lshl_b32 s44, s{UFB[s>>2]}, 14", "s_add_u32 s44, s44, s40"]
        if s & 3: o.append(f"s_add_u32 s44, s44, {(s&3)*16384}")
    else:
        srd = 28
        o = [f"s_add_u32 s44, s42, {(s-28)*16384}"]
    a = o + [f"s_add_u32 m0, s43, {DREG[slot]}", "s_add_u32 s45, s44, 8192",
             f"buffer_load_dwordx4 v2, s[{srd}:{srd+3}], s44 offen lds"]
    b = [f"s_add_u32 m0, s43, {DREG[slot]+1024}", "s_nop 0",
         f"buffer_load_dwordx4 v2, s[{srd}:{srd+3}], s45 offen lds"]
    q.add(f"W{s}", 2)
    return [a, b]
P0 = max(NDELTA, 4)
wnext = [0]
GAT, GC = OPT['gat'], OPT['gc']
HP = OPT.get('hprof')
for s in range(17):
    if s < 16: Q.wait(f"S{s}")
    if HP and s >= 4: A(f"s_memtime s[100:101]\ns_waitcnt lgkmcnt(0)\ns_sub_u32 s99, s100, s98\ns_add_u32 s{84+s-4}, s99, s83")
    A("s_barrier")
    if HP: A("s_memtime s[100:101]\ns_waitcnt lgkmcnt(0)\ns_mov_b32 s98, s100")
    if s == 0 and not HP: PR.stamp()
    for k in sched.get(s, []): G(k)
    if s in BUR: pf_burst(*BUR[s])
    if s == 0:
        A("""s_lshl_b32 s57, s48, 13
        s_lshl_b32 s58, s15, 11
        s_add_u32 s57, s57, s58
        buffer_load_dwordx4 v[32:35], v9, s[72:75], s57 offen
        buffer_load_dwordx4 v[36:39], v9, s[72:75], s57 offen offset:1024
        buffer_load_dword v11, v10, s[16:19], 0 offen sc1""")
        Q.add("ST", 3)
    if s < NDELTA:
        lb = f"H_NOCS{s}"
        A(f"s_cmp_eq_u32 s55, {s}\ns_cbranch_scc0 {lb}\nv_add_u32 v12, {WR + (s%5)*WSL}, v12")
        for j in range(3):
            for t in range(4):
                A(f"ds_read_b64_tr_b16 {vr(48+8*j+2*t,2)}, v12 offset:{j*8192 + (t>>1)*2048 + (t&1)*256}")
        A("s_waitcnt lgkmcnt(0)")
        A.label(lb)
    if s == 4: row_valu(0); col_valu([0], False)
    if s == 5: col_valu([1], False)
    if s == 6: col_valu([2], True); row_valu(1)
    if s == OPT["pub"]: publish()
    if s == 3:
        A("s_load_dwordx2 s[4:5], s[0:1], 48\ns_load_dwordx2 s[8:9], s[0:1], 16")
    if OPT["vw"] and s == OPT["vw"]:
        A("""s_cmp_lg_u32 s15, 0
        s_cbranch_scc1 H_NOWARM
        s_mul_i32 s57, s2, 7168
        s_lshl_b32 s58, s2, 11
        v_lshlrev_b32 v20, 7, v1
        s_waitcnt lgkmcnt(0)
        s_add_u32 s6, s57, 7168
        s_mov_b32 s7, 0x20000
        s_add_u32 s10, s58, 2048
        s_mov_b32 s11, 0x20000
        buffer_load_dword v21, v20, s[4:7], s57 offen
        buffer_load_dword v22, v20, s[8:11], s58 offen""")
        A.label("H_NOWARM")
    if s == 5 and not OPT["vw"]:
        A("""s_lshl_b32 s57, s2, 2
        s_add_u32 s57, s57, s15
        s_mul_i32 s58, s57, 1792
        s_lshl_b32 s57, s57, 9
        s_waitcnt lgkmcnt(0)
        s_add_u32 s4, s4, s58
        s_addc_u32 s5, s5, 0
        s_add_u32 s8, s8, s57
        s_addc_u32 s9, s9, 0""")
    if s in (5, 7, 8, 9) and not OPT['vw']:
        k0 = {5: 0, 7: 9, 8: 18, 9: 27}[s]
        for i in range(k0, k0 + 9):
            if i < 28: A(f"s_load_dword s65, s[4:5], {i*64}")
            else: A(f"s_load_dword s65, s[8:9], {(i-28)*64}")
    if OPT["l2pf"] and s == OPT["warm"] + 1:
        A("""s_lshr_b32 s57, s2, 3
        s_lshl_b32 s57, s57, 2
        s_add_u32 s57, s57, s15
        s_lshr_b32 s58, s57, 3
        s_min_u32 s58, s58, 11
        s_lshr_b32 s59, s58, 1
        s_mul_i32 s59, s59, 6
        s_and_b32 s65, s58, 1
        s_lshl_b32 s65, s65, 1
        s_add_u32 s59, s59, s65
        s_add_u32 s59, s59, 2
        s_add_u32 s65, s58, 16
        s_cmp_lt_u32 s58, 8
        s_cselect_b32 s59, s59, s65
        s_lshl_b32 s59, s59, 16
        s_and_b32 s58, s57, 7
        s_lshl_b32 s58, s58, 13
        s_add_u32 s58, s58, s59
        s_lshl_b32 s57, s57, 12
        s_waitcnt lgkmcnt(0)
        s_add_u32 s4, s4, s58
        s_addc_u32 s5, s5, 0
        s_add_u32 s8, s8, s57
        s_addc_u32 s9, s9, 0""")
    if OPT["l2pf"] and OPT["warm"] + 1 <= s <= OPT["l2end"]:
        nst = OPT["l2end"] - OPT["warm"]
        tot = OPT["l2pf"]
        i0 = (s - OPT["warm"] - 1) * tot // nst; i1 = (s - OPT["warm"]) * tot // nst
        for i in range(i0, i1):
            if i < 64: A(f"s_load_dword s65, s[4:5], {i*128}")
            else: A(f"s_load_dword s65, s[8:9], {(i-64)*128}")
    if s == 8: gather_prep()
    if s == GAT: gather_loads(0); Q.add("GA0", 6)
    if s == GAT + OPT["gd"]: gather_loads(1); Q.add("GA", 5)
    if s == 12:
        A("s_load_dwordx2 s[24:25], s[0:1], 48\ns_load_dwordx2 s[28:29], s[0:1], 16")
        d_setup_w()
    if s == GC: gather_check()
    if s in DAVAIL:
        for _ in range(DAVAIL[s]):
            emit(issw(wnext[0], Q)); wnext[0] += 1
    if s == GC + 1: gather_cols()
    if s == GC + 2: gather_toks()
    if s in (4, 8, 12) and not HP: PR.stamp()
if HP:
    PR.n = 15; PR.dump(20); PR.n = 0
    OPT["prof"] = 0
PR.stamp()
PR.stamp()
import gen_cd
gen_cd.OPT = OPT
A("""s_and_b32 s57, s2, 7
s_lshr_b32 s58, s2, 3
s_and_b32 s58, s58, 3
s_lshl_b32 s50, s58, 3
s_add_u32 s50, s50, s57
s_lshr_b32 s51, s2, 5
s_lshl_b32 s51, s51, 2
s_add_u32 s51, s51, s15""")
gen_cd.attn_setup(A)
SH = OPT["share"]
LK, LVS, LFL = 16384, 49152, 49152 + 16384 + 1024
if SH:
    LONE = 49152 + 16384
    A(f"""s_lshr_b32 s49, s2, 5
    s_lshl_b32 s49, s49, 2
    s_lshl_b32 s57, s15, 1
    s_add_u32 s49, s49, s57
    s_sub_u32 s49, s49, 4
    v_and_b32 v9, 1, v1
    v_add_u32 v9, s49, v9
    v_max_i32 v9, 0, v9
    v_lshlrev_b32 v9, 8, v9
    v_bfe_u32 v10, v1, 1, 1
    v_lshlrev_b32 v10, 6, v10
    v_add3_u32 v9, v9, v10, 64
    s_lshl_b32 s57, s51, 8
    v_mov_b32 v10, s57
    v_cmp_gt_u32 vcc, 4, v1
    s_lshr_b32 s57, s50, 1
    s_lshl_b32 s57, s57, 7
    s_add_u32 s57, s57, {WS_FQ}
    v_cndmask_b32 v9, v10, v9, vcc
    v_lshlrev_b32 v9, 5, v9
    v_add_u32 v252, s57, v9""")
else:
    A(f"""v_min_u32 v9, 10, v1
    v_cmp_gt_u32 vcc, 5, v9
    v_subrev_u32 v10, 5, v9
    s_nop 0
    v_cndmask_b32 v10, v10, v9, vcc
    v_min_u32 v10, 4, v10
    s_sub_u32 s57, s51, 4
    v_add_u32 v10, s57, v10
    v_max_i32 v10, 0, v10
    v_lshlrev_b32 v10, 8, v10
    v_mov_b32 v11, 128
    v_cndmask_b32 v11, v11, 64, vcc
    v_cmp_eq_u32 vcc, 10, v9
    s_lshr_b32 s57, s50, 1
    s_lshl_b32 s57, s57, 7
    s_add_u32 s57, s57, {WS_FQ}
    v_cndmask_b32 v11, v11, 0, vcc
    v_add_u32 v10, v10, v11
    v_lshlrev_b32 v10, 5, v10
    v_add_u32 v252, s57, v10""")
A("s_barrier")
PR.stamp()
gen_cd.LONE = LONE
if SH:
    A(f"s_lshl_b32 s57, s15, 11\ns_add_u32 s57, s57, {LVS}")
else:
    A("""s_movk_i32 s57, 0x4000
    s_cmp_eq_u32 s15, 1
    s_cselect_b32 s57, 49152, s57
    s_cmp_eq_u32 s15, 2
    s_cselect_b32 s57, 59392, s57
    s_cmp_eq_u32 s15, 3
    s_cselect_b32 s57, 151552, s57""")
gen_cd.attn_setup2(A, None)
ld = "buffer_load_dword v253, v252, s[20:23], 0 offen sc1"
A("s_waitcnt vmcnt(0)")
PR.stamp()
A("s_barrier")
A(f"s_setprio {OPT['aprio']}")
A(f"s_sleep {OPT['hs']}")
A(ld)
A("s_waitcnt vmcnt(0)")
spin(A, "HQ", ld, 253)
PR.stamp()
if SH:
    A(f"""s_lshl_b32 s52, s50, 16
    s_lshl_b32 s53, s49, 11""")
    for which, base, r0 in ((0, WS_K, 188), (1, WS_V, 204)):
        for b in range(4):
            if b % 2 == 0:
                A(f"s_add_i32 s55, s53, {b*1024}\ns_max_i32 s55, s55, 0\ns_add_u32 s55, s55, s52\ns_add_u32 s55, s55, {base}")
            A(f"buffer_load_dwordx4 {vr(r0+4*b,4)}, v3, s[20:23], s55 offen offset:{(b%2)*1024} sc1")
    A(f"""s_lshl_b32 s53, s51, 11
    s_add_u32 s54, s52, s53
    buffer_load_dwordx4 v[12:15], v3, s[20:23], s54 offen sc1
    buffer_load_dwordx4 v[16:19], v3, s[20:23], s54 offen offset:1024 sc1
    s_lshl_b32 s57, s15, 12
    v_add_u32 v9, s57, v3
    v_add_u32 v10, s57, v2
    s_lshl_b32 s57, s15, 11
    v_add_u32 v11, s57, v3
    s_lshl_b32 s57, s15, 2
    s_add_u32 s57, s57, {LFL}
    v_mov_b32 v252, s57
    v_mov_b32 v253, s80
    v_mov_b32 v254, {LFL}""")
    for b in range(4):
        A(f"s_waitcnt vmcnt({9-b})\nds_write_b128 v9, {vr(188+4*b,4)} offset:{LK + b*1024}")
    for b in range(4):
        A(f"s_waitcnt vmcnt({5-b})\nds_write_b128 v10, {vr(204+4*b,4)} offset:{LVS + b*1024}")
    A("""s_waitcnt lgkmcnt(0)
    ds_write_b32 v252, v253
    s_mov_b32 s56, 0""")
    A.label("H_LW")
    A(f"""ds_read_b128 v[188:191], v254
    s_add_u32 s56, s56, 1
    s_waitcnt lgkmcnt(0)
    v_xor_b32 v188, s80, v188
    v_xor_b32 v189, s80, v189
    v_xor_b32 v190, s80, v190
    v_xor_b32 v191, s80, v191
    v_or3_b32 v188, v188, v189, v190
    v_or_b32 v188, v188, v191
    v_cmp_eq_u32 vcc, 0, v188
    s_cmp_gt_u32 s56, {SPIN*50}
    s_cbranch_scc1 H_LOK
    s_cmp_eq_u64 vcc, -1
    s_cbranch_scc1 H_LOK
    s_sleep 1
    s_branch H_LW""")
    A.label("H_LOK")
    for b in range(10):
        A(f"ds_read_b128 {vr(20+4*b,4)}, v11 offset:{LK + b*1024}")
    A("s_waitcnt vmcnt(0)")
A(f"s_setprio {OPT['aprio2']}")
if OPT.get("noattn"): A("s_branch H_AFIN")
A("s_cmp_lt_u32 s51, 4")
A("s_cbranch_scc1 H_SLOW")
n0 = PR.n
gen_cd.gen_attn(A, False, "AF", PR, "sc1", setup=False, bar=OPT["defer"] >= 4, loads=not SH, shared=SH)
A.label("H_AFIN")
PR.stamp()
A(f"""s_lshl_b32 s57, s51, 12
s_lshl_b32 s58, s50, 7
s_add_u32 s57, s57, s58
s_add_u32 s57, s57, {WS_FO}
v_mov_b32 v9, 0
v_mov_b32 v10, s80
s_waitcnt vmcnt(0)
s_mov_b64 exec, 1
buffer_store_dword v10, v9, s[20:23], s57 offen sc1
s_mov_b64 exec, -1""")
PR.stamp()
PR.dump(2)
A.label("L_END")
A("s_endpgm")
A.label("H_SLOW")
PR.n = n0
gen_cd.gen_attn(A, True, "AS", PR, "sc1", setup=False, bar=OPT["defer"] >= 4, loads=not SH, shared=SH)
A("s_branch H_AFIN")
A.label("L_M")
PR.n = 0
A("s_waitcnt lgkmcnt(0)")
PR.stamp(True); PR.stamp()
ws_srd()
if OPT["codepf"]:
    A("s_getpc_b64 s[24:25]")
    A.label("L_PC")
    A(f"""s_sub_u32 s24, s24, L_PC-{NAME}
    s_subb_u32 s25, s25, 0
    s_mov_b32 s26, L_CODE_END-{NAME}
    s_mov_b32 s27, 0x20000
    s_lshr_b32 s57, s2, 3
    s_lshl_b32 s57, s57, 2
    s_add_u32 s57, s57, s14
    s_lshl_b32 s57, s57, 9
    v_lshlrev_b32 v16, 7, v1
    s_mov_b64 exec, 15
    buffer_load_dword v31, v16, s[24:27], s57 offen
    s_mov_b64 exec, -1""")
vXa = [2, 3, 4, 5]; vWa = [6, 7, 8, 9, 10]; vWb = [11, 12, 13, 14, 15]
P = 32; QQ = 60; ACC = 88
A("s_setprio 2")
A("""s_and_b32 s12, s14, 1
s_lshr_b32 s13, s14, 1
v_and_b32 v16, 31, v1
v_lshrrev_b32 v17, 5, v1
v_bfe_u32 v18, v1, 1, 3
v_xor_b32 v17, v17, v18
v_lshlrev_b32 v17, 4, v17
v_lshlrev_b32 v16, 7, v16
v_add_u32 v16, v16, v17
s_lshl_b32 s57, s12, 13
v_add_u32 v2, s57, v16
v_xor_b32 v3, 32, v2
v_xor_b32 v4, 64, v2
v_xor_b32 v5, 96, v2""")
A(f"""v_lshrrev_b32 v16, 5, v1
v_lshlrev_b32 v16, 10, v16
v_bfe_u32 v17, v1, 2, 2
v_lshlrev_b32 v17, 6, v17
v_add_u32 v16, v16, v17
v_and_b32 v17, 3, v1
v_lshlrev_b32 v17, 3, v17
v_add_u32 v16, v16, v17
v_add_u32 v16, {WR}, v16
v_bfe_u32 v17, v1, 4, 1
s_sub_u32 s57, 2, s50
s_lshl_b32 s57, s57, 12
v_mul_u32_u24 v18, s57, v17
v_xor_b32 v19, s13, v17
v_lshlrev_b32 v19, 5, v19
v_add3_u32 v18, v18, v19, v16
v_lshlrev_b32 v19, 5, v17
s_lshl_b32 s57, s13, 9
v_add3_u32 v19, v19, s57, v16
s_cmp_eq_u32 s50, 1
s_cselect_b64 vcc, -1, 0""")
for n in range(5):
    fo = (n >> 1) * 4096 + (n & 1) * 512
    qo = n * 4096
    if n < 2: A(f"v_add_u32 v{vWa[n]}, {fo}, v18")
    elif n == 4: A(f"v_add_u32 v{vWa[n]}, {qo}, v19")
    else:
        A(f"v_add_u32 v20, {fo}, v18\nv_add_u32 v21, {qo}, v19\nv_cndmask_b32 v{vWa[n]}, v20, v21, vcc")
for n in range(5): A(f"v_add_u32 v{vWb[n]}, {4*WSL}, v{vWa[n]}")
def reads(s, kk, dst):
    xs = (s >> 1) % 3; q4 = (s & 1) * 2 + kk; sl = s % 5
    def xr(tt): return f"ds_read_b128 {vr(dst+4*tt,4)}, v{vXa[q4]} offset:{XR + xs*XS + tt*4096}"
    def wr(n, sec):
        a, o = (vWa[n], sl * WSL) if sl < 4 else (vWb[n], 0)
        return f"ds_read_b64_tr_b16 {vr(dst+8+4*n+2*sec,2)}, v{a} offset:{o + kk*2048 + sec*256}"
    R = [xr(0), wr(0, 0), wr(0, 1), xr(1)]
    for n in range(1, 5): R += [wr(n, 0), wr(n, 1)]
    return R
need = {0: 2, 1: 3, 2: 5, 4: 7, 6: 9, 8: 11}
def substep(cur, R, first=False):
    issued = 0
    for j in range(10):
        n, tt = j >> 1, j & 1
        if j in need: A(f"s_waitcnt lgkmcnt({min(15, 11 - need[j] + issued)})")
        a = ACC + 16 * (2 * n + tt)
        c = "0" if first else vr(a, 16)
        A(f"v_mfma_f32_32x32x16_bf16 {vr(a,16)}, {vr(cur+8+4*n,4)}, {vr(cur+4*tt,4)}, {c}")
        k = 2 if j < 2 else 1
        for r in R[issued:issued + k]: A(r)
        issued += len(R[issued:issued + k])
A(f"""v_and_b32 v16, 31, v1
v_lshlrev_b32 v22, 5, v16
s_lshl_b32 s57, s12, 11
s_add_u32 s57, s57, {EX_TOK}
v_add_u32 v22, s57, v22
v_and_b32 v16, 15, v1
s_sub_u32 s57, 2, s50
s_lshl_b32 s57, s57, 6
v_mul_u32_u24 v18, s57, v17
v_xor_b32 v19, s13, v17
v_lshlrev_b32 v19, 4, v19
v_add3_u32 v18, v18, v19, v16
v_lshlrev_b32 v18, 2, v18
v_and_b32 v19, 31, v1
s_lshl_b32 s57, s13, 5
v_add_u32 v19, s57, v19
v_lshlrev_b32 v19, 2, v19""")
for n in range(5):
    fo = EX_COL + ((n >> 1) * 64 + (n & 1) * 32) * 4
    qo = EX_COL + n * 256
    if n < 2: A(f"v_add_u32 v{23+n}, {fo}, v18")
    elif n == 4: A(f"v_add_u32 v{23+n}, {qo}, v19")
    else:
        A(f"v_add_u32 v20, {fo}, v18\nv_add_u32 v21, {qo}, v19\nv_cndmask_b32 v{23+n}, v20, v21, vcc")
A(f"""s_lshl_b32 s57, s47, 2
s_lshl_b32 s58, s12, 1
s_add_u32 s57, s57, s58
s_mul_i32 s70, s57, {112*1024}
s_lshl_b32 s59, s53, 12
s_add_u32 s70, s70, s59
s_lshl_b32 s59, s13, 10
s_add_u32 s70, s70, s59
s_add_u32 s70, s70, {WS_H}
s_lshl_b32 s59, s54, 2
s_lshl_b32 s60, s13, 1
s_add_u32 s59, s59, s60
s_lshl_b32 s71, s59, 6
s_add_u32 s71, s71, s57
s_lshl_b32 s71, s71, 10
s_lshl_b32 s57, s57, 7
s_lshl_b32 s72, s59, 1
s_add_u32 s72, s72, s57
s_lshl_b32 s72, s72, 5
s_add_u32 s72, s72, {WS_FQ}
s_lshl_b32 s73, s48, 3
s_lshl_b32 s60, s13, 2
s_add_u32 s73, s73, s60
s_add_u32 s73, s73, s57
s_lshl_b32 s73, s73, 5
s_add_u32 s73, s73, {WS_FH}
s_add_u32 s74, s73, 4096
s_load_dwordx2 s[24:25], s[0:1], 48
s_load_dwordx2 s[28:29], s[0:1], 16
s_load_dwordx2 s[36:37], s[0:1], 56
s_waitcnt vmcnt(0) lgkmcnt(0)""")
A("s_barrier")
PR.stamp()
for r in reads(0, 0, P): A(r)
A.raw(".p2align 3")
for s in range(16):
    substep(P, reads(s, 1, QQ), first=(s == 0))
    A("s_barrier")
    if s < 15: substep(QQ, reads(s + 1, 0, P))
    else:
        R = [f"ds_read_b128 {vr(P,4)}, v22", f"ds_read_b128 {vr(P+4,4)}, v22 offset:1024",
             f"ds_read_b128 v[16:19], v22 offset:16", f"ds_read_b128 v[28:31], v22 offset:1040"]
        R += [f"ds_read_b32 v{P+8+4*n}, v{23+n}" for n in range(5)]
        substep(QQ, R)
    if s in (11,): PR.stamp()
A("s_waitcnt lgkmcnt(0)")
A("s_barrier")
PR.stamp()
A(f"""v_mov_b32 v248, v{P+2}
v_mov_b32 v249, v{P+3}
v_mov_b32 v250, v16
v_mov_b32 v251, v17
v_mov_b32 v252, v{P+6}
v_mov_b32 v253, v{P+7}
v_mov_b32 v254, v28
v_mov_b32 v255, v29
v_cmp_gt_u32 vcc, 32, v1
v_readfirstlane_b32 s80, v18
v_mov_b32 v{P+2}, 0
v_mov_b32 v{P+3}, 0
v_mov_b32 v{P+6}, 0
v_mov_b32 v{P+7}, 0
v_cndmask_b32 v{P}, 0, v{P}, vcc
v_cndmask_b32 v{P+1}, 0, v{P+1}, vcc
v_cndmask_b32 v{P+4}, 0, v{P+4}, vcc
v_cndmask_b32 v{P+5}, 0, v{P+5}, vcc""")
for n in (4, 3, 2, 1, 0):
    w = P + 8 + 4 * n
    A(f"v_mov_b32 v{w+1}, v{w}\nv_mov_b32 v{w+2}, 0\nv_mov_b32 v{w+3}, 0")
for n in (4, 3, 2, 1, 0):
    for tt in range(2):
        a = ACC + 16 * (2 * n + tt)
        A(f"v_mfma_f32_32x32x16_bf16 {vr(a,16)}, {vr(P+8+4*n,4)}, {vr(P+4*tt,4)}, {vr(a,16)}")
A(f"""v_lshlrev_b32 v2, 4, v1
v_and_b32 v3, 31, v1
v_lshlrev_b32 v3, 5, v3
v_lshrrev_b32 v4, 5, v1
v_lshlrev_b32 v4, 4, v4
v_add_u32 v3, v3, v4
v_lshlrev_b32 v8, 8, v1
v_mov_b32 v9, s80""")
T = QQ
for tt in range(2):
    for k in range(3):
        A(f"v_mov_b32 v{68+6*tt+2*k}, v{248+4*tt+1+k}\nv_mov_b32 v{69+6*tt+2*k}, v{248+4*tt+1+k}")
def ffn(n, tt):
    a = ACC + 16 * (2 * n + tt); c = 68 + 6 * tt
    for r in range(0, 8, 2): A(f"v_pk_mul_f32 {vr(T+r,2)}, {vr(a+r,2)}, {vr(a+r,2)}")
    for r in range(0, 8, 2): A(f"v_pk_fma_f32 {vr(T+r,2)}, {vr(T+r,2)}, {vr(c+2,2)}, {vr(c,2)}")
    for r in range(0, 8, 2): A(f"v_pk_mul_f32 {vr(T+r,2)}, {vr(T+r,2)}, {vr(a+r,2)}")
    for r in range(8): A(f"v_exp_f32 v{T+r}, v{T+r}")
    for r in range(0, 8, 2): A(f"v_pk_mul_f32 {vr(a+r,2)}, {vr(a+r,2)}, {vr(a+8+r,2)}")
    for r in range(0, 8, 2): A(f"v_pk_fma_f32 {vr(T+r,2)}, {vr(T+r,2)}, {vr(c+4,2)}, {vr(c+4,2)}")
    for r in range(8): A(f"v_rcp_f32 v{T+r}, v{T+r}")
    A("s_nop 0")
    for r in range(0, 8, 2): A(f"v_pk_mul_f32 {vr(a+r,2)}, {vr(a+r,2)}, {vr(T+r,2)}")
    for d in range(4): A(f"v_cvt_pk_bf16_f32 v{a+8+d}, v{a+2*d}, v{a+2*d+1}")
def ffn_st(n, tt):
    a = ACC + 16 * (2 * n + tt)
    A(f"s_add_u32 s63, s70, {2048*n + tt*112*1024}")
    A(f"buffer_store_dwordx4 {vr(a+8,4)}, v2, s[20:23], s63 offen sc1")
def qkv(n, zoff):
    A(f"""s_add_u32 s60, s54, {zoff}
    s_cmp_lt_u32 s60, 8
    s_mov_b32 s62, {f32(0.25*LOG2E)}
    s_cselect_b32 s62, s62, 1.0
    v_mul_f32 v4, s62, v248
    v_mul_f32 v6, s62, v252
    v_mul_f32 v5, s62, v248
    v_mul_f32 v7, s62, v252""")
    for tt in range(2):
        a = ACC + 16 * (2 * n + tt)
        for r in range(0, 16, 2): A(f"v_pk_mul_f32 {vr(a+r,2)}, {vr(a+r,2)}, {vr(4+2*tt,2)}")
        for d in range(8): A(f"v_cvt_pk_bf16_f32 v{a+d}, v{a+2*d}, v{a+2*d+1}")
        A(f"s_add_u32 s63, s71, {zoff*4*65536 + tt*1024}")
        A(f"buffer_store_dwordx4 {vr(a,4)}, v2, s[20:23], s63 offen sc1")
        A(f"s_add_u32 s63, s63, 65536")
        A(f"buffer_store_dwordx4 {vr(a+4,4)}, v2, s[20:23], s63 offen sc1")
def flag(vm, mask, soff, imm=0, voff=8):
    A(f"s_waitcnt vmcnt({vm})\ns_mov_b64 exec, {mask}\nbuffer_store_dword v9, v{voff}, s[20:23], s{soff} offen offset:{imm} sc1\ns_mov_b64 exec, -1")
A("s_cmp_eq_u32 s50, 1")
A("s_cbranch_scc1 M_TC")
def ffs(n, tt): ffn(n, tt); ffn_st(n, tt)
DF = OPT["defer"]
qkv(4, 0)
if DF:
    ffn(3, 0); ffn(3, 1)
    A("s_barrier")
    ffn(2, 0); ffn(2, 1)
    if DF == 5: flag(0, 1, 72)
    if DF >= 2: ffn(1, 0); ffn(1, 1)
    if DF != 5: flag(0, 1, 72)
    nq = PR.n; PR.stamp()
    if DF >= 3: ffn(0, 0); ffn(0, 1)
    if DF >= 4: A("s_barrier")
    for n in (3, 2):
        for tt in range(2): ffn_st(n, tt)
    if DF == 1: ffs(1, 0); ffs(1, 1); ffs(0, 0); ffs(0, 1)
    elif DF == 2: ffn_st(1, 0); ffn_st(1, 1); ffs(0, 0); ffs(0, 1)
    else: ffn_st(1, 0); ffn_st(1, 1); ffn_st(0, 0); ffn_st(0, 1)
    flag(4, 1, 73)
else:
    ffs(3, 0); ffs(3, 1)
    A("s_barrier")
    ffs(2, 0); ffs(2, 1)
    flag(4, 1, 72)
    ffs(1, 0); ffs(1, 1); ffs(0, 0); ffs(0, 1)
    flag(4, 1, 73)
A("s_branch M_TJ")
A.label("M_TC")
qkv(4, 2); qkv(3, 1); qkv(2, 0)
A("s_barrier")
if DF:
    order = [(1, 0), (1, 1), (0, 0), (0, 1)]
    for t in order[:OPT["cq"]]: ffn(*t)
    flag(0, 7, 72)
    PR.n = nq; PR.stamp()
    for t in order[OPT["cq"]:]: ffn(*t)
    if DF >= 4: A("s_barrier")
    ffn_st(1, 0); ffn_st(1, 1); ffn_st(0, 0); ffn_st(0, 1)
else:
    ffs(1, 0); ffs(1, 1); ffs(0, 0); ffs(0, 1)
    flag(4, 7, 72)
A.label("M_TJ")
PR.stamp()
A("s_mov_b32 s15, s14")
d_setup_w()
XRr, BF, WF, AD, AS = 8, 16, 80, 96, 160
BD, NS = 8, 36
flag(0, 1, 74)
PR.stamp()
DQ = VQ(A)
A(f"""s_and_b32 s57, s2, 7
s_lshl_b32 s50, s57, 2
s_lshr_b32 s57, s2, 3
s_and_b32 s57, s57, 3
s_add_u32 s50, s50, s57
s_lshr_b32 s51, s2, 5
v_lshlrev_b32 v3, 4, v1
s_lshl_b32 s55, s50, 13
s_lshl_b32 s57, s15, 10
s_add_u32 s55, s55, s57
s_add_u32 s55, s55, {WS_FH}
s_add_u32 s75, s55, 4096
v_min_u32 v226, 5, v1
v_lshlrev_b32 v226, 7, v226
v_min_u32 v227, 7, v1
v_lshlrev_b32 v227, 7, v227""")
ld0 = "buffer_load_dword v228, v226, s[20:23], s55 offen sc1"
ld1 = "buffer_load_dword v228, v227, s[20:23], s75 offen sc1"
RP = OPT["rpf"]
for k in range(RP):
    st = WD + k
    A(f"s_lshl_b32 s44, s{UFB[st>>2]}, 14\ns_add_u32 s44, s44, s40")
    if st & 3: A(f"s_add_u32 s44, s44, {(st&3)*16384}")
    A(f"s_add_u32 s45, s44, 8192")
    A(f"buffer_load_dwordx4 {vr(160+8*k,4)}, v2, s[24:27], s44 offen")
    A(f"buffer_load_dwordx4 {vr(164+8*k,4)}, v2, s[24:27], s45 offen")
if OPT["ms"]: A(f"s_sleep {OPT['ms']}")
A(ld0)
A(f"""s_lshl_b32 s57, s50, 1
s_and_b32 s58, s15, 1
s_add_u32 s59, s57, s58
s_xor_b32 s58, s58, 1
s_add_u32 s57, s57, s58
s_mul_i32 s64, s59, {112*1024}
s_add_u32 s64, s64, {WS_H}
s_mul_i32 s65, s57, {112*1024}
s_add_u32 s65, s65, {WS_H}
s_lshl_b32 s58, s15, 13
s_add_u32 s58, s58, {WS_O}
s_lshl_b32 s67, s59, 15
s_add_u32 s67, s67, s58
s_lshl_b32 s53, s57, 15
s_add_u32 s53, s53, s58
v_and_b32 v6, 31, v1
v_lshlrev_b32 v6, 10, v6
v_lshrrev_b32 v7, 5, v1
v_lshlrev_b32 v7, 4, v7
v_add_u32 v224, v6, v7
s_lshl_b32 s54, s59, 15
s_lshl_b32 s57, s51, 7
s_add_u32 s54, s54, s57
s_lshr_b32 s57, s15, 1
s_lshl_b32 s57, s57, 6
s_add_u32 s54, s54, s57
v_lshrrev_b32 v6, 5, v1
v_lshlrev_b32 v6, 8, v6
v_bfe_u32 v7, v1, 2, 2
v_lshlrev_b32 v7, 6, v7
v_add_u32 v6, v6, v7
v_and_b32 v7, 3, v1
v_lshlrev_b32 v7, 3, v7
v_add_u32 v6, v6, v7
v_bfe_u32 v7, v1, 4, 1
v_lshlrev_b32 v7, 5, v7
v_add_u32 v6, v6, v7
s_lshl_b32 s57, s57, 3
v_add_u32 v6, s57, v6
v_xor_b32 v7, 512, v6
v_add_u32 v4, s43, v6
v_add_u32 v5, s43, v7
v_add_u32 v232, 0x10000, v4
v_add_u32 v233, 0x10000, v5
v_add_u32 v234, 0x20000, v4
v_add_u32 v235, 0x20000, v5
s_mov_b32 s32, s4
s_mov_b32 s33, s5
s_mov_b32 s34, 0x200000
s_mov_b32 s35, 0x20000
s_mov_b32 s38, 0x200000
s_mov_b32 s39, 0x20000
s_setprio {OPT['dprio']}
s_waitcnt vmcnt(0)""")
PR.stamp()
spin(A, "MH0", ld0, 228)
PR.stamp()
def htouch(lvl):
    if not OPT["htouch"]: return
    A(f"""v_bfe_u32 v229, v1, 2, 2
    v_lshlrev_b32 v230, 13, v229
    s_mul_i32 s57, s15, {24*1024}
    s_add_u32 s57, s57, {4096 if lvl == 0 else 0}
    v_add_u32 v230, s57, v230
    s_lshl_b32 s58, s15, 12
    s_add_u32 s58, s58, {96*1024}
    v_mov_b32 v231, {'s58' if lvl else 's57'}
    v_cmp_eq_u32 vcc, 3, v229
    v_and_b32 v229, 3, v1
    v_lshlrev_b32 v229, 10, v229
    v_cndmask_b32 v230, v230, v231, vcc
    v_add_u32 v230, v230, v229
    v_bfe_u32 v229, v1, 4, 1
    v_mul_u32_u24 v229, {112*1024}, v229
    v_add_u32 v230, v230, v229
    s_min_u32 s57, s64, s65
    s_lshl_b32 s58, s51, 7
    s_add_u32 s57, s57, s58
    s_mov_b32 exec_hi, 0
    buffer_load_dword v229, v230, s[20:23], s57 offen sc1
    s_mov_b64 exec, -1""")
    DQ.add("HT", 1)
htouch(0)
def issb(s):
    r = BF + 8 * (s % BD)
    if s < 28:
        o = [f"s_lshl_b32 s48, s{UFB[s>>2]}, 10", "s_add_u32 s49, s48, s65", "s_add_u32 s48, s48, s64"] if (s & 3) == 0 else []
    else:
        o = [f"s_add_u32 s48, s67, {(s-28)*1024}", f"s_add_u32 s49, s53, {(s-28)*1024}"] if (s & 3) == 0 else []
    DQ.add(f"B{s}", 2)
    return [o + [f"buffer_load_dwordx4 {vr(r,4)}, v3, s[20:23], s48 offen offset:{(s&3)*1024} sc1"],
            [f"buffer_load_dwordx4 {vr(r+4,4)}, v3, s[20:23], s49 offen offset:{(s&3)*1024} sc1"]]
for s in range(BD - 1): emit(issb(s))
A(f"buffer_load_dwordx4 {vr(XRr,4)}, v224, s[32:35], s54 offen")
A(f"buffer_load_dwordx4 {vr(XRr+4,4)}, v224, s[32:35], s54 offen offset:32")
DQ.add("X", 2)
def rdw(s):
    slot = s % WD; w = WF + 8 * (s & 1)
    hi, lo = DREG[slot] >> 16, DREG[slot] & 0xffff
    vb = [4, 232, 234][hi]
    return [f"ds_read_b64_tr_b16 {vr(w+4*u+2*sec,2)}, v{vb+u} offset:{lo+sec*1024}" for u in range(2) for sec in range(2)]
for i in rdw(0): A(i)
DQ.wait("B0")
L1S = OPT["l1s"]
def tB(sp): return max(sp - (BD - 1), L1S) if sp >= 12 else sp - (BD - 1)
def xaddr(base3, which, a, qd):
    k = (a - 1) * 4 + qd
    reg = DREG[(8 if which == 0 else 0) + (k >> 1)] + (k & 1) * 1024
    return base3[reg >> 16], reg & 0xffff
def dump(which, acc):
    for a in range(1, 4):
        for qd in range(4):
            vb, off = xaddr([236, 6, 7], which, a, qd)
            A(f"ds_write_b128 v{vb}, {vr(acc+16*a+4*qd,4)} offset:{off}")
def fetch(which, acc):
    for a in range(1, 4):
        b = 237 + 3 * (a - 1)
        for qd in range(4):
            vb, off = xaddr([b, b + 1, b + 2], which, a, qd)
            A(f"ds_read_b128 {vr(acc+16*a+4*qd,4)}, v{vb} offset:{off}")
def sum4(acc):
    for r in range(0, 16, 2):
        A(f"v_pk_add_f32 {vr(acc+r,2)}, {vr(acc+r,2)}, {vr(acc+16+r,2)}\nv_pk_add_f32 {vr(acc+32+r,2)}, {vr(acc+32+r,2)}, {vr(acc+48+r,2)}")
    for r in range(0, 16, 2): A(f"v_pk_add_f32 {vr(acc+r,2)}, {vr(acc+r,2)}, {vr(acc+32+r,2)}")
for s in range(NS):
    w = WF + 8 * (s & 1); b = BF + 8 * (s % BD)
    acc = AD if s < 28 else AS
    if s == 12: PR.stamp()
    if s == 28:
        PR.stamp()
        A("s_nop 7\ns_nop 1")
        dump(0, AD)
        DQ.wait("PO")
        A("""v_cmp_eq_u32 vcc, s80, v228
        s_mov_b32 s46, 0
        s_cmp_eq_u64 vcc, -1
        s_cbranch_scc1 M_OOK
        s_mov_b32 s46, 1""")
        A(ld2)
        A("s_call_b64 s[66:67], M_GATE" if False else "s_call_b64 s[70:71], M_GATE")
        A("s_waitcnt vmcnt(0)")
        spin(A, "MO", ld2, 228)
        A.label("M_OOK")
        PR.stamp()
        for sp in range(28, 36): emit(issb(sp))
        A("s_cmp_eq_u32 s46, 1\ns_cbranch_scc1 M_GDONE\ns_call_b64 s[70:71], M_GATE")
        A.label("M_GDONE")
        DQ.wait("B28")
    if s + 1 < NS:
        DQ.wait([f"W{s+1}", f"B{s+1}"])
        for i in rdw(s + 1): A(i)
        A("s_waitcnt lgkmcnt(4)")
    else:
        A("s_waitcnt lgkmcnt(0)")
    if s == L1S - 3:
        A(ld1); DQ.add("P1", 1)
    if s == L1S:
        DQ.wait("P1")
        spin(A, "MH1", ld1, 228)
        htouch(1)
    if s == 0:
        A("v_add_u32 v236, s43, v3\nv_add_u32 v6, 0x10000, v236\nv_add_u32 v7, 0x20000, v236")
    if s == 20:
        for a in range(1, 4):
            bb = 237 + 3 * (a - 1)
            A(f"s_xor_b32 s57, s15, {a}\ns_lshl_b32 s57, s57, 11\nv_add_u32 v{bb}, s57, v3\nv_add_u32 v{bb+1}, 0x10000, v{bb}\nv_add_u32 v{bb+2}, 0x20000, v{bb}")
    if s == 25:
        A(f"""s_lshl_b32 s55, s50, 12
        s_lshl_b32 s57, s15, 10
        s_add_u32 s55, s55, s57
        s_add_u32 s55, s55, {WS_FO}""")
        ld2 = "buffer_load_dword v228, v227, s[20:23], s55 offen sc1"
        A(ld2); DQ.add("PO", 1)
    grp = []
    for sp in range(BD - 1, 28):
        if tB(sp) == s: grp += issb(sp)
    if 1 <= s <= RP:
        reg = DREG[s - 1]; vb = [236, 6, 7][reg >> 16]
        grp += [[f"ds_write_b128 v{vb}, {vr(160+8*(s-1),4)} offset:{reg & 0xffff}"], [f"ds_write_b128 v{vb}, {vr(164+8*(s-1),4)} offset:{(reg & 0xffff)+1024}"]]
    elif s >= 1 and s + WD - 1 < NS: grp += issw(s + WD - 1, DQ)
    per = [grp[(len(grp) * a) // 4:(len(grp) * (a + 1)) // 4] for a in range(4)]
    for a in range(4):
        u, tt = a >> 1, a & 1
        r = acc + 16 * a
        c = "0" if s in (0, 28) else vr(r, 16)
        A(f"v_mfma_f32_32x32x16_bf16 {vr(r,16)}, {vr(w+4*u,4)}, {vr(b+4*tt,4)}, {c}")
        for g in per[a]:
            for i in g: A(i)
PR.stamp()
A("s_nop 7\ns_nop 1")
dump(1, AS)
A("s_waitcnt lgkmcnt(0)")
A("s_barrier")
fetch(1, AS)
A("s_waitcnt lgkmcnt(0)")
sum4(AS)
for r in range(0, 16, 2): A(f"v_pk_fma_f32 {vr(AD+r,2)}, {vr(AD+r,2)}, {vr(AS+r,2)}, {vr(AD+32+r,2)}")
for d in range(8): A(f"v_cvt_pk_bf16_f32 v{XRr+d}, v{AD+2*d}, v{AD+2*d+1}")
A("s_nop 1")
for j in range(2):
    A(f"v_permlane32_swap_b32 v{XRr+4*j}, v{XRr+4*j+2}\nv_permlane32_swap_b32 v{XRr+4*j+1}, v{XRr+4*j+3}")
osc = "sc1" if OPT["osc"] else ""
A(f"buffer_store_dwordx4 {vr(XRr,4)}, v224, s[36:39], s54 offen {osc}")
A(f"buffer_store_dwordx4 {vr(XRr+4,4)}, v224, s[36:39], s54 offen offset:32 {osc}")
PR.stamp()
PR.dump(2)
A("s_endpgm")
def gate():
    A("s_waitcnt lgkmcnt(0)")
    A("s_barrier")
    fetch(0, AD)
    for j in range(2):
        A(f"v_permlane32_swap_b32 v{XRr+4*j}, v{XRr+4*j+2}\nv_permlane32_swap_b32 v{XRr+4*j+1}, v{XRr+4*j+3}")
    A("s_waitcnt lgkmcnt(0)")
    sum4(AD)
    T = AD + 16
    for r in range(16): A(f"v_mul_f32 v{T+r}, {f32(-LOG2E)}, v{AD+r}")
    for r in range(16): A(f"v_exp_f32 v{T+r}, v{T+r}")
    for d in range(8): A(f"v_lshlrev_b32 v{T+16+2*d}, 16, v{XRr+d}\nv_and_b32 v{T+17+2*d}, 0xffff0000, v{XRr+d}")
    for r in range(16): A(f"v_add_f32 v{T+r}, 1.0, v{T+r}")
    for r in range(16): A(f"v_rcp_f32 v{T+r}, v{T+r}")
    A("s_nop 0")
    for r in range(0, 16, 2): A(f"v_pk_mul_f32 {vr(AD+r,2)}, {vr(AD+r,2)}, {vr(T+r,2)}")
A.label("M_GATE")
gate()
A("s_setpc_b64 s[70:71]")
A.label("L_CODE_END")
A.raw('.section .rodata,"a"')
A.raw(kernel_desc(NAME, 256))
txt = A.text()
if OPT.get("plainst"):
    import re
    txt = re.sub(r"(buffer_store_dwordx4 .*s63 offen) sc1", r"\1", txt)
if OPT.get("align", 1):
    import align
    txt = align.align(txt)
print(txt)
```

```python
import sys, math
from asmlib import *

NAME = "recurrent_scan__sliding_block__geglu_ffn__prompt_kernel"
WS_Q = 0; WS_K = 2 << 20; WS_V = 4 << 20; WS_O = 6 << 20; WS_H = 8 << 20
WS_TOK = 16 << 20
WS_CS = (16 << 20) + 65536
WS_FO = 17 << 20
WS_FH = (17 << 20) + (1 << 18)
WS_FQ = (17 << 20) + (2 << 18)
LOG2E = 1.4426950408889634
OPT = dict(prof=0, rot=2, codepf=1, wd=14, sleep=8, warm=7, thr=6, aprio=3, l2pf=0, rotd=1, hs=56, dprio=0, wtouch=0, htouch=1, wts=10, defer=1, gat=10, gc=13, hprio=0, l1s=8, osc=0, cq=2, ms=16, ntx=0, ntw=4, share=1, l2end=11, aprio2=3, rpf=0, pub=7, gd=1, vw=4, epf=16)
for a in sys.argv[1:]:
    k, v = a.split("="); OPT[k] = int(v)
XR = 0; XS = 16384; WR = 49152; WSL = 20480; EX = 151552
EX_TOK = EX; EX_COL = EX + 4096
DREG = [32768, 40960, 69632, 77824,   86016, 94208, 102400,   110592, 118784, 0, 8192,   126976, 135168, 143360]
DAVAIL = {13: 4, 14: 3, 15: 4, 16: 3}
LONE = 26624
SPIN = 20000

class Prof:
    def __init__(self, A, base=82): self.A = A; self.n = 0; self.base = base
    def stamp(self, real=False):
        if not OPT["prof"]: return
        i = self.n; self.n += 1
        assert i < 16
        self.A(f"{'s_memrealtime' if (real or OPT['prof'] == 2) else 's_memtime'} s[100:101]")
        self.A("s_waitcnt lgkmcnt(0)")
        self.A(f"s_mov_b32 s{self.base+i}, s100")
    def dump(self, vt):
        if not OPT["prof"]: return
        A = self.A
        while self.n < 15: self.stamp()
        self.stamp(True)
        A(f"s_lshl_b32 s68, s2, 3\ns_add_u32 s68, s68, s14\ns_lshl_b32 s68, s68, 6\ns_add_u32 s68, s68, {32<<20}")
        A(f"v_mov_b32 v{vt}, 0")
        for i in range(self.n):
            A(f"v_mov_b32 v{vt+1}, s{self.base+i}")
            A(f"buffer_store_dword v{vt+1}, v{vt}, s[20:23], s68 offen offset:{4*i}")

class VQ:
    def __init__(self, A): self.A = A; self.q = []
    def add(self, tag, n): self.q.append((tag, n))
    def wait(self, tags):
        if isinstance(tags, str): tags = [tags]
        idx = max([i for i, (t, _) in enumerate(self.q) if t in tags], default=-1)
        if idx < 0: return
        rest = sum(c for _, c in self.q[idx + 1:])
        assert rest < 64
        self.A(f"s_waitcnt vmcnt({rest})")
        del self.q[:idx + 1]
    def has(self, tag): return tag in [t for t, _ in self.q]
    def clear(self): self.q = []

def spin(A, name, load, vval, maskexpr=None, cnt=56):
    A(f"""v_cmp_eq_u32 vcc, s80, v{vval}
    s_mov_b32 s{cnt}, 0
    s_cmp_eq_u64 vcc, -1
    s_cbranch_scc1 {name}_OK""")
    A.label(f"{name}_P")
    A(f"""s_sleep {OPT['sleep']}
    {load}
    s_add_u32 s{cnt}, s{cnt}, 1
    s_waitcnt vmcnt(0)
    v_cmp_eq_u32 vcc, s80, v{vval}
    s_cmp_gt_u32 s{cnt}, {SPIN}
    s_cbranch_scc1 {name}_OK
    s_cmp_eq_u64 vcc, -1
    s_cbranch_scc0 {name}_P""")
    A.label(f"{name}_OK")

A = Asm()
A.raw(f"""; recurrent_scan__sliding_block__geglu_ffn__prompt -- hand-designed gfx950 kernel, emitted by my own python generator.
; @launch grid=(256,1,1) block=(512,1,1) lds=163840
.amdgcn_target "amdgcn-amd-amdhsa--gfx950"
.text""")
kernel_header(A, NAME)
PR = Prof(A)
A("""s_load_dwordx4 s[4:7], s[0:1], 0
s_load_dwordx4 s[8:11], s[0:1], 32
s_load_dwordx4 s[16:19], s[0:1], 64""")
if OPT["epf"]:
    A("s_getpc_b64 s[24:25]")
    A.label("L_PC0")
    nl = OPT["epf"]
    A(f"""v_and_b32 v16, {nl-1}, v0
    v_bfe_u32 v17, v0, 6, 2
    v_mul_u32_u24 v17, {nl}, v17
    v_add_lshl_u32 v16, v16, v17, 7
    v_add_u32 v17, L_M-L_PC0, v16
    v_cmp_gt_u32 vcc, 256, v0
    s_mov_b64 exec, {(1<<nl)-1}
    s_nop 0
    v_cndmask_b32 v16, v16, v17, vcc
    global_load_dword v29, v16, s[24:25]
    s_mov_b64 exec, -1""")
A("""s_cmp_ge_u32 s2, 256
s_cbranch_scc1 L_END
v_and_b32 v1, 63, v0
v_lshrrev_b32 v16, 6, v0
s_and_b32 s57, s2, 7
v_readfirstlane_b32 s14, v16
s_lshr_b32 s58, s2, 3
s_and_b32 s44, s57, 1
s_and_b32 s45, s58, 7
s_lshl_b32 s47, s44, 3
s_add_u32 s47, s47, s45
s_lshr_b32 s46, s57, 1
s_lshr_b32 s49, s58, 3
s_lshl_b32 s48, s46, 2
s_add_u32 s48, s48, s49
s_mul_i32 s51, s46, 3
s_add_u32 s52, s51, s49
s_lshl_b32 s53, s52, 1
s_add_u32 s57, s46, 24
s_add_u32 s54, s51, 12
s_cmp_eq_u32 s49, 3
s_cselect_b32 s50, 1, 0
s_cselect_b32 s53, s57, s53
s_cselect_b32 s54, s54, s52
s_and_b32 s15, s14, 3
s_cmp_lt_u32 s14, 4
s_cbranch_scc1 L_M""")
def ws_srd():
    A("""s_mov_b32 s20, s18
    s_mov_b32 s21, s19
    s_mov_b32 s22, 0x10000000
    s_mov_b32 s23, 0x20000
    s_mov_b32 s18, 256
    s_mov_b32 s19, 0x20000""")
vDW = [2, 3, 4, 5, 6]; vDX = [7, 8]
ROT = OPT["rot"]
A("""s_lshl_b32 s58, s15, 15
v_lshrrev_b32 v16, 3, v1
v_lshlrev_b32 v16, 10, v16
v_add_u32 v16, s58, v16
v_lshrrev_b32 v17, 4, v1
v_xor_b32 v17, v17, v1
v_and_b32 v17, 7, v17
v_lshlrev_b32 v17, 4, v17
v_add_u32 v7, v16, v17
v_xor_b32 v8, 64, v7
s_lshl_b32 s12, s15, 12
s_lshl_b32 s13, s15, 10
s_lshl_b32 s57, s47, 17""")
if ROT == 1: A("s_lshl_b32 s81, s49, 2\ns_lshl_b32 s58, s45, 1\ns_add_u32 s81, s81, s58")
elif ROT == 2: A("s_add_u32 s81, s49, s45\ns_lshl_b32 s81, s81, 2")
elif ROT == 3: A("s_add_u32 s81, s49, s45\ns_lshl_b32 s81, s81, 3")
elif ROT == 0: A("s_mov_b32 s81, 0")
A("""s_waitcnt lgkmcnt(0)
s_add_u32 s72, s4, s57
s_addc_u32 s73, s5, 0
s_mov_b32 s74, 0x20000
s_mov_b32 s75, 0x20000""")
PR.stamp(True); PR.stamp()
def dma_x(u):
    o = []
    for jj in range(4):
        pre = [f"s_add_u32 s56, s81, {2*u}", "s_and_b32 s56, s56, 15", "s_lshl_b32 s56, s56, 6"] if jj == 0 else []
        o.append(pre + [f"s_add_u32 m0, s12, {XR + (u%3)*XS + jj*1024}", f"s_add_u32 s59, s56, {jj*8192}",
                        f"buffer_load_dwordx4 v{vDX[jj&1]}, s[72:75], s59 offen {'nt ' if 2*u < OPT['ntx'] else ''}lds"])
    return o
def emit(groups):
    for g in groups:
        for i in g: A(i)
    return len(groups)
A(f"s_setprio {OPT['hprio']}")
Q = VQ(A)
n0 = emit(dma_x(0))
A("s_lshl_b32 s55, s53, 7\ns_lshl_b32 s56, s54, 7")
tabA = [(8, 55, 0), (8, 55, 128), (10, 55, 0), (10, 55, 128), (6, 56, 0)]
tabC = [(8, 55, 0), (10, 55, 0), (6, 56, 0), (6, 56, 128), (6, 56, 256)]
A("""v_bfe_u32 v16, v1, 2, 3
s_lshl_b32 s57, s15, 3
v_add_u32 v16, s57, v16
v_lshrrev_b32 v17, 5, v1
v_lshlrev_b32 v17, 6, v17
v_and_b32 v18, 3, v1
v_lshlrev_b32 v18, 4, v18
v_add_u32 v17, v17, v18
s_lshl_b32 s66, s50, 5
s_xor_b32 s67, s66, 32""")
swap = {0: None, 1: 66, 2: 67, 3: 67, 4: None}
for D in range(5):
    S = 24 + 4 * D
    (pa, ca, oa), (pc, cc_, oc) = tabA[D], tabC[D]
    A("s_cmp_eq_u32 s50, 1")
    if pa != pc:
        A(f"s_cselect_b32 s{S}, s{pc}, s{pa}\ns_cselect_b32 s{S+1}, s{pc+1}, s{pa+1}")
        src = S
    else: src = pa
    if ca != cc_: A(f"s_cselect_b32 s57, s{cc_}, s{ca}"); cs = 57
    else: cs = ca
    if oa != oc: A(f"s_cselect_b32 s58, {oc}, {oa}")
    sa = 3072 if pa == 6 else 3584; sc = 3072 if pc == 6 else 3584
    A(f"s_movk_i32 s{60+D}, {sa}")
    if sa != sc: A(f"s_cselect_b32 s{60+D}, {sc}, s{60+D}")
    if oa != oc: A(f"s_add_u32 s57, s{cs}, s58"); cs = 57
    elif oa: A(f"s_add_u32 s57, s{cs}, {oa}"); cs = 57
    A(f"s_add_u32 s{S}, s{src}, s{cs}\ns_addc_u32 s{S+1}, s{src+1}, 0")
    A(f"v_mul_u32_u24 v18, s{60+D}, v16")
    if swap[D]:
        A(f"v_xor_b32 v19, s{swap[D]}, v17\nv_add_u32 v{vDW[D]}, v18, v19")
    else:
        A(f"v_add_u32 v{vDW[D]}, v18, v17")
    A(f"s_lshl_b32 s{S+2}, s{60+D}, 9\ns_mov_b32 s{S+3}, 0x20000")
def dma_w(k):
    o = []
    for D in range(5):
        S = 24 + 4 * D
        pre = [f"s_add_u32 s56, s81, {k}", "s_and_b32 s56, s56, 15", "s_lshl_b32 s56, s56, 5"] if D == 0 else []
        o.append(pre + [f"s_add_u32 m0, s13, {WR + (k%5)*WSL + D*4096}", f"s_mul_i32 s59, s{60+D}, s56",
                        f"buffer_load_dwordx4 v{vDW[D]}, s[{S}:{S+3}], s59 offen {'nt ' if k < OPT['ntw'] else ''}lds"])
    return o
def G(k):
    g = (dma_x(k // 2) if k % 2 == 0 else []) + dma_w(k)
    Q.add(f"S{k}", emit(g))
Q.add("S0", n0 + emit(dma_w(0)))
G(1)
ws_srd()
A("""s_or_b32 s57, s2, s15
s_cmp_lg_u32 s57, 0
s_cbranch_scc1 H_NONONCE
s_memrealtime s[56:57]
s_waitcnt lgkmcnt(0)
s_mul_i32 s56, s56, 0x9e3779b1
s_or_b32 s56, s56, 1
v_mov_b32 v16, 0
v_mov_b32 v17, s56
buffer_store_dword v17, v16, s[16:19], 0 offen sc1""")
A.label("H_NONONCE")
A("s_lshl_b32 s69, s47, 5")
if ROT == 2: A("s_lshr_b32 s55, s45, 2\ns_lshl_b32 s57, s44, 1\ns_add_u32 s55, s55, s57")
elif ROT == 1: A("s_mov_b32 s55, s44")
elif ROT == 3: A("s_lshr_b32 s55, s45, 1\ns_lshl_b32 s57, s44, 2\ns_add_u32 s55, s55, s57")
if ROT == 0: A("s_and_b32 s55, s45, 3")
NDELTA = {0: 4, 1: 2, 2: 4, 3: 8}[ROT]
def pf_setup():
    A("""v_lshrrev_b32 v20, 3, v1
    v_and_b32 v21, 3, v20
    v_lshrrev_b32 v20, 2, v20
    v_lshlrev_b32 v20, 5, v20
    v_add_u32 v20, v20, v21
    s_lshl_b32 s57, s45, 2
    v_add_u32 v20, s57, v20
    v_and_b32 v21, 7, v1
    v_lshlrev_b32 v21, 4, v21""")
    for D in range(5):
        A(f"v_mul_u32_u24 v{116+D}, s{60+D}, v20\nv_add_u32 v{116+D}, v{116+D}, v21")
    A("""v_lshrrev_b32 v20, 3, v1
    v_lshlrev_b32 v20, 10, v20
    s_lshl_b32 s57, s49, 15
    s_lshl_b32 s58, s15, 13
    s_add_u32 s57, s57, s58
    v_add3_u32 v121, v20, v21, s57""")
def pf_burst(u0, u1):
    n = 0
    for u in range(u0, u1):
        A(f"s_movk_i32 s59, {u*128}\nbuffer_load_dwordx4 {vr(128+4*u,4)}, v121, s[72:75], s59 offen"); n += 1
    for u in range(u0, u1):
        A(f"s_mul_i32 s59, s{PFS}, {64*u}\nbuffer_load_dwordx4 {vr(160+4*u,4)}, v122, s[{PFR}:{PFR+3}], s59 offen"); n += 1
        lb = f"H_PF{u}"
        A(f"s_cmp_eq_u32 s15, {u%4}\ns_cbranch_scc0 {lb}\ns_mul_i32 s59, s64, {64*u}\nbuffer_load_dwordx4 {vr(192+4*(u>>2),4)}, v120, s[40:43], s59 offen")
        A.label(lb)
    Q.add("PF", n)
PFR, PFS = 76, 71
BUR = {}
if OPT.get("burst"):
    pf_setup()
    A(f"s_mov_b32 s{PFR}, s24\ns_mov_b32 s{PFR+1}, s25\ns_mov_b32 s{PFR+2}, s26\ns_mov_b32 s{PFR+3}, 0x20000\ns_mov_b32 s{PFS}, s60\nv_mov_b32 v122, v116")
    for D in (1, 2, 3):
        A(f"""s_cmp_eq_u32 s15, {D}
        s_cselect_b32 s{PFR}, s{24+4*D}, s{PFR}
        s_cselect_b32 s{PFR+1}, s{25+4*D}, s{PFR+1}
        s_cselect_b32 s{PFR+2}, s{26+4*D}, s{PFR+2}
        s_cselect_b32 s{PFS}, s{60+D}, s{PFS}
        s_cselect_b64 vcc, -1, 0
        v_cndmask_b32 v122, v122, v{116+D}, vcc""")
    BUR = {1: {-1: (1, 3), 1: (3, 6), 5: (6, 8)}, 2: {-1: (1, 4), 2: (4, 8)}, 3: {-1: (1, 2), 0: (2, 3), 1: (3, 4), 3: (4, 5), 5: (5, 6), 7: (6, 7), 9: (7, 8)}, 4: {-1: (1, 8)}}[OPT["burst"]]
    pf_burst(*BUR[-1])
A(f"""v_lshrrev_b32 v16, 5, v1
v_lshlrev_b32 v16, 10, v16
v_bfe_u32 v17, v1, 2, 2
v_lshlrev_b32 v17, 6, v17
v_add_u32 v16, v16, v17
v_and_b32 v17, 3, v1
v_lshlrev_b32 v17, 3, v17
v_add_u32 v16, v16, v17
v_bfe_u32 v17, v1, 4, 1
v_lshlrev_b32 v17, 5, v17
s_lshr_b32 s58, s15, 1
s_lshl_b32 s58, s58, 12
s_and_b32 s59, s15, 1
s_lshl_b32 s59, s59, 9
s_add_u32 s58, s58, s59
v_add3_u32 v12, v16, v17, s58
v_lshlrev_b32 v9, 4, v1
v_mov_b32 v10, 0""")
sched = {0: [2], 1: [3], 2: [4, 5]}
for s in range(3, 13): sched[s] = [s + 3]
def col_valu(js, fin):
    for j in js:
        b = 48 + 8 * j; acc = 44 + j
        for d in range(8):
            A(f"v_lshlrev_b32 v18, 16, v{b+d}\nv_and_b32 v19, 0xffff0000, v{b+d}")
            if d == 0: A(f"v_add_f32 v{acc}, v18, v19")
            else: A(f"v_add_f32 v{acc}, v{acc}, v18\nv_add_f32 v{acc}, v{acc}, v19")
    if fin:
        for j in range(3): A(f"v_mov_b32 v{72+2*j}, v{44+j}")
        A("s_nop 1")
        for j in range(3): A(f"v_permlane32_swap_b32 v{72+2*j}, v{44+j}")
        A("s_nop 1")
        for j in range(3): A(f"v_add_f32 v{72+2*j}, v{72+2*j}, v{44+j}")
def row_valu(part):
    if part == 0:
        for rrow in range(2):
            b = 32 + 4 * rrow; sx = 40 + 2 * rrow; sq = sx + 1
            for d in range(4):
                A(f"v_lshlrev_b32 v18, 16, v{b+d}\nv_and_b32 v19, 0xffff0000, v{b+d}")
                if d == 0: A(f"v_add_f32 v{sx}, v18, v19\nv_mul_f32 v{sq}, v18, v18\nv_fmac_f32 v{sq}, v19, v19")
                else: A(f"v_add_f32 v{sx}, v{sx}, v18\nv_fmac_f32 v{sq}, v18, v18\nv_add_f32 v{sx}, v{sx}, v19\nv_fmac_f32 v{sq}, v19, v19")
    else:
        for dpp in ("quad_perm:[1,0,3,2] row_mask:0xf bank_mask:0xf", "quad_perm:[2,3,0,1] row_mask:0xf bank_mask:0xf",
                    "row_half_mirror row_mask:0xf bank_mask:0xf", "row_mirror row_mask:0xf bank_mask:0xf",
                    "row_bcast:15 row_mask:0xa bank_mask:0xf", "row_bcast:31 row_mask:0xc bank_mask:0xf"):
            for r in range(40, 44): A(f"v_add_f32_dpp v{r}, v{r}, v{r} {dpp}")
def get_nonce(tag, vz, vn):
    A(f"""v_readfirstlane_b32 s80, v{vn}
    s_mov_b32 s57, 0
    s_cmp_eq_u32 s80, 0
    s_cbranch_scc0 {tag}_GOTN""")
    A.label(f"{tag}_POLLN")
    A(f"""buffer_load_dword v{vn}, v{vz}, s[16:19], 0 offen sc1
    s_add_u32 s57, s57, 1
    s_waitcnt vmcnt(0)
    v_readfirstlane_b32 s80, v{vn}
    s_cmp_gt_u32 s57, {SPIN}
    s_cbranch_scc1 {tag}_GOTN
    s_cmp_eq_u32 s80, 0
    s_cbranch_scc1 {tag}_POLLN""")
    A.label(f"{tag}_GOTN")
def publish():
    get_nonce("H", 10, 11)
    A(f"""s_lshl_b32 s57, s48, 4
    s_add_u32 s57, s57, s47
    s_mul_i32 s57, s57, 2560
    s_lshl_b32 s58, s15, 8
    s_add_u32 s57, s57, s58
    s_add_u32 s57, s57, {WS_CS}
    v_lshlrev_b32 v16, 3, v1
    v_mov_b32 v73, s80
    v_mov_b32 v75, s80
    v_mov_b32 v77, s80
    s_mov_b32 exec_hi, 0
    buffer_store_dwordx2 v[72:73], v16, s[20:23], s57 offen sc1
    buffer_store_dwordx2 v[74:75], v16, s[20:23], s57 offen offset:1024 sc1
    s_cmp_ge_u32 s15, 2
    s_cbranch_scc1 H_NO3
    buffer_store_dwordx2 v[76:77], v16, s[20:23], s57 offen offset:2048 sc1""")
    A.label("H_NO3")
    A(f"""s_mov_b32 exec_lo, 0
    s_mov_b32 exec_hi, 0x80000000
    s_lshl_b32 s57, s69, 6
    s_lshl_b32 s58, s48, 7
    s_add_u32 s57, s57, s58
    s_lshl_b32 s58, s15, 5
    s_add_u32 s57, s57, s58
    s_add_u32 s57, s57, {WS_TOK}
    v_mov_b32 v48, v40
    v_mov_b32 v49, v41
    v_mov_b32 v50, s80
    v_mov_b32 v51, s80
    v_mov_b32 v52, v42
    v_mov_b32 v53, v43
    v_mov_b32 v54, s80
    v_mov_b32 v55, s80
    buffer_store_dwordx4 v[48:51], v10, s[20:23], s57 offen sc1
    buffer_store_dwordx4 v[52:55], v10, s[20:23], s57 offen offset:16 sc1
    s_mov_b64 exec, -1""")
def gather_loads(part=None):
    if part == 0:
        for m in range(6):
            A(f"s_add_u32 s59, s66, {m*5120}")
            A(f"buffer_load_dwordx4 {vr(64+4*m,4)}, v16, s[20:23], s59 offen sc1")
        return
    for m in range(6 if part == 1 else 0, 8):
        A(f"s_add_u32 s59, s66, {m*5120}")
        A(f"buffer_load_dwordx4 {vr(64+4*m,4)}, v16, s[20:23], s59 offen sc1")
    for m in range(2):
        A(f"s_add_u32 s59, s66, {m*8*2560}")
        A(f"buffer_load_dwordx4 {vr(96+4*m,4)}, v17, s[20:23], s59 offen sc1")
    A("buffer_load_dwordx4 v[104:107], v18, s[20:23], s67 offen sc1")
def gather_prep():
    A(f"""s_mul_i32 s66, s48, {16*2560}
    s_add_u32 s66, s66, {WS_CS}
    v_and_b32 v18, 31, v1
    v_lshlrev_b32 v18, 4, v18
    v_lshrrev_b32 v16, 5, v1
    v_mul_u32_u24 v16, 2560, v16
    s_lshl_b32 s58, s15, 9
    v_add3_u32 v16, v16, v18, s58
    v_and_b32 v17, 7, v1
    v_lshlrev_b32 v17, 4, v17
    v_lshrrev_b32 v19, 3, v1
    v_mul_u32_u24 v19, 2560, v19
    s_lshl_b32 s58, s15, 7
    s_add_u32 s58, s58, 2048
    v_add3_u32 v17, v17, v19, s58
    s_lshl_b32 s67, s69, 6
    s_lshl_b32 s59, s15, 9
    s_add_u32 s67, s67, s59
    s_add_u32 s67, s67, {WS_TOK}""")
def gather_check():
    A("s_mov_b32 s70, 0")
    Q.wait("GA")
    A.label("H_GCHK")
    tags = list(range(65, 104, 2)) + [106]
    A(f"v_and_b32 v19, v{tags[0]}, v{tags[1]}\nv_or_b32 v20, v{tags[0]}, v{tags[1]}")
    rest = tags[2:]
    for k in range(0, len(rest) - 1, 2):
        A(f"v_bitop3_b32 v19, v19, v{rest[k]}, v{rest[k+1]} bitop3:0x80\nv_or3_b32 v20, v20, v{rest[k]}, v{rest[k+1]}")
    if len(rest) % 2: A(f"v_and_b32 v19, v19, v{rest[-1]}\nv_or_b32 v20, v20, v{rest[-1]}")
    A(f"""v_xor_b32 v19, s80, v19
    v_xor_b32 v20, s80, v20
    v_or_b32 v19, v19, v20
    v_cmp_eq_u32 vcc, 0, v19
    s_add_u32 s70, s70, 1
    s_cmp_gt_u32 s70, {SPIN}
    s_cbranch_scc1 H_GOK
    s_cmp_eq_u64 vcc, -1
    s_cbranch_scc1 H_GOK
    s_sleep 4""")
    gather_loads()
    A("s_waitcnt vmcnt(0)")
    A("s_branch H_GCHK")
    A.label("H_GOK")
def gather_cols():
    st = 4
    while st <= 16:
        for r in range(64, 96, 2 * st):
            A(f"v_add_f32 v{r}, v{r}, v{r+st}\nv_add_f32 v{r+2}, v{r+2}, v{r+st+2}")
        st *= 2
    A("""v_add_f32 v96, v96, v100
    v_add_f32 v98, v98, v102
    v_mov_b32 v65, v64
    v_mov_b32 v67, v66
    v_add_f32_dpp v96, v96, v96 row_ror:8 row_mask:0xf bank_mask:0xf
    v_add_f32_dpp v98, v98, v98 row_ror:8 row_mask:0xf bank_mask:0xf
    v_permlane32_swap_b32 v65, v64
    v_permlane32_swap_b32 v67, v66
    v_mov_b32 v97, v96
    v_mov_b32 v99, v98
    v_add_f32 v64, v64, v65
    v_add_f32 v66, v66, v67
    v_permlane32_swap_b32 v97, v96
    v_permlane32_swap_b32 v99, v98
    s_nop 0
    v_add_f32 v96, v96, v97
    v_add_f32 v98, v98, v99
    v_mov_b32 v97, v96
    v_mov_b32 v99, v98
    s_nop 1
    v_permlane16_swap_b32 v97, v96
    v_permlane16_swap_b32 v99, v98
    s_nop 0
    v_add_f32 v96, v96, v97
    v_add_f32 v98, v98, v99""")
    for r, d in ((64, 68), (66, 69), (96, 70), (98, 71)):
        A(f"""v_cvt_pk_bf16_f32 v{r+1}, v{r}, v{r}
        v_and_b32 v{r+1}, 0xffff0000, v{r+1}
        v_sub_f32 v{r}, v{r}, v{r+1}
        v_cvt_pk_bf16_f32 v{d}, v{r+1}, v{r}""")
    A(f"""v_lshrrev_b32 v16, 1, v18
    s_lshl_b32 s58, s15, 8
    s_add_u32 s58, s58, {EX_COL}
    v_add_u32 v16, s58, v16
    ds_write_b64 v16, v[68:69]
    v_and_b32 v17, 7, v1
    v_lshlrev_b32 v17, 3, v17
    s_lshl_b32 s58, s15, 6
    s_add_u32 s58, s58, {EX_COL + 1024}
    v_add_u32 v17, s58, v17
    ds_write_b64 v17, v[70:71]""")
def gather_toks():
    c1 = -2.0 * math.sqrt(2.0 / math.pi) * LOG2E
    c3 = c1 * 0.044715
    A(f"""    v_mul_f32 v104, {f32(-1/512)}, v104
    v_mul_f32 v105, {f32(1/512)}, v105
    v_fma_f32 v105, -v104, v104, v105
    v_max_f32 v105, 0, v105
    v_add_f32 v113, {f32(1e-5)}, v105
    v_rsq_f32 v110, v113
    v_cvt_pk_bf16_f32 v108, v104, v104
    v_and_b32 v106, 0xffff0000, v108
    v_sub_f32 v106, v104, v106
    v_cvt_pk_bf16_f32 v109, v106, v106
    v_mul_f32 v111, {f32(c1)}, v110
    v_mul_f32 v112, v110, v110
    v_mul_f32 v112, v112, v110
    v_mul_f32 v112, {f32(c3)}, v112
    v_mov_b32 v114, s80
    v_lshlrev_b32 v18, 1, v18
    s_lshl_b32 s58, s15, 10
    s_add_u32 s58, s58, {EX_TOK}
    v_add_u32 v18, s58, v18
    ds_write_b128 v18, v[108:111]
    ds_write_b128 v18, v[112:115] offset:16
    s_waitcnt lgkmcnt(0)""")
WD = OPT["wd"]
UFB = [60, 61, 62, 76, 77, 78, 79]
def d_setup_w():
    A(f"""v_bfe_u32 v6, v1, 2, 3
    v_lshlrev_b32 v6, 10, v6
    v_lshrrev_b32 v7, 5, v1
    v_lshlrev_b32 v7, 6, v7
    v_add_u32 v6, v6, v7
    v_and_b32 v7, 3, v1
    v_lshlrev_b32 v7, 4, v7
    v_add_u32 v2, v6, v7
    s_lshl_b32 s43, s15, 11
    s_lshr_b32 s58, s2, 5
    s_lshl_b32 s40, s58, 7
    s_lshl_b32 s42, s15, 17
    s_add_u32 s42, s42, s40
    s_mul_i32 s57, s15, 24""")
    if OPT["rotd"]:
        A("""s_mul_i32 s59, s58, 11
        s_lshr_b32 s59, s59, 5
        s_mul_i32 s59, s59, 3
        s_sub_u32 s59, s58, s59""")
    else:
        A("s_mov_b32 s59, 0\ns_mov_b32 s58, 0")
    for u in range(3):
        A(f"""s_lshl_b32 s{UFB[u]}, s59, 3
        s_add_u32 s{UFB[u]}, s{UFB[u]}, s57
        s_add_u32 s{UFB[u]}, s{UFB[u]}, 4
        s_add_u32 s59, s59, 1
        s_cmp_eq_u32 s59, 3
        s_cselect_b32 s59, 0, s59""")
    A("s_lshl_b32 s41, s15, 2\ns_add_u32 s41, s41, 96")
    for u in range(4):
        A(f"""s_add_u32 s59, s58, {u}
        s_and_b32 s59, s59, 3
        s_lshl_b32 s44, s59, 3
        s_add_u32 s44, s44, s57
        s_cmp_eq_u32 s59, 3
        s_cselect_b32 s{UFB[3+u]}, s41, s44""")
    A("""s_waitcnt lgkmcnt(0)
    s_mov_b32 s26, 0x1c0000
    s_mov_b32 s27, 0x20000
    s_mov_b32 s30, 0x80000
    s_mov_b32 s31, 0x20000""")
def issw(s, q):
    slot = s % WD
    if s < 28:
        srd = 24
        o = [f"s_lshl_b32 s44, s{UFB[s>>2]}, 14", "s_add_u32 s44, s44, s40"]
        if s & 3: o.append(f"s_add_u32 s44, s44, {(s&3)*16384}")
    else:
        srd = 28
        o = [f"s_add_u32 s44, s42, {(s-28)*16384}"]
    a = o + [f"s_add_u32 m0, s43, {DREG[slot]}", "s_add_u32 s45, s44, 8192",
             f"buffer_load_dwordx4 v2, s[{srd}:{srd+3}], s44 offen lds"]
    b = [f"s_add_u32 m0, s43, {DREG[slot]+1024}", "s_nop 0",
         f"buffer_load_dwordx4 v2, s[{srd}:{srd+3}], s45 offen lds"]
    q.add(f"W{s}", 2)
    return [a, b]
P0 = max(NDELTA, 4)
wnext = [0]
GAT, GC = OPT['gat'], OPT['gc']
HP = OPT.get('hprof')
for s in range(17):
    if s < 16: Q.wait(f"S{s}")
    if HP and s >= 4: A(f"s_memtime s[100:101]\ns_waitcnt lgkmcnt(0)\ns_sub_u32 s99, s100, s98\ns_add_u32 s{84+s-4}, s99, s83")
    A("s_barrier")
    if HP: A("s_memtime s[100:101]\ns_waitcnt lgkmcnt(0)\ns_mov_b32 s98, s100")
    if s == 0 and not HP: PR.stamp()
    for k in sched.get(s, []): G(k)
    if s in BUR: pf_burst(*BUR[s])
    if s == 0:
        A("""s_lshl_b32 s57, s48, 13
        s_lshl_b32 s58, s15, 11
        s_add_u32 s57, s57, s58
        buffer_load_dwordx4 v[32:35], v9, s[72:75], s57 offen
        buffer_load_dwordx4 v[36:39], v9, s[72:75], s57 offen offset:1024
        buffer_load_dword v11, v10, s[16:19], 0 offen sc1""")
        Q.add("ST", 3)
    if s < NDELTA:
        lb = f"H_NOCS{s}"
        A(f"s_cmp_eq_u32 s55, {s}\ns_cbranch_scc0 {lb}\nv_add_u32 v12, {WR + (s%5)*WSL}, v12")
        for j in range(3):
            for t in range(4):
                A(f"ds_read_b64_tr_b16 {vr(48+8*j+2*t,2)}, v12 offset:{j*8192 + (t>>1)*2048 + (t&1)*256}")
        A("s_waitcnt lgkmcnt(0)")
        A.label(lb)
    if s == 4: row_valu(0); col_valu([0], False)
    if s == 5: col_valu([1], False)
    if s == 6: col_valu([2], True); row_valu(1)
    if s == OPT["pub"]: publish()
    if s == 3:
        A("s_load_dwordx2 s[4:5], s[0:1], 48\ns_load_dwordx2 s[8:9], s[0:1], 16")
    if OPT["vw"] and s == OPT["vw"]:
        A("""s_cmp_lg_u32 s15, 0
        s_cbranch_scc1 H_NOWARM
        s_mul_i32 s57, s2, 7168
        s_lshl_b32 s58, s2, 11
        v_lshlrev_b32 v20, 7, v1
        s_waitcnt lgkmcnt(0)
        s_add_u32 s6, s57, 7168
        s_mov_b32 s7, 0x20000
        s_add_u32 s10, s58, 2048
        s_mov_b32 s11, 0x20000
        buffer_load_dword v21, v20, s[4:7], s57 offen
        buffer_load_dword v22, v20, s[8:11], s58 offen""")
        A.label("H_NOWARM")
    if s == 5 and not OPT["vw"]:
        A("""s_lshl_b32 s57, s2, 2
        s_add_u32 s57, s57, s15
        s_mul_i32 s58, s57, 1792
        s_lshl_b32 s57, s57, 9
        s_waitcnt lgkmcnt(0)
        s_add_u32 s4, s4, s58
        s_addc_u32 s5, s5, 0
        s_add_u32 s8, s8, s57
        s_addc_u32 s9, s9, 0""")
    if s in (5, 7, 8, 9) and not OPT['vw']:
        k0 = {5: 0, 7: 9, 8: 18, 9: 27}[s]
        for i in range(k0, k0 + 9):
            if i < 28: A(f"s_load_dword s65, s[4:5], {i*64}")
            else: A(f"s_load_dword s65, s[8:9], {(i-28)*64}")
    if OPT["l2pf"] and s == OPT["warm"] + 1:
        A("""s_lshr_b32 s57, s2, 3
        s_lshl_b32 s57, s57, 2
        s_add_u32 s57, s57, s15
        s_lshr_b32 s58, s57, 3
        s_min_u32 s58, s58, 11
        s_lshr_b32 s59, s58, 1
        s_mul_i32 s59, s59, 6
        s_and_b32 s65, s58, 1
        s_lshl_b32 s65, s65, 1
        s_add_u32 s59, s59, s65
        s_add_u32 s59, s59, 2
        s_add_u32 s65, s58, 16
        s_cmp_lt_u32 s58, 8
        s_cselect_b32 s59, s59, s65
        s_lshl_b32 s59, s59, 16
        s_and_b32 s58, s57, 7
        s_lshl_b32 s58, s58, 13
        s_add_u32 s58, s58, s59
        s_lshl_b32 s57, s57, 12
        s_waitcnt lgkmcnt(0)
        s_add_u32 s4, s4, s58
        s_addc_u32 s5, s5, 0
        s_add_u32 s8, s8, s57
        s_addc_u32 s9, s9, 0""")
    if OPT["l2pf"] and OPT["warm"] + 1 <= s <= OPT["l2end"]:
        nst = OPT["l2end"] - OPT["warm"]
        tot = OPT["l2pf"]
        i0 = (s - OPT["warm"] - 1) * tot // nst; i1 = (s - OPT["warm"]) * tot // nst
        for i in range(i0, i1):
            if i < 64: A(f"s_load_dword s65, s[4:5], {i*128}")
            else: A(f"s_load_dword s65, s[8:9], {(i-64)*128}")
    if s == 8: gather_prep()
    if s == GAT: gather_loads(0); Q.add("GA0", 6)
    if s == GAT + OPT["gd"]: gather_loads(1); Q.add("GA", 5)
    if s == 12:
        A("s_load_dwordx2 s[24:25], s[0:1], 48\ns_load_dwordx2 s[28:29], s[0:1], 16")
        d_setup_w()
    if s == GC: gather_check()
    if s in DAVAIL:
        for _ in range(DAVAIL[s]):
            emit(issw(wnext[0], Q)); wnext[0] += 1
    if s == GC + 1: gather_cols()
    if s == GC + 2: gather_toks()
    if s in (4, 8, 12) and not HP: PR.stamp()
if HP:
    PR.n = 15; PR.dump(20); PR.n = 0
    OPT["prof"] = 0
PR.stamp()
PR.stamp()
import gen_cd
gen_cd.OPT = OPT
A("""s_and_b32 s57, s2, 7
s_lshr_b32 s58, s2, 3
s_and_b32 s58, s58, 3
s_lshl_b32 s50, s58, 3
s_add_u32 s50, s50, s57
s_lshr_b32 s51, s2, 5
s_lshl_b32 s51, s51, 2
s_add_u32 s51, s51, s15""")
gen_cd.attn_setup(A)
SH = OPT["share"]
LK, LVS, LFL = 16384, 49152, 49152 + 16384 + 1024
if SH:
    LONE = 49152 + 16384
    A(f"""s_lshr_b32 s49, s2, 5
    s_lshl_b32 s49, s49, 2
    s_lshl_b32 s57, s15, 1
    s_add_u32 s49, s49, s57
    s_sub_u32 s49, s49, 4
    v_and_b32 v9, 1, v1
    v_add_u32 v9, s49, v9
    v_max_i32 v9, 0, v9
    v_lshlrev_b32 v9, 8, v9
    v_bfe_u32 v10, v1, 1, 1
    v_lshlrev_b32 v10, 6, v10
    v_add3_u32 v9, v9, v10, 64
    s_lshl_b32 s57, s51, 8
    v_mov_b32 v10, s57
    v_cmp_gt_u32 vcc, 4, v1
    s_lshr_b32 s57, s50, 1
    s_lshl_b32 s57, s57, 7
    s_add_u32 s57, s57, {WS_FQ}
    v_cndmask_b32 v9, v10, v9, vcc
    v_lshlrev_b32 v9, 5, v9
    v_add_u32 v252, s57, v9""")
else:
    A(f"""v_min_u32 v9, 10, v1
    v_cmp_gt_u32 vcc, 5, v9
    v_subrev_u32 v10, 5, v9
    s_nop 0
    v_cndmask_b32 v10, v10, v9, vcc
    v_min_u32 v10, 4, v10
    s_sub_u32 s57, s51, 4
    v_add_u32 v10, s57, v10
    v_max_i32 v10, 0, v10
    v_lshlrev_b32 v10, 8, v10
    v_mov_b32 v11, 128
    v_cndmask_b32 v11, v11, 64, vcc
    v_cmp_eq_u32 vcc, 10, v9
    s_lshr_b32 s57, s50, 1
    s_lshl_b32 s57, s57, 7
    s_add_u32 s57, s57, {WS_FQ}
    v_cndmask_b32 v11, v11, 0, vcc
    v_add_u32 v10, v10, v11
    v_lshlrev_b32 v10, 5, v10
    v_add_u32 v252, s57, v10""")
A("s_barrier")
PR.stamp()
gen_cd.LONE = LONE
if SH:
    A(f"s_lshl_b32 s57, s15, 11\ns_add_u32 s57, s57, {LVS}")
else:
    A("""s_movk_i32 s57, 0x4000
    s_cmp_eq_u32 s15, 1
    s_cselect_b32 s57, 49152, s57
    s_cmp_eq_u32 s15, 2
    s_cselect_b32 s57, 59392, s57
    s_cmp_eq_u32 s15, 3
    s_cselect_b32 s57, 151552, s57""")
gen_cd.attn_setup2(A, None)
ld = "buffer_load_dword v253, v252, s[20:23], 0 offen sc1"
A("s_waitcnt vmcnt(0)")
PR.stamp()
A("s_barrier")
A(f"s_setprio {OPT['aprio']}")
A(f"s_sleep {OPT['hs']}")
A(ld)
A("s_waitcnt vmcnt(0)")
spin(A, "HQ", ld, 253)
PR.stamp()
if SH:
    A(f"""s_lshl_b32 s52, s50, 16
    s_lshl_b32 s53, s49, 11""")
    for which, base, r0 in ((0, WS_K, 188), (1, WS_V, 204)):
        for b in range(4):
            if b % 2 == 0:
                A(f"s_add_i32 s55, s53, {b*1024}\ns_max_i32 s55, s55, 0\ns_add_u32 s55, s55, s52\ns_add_u32 s55, s55, {base}")
            A(f"buffer_load_dwordx4 {vr(r0+4*b,4)}, v3, s[20:23], s55 offen offset:{(b%2)*1024} sc1")
    A(f"""s_lshl_b32 s53, s51, 11
    s_add_u32 s54, s52, s53
    buffer_load_dwordx4 v[12:15], v3, s[20:23], s54 offen sc1
    buffer_load_dwordx4 v[16:19], v3, s[20:23], s54 offen offset:1024 sc1
    s_lshl_b32 s57, s15, 12
    v_add_u32 v9, s57, v3
    v_add_u32 v10, s57, v2
    s_lshl_b32 s57, s15, 11
    v_add_u32 v11, s57, v3
    s_lshl_b32 s57, s15, 2
    s_add_u32 s57, s57, {LFL}
    v_mov_b32 v252, s57
    v_mov_b32 v253, s80
    v_mov_b32 v254, {LFL}""")
    for b in range(4):
        A(f"s_waitcnt vmcnt({9-b})\nds_write_b128 v9, {vr(188+4*b,4)} offset:{LK + b*1024}")
    for b in range(4):
        A(f"s_waitcnt vmcnt({5-b})\nds_write_b128 v10, {vr(204+4*b,4)} offset:{LVS + b*1024}")
    A("""s_waitcnt lgkmcnt(0)
    ds_write_b32 v252, v253
    s_mov_b32 s56, 0""")
    A.label("H_LW")
    A(f"""ds_read_b128 v[188:191], v254
    s_add_u32 s56, s56, 1
    s_waitcnt lgkmcnt(0)
    v_xor_b32 v188, s80, v188
    v_xor_b32 v189, s80, v189
    v_xor_b32 v190, s80, v190
    v_xor_b32 v191, s80, v191
    v_or3_b32 v188, v188, v189, v190
    v_or_b32 v188, v188, v191
    v_cmp_eq_u32 vcc, 0, v188
    s_cmp_gt_u32 s56, {SPIN*50}
    s_cbranch_scc1 H_LOK
    s_cmp_eq_u64 vcc, -1
    s_cbranch_scc1 H_LOK
    s_sleep 1
    s_branch H_LW""")
    A.label("H_LOK")
    for b in range(10):
        A(f"ds_read_b128 {vr(20+4*b,4)}, v11 offset:{LK + b*1024}")
    A("s_waitcnt vmcnt(0)")
A(f"s_setprio {OPT['aprio2']}")
if OPT.get("noattn"): A("s_branch H_AFIN")
A("s_cmp_lt_u32 s51, 4")
A("s_cbranch_scc1 H_SLOW")
n0 = PR.n
gen_cd.gen_attn(A, False, "AF", PR, "sc1", setup=False, bar=OPT["defer"] >= 4, loads=not SH, shared=SH)
A.label("H_AFIN")
PR.stamp()
A(f"""s_lshl_b32 s57, s51, 12
s_lshl_b32 s58, s50, 7
s_add_u32 s57, s57, s58
s_add_u32 s57, s57, {WS_FO}
v_mov_b32 v9, 0
v_mov_b32 v10, s80
s_waitcnt vmcnt(0)
s_mov_b64 exec, 1
buffer_store_dword v10, v9, s[20:23], s57 offen sc1
s_mov_b64 exec, -1""")
PR.stamp()
PR.dump(2)
A.label("L_END")
A("s_endpgm")
A.label("H_SLOW")
PR.n = n0
gen_cd.gen_attn(A, True, "AS", PR, "sc1", setup=False, bar=OPT["defer"] >= 4, loads=not SH, shared=SH)
A("s_branch H_AFIN")
A.label("L_M")
PR.n = 0
A("s_waitcnt lgkmcnt(0)")
PR.stamp(True); PR.stamp()
ws_srd()
if OPT["codepf"]:
    A("s_getpc_b64 s[24:25]")
    A.label("L_PC")
    A(f"""s_sub_u32 s24, s24, L_PC-{NAME}
    s_subb_u32 s25, s25, 0
    s_mov_b32 s26, L_CODE_END-{NAME}
    s_mov_b32 s27, 0x20000
    s_lshr_b32 s57, s2, 3
    s_lshl_b32 s57, s57, 2
    s_add_u32 s57, s57, s14
    s_lshl_b32 s57, s57, 9
    v_lshlrev_b32 v16, 7, v1
    s_mov_b64 exec, 15
    buffer_load_dword v31, v16, s[24:27], s57 offen
    s_mov_b64 exec, -1""")
vXa = [2, 3, 4, 5]; vWa = [6, 7, 8, 9, 10]; vWb = [11, 12, 13, 14, 15]
P = 32; QQ = 60; ACC = 88
A("s_setprio 2")
A("""s_and_b32 s12, s14, 1
s_lshr_b32 s13, s14, 1
v_and_b32 v16, 31, v1
v_lshrrev_b32 v17, 5, v1
v_bfe_u32 v18, v1, 1, 3
v_xor_b32 v17, v17, v18
v_lshlrev_b32 v17, 4, v17
v_lshlrev_b32 v16, 7, v16
v_add_u32 v16, v16, v17
s_lshl_b32 s57, s12, 13
v_add_u32 v2, s57, v16
v_xor_b32 v3, 32, v2
v_xor_b32 v4, 64, v2
v_xor_b32 v5, 96, v2""")
A(f"""v_lshrrev_b32 v16, 5, v1
v_lshlrev_b32 v16, 10, v16
v_bfe_u32 v17, v1, 2, 2
v_lshlrev_b32 v17, 6, v17
v_add_u32 v16, v16, v17
v_and_b32 v17, 3, v1
v_lshlrev_b32 v17, 3, v17
v_add_u32 v16, v16, v17
v_add_u32 v16, {WR}, v16
v_bfe_u32 v17, v1, 4, 1
s_sub_u32 s57, 2, s50
s_lshl_b32 s57, s57, 12
v_mul_u32_u24 v18, s57, v17
v_xor_b32 v19, s13, v17
v_lshlrev_b32 v19, 5, v19
v_add3_u32 v18, v18, v19, v16
v_lshlrev_b32 v19, 5, v17
s_lshl_b32 s57, s13, 9
v_add3_u32 v19, v19, s57, v16
s_cmp_eq_u32 s50, 1
s_cselect_b64 vcc, -1, 0""")
for n in range(5):
    fo = (n >> 1) * 4096 + (n & 1) * 512
    qo = n * 4096
    if n < 2: A(f"v_add_u32 v{vWa[n]}, {fo}, v18")
    elif n == 4: A(f"v_add_u32 v{vWa[n]}, {qo}, v19")
    else:
        A(f"v_add_u32 v20, {fo}, v18\nv_add_u32 v21, {qo}, v19\nv_cndmask_b32 v{vWa[n]}, v20, v21, vcc")
for n in range(5): A(f"v_add_u32 v{vWb[n]}, {4*WSL}, v{vWa[n]}")
def reads(s, kk, dst):
    xs = (s >> 1) % 3; q4 = (s & 1) * 2 + kk; sl = s % 5
    def xr(tt): return f"ds_read_b128 {vr(dst+4*tt,4)}, v{vXa[q4]} offset:{XR + xs*XS + tt*4096}"
    def wr(n, sec):
        a, o = (vWa[n], sl * WSL) if sl < 4 else (vWb[n], 0)
        return f"ds_read_b64_tr_b16 {vr(dst+8+4*n+2*sec,2)}, v{a} offset:{o + kk*2048 + sec*256}"
    R = [xr(0), wr(0, 0), wr(0, 1), xr(1)]
    for n in range(1, 5): R += [wr(n, 0), wr(n, 1)]
    return R
need = {0: 2, 1: 3, 2: 5, 4: 7, 6: 9, 8: 11}
def substep(cur, R, first=False):
    issued = 0
    for j in range(10):
        n, tt = j >> 1, j & 1
        if j in need: A(f"s_waitcnt lgkmcnt({min(15, 11 - need[j] + issued)})")
        a = ACC + 16 * (2 * n + tt)
        c = "0" if first else vr(a, 16)
        A(f"v_mfma_f32_32x32x16_bf16 {vr(a,16)}, {vr(cur+8+4*n,4)}, {vr(cur+4*tt,4)}, {c}")
        k = 2 if j < 2 else 1
        for r in R[issued:issued + k]: A(r)
        issued += len(R[issued:issued + k])
A(f"""v_and_b32 v16, 31, v1
v_lshlrev_b32 v22, 5, v16
s_lshl_b32 s57, s12, 11
s_add_u32 s57, s57, {EX_TOK}
v_add_u32 v22, s57, v22
v_and_b32 v16, 15, v1
s_sub_u32 s57, 2, s50
s_lshl_b32 s57, s57, 6
v_mul_u32_u24 v18, s57, v17
v_xor_b32 v19, s13, v17
v_lshlrev_b32 v19, 4, v19
v_add3_u32 v18, v18, v19, v16
v_lshlrev_b32 v18, 2, v18
v_and_b32 v19, 31, v1
s_lshl_b32 s57, s13, 5
v_add_u32 v19, s57, v19
v_lshlrev_b32 v19, 2, v19""")
for n in range(5):
    fo = EX_COL + ((n >> 1) * 64 + (n & 1) * 32) * 4
    qo = EX_COL + n * 256
    if n < 2: A(f"v_add_u32 v{23+n}, {fo}, v18")
    elif n == 4: A(f"v_add_u32 v{23+n}, {qo}, v19")
    else:
        A(f"v_add_u32 v20, {fo}, v18\nv_add_u32 v21, {qo}, v19\nv_cndmask_b32 v{23+n}, v20, v21, vcc")
A(f"""s_lshl_b32 s57, s47, 2
s_lshl_b32 s58, s12, 1
s_add_u32 s57, s57, s58
s_mul_i32 s70, s57, {112*1024}
s_lshl_b32 s59, s53, 12
s_add_u32 s70, s70, s59
s_lshl_b32 s59, s13, 10
s_add_u32 s70, s70, s59
s_add_u32 s70, s70, {WS_H}
s_lshl_b32 s59, s54, 2
s_lshl_b32 s60, s13, 1
s_add_u32 s59, s59, s60
s_lshl_b32 s71, s59, 6
s_add_u32 s71, s71, s57
s_lshl_b32 s71, s71, 10
s_lshl_b32 s57, s57, 7
s_lshl_b32 s72, s59, 1
s_add_u32 s72, s72, s57
s_lshl_b32 s72, s72, 5
s_add_u32 s72, s72, {WS_FQ}
s_lshl_b32 s73, s48, 3
s_lshl_b32 s60, s13, 2
s_add_u32 s73, s73, s60
s_add_u32 s73, s73, s57
s_lshl_b32 s73, s73, 5
s_add_u32 s73, s73, {WS_FH}
s_add_u32 s74, s73, 4096
s_load_dwordx2 s[24:25], s[0:1], 48
s_load_dwordx2 s[28:29], s[0:1], 16
s_load_dwordx2 s[36:37], s[0:1], 56
s_waitcnt vmcnt(0) lgkmcnt(0)""")
A("s_barrier")
PR.stamp()
for r in reads(0, 0, P): A(r)
A.raw(".p2align 3")
for s in range(16):
    substep(P, reads(s, 1, QQ), first=(s == 0))
    A("s_barrier")
    if s < 15: substep(QQ, reads(s + 1, 0, P))
    else:
        R = [f"ds_read_b128 {vr(P,4)}, v22", f"ds_read_b128 {vr(P+4,4)}, v22 offset:1024",
             f"ds_read_b128 v[16:19], v22 offset:16", f"ds_read_b128 v[28:31], v22 offset:1040"]
        R += [f"ds_read_b32 v{P+8+4*n}, v{23+n}" for n in range(5)]
        substep(QQ, R)
    if s in (11,): PR.stamp()
A("s_waitcnt lgkmcnt(0)")
A("s_barrier")
PR.stamp()
A(f"""v_mov_b32 v248, v{P+2}
v_mov_b32 v249, v{P+3}
v_mov_b32 v250, v16
v_mov_b32 v251, v17
v_mov_b32 v252, v{P+6}
v_mov_b32 v253, v{P+7}
v_mov_b32 v254, v28
v_mov_b32 v255, v29
v_cmp_gt_u32 vcc, 32, v1
v_readfirstlane_b32 s80, v18
v_mov_b32 v{P+2}, 0
v_mov_b32 v{P+3}, 0
v_mov_b32 v{P+6}, 0
v_mov_b32 v{P+7}, 0
v_cndmask_b32 v{P}, 0, v{P}, vcc
v_cndmask_b32 v{P+1}, 0, v{P+1}, vcc
v_cndmask_b32 v{P+4}, 0, v{P+4}, vcc
v_cndmask_b32 v{P+5}, 0, v{P+5}, vcc""")
for n in (4, 3, 2, 1, 0):
    w = P + 8 + 4 * n
    A(f"v_mov_b32 v{w+1}, v{w}\nv_mov_b32 v{w+2}, 0\nv_mov_b32 v{w+3}, 0")
for n in (4, 3, 2, 1, 0):
    for tt in range(2):
        a = ACC + 16 * (2 * n + tt)
        A(f"v_mfma_f32_32x32x16_bf16 {vr(a,16)}, {vr(P+8+4*n,4)}, {vr(P+4*tt,4)}, {vr(a,16)}")
A(f"""v_lshlrev_b32 v2, 4, v1
v_and_b32 v3, 31, v1
v_lshlrev_b32 v3, 5, v3
v_lshrrev_b32 v4, 5, v1
v_lshlrev_b32 v4, 4, v4
v_add_u32 v3, v3, v4
v_lshlrev_b32 v8, 8, v1
v_mov_b32 v9, s80""")
T = QQ
for tt in range(2):
    for k in range(3):
        A(f"v_mov_b32 v{68+6*tt+2*k}, v{248+4*tt+1+k}\nv_mov_b32 v{69+6*tt+2*k}, v{248+4*tt+1+k}")
def ffn(n, tt):
    a = ACC + 16 * (2 * n + tt); c = 68 + 6 * tt
    for r in range(0, 8, 2): A(f"v_pk_mul_f32 {vr(T+r,2)}, {vr(a+r,2)}, {vr(a+r,2)}")
    for r in range(0, 8, 2): A(f"v_pk_fma_f32 {vr(T+r,2)}, {vr(T+r,2)}, {vr(c+2,2)}, {vr(c,2)}")
    for r in range(0, 8, 2): A(f"v_pk_mul_f32 {vr(T+r,2)}, {vr(T+r,2)}, {vr(a+r,2)}")
    for r in range(8): A(f"v_exp_f32 v{T+r}, v{T+r}")
    for r in range(0, 8, 2): A(f"v_pk_mul_f32 {vr(a+r,2)}, {vr(a+r,2)}, {vr(a+8+r,2)}")
    for r in range(0, 8, 2): A(f"v_pk_fma_f32 {vr(T+r,2)}, {vr(T+r,2)}, {vr(c+4,2)}, {vr(c+4,2)}")
    for r in range(8): A(f"v_rcp_f32 v{T+r}, v{T+r}")
    A("s_nop 0")
    for r in range(0, 8, 2): A(f"v_pk_mul_f32 {vr(a+r,2)}, {vr(a+r,2)}, {vr(T+r,2)}")
    for d in range(4): A(f"v_cvt_pk_bf16_f32 v{a+8+d}, v{a+2*d}, v{a+2*d+1}")
def ffn_st(n, tt):
    a = ACC + 16 * (2 * n + tt)
    A(f"s_add_u32 s63, s70, {2048*n + tt*112*1024}")
    A(f"buffer_store_dwordx4 {vr(a+8,4)}, v2, s[20:23], s63 offen sc1")
def qkv(n, zoff):
    A(f"""s_add_u32 s60, s54, {zoff}
    s_cmp_lt_u32 s60, 8
    s_mov_b32 s62, {f32(0.25*LOG2E)}
    s_cselect_b32 s62, s62, 1.0
    v_mul_f32 v4, s62, v248
    v_mul_f32 v6, s62, v252
    v_mul_f32 v5, s62, v248
    v_mul_f32 v7, s62, v252""")
    for tt in range(2):
        a = ACC + 16 * (2 * n + tt)
        for r in range(0, 16, 2): A(f"v_pk_mul_f32 {vr(a+r,2)}, {vr(a+r,2)}, {vr(4+2*tt,2)}")
        for d in range(8): A(f"v_cvt_pk_bf16_f32 v{a+d}, v{a+2*d}, v{a+2*d+1}")
        A(f"s_add_u32 s63, s71, {zoff*4*65536 + tt*1024}")
        A(f"buffer_store_dwordx4 {vr(a,4)}, v2, s[20:23], s63 offen sc1")
        A(f"s_add_u32 s63, s63, 65536")
        A(f"buffer_store_dwordx4 {vr(a+4,4)}, v2, s[20:23], s63 offen sc1")
def flag(vm, mask, soff, imm=0, voff=8):
    A(f"s_waitcnt vmcnt({vm})\ns_mov_b64 exec, {mask}\nbuffer_store_dword v9, v{voff}, s[20:23], s{soff} offen offset:{imm} sc1\ns_mov_b64 exec, -1")
A("s_cmp_eq_u32 s50, 1")
A("s_cbranch_scc1 M_TC")
def ffs(n, tt): ffn(n, tt); ffn_st(n, tt)
DF = OPT["defer"]
qkv(4, 0)
if DF:
    ffn(3, 0); ffn(3, 1)
    A("s_barrier")
    ffn(2, 0); ffn(2, 1)
    if DF == 5: flag(0, 1, 72)
    if DF >= 2: ffn(1, 0); ffn(1, 1)
    if DF != 5: flag(0, 1, 72)
    nq = PR.n; PR.stamp()
    if DF >= 3: ffn(0, 0); ffn(0, 1)
    if DF >= 4: A("s_barrier")
    for n in (3, 2):
        for tt in range(2): ffn_st(n, tt)
    if DF == 1: ffs(1, 0); ffs(1, 1); ffs(0, 0); ffs(0, 1)
    elif DF == 2: ffn_st(1, 0); ffn_st(1, 1); ffs(0, 0); ffs(0, 1)
    else: ffn_st(1, 0); ffn_st(1, 1); ffn_st(0, 0); ffn_st(0, 1)
    flag(4, 1, 73)
else:
    ffs(3, 0); ffs(3, 1)
    A("s_barrier")
    ffs(2, 0); ffs(2, 1)
    flag(4, 1, 72)
    ffs(1, 0); ffs(1, 1); ffs(0, 0); ffs(0, 1)
    flag(4, 1, 73)
A("s_branch M_TJ")
A.label("M_TC")
qkv(4, 2); qkv(3, 1); qkv(2, 0)
A("s_barrier")
if DF:
    order = [(1, 0), (1, 1), (0, 0), (0, 1)]
    for t in order[:OPT["cq"]]: ffn(*t)
    flag(0, 7, 72)
    PR.n = nq; PR.stamp()
    for t in order[OPT["cq"]:]: ffn(*t)
    if DF >= 4: A("s_barrier")
    ffn_st(1, 0); ffn_st(1, 1); ffn_st(0, 0); ffn_st(0, 1)
else:
    ffs(1, 0); ffs(1, 1); ffs(0, 0); ffs(0, 1)
    flag(4, 7, 72)
A.label("M_TJ")
PR.stamp()
A("s_mov_b32 s15, s14")
d_setup_w()
XRr, BF, WF, AD, AS = 8, 16, 80, 96, 160
BD, NS = 8, 36
flag(0, 1, 74)
PR.stamp()
DQ = VQ(A)
A(f"""s_and_b32 s57, s2, 7
s_lshl_b32 s50, s57, 2
s_lshr_b32 s57, s2, 3
s_and_b32 s57, s57, 3
s_add_u32 s50, s50, s57
s_lshr_b32 s51, s2, 5
v_lshlrev_b32 v3, 4, v1
s_lshl_b32 s55, s50, 13
s_lshl_b32 s57, s15, 10
s_add_u32 s55, s55, s57
s_add_u32 s55, s55, {WS_FH}
s_add_u32 s75, s55, 4096
v_min_u32 v226, 5, v1
v_lshlrev_b32 v226, 7, v226
v_min_u32 v227, 7, v1
v_lshlrev_b32 v227, 7, v227""")
ld0 = "buffer_load_dword v228, v226, s[20:23], s55 offen sc1"
ld1 = "buffer_load_dword v228, v227, s[20:23], s75 offen sc1"
RP = OPT["rpf"]
for k in range(RP):
    st = WD + k
    A(f"s_lshl_b32 s44, s{UFB[st>>2]}, 14\ns_add_u32 s44, s44, s40")
    if st & 3: A(f"s_add_u32 s44, s44, {(st&3)*16384}")
    A(f"s_add_u32 s45, s44, 8192")
    A(f"buffer_load_dwordx4 {vr(160+8*k,4)}, v2, s[24:27], s44 offen")
    A(f"buffer_load_dwordx4 {vr(164+8*k,4)}, v2, s[24:27], s45 offen")
if OPT["ms"]: A(f"s_sleep {OPT['ms']}")
A(ld0)
A(f"""s_lshl_b32 s57, s50, 1
s_and_b32 s58, s15, 1
s_add_u32 s59, s57, s58
s_xor_b32 s58, s58, 1
s_add_u32 s57, s57, s58
s_mul_i32 s64, s59, {112*1024}
s_add_u32 s64, s64, {WS_H}
s_mul_i32 s65, s57, {112*1024}
s_add_u32 s65, s65, {WS_H}
s_lshl_b32 s58, s15, 13
s_add_u32 s58, s58, {WS_O}
s_lshl_b32 s67, s59, 15
s_add_u32 s67, s67, s58
s_lshl_b32 s53, s57, 15
s_add_u32 s53, s53, s58
v_and_b32 v6, 31, v1
v_lshlrev_b32 v6, 10, v6
v_lshrrev_b32 v7, 5, v1
v_lshlrev_b32 v7, 4, v7
v_add_u32 v224, v6, v7
s_lshl_b32 s54, s59, 15
s_lshl_b32 s57, s51, 7
s_add_u32 s54, s54, s57
s_lshr_b32 s57, s15, 1
s_lshl_b32 s57, s57, 6
s_add_u32 s54, s54, s57
v_lshrrev_b32 v6, 5, v1
v_lshlrev_b32 v6, 8, v6
v_bfe_u32 v7, v1, 2, 2
v_lshlrev_b32 v7, 6, v7
v_add_u32 v6, v6, v7
v_and_b32 v7, 3, v1
v_lshlrev_b32 v7, 3, v7
v_add_u32 v6, v6, v7
v_bfe_u32 v7, v1, 4, 1
v_lshlrev_b32 v7, 5, v7
v_add_u32 v6, v6, v7
s_lshl_b32 s57, s57, 3
v_add_u32 v6, s57, v6
v_xor_b32 v7, 512, v6
v_add_u32 v4, s43, v6
v_add_u32 v5, s43, v7
v_add_u32 v232, 0x10000, v4
v_add_u32 v233, 0x10000, v5
v_add_u32 v234, 0x20000, v4
v_add_u32 v235, 0x20000, v5
s_mov_b32 s32, s4
s_mov_b32 s33, s5
s_mov_b32 s34, 0x200000
s_mov_b32 s35, 0x20000
s_mov_b32 s38, 0x200000
s_mov_b32 s39, 0x20000
s_setprio {OPT['dprio']}
s_waitcnt vmcnt(0)""")
PR.stamp()
spin(A, "MH0", ld0, 228)
PR.stamp()
def htouch(lvl):
    if not OPT["htouch"]: return
    A(f"""v_bfe_u32 v229, v1, 2, 2
    v_lshlrev_b32 v230, 13, v229
    s_mul_i32 s57, s15, {24*1024}
    s_add_u32 s57, s57, {4096 if lvl == 0 else 0}
    v_add_u32 v230, s57, v230
    s_lshl_b32 s58, s15, 12
    s_add_u32 s58, s58, {96*1024}
    v_mov_b32 v231, {'s58' if lvl else 's57'}
    v_cmp_eq_u32 vcc, 3, v229
    v_and_b32 v229, 3, v1
    v_lshlrev_b32 v229, 10, v229
    v_cndmask_b32 v230, v230, v231, vcc
    v_add_u32 v230, v230, v229
    v_bfe_u32 v229, v1, 4, 1
    v_mul_u32_u24 v229, {112*1024}, v229
    v_add_u32 v230, v230, v229
    s_min_u32 s57, s64, s65
    s_lshl_b32 s58, s51, 7
    s_add_u32 s57, s57, s58
    s_mov_b32 exec_hi, 0
    buffer_load_dword v229, v230, s[20:23], s57 offen sc1
    s_mov_b64 exec, -1""")
    DQ.add("HT", 1)
htouch(0)
def issb(s):
    r = BF + 8 * (s % BD)
    if s < 28:
        o = [f"s_lshl_b32 s48, s{UFB[s>>2]}, 10", "s_add_u32 s49, s48, s65", "s_add_u32 s48, s48, s64"] if (s & 3) == 0 else []
    else:
        o = [f"s_add_u32 s48, s67, {(s-28)*1024}", f"s_add_u32 s49, s53, {(s-28)*1024}"] if (s & 3) == 0 else []
    DQ.add(f"B{s}", 2)
    return [o + [f"buffer_load_dwordx4 {vr(r,4)}, v3, s[20:23], s48 offen offset:{(s&3)*1024} sc1"],
            [f"buffer_load_dwordx4 {vr(r+4,4)}, v3, s[20:23], s49 offen offset:{(s&3)*1024} sc1"]]
for s in range(BD - 1): emit(issb(s))
A(f"buffer_load_dwordx4 {vr(XRr,4)}, v224, s[32:35], s54 offen")
A(f"buffer_load_dwordx4 {vr(XRr+4,4)}, v224, s[32:35], s54 offen offset:32")
DQ.add("X", 2)
def rdw(s):
    slot = s % WD; w = WF + 8 * (s & 1)
    hi, lo = DREG[slot] >> 16, DREG[slot] & 0xffff
    vb = [4, 232, 234][hi]
    return [f"ds_read_b64_tr_b16 {vr(w+4*u+2*sec,2)}, v{vb+u} offset:{lo+sec*1024}" for u in range(2) for sec in range(2)]
for i in rdw(0): A(i)
DQ.wait("B0")
L1S = OPT["l1s"]
def tB(sp): return max(sp - (BD - 1), L1S) if sp >= 12 else sp - (BD - 1)
def xaddr(base3, which, a, qd):
    k = (a - 1) * 4 + qd
    reg = DREG[(8 if which == 0 else 0) + (k >> 1)] + (k & 1) * 1024
    return base3[reg >> 16], reg & 0xffff
def dump(which, acc):
    for a in range(1, 4):
        for qd in range(4):
            vb, off = xaddr([236, 6, 7], which, a, qd)
            A(f"ds_write_b128 v{vb}, {vr(acc+16*a+4*qd,4)} offset:{off}")
def fetch(which, acc):
    for a in range(1, 4):
        b = 237 + 3 * (a - 1)
        for qd in range(4):
            vb, off = xaddr([b, b + 1, b + 2], which, a, qd)
            A(f"ds_read_b128 {vr(acc+16*a+4*qd,4)}, v{vb} offset:{off}")
def sum4(acc):
    for r in range(0, 16, 2):
        A(f"v_pk_add_f32 {vr(acc+r,2)}, {vr(acc+r,2)}, {vr(acc+16+r,2)}\nv_pk_add_f32 {vr(acc+32+r,2)}, {vr(acc+32+r,2)}, {vr(acc+48+r,2)}")
    for r in range(0, 16, 2): A(f"v_pk_add_f32 {vr(acc+r,2)}, {vr(acc+r,2)}, {vr(acc+32+r,2)}")
for s in range(NS):
    w = WF + 8 * (s & 1); b = BF + 8 * (s % BD)
    acc = AD if s < 28 else AS
    if s == 12: PR.stamp()
    if s == 28:
        PR.stamp()
        A("s_nop 7\ns_nop 1")
        dump(0, AD)
        DQ.wait("PO")
        A("""v_cmp_eq_u32 vcc, s80, v228
        s_mov_b32 s46, 0
        s_cmp_eq_u64 vcc, -1
        s_cbranch_scc1 M_OOK
        s_mov_b32 s46, 1""")
        A(ld2)
        A("s_call_b64 s[66:67], M_GATE" if False else "s_call_b64 s[70:71], M_GATE")
        A("s_waitcnt vmcnt(0)")
        spin(A, "MO", ld2, 228)
        A.label("M_OOK")
        PR.stamp()
        for sp in range(28, 36): emit(issb(sp))
        A("s_cmp_eq_u32 s46, 1\ns_cbranch_scc1 M_GDONE\ns_call_b64 s[70:71], M_GATE")
        A.label("M_GDONE")
        DQ.wait("B28")
    if s + 1 < NS:
        DQ.wait([f"W{s+1}", f"B{s+1}"])
        for i in rdw(s + 1): A(i)
        A("s_waitcnt lgkmcnt(4)")
    else:
        A("s_waitcnt lgkmcnt(0)")
    if s == L1S - 3:
        A(ld1); DQ.add("P1", 1)
    if s == L1S:
        DQ.wait("P1")
        spin(A, "MH1", ld1, 228)
        htouch(1)
    if s == 0:
        A("v_add_u32 v236, s43, v3\nv_add_u32 v6, 0x10000, v236\nv_add_u32 v7, 0x20000, v236")
    if s == 20:
        for a in range(1, 4):
            bb = 237 + 3 * (a - 1)
            A(f"s_xor_b32 s57, s15, {a}\ns_lshl_b32 s57, s57, 11\nv_add_u32 v{bb}, s57, v3\nv_add_u32 v{bb+1}, 0x10000, v{bb}\nv_add_u32 v{bb+2}, 0x20000, v{bb}")
    if s == 25:
        A(f"""s_lshl_b32 s55, s50, 12
        s_lshl_b32 s57, s15, 10
        s_add_u32 s55, s55, s57
        s_add_u32 s55, s55, {WS_FO}""")
        ld2 = "buffer_load_dword v228, v227, s[20:23], s55 offen sc1"
        A(ld2); DQ.add("PO", 1)
    grp = []
    for sp in range(BD - 1, 28):
        if tB(sp) == s: grp += issb(sp)
    if 1 <= s <= RP:
        reg = DREG[s - 1]; vb = [236, 6, 7][reg >> 16]
        grp += [[f"ds_write_b128 v{vb}, {vr(160+8*(s-1),4)} offset:{reg & 0xffff}"], [f"ds_write_b128 v{vb}, {vr(164+8*(s-1),4)} offset:{(reg & 0xffff)+1024}"]]
    elif s >= 1 and s + WD - 1 < NS: grp += issw(s + WD - 1, DQ)
    per = [grp[(len(grp) * a) // 4:(len(grp) * (a + 1)) // 4] for a in range(4)]
    for a in range(4):
        u, tt = a >> 1, a & 1
        r = acc + 16 * a
        c = "0" if s in (0, 28) else vr(r, 16)
        A(f"v_mfma_f32_32x32x16_bf16 {vr(r,16)}, {vr(w+4*u,4)}, {vr(b+4*tt,4)}, {c}")
        for g in per[a]:
            for i in g: A(i)
PR.stamp()
A("s_nop 7\ns_nop 1")
dump(1, AS)
A("s_waitcnt lgkmcnt(0)")
A("s_barrier")
fetch(1, AS)
A("s_waitcnt lgkmcnt(0)")
sum4(AS)
for r in range(0, 16, 2): A(f"v_pk_fma_f32 {vr(AD+r,2)}, {vr(AD+r,2)}, {vr(AS+r,2)}, {vr(AD+32+r,2)}")
for d in range(8): A(f"v_cvt_pk_bf16_f32 v{XRr+d}, v{AD+2*d}, v{AD+2*d+1}")
A("s_nop 1")
for j in range(2):
    A(f"v_permlane32_swap_b32 v{XRr+4*j}, v{XRr+4*j+2}\nv_permlane32_swap_b32 v{XRr+4*j+1}, v{XRr+4*j+3}")
osc = "sc1" if OPT["osc"] else ""
A(f"buffer_store_dwordx4 {vr(XRr,4)}, v224, s[36:39], s54 offen {osc}")
A(f"buffer_store_dwordx4 {vr(XRr+4,4)}, v224, s[36:39], s54 offen offset:32 {osc}")
PR.stamp()
PR.dump(2)
A("s_endpgm")
def gate():
    A("s_waitcnt lgkmcnt(0)")
    A("s_barrier")
    fetch(0, AD)
    for j in range(2):
        A(f"v_permlane32_swap_b32 v{XRr+4*j}, v{XRr+4*j+2}\nv_permlane32_swap_b32 v{XRr+4*j+1}, v{XRr+4*j+3}")
    A("s_waitcnt lgkmcnt(0)")
    sum4(AD)
    T = AD + 16
    for r in range(16): A(f"v_mul_f32 v{T+r}, {f32(-LOG2E)}, v{AD+r}")
    for r in range(16): A(f"v_exp_f32 v{T+r}, v{T+r}")
    for d in range(8): A(f"v_lshlrev_b32 v{T+16+2*d}, 16, v{XRr+d}\nv_and_b32 v{T+17+2*d}, 0xffff0000, v{XRr+d}")
    for r in range(16): A(f"v_add_f32 v{T+r}, 1.0, v{T+r}")
    for r in range(16): A(f"v_rcp_f32 v{T+r}, v{T+r}")
    A("s_nop 0")
    for r in range(0, 16, 2): A(f"v_pk_mul_f32 {vr(AD+r,2)}, {vr(AD+r,2)}, {vr(T+r,2)}")
A.label("M_GATE")
gate()
A("s_setpc_b64 s[70:71]")
A.label("L_CODE_END")
A.raw('.section .rodata,"a"')
A.raw(kernel_desc(NAME, 256))
txt = A.text()
if OPT.get("plainst"):
    import re
    txt = re.sub(r"(buffer_store_dwordx4 .*s63 offen) sc1", r"\1", txt)
if OPT.get("align", 1):
    import align
    txt = align.align(txt)
print(txt)
```

```python
import sys, math
from asmlib import *

NAME = "recurrent_scan__sliding_block__geglu_ffn__prompt_kernel"
WS_Q = 0; WS_K = 2 << 20; WS_V = 4 << 20; WS_O = 6 << 20; WS_H = 8 << 20
WS_TOK = 16 << 20
WS_CS = (16 << 20) + 65536
WS_FO = 17 << 20
WS_FH = (17 << 20) + (1 << 18)
WS_FQ = (17 << 20) + (2 << 18)
LOG2E = 1.4426950408889634
OPT = dict(prof=0, rot=2, codepf=1, wd=14, sleep=8, warm=7, thr=6, aprio=3, l2pf=0, rotd=1, hs=56, dprio=0, wtouch=0, htouch=1, wts=10, defer=1, gat=10, gc=13, hprio=0, l1s=8, osc=0, cq=2, ms=16, ntx=0, ntw=4, share=1, l2end=11, aprio2=3, rpf=0, pub=7, gd=1, vw=4, epf=16, tlb=0)
for a in sys.argv[1:]:
    k, v = a.split("="); OPT[k] = int(v)
XR = 0; XS = 16384; WR = 49152; WSL = 20480; EX = 151552
EX_TOK = EX; EX_COL = EX + 4096
DREG = [32768, 40960, 69632, 77824,   86016, 94208, 102400,   110592, 118784, 0, 8192,   126976, 135168, 143360]
DAVAIL = {13: 4, 14: 3, 15: 4, 16: 3}
LONE = 26624
SPIN = 20000

class Prof:
    def __init__(self, A, base=82): self.A = A; self.n = 0; self.base = base
    def stamp(self, real=False):
        if not OPT["prof"]: return
        i = self.n; self.n += 1
        assert i < 16
        self.A(f"{'s_memrealtime' if (real or OPT['prof'] == 2) else 's_memtime'} s[100:101]")
        self.A("s_waitcnt lgkmcnt(0)")
        self.A(f"s_mov_b32 s{self.base+i}, s100")
    def dump(self, vt):
        if not OPT["prof"]: return
        A = self.A
        while self.n < 15: self.stamp()
        self.stamp(True)
        A(f"s_lshl_b32 s68, s2, 3\ns_add_u32 s68, s68, s14\ns_lshl_b32 s68, s68, 6\ns_add_u32 s68, s68, {32<<20}")
        A(f"v_mov_b32 v{vt}, 0")
        for i in range(self.n):
            A(f"v_mov_b32 v{vt+1}, s{self.base+i}")
            A(f"buffer_store_dword v{vt+1}, v{vt}, s[20:23], s68 offen offset:{4*i}")

class VQ:
    def __init__(self, A): self.A = A; self.q = []
    def add(self, tag, n): self.q.append((tag, n))
    def wait(self, tags):
        if isinstance(tags, str): tags = [tags]
        idx = max([i for i, (t, _) in enumerate(self.q) if t in tags], default=-1)
        if idx < 0: return
        rest = sum(c for _, c in self.q[idx + 1:])
        assert rest < 64
        self.A(f"s_waitcnt vmcnt({rest})")
        del self.q[:idx + 1]
    def has(self, tag): return tag in [t for t, _ in self.q]
    def clear(self): self.q = []

def spin(A, name, load, vval, maskexpr=None, cnt=56):
    A(f"""v_cmp_eq_u32 vcc, s80, v{vval}
    s_mov_b32 s{cnt}, 0
    s_cmp_eq_u64 vcc, -1
    s_cbranch_scc1 {name}_OK""")
    A.label(f"{name}_P")
    A(f"""s_sleep {OPT['sleep']}
    {load}
    s_add_u32 s{cnt}, s{cnt}, 1
    s_waitcnt vmcnt(0)
    v_cmp_eq_u32 vcc, s80, v{vval}
    s_cmp_gt_u32 s{cnt}, {SPIN}
    s_cbranch_scc1 {name}_OK
    s_cmp_eq_u64 vcc, -1
    s_cbranch_scc0 {name}_P""")
    A.label(f"{name}_OK")

A = Asm()
A.raw(f"""; recurrent_scan__sliding_block__geglu_ffn__prompt -- hand-designed gfx950 kernel, emitted by my own python generator.
; @launch grid=(256,1,1) block=(512,1,1) lds=163840
.amdgcn_target "amdgcn-amd-amdhsa--gfx950"
.text""")
kernel_header(A, NAME)
PR = Prof(A)
A("""s_load_dwordx4 s[4:7], s[0:1], 0
s_load_dwordx4 s[8:11], s[0:1], 32
s_load_dwordx4 s[16:19], s[0:1], 64""")
if OPT["epf"]:
    A("s_getpc_b64 s[24:25]")
    A.label("L_PC0")
    nl = OPT["epf"]
    A(f"""v_and_b32 v16, {nl-1}, v0
    v_bfe_u32 v17, v0, 6, 2
    v_mul_u32_u24 v17, {nl}, v17
    v_add_lshl_u32 v16, v16, v17, 7
    v_add_u32 v17, L_M-L_PC0, v16
    v_cmp_gt_u32 vcc, 256, v0
    s_mov_b64 exec, {(1<<nl)-1}
    s_nop 0
    v_cndmask_b32 v16, v16, v17, vcc
    global_load_dword v29, v16, s[24:25]
    s_mov_b64 exec, -1""")
A("""s_cmp_ge_u32 s2, 256
s_cbranch_scc1 L_END
v_and_b32 v1, 63, v0
v_lshrrev_b32 v16, 6, v0
s_and_b32 s57, s2, 7
v_readfirstlane_b32 s14, v16
s_lshr_b32 s58, s2, 3
s_and_b32 s44, s57, 1
s_and_b32 s45, s58, 7
s_lshl_b32 s47, s44, 3
s_add_u32 s47, s47, s45
s_lshr_b32 s46, s57, 1
s_lshr_b32 s49, s58, 3
s_lshl_b32 s48, s46, 2
s_add_u32 s48, s48, s49
s_mul_i32 s51, s46, 3
s_add_u32 s52, s51, s49
s_lshl_b32 s53, s52, 1
s_add_u32 s57, s46, 24
s_add_u32 s54, s51, 12
s_cmp_eq_u32 s49, 3
s_cselect_b32 s50, 1, 0
s_cselect_b32 s53, s57, s53
s_cselect_b32 s54, s54, s52
s_and_b32 s15, s14, 3
s_cmp_lt_u32 s14, 4
s_cbranch_scc1 L_M""")
def ws_srd():
    A("""s_mov_b32 s20, s18
    s_mov_b32 s21, s19
    s_mov_b32 s22, 0x10000000
    s_mov_b32 s23, 0x20000
    s_mov_b32 s18, 256
    s_mov_b32 s19, 0x20000""")
vDW = [2, 3, 4, 5, 6]; vDX = [7, 8]
ROT = OPT["rot"]
A("""s_lshl_b32 s58, s15, 15
v_lshrrev_b32 v16, 3, v1
v_lshlrev_b32 v16, 10, v16
v_add_u32 v16, s58, v16
v_lshrrev_b32 v17, 4, v1
v_xor_b32 v17, v17, v1
v_and_b32 v17, 7, v17
v_lshlrev_b32 v17, 4, v17
v_add_u32 v7, v16, v17
v_xor_b32 v8, 64, v7
s_lshl_b32 s12, s15, 12
s_lshl_b32 s13, s15, 10
s_lshl_b32 s57, s47, 17""")
if ROT == 1: A("s_lshl_b32 s81, s49, 2\ns_lshl_b32 s58, s45, 1\ns_add_u32 s81, s81, s58")
elif ROT == 2: A("s_add_u32 s81, s49, s45\ns_lshl_b32 s81, s81, 2")
elif ROT == 3: A("s_add_u32 s81, s49, s45\ns_lshl_b32 s81, s81, 3")
elif ROT == 0: A("s_mov_b32 s81, 0")
A("""s_waitcnt lgkmcnt(0)
s_add_u32 s72, s4, s57
s_addc_u32 s73, s5, 0
s_mov_b32 s74, 0x20000
s_mov_b32 s75, 0x20000""")
PR.stamp(True); PR.stamp()
def dma_x(u):
    o = []
    for jj in range(4):
        pre = [f"s_add_u32 s56, s81, {2*u}", "s_and_b32 s56, s56, 15", "s_lshl_b32 s56, s56, 6"] if jj == 0 else []
        o.append(pre + [f"s_add_u32 m0, s12, {XR + (u%3)*XS + jj*1024}", f"s_add_u32 s59, s56, {jj*8192}",
                        f"buffer_load_dwordx4 v{vDX[jj&1]}, s[72:75], s59 offen {'nt ' if 2*u < OPT['ntx'] else ''}lds"])
    return o
def emit(groups):
    for g in groups:
        for i in g: A(i)
    return len(groups)
A(f"s_setprio {OPT['hprio']}")
Q = VQ(A)
n0 = emit(dma_x(0))
A("s_lshl_b32 s55, s53, 7\ns_lshl_b32 s56, s54, 7")
tabA = [(8, 55, 0), (8, 55, 128), (10, 55, 0), (10, 55, 128), (6, 56, 0)]
tabC = [(8, 55, 0), (10, 55, 0), (6, 56, 0), (6, 56, 128), (6, 56, 256)]
A("""v_bfe_u32 v16, v1, 2, 3
s_lshl_b32 s57, s15, 3
v_add_u32 v16, s57, v16
v_lshrrev_b32 v17, 5, v1
v_lshlrev_b32 v17, 6, v17
v_and_b32 v18, 3, v1
v_lshlrev_b32 v18, 4, v18
v_add_u32 v17, v17, v18
s_lshl_b32 s66, s50, 5
s_xor_b32 s67, s66, 32""")
swap = {0: None, 1: 66, 2: 67, 3: 67, 4: None}
for D in range(5):
    S = 24 + 4 * D
    (pa, ca, oa), (pc, cc_, oc) = tabA[D], tabC[D]
    A("s_cmp_eq_u32 s50, 1")
    if pa != pc:
        A(f"s_cselect_b32 s{S}, s{pc}, s{pa}\ns_cselect_b32 s{S+1}, s{pc+1}, s{pa+1}")
        src = S
    else: src = pa
    if ca != cc_: A(f"s_cselect_b32 s57, s{cc_}, s{ca}"); cs = 57
    else: cs = ca
    if oa != oc: A(f"s_cselect_b32 s58, {oc}, {oa}")
    sa = 3072 if pa == 6 else 3584; sc = 3072 if pc == 6 else 3584
    A(f"s_movk_i32 s{60+D}, {sa}")
    if sa != sc: A(f"s_cselect_b32 s{60+D}, {sc}, s{60+D}")
    if oa != oc: A(f"s_add_u32 s57, s{cs}, s58"); cs = 57
    elif oa: A(f"s_add_u32 s57, s{cs}, {oa}"); cs = 57
    A(f"s_add_u32 s{S}, s{src}, s{cs}\ns_addc_u32 s{S+1}, s{src+1}, 0")
    A(f"v_mul_u32_u24 v18, s{60+D}, v16")
    if swap[D]:
        A(f"v_xor_b32 v19, s{swap[D]}, v17\nv_add_u32 v{vDW[D]}, v18, v19")
    else:
        A(f"v_add_u32 v{vDW[D]}, v18, v17")
    A(f"s_lshl_b32 s{S+2}, s{60+D}, 9\ns_mov_b32 s{S+3}, 0x20000")
def dma_w(k):
    o = []
    for D in range(5):
        S = 24 + 4 * D
        pre = [f"s_add_u32 s56, s81, {k}", "s_and_b32 s56, s56, 15", "s_lshl_b32 s56, s56, 5"] if D == 0 else []
        o.append(pre + [f"s_add_u32 m0, s13, {WR + (k%5)*WSL + D*4096}", f"s_mul_i32 s59, s{60+D}, s56",
                        f"buffer_load_dwordx4 v{vDW[D]}, s[{S}:{S+3}], s59 offen {'nt ' if k < OPT['ntw'] else ''}lds"])
    return o
def G(k):
    g = (dma_x(k // 2) if k % 2 == 0 else []) + dma_w(k)
    Q.add(f"S{k}", emit(g))
Q.add("S0", n0 + emit(dma_w(0)))
G(1)
ws_srd()
A("""s_or_b32 s57, s2, s15
s_cmp_lg_u32 s57, 0
s_cbranch_scc1 H_NONONCE
s_memrealtime s[56:57]
s_waitcnt lgkmcnt(0)
s_mul_i32 s56, s56, 0x9e3779b1
s_or_b32 s56, s56, 1
v_mov_b32 v16, 0
v_mov_b32 v17, s56
buffer_store_dword v17, v16, s[16:19], 0 offen sc1""")
A.label("H_NONONCE")
A("s_lshl_b32 s69, s47, 5")
if ROT == 2: A("s_lshr_b32 s55, s45, 2\ns_lshl_b32 s57, s44, 1\ns_add_u32 s55, s55, s57")
elif ROT == 1: A("s_mov_b32 s55, s44")
elif ROT == 3: A("s_lshr_b32 s55, s45, 1\ns_lshl_b32 s57, s44, 2\ns_add_u32 s55, s55, s57")
if ROT == 0: A("s_and_b32 s55, s45, 3")
NDELTA = {0: 4, 1: 2, 2: 4, 3: 8}[ROT]
def pf_setup():
    A("""v_lshrrev_b32 v20, 3, v1
    v_and_b32 v21, 3, v20
    v_lshrrev_b32 v20, 2, v20
    v_lshlrev_b32 v20, 5, v20
    v_add_u32 v20, v20, v21
    s_lshl_b32 s57, s45, 2
    v_add_u32 v20, s57, v20
    v_and_b32 v21, 7, v1
    v_lshlrev_b32 v21, 4, v21""")
    for D in range(5):
        A(f"v_mul_u32_u24 v{116+D}, s{60+D}, v20\nv_add_u32 v{116+D}, v{116+D}, v21")
    A("""v_lshrrev_b32 v20, 3, v1
    v_lshlrev_b32 v20, 10, v20
    s_lshl_b32 s57, s49, 15
    s_lshl_b32 s58, s15, 13
    s_add_u32 s57, s57, s58
    v_add3_u32 v121, v20, v21, s57""")
def pf_burst(u0, u1):
    n = 0
    for u in range(u0, u1):
        A(f"s_movk_i32 s59, {u*128}\nbuffer_load_dwordx4 {vr(128+4*u,4)}, v121, s[72:75], s59 offen"); n += 1
    for u in range(u0, u1):
        A(f"s_mul_i32 s59, s{PFS}, {64*u}\nbuffer_load_dwordx4 {vr(160+4*u,4)}, v122, s[{PFR}:{PFR+3}], s59 offen"); n += 1
        lb = f"H_PF{u}"
        A(f"s_cmp_eq_u32 s15, {u%4}\ns_cbranch_scc0 {lb}\ns_mul_i32 s59, s64, {64*u}\nbuffer_load_dwordx4 {vr(192+4*(u>>2),4)}, v120, s[40:43], s59 offen")
        A.label(lb)
    Q.add("PF", n)
PFR, PFS = 76, 71
BUR = {}
if OPT.get("burst"):
    pf_setup()
    A(f"s_mov_b32 s{PFR}, s24\ns_mov_b32 s{PFR+1}, s25\ns_mov_b32 s{PFR+2}, s26\ns_mov_b32 s{PFR+3}, 0x20000\ns_mov_b32 s{PFS}, s60\nv_mov_b32 v122, v116")
    for D in (1, 2, 3):
        A(f"""s_cmp_eq_u32 s15, {D}
        s_cselect_b32 s{PFR}, s{24+4*D}, s{PFR}
        s_cselect_b32 s{PFR+1}, s{25+4*D}, s{PFR+1}
        s_cselect_b32 s{PFR+2}, s{26+4*D}, s{PFR+2}
        s_cselect_b32 s{PFS}, s{60+D}, s{PFS}
        s_cselect_b64 vcc, -1, 0
        v_cndmask_b32 v122, v122, v{116+D}, vcc""")
    BUR = {1: {-1: (1, 3), 1: (3, 6), 5: (6, 8)}, 2: {-1: (1, 4), 2: (4, 8)}, 3: {-1: (1, 2), 0: (2, 3), 1: (3, 4), 3: (4, 5), 5: (5, 6), 7: (6, 7), 9: (7, 8)}, 4: {-1: (1, 8)}}[OPT["burst"]]
    pf_burst(*BUR[-1])
A(f"""v_lshrrev_b32 v16, 5, v1
v_lshlrev_b32 v16, 10, v16
v_bfe_u32 v17, v1, 2, 2
v_lshlrev_b32 v17, 6, v17
v_add_u32 v16, v16, v17
v_and_b32 v17, 3, v1
v_lshlrev_b32 v17, 3, v17
v_add_u32 v16, v16, v17
v_bfe_u32 v17, v1, 4, 1
v_lshlrev_b32 v17, 5, v17
s_lshr_b32 s58, s15, 1
s_lshl_b32 s58, s58, 12
s_and_b32 s59, s15, 1
s_lshl_b32 s59, s59, 9
s_add_u32 s58, s58, s59
v_add3_u32 v12, v16, v17, s58
v_lshlrev_b32 v9, 4, v1
v_mov_b32 v10, 0""")
sched = {0: [2], 1: [3], 2: [4, 5]}
for s in range(3, 13): sched[s] = [s + 3]
def col_valu(js, fin):
    for j in js:
        b = 48 + 8 * j; acc = 44 + j
        for d in range(8):
            A(f"v_lshlrev_b32 v18, 16, v{b+d}\nv_and_b32 v19, 0xffff0000, v{b+d}")
            if d == 0: A(f"v_add_f32 v{acc}, v18, v19")
            else: A(f"v_add_f32 v{acc}, v{acc}, v18\nv_add_f32 v{acc}, v{acc}, v19")
    if fin:
        for j in range(3): A(f"v_mov_b32 v{72+2*j}, v{44+j}")
        A("s_nop 1")
        for j in range(3): A(f"v_permlane32_swap_b32 v{72+2*j}, v{44+j}")
        A("s_nop 1")
        for j in range(3): A(f"v_add_f32 v{72+2*j}, v{72+2*j}, v{44+j}")
def row_valu(part):
    if part == 0:
        for rrow in range(2):
            b = 32 + 4 * rrow; sx = 40 + 2 * rrow; sq = sx + 1
            for d in range(4):
                A(f"v_lshlrev_b32 v18, 16, v{b+d}\nv_and_b32 v19, 0xffff0000, v{b+d}")
                if d == 0: A(f"v_add_f32 v{sx}, v18, v19\nv_mul_f32 v{sq}, v18, v18\nv_fmac_f32 v{sq}, v19, v19")
                else: A(f"v_add_f32 v{sx}, v{sx}, v18\nv_fmac_f32 v{sq}, v18, v18\nv_add_f32 v{sx}, v{sx}, v19\nv_fmac_f32 v{sq}, v19, v19")
    else:
        for dpp in ("quad_perm:[1,0,3,2] row_mask:0xf bank_mask:0xf", "quad_perm:[2,3,0,1] row_mask:0xf bank_mask:0xf",
                    "row_half_mirror row_mask:0xf bank_mask:0xf", "row_mirror row_mask:0xf bank_mask:0xf",
                    "row_bcast:15 row_mask:0xa bank_mask:0xf", "row_bcast:31 row_mask:0xc bank_mask:0xf"):
            for r in range(40, 44): A(f"v_add_f32_dpp v{r}, v{r}, v{r} {dpp}")
def get_nonce(tag, vz, vn):
    A(f"""v_readfirstlane_b32 s80, v{vn}
    s_mov_b32 s57, 0
    s_cmp_eq_u32 s80, 0
    s_cbranch_scc0 {tag}_GOTN""")
    A.label(f"{tag}_POLLN")
    A(f"""buffer_load_dword v{vn}, v{vz}, s[16:19], 0 offen sc1
    s_add_u32 s57, s57, 1
    s_waitcnt vmcnt(0)
    v_readfirstlane_b32 s80, v{vn}
    s_cmp_gt_u32 s57, {SPIN}
    s_cbranch_scc1 {tag}_GOTN
    s_cmp_eq_u32 s80, 0
    s_cbranch_scc1 {tag}_POLLN""")
    A.label(f"{tag}_GOTN")
def publish():
    get_nonce("H", 10, 11)
    A(f"""s_lshl_b32 s57, s48, 4
    s_add_u32 s57, s57, s47
    s_mul_i32 s57, s57, 2560
    s_lshl_b32 s58, s15, 8
    s_add_u32 s57, s57, s58
    s_add_u32 s57, s57, {WS_CS}
    v_lshlrev_b32 v16, 3, v1
    v_mov_b32 v73, s80
    v_mov_b32 v75, s80
    v_mov_b32 v77, s80
    s_mov_b32 exec_hi, 0
    buffer_store_dwordx2 v[72:73], v16, s[20:23], s57 offen sc1
    buffer_store_dwordx2 v[74:75], v16, s[20:23], s57 offen offset:1024 sc1
    s_cmp_ge_u32 s15, 2
    s_cbranch_scc1 H_NO3
    buffer_store_dwordx2 v[76:77], v16, s[20:23], s57 offen offset:2048 sc1""")
    A.label("H_NO3")
    A(f"""s_mov_b32 exec_lo, 0
    s_mov_b32 exec_hi, 0x80000000
    s_lshl_b32 s57, s69, 6
    s_lshl_b32 s58, s48, 7
    s_add_u32 s57, s57, s58
    s_lshl_b32 s58, s15, 5
    s_add_u32 s57, s57, s58
    s_add_u32 s57, s57, {WS_TOK}
    v_mov_b32 v48, v40
    v_mov_b32 v49, v41
    v_mov_b32 v50, s80
    v_mov_b32 v51, s80
    v_mov_b32 v52, v42
    v_mov_b32 v53, v43
    v_mov_b32 v54, s80
    v_mov_b32 v55, s80
    buffer_store_dwordx4 v[48:51], v10, s[20:23], s57 offen sc1
    buffer_store_dwordx4 v[52:55], v10, s[20:23], s57 offen offset:16 sc1
    s_mov_b64 exec, -1""")
def gather_loads(part=None):
    if part == 0:
        for m in range(6):
            A(f"s_add_u32 s59, s66, {m*5120}")
            A(f"buffer_load_dwordx4 {vr(64+4*m,4)}, v16, s[20:23], s59 offen sc1")
        return
    for m in range(6 if part == 1 else 0, 8):
        A(f"s_add_u32 s59, s66, {m*5120}")
        A(f"buffer_load_dwordx4 {vr(64+4*m,4)}, v16, s[20:23], s59 offen sc1")
    for m in range(2):
        A(f"s_add_u32 s59, s66, {m*8*2560}")
        A(f"buffer_load_dwordx4 {vr(96+4*m,4)}, v17, s[20:23], s59 offen sc1")
    A("buffer_load_dwordx4 v[104:107], v18, s[20:23], s67 offen sc1")
def gather_prep():
    A(f"""s_mul_i32 s66, s48, {16*2560}
    s_add_u32 s66, s66, {WS_CS}
    v_and_b32 v18, 31, v1
    v_lshlrev_b32 v18, 4, v18
    v_lshrrev_b32 v16, 5, v1
    v_mul_u32_u24 v16, 2560, v16
    s_lshl_b32 s58, s15, 9
    v_add3_u32 v16, v16, v18, s58
    v_and_b32 v17, 7, v1
    v_lshlrev_b32 v17, 4, v17
    v_lshrrev_b32 v19, 3, v1
    v_mul_u32_u24 v19, 2560, v19
    s_lshl_b32 s58, s15, 7
    s_add_u32 s58, s58, 2048
    v_add3_u32 v17, v17, v19, s58
    s_lshl_b32 s67, s69, 6
    s_lshl_b32 s59, s15, 9
    s_add_u32 s67, s67, s59
    s_add_u32 s67, s67, {WS_TOK}""")
def gather_check():
    A("s_mov_b32 s70, 0")
    Q.wait("GA")
    A.label("H_GCHK")
    tags = list(range(65, 104, 2)) + [106]
    A(f"v_and_b32 v19, v{tags[0]}, v{tags[1]}\nv_or_b32 v20, v{tags[0]}, v{tags[1]}")
    rest = tags[2:]
    for k in range(0, len(rest) - 1, 2):
        A(f"v_bitop3_b32 v19, v19, v{rest[k]}, v{rest[k+1]} bitop3:0x80\nv_or3_b32 v20, v20, v{rest[k]}, v{rest[k+1]}")
    if len(rest) % 2: A(f"v_and_b32 v19, v19, v{rest[-1]}\nv_or_b32 v20, v20, v{rest[-1]}")
    A(f"""v_xor_b32 v19, s80, v19
    v_xor_b32 v20, s80, v20
    v_or_b32 v19, v19, v20
    v_cmp_eq_u32 vcc, 0, v19
    s_add_u32 s70, s70, 1
    s_cmp_gt_u32 s70, {SPIN}
    s_cbranch_scc1 H_GOK
    s_cmp_eq_u64 vcc, -1
    s_cbranch_scc1 H_GOK
    s_sleep 4""")
    gather_loads()
    A("s_waitcnt vmcnt(0)")
    A("s_branch H_GCHK")
    A.label("H_GOK")
def gather_cols():
    st = 4
    while st <= 16:
        for r in range(64, 96, 2 * st):
            A(f"v_add_f32 v{r}, v{r}, v{r+st}\nv_add_f32 v{r+2}, v{r+2}, v{r+st+2}")
        st *= 2
    A("""v_add_f32 v96, v96, v100
    v_add_f32 v98, v98, v102
    v_mov_b32 v65, v64
    v_mov_b32 v67, v66
    v_add_f32_dpp v96, v96, v96 row_ror:8 row_mask:0xf bank_mask:0xf
    v_add_f32_dpp v98, v98, v98 row_ror:8 row_mask:0xf bank_mask:0xf
    v_permlane32_swap_b32 v65, v64
    v_permlane32_swap_b32 v67, v66
    v_mov_b32 v97, v96
    v_mov_b32 v99, v98
    v_add_f32 v64, v64, v65
    v_add_f32 v66, v66, v67
    v_permlane32_swap_b32 v97, v96
    v_permlane32_swap_b32 v99, v98
    s_nop 0
    v_add_f32 v96, v96, v97
    v_add_f32 v98, v98, v99
    v_mov_b32 v97, v96
    v_mov_b32 v99, v98
    s_nop 1
    v_permlane16_swap_b32 v97, v96
    v_permlane16_swap_b32 v99, v98
    s_nop 0
    v_add_f32 v96, v96, v97
    v_add_f32 v98, v98, v99""")
    for r, d in ((64, 68), (66, 69), (96, 70), (98, 71)):
        A(f"""v_cvt_pk_bf16_f32 v{r+1}, v{r}, v{r}
        v_and_b32 v{r+1}, 0xffff0000, v{r+1}
        v_sub_f32 v{r}, v{r}, v{r+1}
        v_cvt_pk_bf16_f32 v{d}, v{r+1}, v{r}""")
    A(f"""v_lshrrev_b32 v16, 1, v18
    s_lshl_b32 s58, s15, 8
    s_add_u32 s58, s58, {EX_COL}
    v_add_u32 v16, s58, v16
    ds_write_b64 v16, v[68:69]
    v_and_b32 v17, 7, v1
    v_lshlrev_b32 v17, 3, v17
    s_lshl_b32 s58, s15, 6
    s_add_u32 s58, s58, {EX_COL + 1024}
    v_add_u32 v17, s58, v17
    ds_write_b64 v17, v[70:71]""")
def gather_toks():
    c1 = -2.0 * math.sqrt(2.0 / math.pi) * LOG2E
    c3 = c1 * 0.044715
    A(f"""    v_mul_f32 v104, {f32(-1/512)}, v104
    v_mul_f32 v105, {f32(1/512)}, v105
    v_fma_f32 v105, -v104, v104, v105
    v_max_f32 v105, 0, v105
    v_add_f32 v113, {f32(1e-5)}, v105
    v_rsq_f32 v110, v113
    v_cvt_pk_bf16_f32 v108, v104, v104
    v_and_b32 v106, 0xffff0000, v108
    v_sub_f32 v106, v104, v106
    v_cvt_pk_bf16_f32 v109, v106, v106
    v_mul_f32 v111, {f32(c1)}, v110
    v_mul_f32 v112, v110, v110
    v_mul_f32 v112, v112, v110
    v_mul_f32 v112, {f32(c3)}, v112
    v_mov_b32 v114, s80
    v_lshlrev_b32 v18, 1, v18
    s_lshl_b32 s58, s15, 10
    s_add_u32 s58, s58, {EX_TOK}
    v_add_u32 v18, s58, v18
    ds_write_b128 v18, v[108:111]
    ds_write_b128 v18, v[112:115] offset:16
    s_waitcnt lgkmcnt(0)""")
WD = OPT["wd"]
UFB = [60, 61, 62, 76, 77, 78, 79]
def d_setup_w():
    A(f"""v_bfe_u32 v6, v1, 2, 3
    v_lshlrev_b32 v6, 10, v6
    v_lshrrev_b32 v7, 5, v1
    v_lshlrev_b32 v7, 6, v7
    v_add_u32 v6, v6, v7
    v_and_b32 v7, 3, v1
    v_lshlrev_b32 v7, 4, v7
    v_add_u32 v2, v6, v7
    s_lshl_b32 s43, s15, 11
    s_lshr_b32 s58, s2, 5
    s_lshl_b32 s40, s58, 7
    s_lshl_b32 s42, s15, 17
    s_add_u32 s42, s42, s40
    s_mul_i32 s57, s15, 24""")
    if OPT["rotd"]:
        A("""s_mul_i32 s59, s58, 11
        s_lshr_b32 s59, s59, 5
        s_mul_i32 s59, s59, 3
        s_sub_u32 s59, s58, s59""")
    else:
        A("s_mov_b32 s59, 0\ns_mov_b32 s58, 0")
    for u in range(3):
        A(f"""s_lshl_b32 s{UFB[u]}, s59, 3
        s_add_u32 s{UFB[u]}, s{UFB[u]}, s57
        s_add_u32 s{UFB[u]}, s{UFB[u]}, 4
        s_add_u32 s59, s59, 1
        s_cmp_eq_u32 s59, 3
        s_cselect_b32 s59, 0, s59""")
    A("s_lshl_b32 s41, s15, 2\ns_add_u32 s41, s41, 96")
    for u in range(4):
        A(f"""s_add_u32 s59, s58, {u}
        s_and_b32 s59, s59, 3
        s_lshl_b32 s44, s59, 3
        s_add_u32 s44, s44, s57
        s_cmp_eq_u32 s59, 3
        s_cselect_b32 s{UFB[3+u]}, s41, s44""")
    A("""s_waitcnt lgkmcnt(0)
    s_mov_b32 s26, 0x1c0000
    s_mov_b32 s27, 0x20000
    s_mov_b32 s30, 0x80000
    s_mov_b32 s31, 0x20000""")
def issw(s, q):
    slot = s % WD
    if s < 28:
        srd = 24
        o = [f"s_lshl_b32 s44, s{UFB[s>>2]}, 14", "s_add_u32 s44, s44, s40"]
        if s & 3: o.append(f"s_add_u32 s44, s44, {(s&3)*16384}")
    else:
        srd = 28
        o = [f"s_add_u32 s44, s42, {(s-28)*16384}"]
    a = o + [f"s_add_u32 m0, s43, {DREG[slot]}", "s_add_u32 s45, s44, 8192",
             f"buffer_load_dwordx4 v2, s[{srd}:{srd+3}], s44 offen lds"]
    b = [f"s_add_u32 m0, s43, {DREG[slot]+1024}", "s_nop 0",
         f"buffer_load_dwordx4 v2, s[{srd}:{srd+3}], s45 offen lds"]
    q.add(f"W{s}", 2)
    return [a, b]
P0 = max(NDELTA, 4)
wnext = [0]
GAT, GC = OPT['gat'], OPT['gc']
HP = OPT.get('hprof')
for s in range(17):
    if s < 16: Q.wait(f"S{s}")
    if HP and s >= 4: A(f"s_memtime s[100:101]\ns_waitcnt lgkmcnt(0)\ns_sub_u32 s99, s100, s98\ns_add_u32 s{84+s-4}, s99, s83")
    A("s_barrier")
    if HP: A("s_memtime s[100:101]\ns_waitcnt lgkmcnt(0)\ns_mov_b32 s98, s100")
    if s == 0 and not HP: PR.stamp()
    for k in sched.get(s, []): G(k)
    if s in BUR: pf_burst(*BUR[s])
    if s == 0:
        A("""s_lshl_b32 s57, s48, 13
        s_lshl_b32 s58, s15, 11
        s_add_u32 s57, s57, s58
        buffer_load_dwordx4 v[32:35], v9, s[72:75], s57 offen
        buffer_load_dwordx4 v[36:39], v9, s[72:75], s57 offen offset:1024
        buffer_load_dword v11, v10, s[16:19], 0 offen sc1""")
        Q.add("ST", 3)
    if s < NDELTA:
        lb = f"H_NOCS{s}"
        A(f"s_cmp_eq_u32 s55, {s}\ns_cbranch_scc0 {lb}\nv_add_u32 v12, {WR + (s%5)*WSL}, v12")
        for j in range(3):
            for t in range(4):
                A(f"ds_read_b64_tr_b16 {vr(48+8*j+2*t,2)}, v12 offset:{j*8192 + (t>>1)*2048 + (t&1)*256}")
        A("s_waitcnt lgkmcnt(0)")
        A.label(lb)
    if s == 4: row_valu(0); col_valu([0], False)
    if s == 5: col_valu([1], False)
    if s == 6: col_valu([2], True); row_valu(1)
    if s == OPT["pub"]: publish()
    if s == 3:
        A("s_load_dwordx2 s[4:5], s[0:1], 48\ns_load_dwordx2 s[8:9], s[0:1], 16")
    if OPT["vw"] and s == OPT["vw"]:
        A("""s_cmp_lg_u32 s15, 0
        s_cbranch_scc1 H_NOWARM
        s_mul_i32 s57, s2, 7168
        s_lshl_b32 s58, s2, 11
        v_lshlrev_b32 v20, 7, v1
        s_waitcnt lgkmcnt(0)
        s_add_u32 s6, s57, 7168
        s_mov_b32 s7, 0x20000
        s_add_u32 s10, s58, 2048
        s_mov_b32 s11, 0x20000
        buffer_load_dword v21, v20, s[4:7], s57 offen
        buffer_load_dword v22, v20, s[8:11], s58 offen""")
        A.label("H_NOWARM")
    if s == 5 and not OPT["vw"]:
        A("""s_lshl_b32 s57, s2, 2
        s_add_u32 s57, s57, s15
        s_mul_i32 s58, s57, 1792
        s_lshl_b32 s57, s57, 9
        s_waitcnt lgkmcnt(0)
        s_add_u32 s4, s4, s58
        s_addc_u32 s5, s5, 0
        s_add_u32 s8, s8, s57
        s_addc_u32 s9, s9, 0""")
    if s in (5, 7, 8, 9) and not OPT['vw']:
        k0 = {5: 0, 7: 9, 8: 18, 9: 27}[s]
        for i in range(k0, k0 + 9):
            if i < 28: A(f"s_load_dword s65, s[4:5], {i*64}")
            else: A(f"s_load_dword s65, s[8:9], {(i-28)*64}")
    if OPT["l2pf"] and s == OPT["warm"] + 1:
        A("""s_lshr_b32 s57, s2, 3
        s_lshl_b32 s57, s57, 2
        s_add_u32 s57, s57, s15
        s_lshr_b32 s58, s57, 3
        s_min_u32 s58, s58, 11
        s_lshr_b32 s59, s58, 1
        s_mul_i32 s59, s59, 6
        s_and_b32 s65, s58, 1
        s_lshl_b32 s65, s65, 1
        s_add_u32 s59, s59, s65
        s_add_u32 s59, s59, 2
        s_add_u32 s65, s58, 16
        s_cmp_lt_u32 s58, 8
        s_cselect_b32 s59, s59, s65
        s_lshl_b32 s59, s59, 16
        s_and_b32 s58, s57, 7
        s_lshl_b32 s58, s58, 13
        s_add_u32 s58, s58, s59
        s_lshl_b32 s57, s57, 12
        s_waitcnt lgkmcnt(0)
        s_add_u32 s4, s4, s58
        s_addc_u32 s5, s5, 0
        s_add_u32 s8, s8, s57
        s_addc_u32 s9, s9, 0""")
    if OPT["l2pf"] and OPT["warm"] + 1 <= s <= OPT["l2end"]:
        nst = OPT["l2end"] - OPT["warm"]
        tot = OPT["l2pf"]
        i0 = (s - OPT["warm"] - 1) * tot // nst; i1 = (s - OPT["warm"]) * tot // nst
        for i in range(i0, i1):
            if i < 64: A(f"s_load_dword s65, s[4:5], {i*128}")
            else: A(f"s_load_dword s65, s[8:9], {(i-64)*128}")
    if s == 8: gather_prep()
    if s == GAT: gather_loads(0); Q.add("GA0", 6)
    if s == GAT + OPT["gd"]: gather_loads(1); Q.add("GA", 5)
    if s == 12:
        A("s_load_dwordx2 s[24:25], s[0:1], 48\ns_load_dwordx2 s[28:29], s[0:1], 16")
        d_setup_w()
    if s == GC: gather_check()
    if s in DAVAIL:
        for _ in range(DAVAIL[s]):
            emit(issw(wnext[0], Q)); wnext[0] += 1
    if s == GC + 1: gather_cols()
    if s == GC + 2: gather_toks()
    if s in (4, 8, 12) and not HP: PR.stamp()
if HP:
    PR.n = 15; PR.dump(20); PR.n = 0
    OPT["prof"] = 0
PR.stamp()
PR.stamp()
import gen_cd
gen_cd.OPT = OPT
A("""s_and_b32 s57, s2, 7
s_lshr_b32 s58, s2, 3
s_and_b32 s58, s58, 3
s_lshl_b32 s50, s58, 3
s_add_u32 s50, s50, s57
s_lshr_b32 s51, s2, 5
s_lshl_b32 s51, s51, 2
s_add_u32 s51, s51, s15""")
gen_cd.attn_setup(A)
SH = OPT["share"]
LK, LVS, LFL = 16384, 49152, 49152 + 16384 + 1024
if SH:
    LONE = 49152 + 16384
    A(f"""s_lshr_b32 s49, s2, 5
    s_lshl_b32 s49, s49, 2
    s_lshl_b32 s57, s15, 1
    s_add_u32 s49, s49, s57
    s_sub_u32 s49, s49, 4
    v_and_b32 v9, 1, v1
    v_add_u32 v9, s49, v9
    v_max_i32 v9, 0, v9
    v_lshlrev_b32 v9, 8, v9
    v_bfe_u32 v10, v1, 1, 1
    v_lshlrev_b32 v10, 6, v10
    v_add3_u32 v9, v9, v10, 64
    s_lshl_b32 s57, s51, 8
    v_mov_b32 v10, s57
    v_cmp_gt_u32 vcc, 4, v1
    s_lshr_b32 s57, s50, 1
    s_lshl_b32 s57, s57, 7
    s_add_u32 s57, s57, {WS_FQ}
    v_cndmask_b32 v9, v10, v9, vcc
    v_lshlrev_b32 v9, 5, v9
    v_add_u32 v252, s57, v9""")
else:
    A(f"""v_min_u32 v9, 10, v1
    v_cmp_gt_u32 vcc, 5, v9
    v_subrev_u32 v10, 5, v9
    s_nop 0
    v_cndmask_b32 v10, v10, v9, vcc
    v_min_u32 v10, 4, v10
    s_sub_u32 s57, s51, 4
    v_add_u32 v10, s57, v10
    v_max_i32 v10, 0, v10
    v_lshlrev_b32 v10, 8, v10
    v_mov_b32 v11, 128
    v_cndmask_b32 v11, v11, 64, vcc
    v_cmp_eq_u32 vcc, 10, v9
    s_lshr_b32 s57, s50, 1
    s_lshl_b32 s57, s57, 7
    s_add_u32 s57, s57, {WS_FQ}
    v_cndmask_b32 v11, v11, 0, vcc
    v_add_u32 v10, v10, v11
    v_lshlrev_b32 v10, 5, v10
    v_add_u32 v252, s57, v10""")
A("s_barrier")
PR.stamp()
gen_cd.LONE = LONE
if SH:
    A(f"s_lshl_b32 s57, s15, 11\ns_add_u32 s57, s57, {LVS}")
else:
    A("""s_movk_i32 s57, 0x4000
    s_cmp_eq_u32 s15, 1
    s_cselect_b32 s57, 49152, s57
    s_cmp_eq_u32 s15, 2
    s_cselect_b32 s57, 59392, s57
    s_cmp_eq_u32 s15, 3
    s_cselect_b32 s57, 151552, s57""")
gen_cd.attn_setup2(A, None)
ld = "buffer_load_dword v253, v252, s[20:23], 0 offen sc1"
A("s_waitcnt vmcnt(0)")
PR.stamp()
A("s_barrier")
A(f"s_setprio {OPT['aprio']}")
A(f"s_sleep {OPT['hs']}")
A(ld)
A("s_waitcnt vmcnt(0)")
spin(A, "HQ", ld, 253)
PR.stamp()
if SH:
    A(f"""s_lshl_b32 s52, s50, 16
    s_lshl_b32 s53, s49, 11""")
    for which, base, r0 in ((0, WS_K, 188), (1, WS_V, 204)):
        for b in range(4):
            if b % 2 == 0:
                A(f"s_add_i32 s55, s53, {b*1024}\ns_max_i32 s55, s55, 0\ns_add_u32 s55, s55, s52\ns_add_u32 s55, s55, {base}")
            A(f"buffer_load_dwordx4 {vr(r0+4*b,4)}, v3, s[20:23], s55 offen offset:{(b%2)*1024} sc1")
    A(f"""s_lshl_b32 s53, s51, 11
    s_add_u32 s54, s52, s53
    buffer_load_dwordx4 v[12:15], v3, s[20:23], s54 offen sc1
    buffer_load_dwordx4 v[16:19], v3, s[20:23], s54 offen offset:1024 sc1
    s_lshl_b32 s57, s15, 12
    v_add_u32 v9, s57, v3
    v_add_u32 v10, s57, v2
    s_lshl_b32 s57, s15, 11
    v_add_u32 v11, s57, v3
    s_lshl_b32 s57, s15, 2
    s_add_u32 s57, s57, {LFL}
    v_mov_b32 v252, s57
    v_mov_b32 v253, s80
    v_mov_b32 v254, {LFL}""")
    for b in range(4):
        A(f"s_waitcnt vmcnt({9-b})\nds_write_b128 v9, {vr(188+4*b,4)} offset:{LK + b*1024}")
    for b in range(4):
        A(f"s_waitcnt vmcnt({5-b})\nds_write_b128 v10, {vr(204+4*b,4)} offset:{LVS + b*1024}")
    A("""s_waitcnt lgkmcnt(0)
    ds_write_b32 v252, v253
    s_mov_b32 s56, 0""")
    A.label("H_LW")
    A(f"""ds_read_b128 v[188:191], v254
    s_add_u32 s56, s56, 1
    s_waitcnt lgkmcnt(0)
    v_xor_b32 v188, s80, v188
    v_xor_b32 v189, s80, v189
    v_xor_b32 v190, s80, v190
    v_xor_b32 v191, s80, v191
    v_or3_b32 v188, v188, v189, v190
    v_or_b32 v188, v188, v191
    v_cmp_eq_u32 vcc, 0, v188
    s_cmp_gt_u32 s56, {SPIN*50}
    s_cbranch_scc1 H_LOK
    s_cmp_eq_u64 vcc, -1
    s_cbranch_scc1 H_LOK
    s_sleep 1
    s_branch H_LW""")
    A.label("H_LOK")
    for b in range(10):
        A(f"ds_read_b128 {vr(20+4*b,4)}, v11 offset:{LK + b*1024}")
    A("s_waitcnt vmcnt(0)")
A(f"s_setprio {OPT['aprio2']}")
if OPT.get("noattn"): A("s_branch H_AFIN")
A("s_cmp_lt_u32 s51, 4")
A("s_cbranch_scc1 H_SLOW")
n0 = PR.n
gen_cd.gen_attn(A, False, "AF", PR, "sc1", setup=False, bar=OPT["defer"] >= 4, loads=not SH, shared=SH)
A.label("H_AFIN")
PR.stamp()
A(f"""s_lshl_b32 s57, s51, 12
s_lshl_b32 s58, s50, 7
s_add_u32 s57, s57, s58
s_add_u32 s57, s57, {WS_FO}
v_mov_b32 v9, 0
v_mov_b32 v10, s80
s_waitcnt vmcnt(0)
s_mov_b64 exec, 1
buffer_store_dword v10, v9, s[20:23], s57 offen sc1
s_mov_b64 exec, -1""")
PR.stamp()
PR.dump(2)
A.label("L_END")
A("s_endpgm")
A.label("H_SLOW")
PR.n = n0
gen_cd.gen_attn(A, True, "AS", PR, "sc1", setup=False, bar=OPT["defer"] >= 4, loads=not SH, shared=SH)
A("s_branch H_AFIN")
A.label("L_M")
PR.n = 0
A("s_waitcnt lgkmcnt(0)")
PR.stamp(True); PR.stamp()
ws_srd()
if OPT["codepf"]:
    A("s_getpc_b64 s[24:25]")
    A.label("L_PC")
    A(f"""s_sub_u32 s24, s24, L_PC-{NAME}
    s_subb_u32 s25, s25, 0
    s_mov_b32 s26, L_CODE_END-{NAME}
    s_mov_b32 s27, 0x20000
    s_lshr_b32 s57, s2, 3
    s_lshl_b32 s57, s57, 2
    s_add_u32 s57, s57, s14
    s_lshl_b32 s57, s57, 9
    v_lshlrev_b32 v16, 7, v1
    s_mov_b64 exec, 15
    buffer_load_dword v31, v16, s[24:27], s57 offen
    s_mov_b64 exec, -1""")
vXa = [2, 3, 4, 5]; vWa = [6, 7, 8, 9, 10]; vWb = [11, 12, 13, 14, 15]
P = 32; QQ = 60; ACC = 88
A("s_setprio 2")
A("""s_and_b32 s12, s14, 1
s_lshr_b32 s13, s14, 1
v_and_b32 v16, 31, v1
v_lshrrev_b32 v17, 5, v1
v_bfe_u32 v18, v1, 1, 3
v_xor_b32 v17, v17, v18
v_lshlrev_b32 v17, 4, v17
v_lshlrev_b32 v16, 7, v16
v_add_u32 v16, v16, v17
s_lshl_b32 s57, s12, 13
v_add_u32 v2, s57, v16
v_xor_b32 v3, 32, v2
v_xor_b32 v4, 64, v2
v_xor_b32 v5, 96, v2""")
A(f"""v_lshrrev_b32 v16, 5, v1
v_lshlrev_b32 v16, 10, v16
v_bfe_u32 v17, v1, 2, 2
v_lshlrev_b32 v17, 6, v17
v_add_u32 v16, v16, v17
v_and_b32 v17, 3, v1
v_lshlrev_b32 v17, 3, v17
v_add_u32 v16, v16, v17
v_add_u32 v16, {WR}, v16
v_bfe_u32 v17, v1, 4, 1
s_sub_u32 s57, 2, s50
s_lshl_b32 s57, s57, 12
v_mul_u32_u24 v18, s57, v17
v_xor_b32 v19, s13, v17
v_lshlrev_b32 v19, 5, v19
v_add3_u32 v18, v18, v19, v16
v_lshlrev_b32 v19, 5, v17
s_lshl_b32 s57, s13, 9
v_add3_u32 v19, v19, s57, v16
s_cmp_eq_u32 s50, 1
s_cselect_b64 vcc, -1, 0""")
for n in range(5):
    fo = (n >> 1) * 4096 + (n & 1) * 512
    qo = n * 4096
    if n < 2: A(f"v_add_u32 v{vWa[n]}, {fo}, v18")
    elif n == 4: A(f"v_add_u32 v{vWa[n]}, {qo}, v19")
    else:
        A(f"v_add_u32 v20, {fo}, v18\nv_add_u32 v21, {qo}, v19\nv_cndmask_b32 v{vWa[n]}, v20, v21, vcc")
for n in range(5): A(f"v_add_u32 v{vWb[n]}, {4*WSL}, v{vWa[n]}")
def reads(s, kk, dst):
    xs = (s >> 1) % 3; q4 = (s & 1) * 2 + kk; sl = s % 5
    def xr(tt): return f"ds_read_b128 {vr(dst+4*tt,4)}, v{vXa[q4]} offset:{XR + xs*XS + tt*4096}"
    def wr(n, sec):
        a, o = (vWa[n], sl * WSL) if sl < 4 else (vWb[n], 0)
        return f"ds_read_b64_tr_b16 {vr(dst+8+4*n+2*sec,2)}, v{a} offset:{o + kk*2048 + sec*256}"
    R = [xr(0), wr(0, 0), wr(0, 1), xr(1)]
    for n in range(1, 5): R += [wr(n, 0), wr(n, 1)]
    return R
need = {0: 2, 1: 3, 2: 5, 4: 7, 6: 9, 8: 11}
def substep(cur, R, first=False):
    issued = 0
    for j in range(10):
        n, tt = j >> 1, j & 1
        if j in need: A(f"s_waitcnt lgkmcnt({min(15, 11 - need[j] + issued)})")
        a = ACC + 16 * (2 * n + tt)
        c = "0" if first else vr(a, 16)
        A(f"v_mfma_f32_32x32x16_bf16 {vr(a,16)}, {vr(cur+8+4*n,4)}, {vr(cur+4*tt,4)}, {c}")
        k = 2 if j < 2 else 1
        for r in R[issued:issued + k]: A(r)
        issued += len(R[issued:issued + k])
A(f"""v_and_b32 v16, 31, v1
v_lshlrev_b32 v22, 5, v16
s_lshl_b32 s57, s12, 11
s_add_u32 s57, s57, {EX_TOK}
v_add_u32 v22, s57, v22
v_and_b32 v16, 15, v1
s_sub_u32 s57, 2, s50
s_lshl_b32 s57, s57, 6
v_mul_u32_u24 v18, s57, v17
v_xor_b32 v19, s13, v17
v_lshlrev_b32 v19, 4, v19
v_add3_u32 v18, v18, v19, v16
v_lshlrev_b32 v18, 2, v18
v_and_b32 v19, 31, v1
s_lshl_b32 s57, s13, 5
v_add_u32 v19, s57, v19
v_lshlrev_b32 v19, 2, v19""")
for n in range(5):
    fo = EX_COL + ((n >> 1) * 64 + (n & 1) * 32) * 4
    qo = EX_COL + n * 256
    if n < 2: A(f"v_add_u32 v{23+n}, {fo}, v18")
    elif n == 4: A(f"v_add_u32 v{23+n}, {qo}, v19")
    else:
        A(f"v_add_u32 v20, {fo}, v18\nv_add_u32 v21, {qo}, v19\nv_cndmask_b32 v{23+n}, v20, v21, vcc")
A(f"""s_lshl_b32 s57, s47, 2
s_lshl_b32 s58, s12, 1
s_add_u32 s57, s57, s58
s_mul_i32 s70, s57, {112*1024}
s_lshl_b32 s59, s53, 12
s_add_u32 s70, s70, s59
s_lshl_b32 s59, s13, 10
s_add_u32 s70, s70, s59
s_add_u32 s70, s70, {WS_H}
s_lshl_b32 s59, s54, 2
s_lshl_b32 s60, s13, 1
s_add_u32 s59, s59, s60
s_lshl_b32 s71, s59, 6
s_add_u32 s71, s71, s57
s_lshl_b32 s71, s71, 10
s_lshl_b32 s57, s57, 7
s_lshl_b32 s72, s59, 1
s_add_u32 s72, s72, s57
s_lshl_b32 s72, s72, 5
s_add_u32 s72, s72, {WS_FQ}
s_lshl_b32 s73, s48, 3
s_lshl_b32 s60, s13, 2
s_add_u32 s73, s73, s60
s_add_u32 s73, s73, s57
s_lshl_b32 s73, s73, 5
s_add_u32 s73, s73, {WS_FH}
s_add_u32 s74, s73, 4096
s_load_dwordx2 s[24:25], s[0:1], 48
s_load_dwordx2 s[28:29], s[0:1], 16
s_load_dwordx2 s[36:37], s[0:1], 56
s_waitcnt lgkmcnt(0)""")
if OPT["tlb"]:
    A("""v_lshlrev_b32 v16, 21, v1
    v_mov_b32 v17, 0
    s_mov_b64 exec, 0x1ff
    buffer_load_dword v30, v16, s[20:23], 0 offen sc1
    s_mov_b64 exec, 1
    global_load_dword v30, v17, s[36:37] sc1
    global_load_dword v30, v17, s[24:25]
    global_load_dword v30, v17, s[28:29]
    s_mov_b64 exec, -1""")
A("s_waitcnt vmcnt(0)")
A("s_barrier")
PR.stamp()
for r in reads(0, 0, P): A(r)
A.raw(".p2align 3")
for s in range(16):
    substep(P, reads(s, 1, QQ), first=(s == 0))
    A("s_barrier")
    if s < 15: substep(QQ, reads(s + 1, 0, P))
    else:
        R = [f"ds_read_b128 {vr(P,4)}, v22", f"ds_read_b128 {vr(P+4,4)}, v22 offset:1024",
             f"ds_read_b128 v[16:19], v22 offset:16", f"ds_read_b128 v[28:31], v22 offset:1040"]
        R += [f"ds_read_b32 v{P+8+4*n}, v{23+n}" for n in range(5)]
        substep(QQ, R)
    if s in (11,): PR.stamp()
A("s_waitcnt lgkmcnt(0)")
A("s_barrier")
PR.stamp()
A(f"""v_mov_b32 v248, v{P+2}
v_mov_b32 v249, v{P+3}
v_mov_b32 v250, v16
v_mov_b32 v251, v17
v_mov_b32 v252, v{P+6}
v_mov_b32 v253, v{P+7}
v_mov_b32 v254, v28
v_mov_b32 v255, v29
v_cmp_gt_u32 vcc, 32, v1
v_readfirstlane_b32 s80, v18
v_mov_b32 v{P+2}, 0
v_mov_b32 v{P+3}, 0
v_mov_b32 v{P+6}, 0
v_mov_b32 v{P+7}, 0
v_cndmask_b32 v{P}, 0, v{P}, vcc
v_cndmask_b32 v{P+1}, 0, v{P+1}, vcc
v_cndmask_b32 v{P+4}, 0, v{P+4}, vcc
v_cndmask_b32 v{P+5}, 0, v{P+5}, vcc""")
for n in (4, 3, 2, 1, 0):
    w = P + 8 + 4 * n
    A(f"v_mov_b32 v{w+1}, v{w}\nv_mov_b32 v{w+2}, 0\nv_mov_b32 v{w+3}, 0")
for n in (4, 3, 2, 1, 0):
    for tt in range(2):
        a = ACC + 16 * (2 * n + tt)
        A(f"v_mfma_f32_32x32x16_bf16 {vr(a,16)}, {vr(P+8+4*n,4)}, {vr(P+4*tt,4)}, {vr(a,16)}")
A(f"""v_lshlrev_b32 v2, 4, v1
v_and_b32 v3, 31, v1
v_lshlrev_b32 v3, 5, v3
v_lshrrev_b32 v4, 5, v1
v_lshlrev_b32 v4, 4, v4
v_add_u32 v3, v3, v4
v_lshlrev_b32 v8, 8, v1
v_mov_b32 v9, s80""")
T = QQ
for tt in range(2):
    for k in range(3):
        A(f"v_mov_b32 v{68+6*tt+2*k}, v{248+4*tt+1+k}\nv_mov_b32 v{69+6*tt+2*k}, v{248+4*tt+1+k}")
def ffn(n, tt):
    a = ACC + 16 * (2 * n + tt); c = 68 + 6 * tt
    for r in range(0, 8, 2): A(f"v_pk_mul_f32 {vr(T+r,2)}, {vr(a+r,2)}, {vr(a+r,2)}")
    for r in range(0, 8, 2): A(f"v_pk_fma_f32 {vr(T+r,2)}, {vr(T+r,2)}, {vr(c+2,2)}, {vr(c,2)}")
    for r in range(0, 8, 2): A(f"v_pk_mul_f32 {vr(T+r,2)}, {vr(T+r,2)}, {vr(a+r,2)}")
    for r in range(8): A(f"v_exp_f32 v{T+r}, v{T+r}")
    for r in range(0, 8, 2): A(f"v_pk_mul_f32 {vr(a+r,2)}, {vr(a+r,2)}, {vr(a+8+r,2)}")
    for r in range(0, 8, 2): A(f"v_pk_fma_f32 {vr(T+r,2)}, {vr(T+r,2)}, {vr(c+4,2)}, {vr(c+4,2)}")
    for r in range(8): A(f"v_rcp_f32 v{T+r}, v{T+r}")
    A("s_nop 0")
    for r in range(0, 8, 2): A(f"v_pk_mul_f32 {vr(a+r,2)}, {vr(a+r,2)}, {vr(T+r,2)}")
    for d in range(4): A(f"v_cvt_pk_bf16_f32 v{a+8+d}, v{a+2*d}, v{a+2*d+1}")
def ffn_st(n, tt):
    a = ACC + 16 * (2 * n + tt)
    A(f"s_add_u32 s63, s70, {2048*n + tt*112*1024}")
    A(f"buffer_store_dwordx4 {vr(a+8,4)}, v2, s[20:23], s63 offen sc1")
def qkv(n, zoff):
    A(f"""s_add_u32 s60, s54, {zoff}
    s_cmp_lt_u32 s60, 8
    s_mov_b32 s62, {f32(0.25*LOG2E)}
    s_cselect_b32 s62, s62, 1.0
    v_mul_f32 v4, s62, v248
    v_mul_f32 v6, s62, v252
    v_mul_f32 v5, s62, v248
    v_mul_f32 v7, s62, v252""")
    for tt in range(2):
        a = ACC + 16 * (2 * n + tt)
        for r in range(0, 16, 2): A(f"v_pk_mul_f32 {vr(a+r,2)}, {vr(a+r,2)}, {vr(4+2*tt,2)}")
        for d in range(8): A(f"v_cvt_pk_bf16_f32 v{a+d}, v{a+2*d}, v{a+2*d+1}")
        A(f"s_add_u32 s63, s71, {zoff*4*65536 + tt*1024}")
        A(f"buffer_store_dwordx4 {vr(a,4)}, v2, s[20:23], s63 offen sc1")
        A(f"s_add_u32 s63, s63, 65536")
        A(f"buffer_store_dwordx4 {vr(a+4,4)}, v2, s[20:23], s63 offen sc1")
def flag(vm, mask, soff, imm=0, voff=8):
    A(f"s_waitcnt vmcnt({vm})\ns_mov_b64 exec, {mask}\nbuffer_store_dword v9, v{voff}, s[20:23], s{soff} offen offset:{imm} sc1\ns_mov_b64 exec, -1")
A("s_cmp_eq_u32 s50, 1")
A("s_cbranch_scc1 M_TC")
def ffs(n, tt): ffn(n, tt); ffn_st(n, tt)
DF = OPT["defer"]
qkv(4, 0)
if DF:
    ffn(3, 0); ffn(3, 1)
    A("s_barrier")
    ffn(2, 0); ffn(2, 1)
    if DF == 5: flag(0, 1, 72)
    if DF >= 2: ffn(1, 0); ffn(1, 1)
    if DF != 5: flag(0, 1, 72)
    nq = PR.n; PR.stamp()
    if DF >= 3: ffn(0, 0); ffn(0, 1)
    if DF >= 4: A("s_barrier")
    for n in (3, 2):
        for tt in range(2): ffn_st(n, tt)
    if DF == 1: ffs(1, 0); ffs(1, 1); ffs(0, 0); ffs(0, 1)
    elif DF == 2: ffn_st(1, 0); ffn_st(1, 1); ffs(0, 0); ffs(0, 1)
    else: ffn_st(1, 0); ffn_st(1, 1); ffn_st(0, 0); ffn_st(0, 1)
    flag(4, 1, 73)
else:
    ffs(3, 0); ffs(3, 1)
    A("s_barrier")
    ffs(2, 0); ffs(2, 1)
    flag(4, 1, 72)
    ffs(1, 0); ffs(1, 1); ffs(0, 0); ffs(0, 1)
    flag(4, 1, 73)
A("s_branch M_TJ")
A.label("M_TC")
qkv(4, 2); qkv(3, 1); qkv(2, 0)
A("s_barrier")
if DF:
    order = [(1, 0), (1, 1), (0, 0), (0, 1)]
    for t in order[:OPT["cq"]]: ffn(*t)
    flag(0, 7, 72)
    PR.n = nq; PR.stamp()
    for t in order[OPT["cq"]:]: ffn(*t)
    if DF >= 4: A("s_barrier")
    ffn_st(1, 0); ffn_st(1, 1); ffn_st(0, 0); ffn_st(0, 1)
else:
    ffs(1, 0); ffs(1, 1); ffs(0, 0); ffs(0, 1)
    flag(4, 7, 72)
A.label("M_TJ")
PR.stamp()
A("s_mov_b32 s15, s14")
d_setup_w()
XRr, BF, WF, AD, AS = 8, 16, 80, 96, 160
BD, NS = 8, 36
flag(0, 1, 74)
PR.stamp()
DQ = VQ(A)
A(f"""s_and_b32 s57, s2, 7
s_lshl_b32 s50, s57, 2
s_lshr_b32 s57, s2, 3
s_and_b32 s57, s57, 3
s_add_u32 s50, s50, s57
s_lshr_b32 s51, s2, 5
v_lshlrev_b32 v3, 4, v1
s_lshl_b32 s55, s50, 13
s_lshl_b32 s57, s15, 10
s_add_u32 s55, s55, s57
s_add_u32 s55, s55, {WS_FH}
s_add_u32 s75, s55, 4096
v_min_u32 v226, 5, v1
v_lshlrev_b32 v226, 7, v226
v_min_u32 v227, 7, v1
v_lshlrev_b32 v227, 7, v227""")
ld0 = "buffer_load_dword v228, v226, s[20:23], s55 offen sc1"
ld1 = "buffer_load_dword v228, v227, s[20:23], s75 offen sc1"
RP = OPT["rpf"]
for k in range(RP):
    st = WD + k
    A(f"s_lshl_b32 s44, s{UFB[st>>2]}, 14\ns_add_u32 s44, s44, s40")
    if st & 3: A(f"s_add_u32 s44, s44, {(st&3)*16384}")
    A(f"s_add_u32 s45, s44, 8192")
    A(f"buffer_load_dwordx4 {vr(160+8*k,4)}, v2, s[24:27], s44 offen")
    A(f"buffer_load_dwordx4 {vr(164+8*k,4)}, v2, s[24:27], s45 offen")
if OPT["ms"]: A(f"s_sleep {OPT['ms']}")
A(ld0)
A(f"""s_lshl_b32 s57, s50, 1
s_and_b32 s58, s15, 1
s_add_u32 s59, s57, s58
s_xor_b32 s58, s58, 1
s_add_u32 s57, s57, s58
s_mul_i32 s64, s59, {112*1024}
s_add_u32 s64, s64, {WS_H}
s_mul_i32 s65, s57, {112*1024}
s_add_u32 s65, s65, {WS_H}
s_lshl_b32 s58, s15, 13
s_add_u32 s58, s58, {WS_O}
s_lshl_b32 s67, s59, 15
s_add_u32 s67, s67, s58
s_lshl_b32 s53, s57, 15
s_add_u32 s53, s53, s58
v_and_b32 v6, 31, v1
v_lshlrev_b32 v6, 10, v6
v_lshrrev_b32 v7, 5, v1
v_lshlrev_b32 v7, 4, v7
v_add_u32 v224, v6, v7
s_lshl_b32 s54, s59, 15
s_lshl_b32 s57, s51, 7
s_add_u32 s54, s54, s57
s_lshr_b32 s57, s15, 1
s_lshl_b32 s57, s57, 6
s_add_u32 s54, s54, s57
v_lshrrev_b32 v6, 5, v1
v_lshlrev_b32 v6, 8, v6
v_bfe_u32 v7, v1, 2, 2
v_lshlrev_b32 v7, 6, v7
v_add_u32 v6, v6, v7
v_and_b32 v7, 3, v1
v_lshlrev_b32 v7, 3, v7
v_add_u32 v6, v6, v7
v_bfe_u32 v7, v1, 4, 1
v_lshlrev_b32 v7, 5, v7
v_add_u32 v6, v6, v7
s_lshl_b32 s57, s57, 3
v_add_u32 v6, s57, v6
v_xor_b32 v7, 512, v6
v_add_u32 v4, s43, v6
v_add_u32 v5, s43, v7
v_add_u32 v232, 0x10000, v4
v_add_u32 v233, 0x10000, v5
v_add_u32 v234, 0x20000, v4
v_add_u32 v235, 0x20000, v5
s_mov_b32 s32, s4
s_mov_b32 s33, s5
s_mov_b32 s34, 0x200000
s_mov_b32 s35, 0x20000
s_mov_b32 s38, 0x200000
s_mov_b32 s39, 0x20000
s_setprio {OPT['dprio']}
s_waitcnt vmcnt(0)""")
PR.stamp()
spin(A, "MH0", ld0, 228)
PR.stamp()
def htouch(lvl):
    if not OPT["htouch"]: return
    A(f"""v_bfe_u32 v229, v1, 2, 2
    v_lshlrev_b32 v230, 13, v229
    s_mul_i32 s57, s15, {24*1024}
    s_add_u32 s57, s57, {4096 if lvl == 0 else 0}
    v_add_u32 v230, s57, v230
    s_lshl_b32 s58, s15, 12
    s_add_u32 s58, s58, {96*1024}
    v_mov_b32 v231, {'s58' if lvl else 's57'}
    v_cmp_eq_u32 vcc, 3, v229
    v_and_b32 v229, 3, v1
    v_lshlrev_b32 v229, 10, v229
    v_cndmask_b32 v230, v230, v231, vcc
    v_add_u32 v230, v230, v229
    v_bfe_u32 v229, v1, 4, 1
    v_mul_u32_u24 v229, {112*1024}, v229
    v_add_u32 v230, v230, v229
    s_min_u32 s57, s64, s65
    s_lshl_b32 s58, s51, 7
    s_add_u32 s57, s57, s58
    s_mov_b32 exec_hi, 0
    buffer_load_dword v229, v230, s[20:23], s57 offen sc1
    s_mov_b64 exec, -1""")
    DQ.add("HT", 1)
htouch(0)
def issb(s):
    r = BF + 8 * (s % BD)
    if s < 28:
        o = [f"s_lshl_b32 s48, s{UFB[s>>2]}, 10", "s_add_u32 s49, s48, s65", "s_add_u32 s48, s48, s64"] if (s & 3) == 0 else []
    else:
        o = [f"s_add_u32 s48, s67, {(s-28)*1024}", f"s_add_u32 s49, s53, {(s-28)*1024}"] if (s & 3) == 0 else []
    DQ.add(f"B{s}", 2)
    return [o + [f"buffer_load_dwordx4 {vr(r,4)}, v3, s[20:23], s48 offen offset:{(s&3)*1024} sc1"],
            [f"buffer_load_dwordx4 {vr(r+4,4)}, v3, s[20:23], s49 offen offset:{(s&3)*1024} sc1"]]
for s in range(BD - 1): emit(issb(s))
A(f"buffer_load_dwordx4 {vr(XRr,4)}, v224, s[32:35], s54 offen")
A(f"buffer_load_dwordx4 {vr(XRr+4,4)}, v224, s[32:35], s54 offen offset:32")
DQ.add("X", 2)
def rdw(s):
    slot = s % WD; w = WF + 8 * (s & 1)
    hi, lo = DREG[slot] >> 16, DREG[slot] & 0xffff
    vb = [4, 232, 234][hi]
    return [f"ds_read_b64_tr_b16 {vr(w+4*u+2*sec,2)}, v{vb+u} offset:{lo+sec*1024}" for u in range(2) for sec in range(2)]
for i in rdw(0): A(i)
DQ.wait("B0")
L1S = OPT["l1s"]
def tB(sp): return max(sp - (BD - 1), L1S) if sp >= 12 else sp - (BD - 1)
def xaddr(base3, which, a, qd):
    k = (a - 1) * 4 + qd
    reg = DREG[(8 if which == 0 else 0) + (k >> 1)] + (k & 1) * 1024
    return base3[reg >> 16], reg & 0xffff
def dump(which, acc):
    for a in range(1, 4):
        for qd in range(4):
            vb, off = xaddr([236, 6, 7], which, a, qd)
            A(f"ds_write_b128 v{vb}, {vr(acc+16*a+4*qd,4)} offset:{off}")
def fetch(which, acc):
    for a in range(1, 4):
        b = 237 + 3 * (a - 1)
        for qd in range(4):
            vb, off = xaddr([b, b + 1, b + 2], which, a, qd)
            A(f"ds_read_b128 {vr(acc+16*a+4*qd,4)}, v{vb} offset:{off}")
def sum4(acc):
    for r in range(0, 16, 2):
        A(f"v_pk_add_f32 {vr(acc+r,2)}, {vr(acc+r,2)}, {vr(acc+16+r,2)}\nv_pk_add_f32 {vr(acc+32+r,2)}, {vr(acc+32+r,2)}, {vr(acc+48+r,2)}")
    for r in range(0, 16, 2): A(f"v_pk_add_f32 {vr(acc+r,2)}, {vr(acc+r,2)}, {vr(acc+32+r,2)}")
for s in range(NS):
    w = WF + 8 * (s & 1); b = BF + 8 * (s % BD)
    acc = AD if s < 28 else AS
    if s == 12: PR.stamp()
    if s == 28:
        PR.stamp()
        A("s_nop 7\ns_nop 1")
        dump(0, AD)
        DQ.wait("PO")
        A("""v_cmp_eq_u32 vcc, s80, v228
        s_mov_b32 s46, 0
        s_cmp_eq_u64 vcc, -1
        s_cbranch_scc1 M_OOK
        s_mov_b32 s46, 1""")
        A(ld2)
        A("s_call_b64 s[66:67], M_GATE" if False else "s_call_b64 s[70:71], M_GATE")
        A("s_waitcnt vmcnt(0)")
        spin(A, "MO", ld2, 228)
        A.label("M_OOK")
        PR.stamp()
        for sp in range(28, 36): emit(issb(sp))
        A("s_cmp_eq_u32 s46, 1\ns_cbranch_scc1 M_GDONE\ns_call_b64 s[70:71], M_GATE")
        A.label("M_GDONE")
        DQ.wait("B28")
    if s + 1 < NS:
        DQ.wait([f"W{s+1}", f"B{s+1}"])
        for i in rdw(s + 1): A(i)
        A("s_waitcnt lgkmcnt(4)")
    else:
        A("s_waitcnt lgkmcnt(0)")
    if s == L1S - 3:
        A(ld1); DQ.add("P1", 1)
    if s == L1S:
        DQ.wait("P1")
        spin(A, "MH1", ld1, 228)
        htouch(1)
    if s == 0:
        A("v_add_u32 v236, s43, v3\nv_add_u32 v6, 0x10000, v236\nv_add_u32 v7, 0x20000, v236")
    if s == 20:
        for a in range(1, 4):
            bb = 237 + 3 * (a - 1)
            A(f"s_xor_b32 s57, s15, {a}\ns_lshl_b32 s57, s57, 11\nv_add_u32 v{bb}, s57, v3\nv_add_u32 v{bb+1}, 0x10000, v{bb}\nv_add_u32 v{bb+2}, 0x20000, v{bb}")
    if s == 25:
        A(f"""s_lshl_b32 s55, s50, 12
        s_lshl_b32 s57, s15, 10
        s_add_u32 s55, s55, s57
        s_add_u32 s55, s55, {WS_FO}""")
        ld2 = "buffer_load_dword v228, v227, s[20:23], s55 offen sc1"
        A(ld2); DQ.add("PO", 1)
    grp = []
    for sp in range(BD - 1, 28):
        if tB(sp) == s: grp += issb(sp)
    if 1 <= s <= RP:
        reg = DREG[s - 1]; vb = [236, 6, 7][reg >> 16]
        grp += [[f"ds_write_b128 v{vb}, {vr(160+8*(s-1),4)} offset:{reg & 0xffff}"], [f"ds_write_b128 v{vb}, {vr(164+8*(s-1),4)} offset:{(reg & 0xffff)+1024}"]]
    elif s >= 1 and s + WD - 1 < NS: grp += issw(s + WD - 1, DQ)
    per = [grp[(len(grp) * a) // 4:(len(grp) * (a + 1)) // 4] for a in range(4)]
    for a in range(4):
        u, tt = a >> 1, a & 1
        r = acc + 16 * a
        c = "0" if s in (0, 28) else vr(r, 16)
        A(f"v_mfma_f32_32x32x16_bf16 {vr(r,16)}, {vr(w+4*u,4)}, {vr(b+4*tt,4)}, {c}")
        for g in per[a]:
            for i in g: A(i)
PR.stamp()
A("s_nop 7\ns_nop 1")
dump(1, AS)
A("s_waitcnt lgkmcnt(0)")
A("s_barrier")
fetch(1, AS)
A("s_waitcnt lgkmcnt(0)")
sum4(AS)
for r in range(0, 16, 2): A(f"v_pk_fma_f32 {vr(AD+r,2)}, {vr(AD+r,2)}, {vr(AS+r,2)}, {vr(AD+32+r,2)}")
for d in range(8): A(f"v_cvt_pk_bf16_f32 v{XRr+d}, v{AD+2*d}, v{AD+2*d+1}")
A("s_nop 1")
for j in range(2):
    A(f"v_permlane32_swap_b32 v{XRr+4*j}, v{XRr+4*j+2}\nv_permlane32_swap_b32 v{XRr+4*j+1}, v{XRr+4*j+3}")
osc = "sc1" if OPT["osc"] else ""
A(f"buffer_store_dwordx4 {vr(XRr,4)}, v224, s[36:39], s54 offen {osc}")
A(f"buffer_store_dwordx4 {vr(XRr+4,4)}, v224, s[36:39], s54 offen offset:32 {osc}")
PR.stamp()
PR.dump(2)
A("s_endpgm")
def gate():
    A("s_waitcnt lgkmcnt(0)")
    A("s_barrier")
    fetch(0, AD)
    for j in range(2):
        A(f"v_permlane32_swap_b32 v{XRr+4*j}, v{XRr+4*j+2}\nv_permlane32_swap_b32 v{XRr+4*j+1}, v{XRr+4*j+3}")
    A("s_waitcnt lgkmcnt(0)")
    sum4(AD)
    T = AD + 16
    for r in range(16): A(f"v_mul_f32 v{T+r}, {f32(-LOG2E)}, v{AD+r}")
    for r in range(16): A(f"v_exp_f32 v{T+r}, v{T+r}")
    for d in range(8): A(f"v_lshlrev_b32 v{T+16+2*d}, 16, v{XRr+d}\nv_and_b32 v{T+17+2*d}, 0xffff0000, v{XRr+d}")
    for r in range(16): A(f"v_add_f32 v{T+r}, 1.0, v{T+r}")
    for r in range(16): A(f"v_rcp_f32 v{T+r}, v{T+r}")
    A("s_nop 0")
    for r in range(0, 16, 2): A(f"v_pk_mul_f32 {vr(AD+r,2)}, {vr(AD+r,2)}, {vr(T+r,2)}")
A.label("M_GATE")
gate()
A("s_setpc_b64 s[70:71]")
A.label("L_CODE_END")
A.raw('.section .rodata,"a"')
A.raw(kernel_desc(NAME, 256))
txt = A.text()
if OPT.get("plainst"):
    import re
    txt = re.sub(r"(buffer_store_dwordx4 .*s63 offen) sc1", r"\1", txt)
if OPT.get("align", 1):
    import align
    txt = align.align(txt)
print(txt)
```

```python
import sys, math
from asmlib import *

NAME = "recurrent_scan__sliding_block__geglu_ffn__prompt_kernel"
WS_Q = 0; WS_K = 2 << 20; WS_V = 4 << 20; WS_O = 6 << 20; WS_H = 8 << 20
WS_TOK = 16 << 20
WS_CS = (16 << 20) + 65536
WS_FO = 17 << 20
WS_FH = (17 << 20) + (1 << 18)
WS_FQ = (17 << 20) + (2 << 18)
LOG2E = 1.4426950408889634
OPT = dict(prof=0, rot=2, codepf=1, wd=14, sleep=8, warm=7, thr=6, aprio=3, l2pf=0, rotd=1, hs=56, dprio=0, wtouch=0, htouch=1, wts=10, defer=1, gat=10, gc=13, hprio=0, l1s=8, osc=0, cq=2, ms=16, ntx=0, ntw=4, share=1, l2end=11, aprio2=3, rpf=0, pub=7, gd=1, vw=4, epf=16, tlb=0, wt2=0)
for a in sys.argv[1:]:
    k, v = a.split("="); OPT[k] = int(v)
XR = 0; XS = 16384; WR = 49152; WSL = 20480; EX = 151552
EX_TOK = EX; EX_COL = EX + 4096
DREG = [32768, 40960, 69632, 77824,   86016, 94208, 102400,   110592, 118784, 0, 8192,   126976, 135168, 143360]
DAVAIL = {13: 4, 14: 3, 15: 4, 16: 3}
LONE = 26624
SPIN = 20000

class Prof:
    def __init__(self, A, base=82): self.A = A; self.n = 0; self.base = base
    def stamp(self, real=False):
        if not OPT["prof"]: return
        i = self.n; self.n += 1
        assert i < 16
        self.A(f"{'s_memrealtime' if (real or OPT['prof'] == 2) else 's_memtime'} s[100:101]")
        self.A("s_waitcnt lgkmcnt(0)")
        self.A(f"s_mov_b32 s{self.base+i}, s100")
    def dump(self, vt):
        if not OPT["prof"]: return
        A = self.A
        while self.n < 15: self.stamp()
        self.stamp(True)
        A(f"s_lshl_b32 s68, s2, 3\ns_add_u32 s68, s68, s14\ns_lshl_b32 s68, s68, 6\ns_add_u32 s68, s68, {32<<20}")
        A(f"v_mov_b32 v{vt}, 0")
        for i in range(self.n):
            A(f"v_mov_b32 v{vt+1}, s{self.base+i}")
            A(f"buffer_store_dword v{vt+1}, v{vt}, s[20:23], s68 offen offset:{4*i}")

class VQ:
    def __init__(self, A): self.A = A; self.q = []
    def add(self, tag, n): self.q.append((tag, n))
    def wait(self, tags):
        if isinstance(tags, str): tags = [tags]
        idx = max([i for i, (t, _) in enumerate(self.q) if t in tags], default=-1)
        if idx < 0: return
        rest = sum(c for _, c in self.q[idx + 1:])
        assert rest < 64
        self.A(f"s_waitcnt vmcnt({rest})")
        del self.q[:idx + 1]
    def has(self, tag): return tag in [t for t, _ in self.q]
    def clear(self): self.q = []

def spin(A, name, load, vval, maskexpr=None, cnt=56):
    A(f"""v_cmp_eq_u32 vcc, s80, v{vval}
    s_mov_b32 s{cnt}, 0
    s_cmp_eq_u64 vcc, -1
    s_cbranch_scc1 {name}_OK""")
    A.label(f"{name}_P")
    A(f"""s_sleep {OPT['sleep']}
    {load}
    s_add_u32 s{cnt}, s{cnt}, 1
    s_waitcnt vmcnt(0)
    v_cmp_eq_u32 vcc, s80, v{vval}
    s_cmp_gt_u32 s{cnt}, {SPIN}
    s_cbranch_scc1 {name}_OK
    s_cmp_eq_u64 vcc, -1
    s_cbranch_scc0 {name}_P""")
    A.label(f"{name}_OK")

A = Asm()
A.raw(f"""; recurrent_scan__sliding_block__geglu_ffn__prompt -- hand-designed gfx950 kernel, emitted by my own python generator.
; @launch grid=(256,1,1) block=(512,1,1) lds=163840
.amdgcn_target "amdgcn-amd-amdhsa--gfx950"
.text""")
kernel_header(A, NAME)
PR = Prof(A)
A("""s_load_dwordx4 s[4:7], s[0:1], 0
s_load_dwordx4 s[8:11], s[0:1], 32
s_load_dwordx4 s[16:19], s[0:1], 64""")
if OPT["epf"]:
    A("s_getpc_b64 s[24:25]")
    A.label("L_PC0")
    nl = OPT["epf"]
    A(f"""v_and_b32 v16, {nl-1}, v0
    v_bfe_u32 v17, v0, 6, 2
    v_mul_u32_u24 v17, {nl}, v17
    v_add_lshl_u32 v16, v16, v17, 7
    v_add_u32 v17, L_M-L_PC0, v16
    v_cmp_gt_u32 vcc, 256, v0
    s_mov_b64 exec, {(1<<nl)-1}
    s_nop 0
    v_cndmask_b32 v16, v16, v17, vcc
    global_load_dword v29, v16, s[24:25]
    s_mov_b64 exec, -1""")
A("""s_cmp_ge_u32 s2, 256
s_cbranch_scc1 L_END
v_and_b32 v1, 63, v0
v_lshrrev_b32 v16, 6, v0
s_and_b32 s57, s2, 7
v_readfirstlane_b32 s14, v16
s_lshr_b32 s58, s2, 3
s_and_b32 s44, s57, 1
s_and_b32 s45, s58, 7
s_lshl_b32 s47, s44, 3
s_add_u32 s47, s47, s45
s_lshr_b32 s46, s57, 1
s_lshr_b32 s49, s58, 3
s_lshl_b32 s48, s46, 2
s_add_u32 s48, s48, s49
s_mul_i32 s51, s46, 3
s_add_u32 s52, s51, s49
s_lshl_b32 s53, s52, 1
s_add_u32 s57, s46, 24
s_add_u32 s54, s51, 12
s_cmp_eq_u32 s49, 3
s_cselect_b32 s50, 1, 0
s_cselect_b32 s53, s57, s53
s_cselect_b32 s54, s54, s52
s_and_b32 s15, s14, 3
s_cmp_lt_u32 s14, 4
s_cbranch_scc1 L_M""")
def ws_srd():
    A("""s_mov_b32 s20, s18
    s_mov_b32 s21, s19
    s_mov_b32 s22, 0x10000000
    s_mov_b32 s23, 0x20000
    s_mov_b32 s18, 256
    s_mov_b32 s19, 0x20000""")
vDW = [2, 3, 4, 5, 6]; vDX = [7, 8]
ROT = OPT["rot"]
A("""s_lshl_b32 s58, s15, 15
v_lshrrev_b32 v16, 3, v1
v_lshlrev_b32 v16, 10, v16
v_add_u32 v16, s58, v16
v_lshrrev_b32 v17, 4, v1
v_xor_b32 v17, v17, v1
v_and_b32 v17, 7, v17
v_lshlrev_b32 v17, 4, v17
v_add_u32 v7, v16, v17
v_xor_b32 v8, 64, v7
s_lshl_b32 s12, s15, 12
s_lshl_b32 s13, s15, 10
s_lshl_b32 s57, s47, 17""")
if ROT == 1: A("s_lshl_b32 s81, s49, 2\ns_lshl_b32 s58, s45, 1\ns_add_u32 s81, s81, s58")
elif ROT == 2: A("s_add_u32 s81, s49, s45\ns_lshl_b32 s81, s81, 2")
elif ROT == 3: A("s_add_u32 s81, s49, s45\ns_lshl_b32 s81, s81, 3")
elif ROT == 0: A("s_mov_b32 s81, 0")
A("""s_waitcnt lgkmcnt(0)
s_add_u32 s72, s4, s57
s_addc_u32 s73, s5, 0
s_mov_b32 s74, 0x20000
s_mov_b32 s75, 0x20000""")
PR.stamp(True); PR.stamp()
def dma_x(u):
    o = []
    for jj in range(4):
        pre = [f"s_add_u32 s56, s81, {2*u}", "s_and_b32 s56, s56, 15", "s_lshl_b32 s56, s56, 6"] if jj == 0 else []
        o.append(pre + [f"s_add_u32 m0, s12, {XR + (u%3)*XS + jj*1024}", f"s_add_u32 s59, s56, {jj*8192}",
                        f"buffer_load_dwordx4 v{vDX[jj&1]}, s[72:75], s59 offen {'nt ' if 2*u < OPT['ntx'] else ''}lds"])
    return o
def emit(groups):
    for g in groups:
        for i in g: A(i)
    return len(groups)
A(f"s_setprio {OPT['hprio']}")
Q = VQ(A)
n0 = emit(dma_x(0))
A("s_lshl_b32 s55, s53, 7\ns_lshl_b32 s56, s54, 7")
tabA = [(8, 55, 0), (8, 55, 128), (10, 55, 0), (10, 55, 128), (6, 56, 0)]
tabC = [(8, 55, 0), (10, 55, 0), (6, 56, 0), (6, 56, 128), (6, 56, 256)]
A("""v_bfe_u32 v16, v1, 2, 3
s_lshl_b32 s57, s15, 3
v_add_u32 v16, s57, v16
v_lshrrev_b32 v17, 5, v1
v_lshlrev_b32 v17, 6, v17
v_and_b32 v18, 3, v1
v_lshlrev_b32 v18, 4, v18
v_add_u32 v17, v17, v18
s_lshl_b32 s66, s50, 5
s_xor_b32 s67, s66, 32""")
swap = {0: None, 1: 66, 2: 67, 3: 67, 4: None}
for D in range(5):
    S = 24 + 4 * D
    (pa, ca, oa), (pc, cc_, oc) = tabA[D], tabC[D]
    A("s_cmp_eq_u32 s50, 1")
    if pa != pc:
        A(f"s_cselect_b32 s{S}, s{pc}, s{pa}\ns_cselect_b32 s{S+1}, s{pc+1}, s{pa+1}")
        src = S
    else: src = pa
    if ca != cc_: A(f"s_cselect_b32 s57, s{cc_}, s{ca}"); cs = 57
    else: cs = ca
    if oa != oc: A(f"s_cselect_b32 s58, {oc}, {oa}")
    sa = 3072 if pa == 6 else 3584; sc = 3072 if pc == 6 else 3584
    A(f"s_movk_i32 s{60+D}, {sa}")
    if sa != sc: A(f"s_cselect_b32 s{60+D}, {sc}, s{60+D}")
    if oa != oc: A(f"s_add_u32 s57, s{cs}, s58"); cs = 57
    elif oa: A(f"s_add_u32 s57, s{cs}, {oa}"); cs = 57
    A(f"s_add_u32 s{S}, s{src}, s{cs}\ns_addc_u32 s{S+1}, s{src+1}, 0")
    A(f"v_mul_u32_u24 v18, s{60+D}, v16")
    if swap[D]:
        A(f"v_xor_b32 v19, s{swap[D]}, v17\nv_add_u32 v{vDW[D]}, v18, v19")
    else:
        A(f"v_add_u32 v{vDW[D]}, v18, v17")
    A(f"s_lshl_b32 s{S+2}, s{60+D}, 9\ns_mov_b32 s{S+3}, 0x20000")
def dma_w(k):
    o = []
    for D in range(5):
        S = 24 + 4 * D
        pre = [f"s_add_u32 s56, s81, {k}", "s_and_b32 s56, s56, 15", "s_lshl_b32 s56, s56, 5"] if D == 0 else []
        o.append(pre + [f"s_add_u32 m0, s13, {WR + (k%5)*WSL + D*4096}", f"s_mul_i32 s59, s{60+D}, s56",
                        f"buffer_load_dwordx4 v{vDW[D]}, s[{S}:{S+3}], s59 offen {'nt ' if k < OPT['ntw'] else ''}lds"])
    return o
def G(k):
    g = (dma_x(k // 2) if k % 2 == 0 else []) + dma_w(k)
    Q.add(f"S{k}", emit(g))
Q.add("S0", n0 + emit(dma_w(0)))
G(1)
ws_srd()
A("""s_or_b32 s57, s2, s15
s_cmp_lg_u32 s57, 0
s_cbranch_scc1 H_NONONCE
s_memrealtime s[56:57]
s_waitcnt lgkmcnt(0)
s_mul_i32 s56, s56, 0x9e3779b1
s_or_b32 s56, s56, 1
v_mov_b32 v16, 0
v_mov_b32 v17, s56
buffer_store_dword v17, v16, s[16:19], 0 offen sc1""")
A.label("H_NONONCE")
A("s_lshl_b32 s69, s47, 5")
if ROT == 2: A("s_lshr_b32 s55, s45, 2\ns_lshl_b32 s57, s44, 1\ns_add_u32 s55, s55, s57")
elif ROT == 1: A("s_mov_b32 s55, s44")
elif ROT == 3: A("s_lshr_b32 s55, s45, 1\ns_lshl_b32 s57, s44, 2\ns_add_u32 s55, s55, s57")
if ROT == 0: A("s_and_b32 s55, s45, 3")
NDELTA = {0: 4, 1: 2, 2: 4, 3: 8}[ROT]
def pf_setup():
    A("""v_lshrrev_b32 v20, 3, v1
    v_and_b32 v21, 3, v20
    v_lshrrev_b32 v20, 2, v20
    v_lshlrev_b32 v20, 5, v20
    v_add_u32 v20, v20, v21
    s_lshl_b32 s57, s45, 2
    v_add_u32 v20, s57, v20
    v_and_b32 v21, 7, v1
    v_lshlrev_b32 v21, 4, v21""")
    for D in range(5):
        A(f"v_mul_u32_u24 v{116+D}, s{60+D}, v20\nv_add_u32 v{116+D}, v{116+D}, v21")
    A("""v_lshrrev_b32 v20, 3, v1
    v_lshlrev_b32 v20, 10, v20
    s_lshl_b32 s57, s49, 15
    s_lshl_b32 s58, s15, 13
    s_add_u32 s57, s57, s58
    v_add3_u32 v121, v20, v21, s57""")
def pf_burst(u0, u1):
    n = 0
    for u in range(u0, u1):
        A(f"s_movk_i32 s59, {u*128}\nbuffer_load_dwordx4 {vr(128+4*u,4)}, v121, s[72:75], s59 offen"); n += 1
    for u in range(u0, u1):
        A(f"s_mul_i32 s59, s{PFS}, {64*u}\nbuffer_load_dwordx4 {vr(160+4*u,4)}, v122, s[{PFR}:{PFR+3}], s59 offen"); n += 1
        lb = f"H_PF{u}"
        A(f"s_cmp_eq_u32 s15, {u%4}\ns_cbranch_scc0 {lb}\ns_mul_i32 s59, s64, {64*u}\nbuffer_load_dwordx4 {vr(192+4*(u>>2),4)}, v120, s[40:43], s59 offen")
        A.label(lb)
    Q.add("PF", n)
PFR, PFS = 76, 71
BUR = {}
if OPT.get("burst"):
    pf_setup()
    A(f"s_mov_b32 s{PFR}, s24\ns_mov_b32 s{PFR+1}, s25\ns_mov_b32 s{PFR+2}, s26\ns_mov_b32 s{PFR+3}, 0x20000\ns_mov_b32 s{PFS}, s60\nv_mov_b32 v122, v116")
    for D in (1, 2, 3):
        A(f"""s_cmp_eq_u32 s15, {D}
        s_cselect_b32 s{PFR}, s{24+4*D}, s{PFR}
        s_cselect_b32 s{PFR+1}, s{25+4*D}, s{PFR+1}
        s_cselect_b32 s{PFR+2}, s{26+4*D}, s{PFR+2}
        s_cselect_b32 s{PFS}, s{60+D}, s{PFS}
        s_cselect_b64 vcc, -1, 0
        v_cndmask_b32 v122, v122, v{116+D}, vcc""")
    BUR = {1: {-1: (1, 3), 1: (3, 6), 5: (6, 8)}, 2: {-1: (1, 4), 2: (4, 8)}, 3: {-1: (1, 2), 0: (2, 3), 1: (3, 4), 3: (4, 5), 5: (5, 6), 7: (6, 7), 9: (7, 8)}, 4: {-1: (1, 8)}}[OPT["burst"]]
    pf_burst(*BUR[-1])
A(f"""v_lshrrev_b32 v16, 5, v1
v_lshlrev_b32 v16, 10, v16
v_bfe_u32 v17, v1, 2, 2
v_lshlrev_b32 v17, 6, v17
v_add_u32 v16, v16, v17
v_and_b32 v17, 3, v1
v_lshlrev_b32 v17, 3, v17
v_add_u32 v16, v16, v17
v_bfe_u32 v17, v1, 4, 1
v_lshlrev_b32 v17, 5, v17
s_lshr_b32 s58, s15, 1
s_lshl_b32 s58, s58, 12
s_and_b32 s59, s15, 1
s_lshl_b32 s59, s59, 9
s_add_u32 s58, s58, s59
v_add3_u32 v12, v16, v17, s58
v_lshlrev_b32 v9, 4, v1
v_mov_b32 v10, 0""")
sched = {0: [2], 1: [3], 2: [4, 5]}
for s in range(3, 13): sched[s] = [s + 3]
def col_valu(js, fin):
    for j in js:
        b = 48 + 8 * j; acc = 44 + j
        for d in range(8):
            A(f"v_lshlrev_b32 v18, 16, v{b+d}\nv_and_b32 v19, 0xffff0000, v{b+d}")
            if d == 0: A(f"v_add_f32 v{acc}, v18, v19")
            else: A(f"v_add_f32 v{acc}, v{acc}, v18\nv_add_f32 v{acc}, v{acc}, v19")
    if fin:
        for j in range(3): A(f"v_mov_b32 v{72+2*j}, v{44+j}")
        A("s_nop 1")
        for j in range(3): A(f"v_permlane32_swap_b32 v{72+2*j}, v{44+j}")
        A("s_nop 1")
        for j in range(3): A(f"v_add_f32 v{72+2*j}, v{72+2*j}, v{44+j}")
def row_valu(part):
    if part == 0:
        for rrow in range(2):
            b = 32 + 4 * rrow; sx = 40 + 2 * rrow; sq = sx + 1
            for d in range(4):
                A(f"v_lshlrev_b32 v18, 16, v{b+d}\nv_and_b32 v19, 0xffff0000, v{b+d}")
                if d == 0: A(f"v_add_f32 v{sx}, v18, v19\nv_mul_f32 v{sq}, v18, v18\nv_fmac_f32 v{sq}, v19, v19")
                else: A(f"v_add_f32 v{sx}, v{sx}, v18\nv_fmac_f32 v{sq}, v18, v18\nv_add_f32 v{sx}, v{sx}, v19\nv_fmac_f32 v{sq}, v19, v19")
    else:
        for dpp in ("quad_perm:[1,0,3,2] row_mask:0xf bank_mask:0xf", "quad_perm:[2,3,0,1] row_mask:0xf bank_mask:0xf",
                    "row_half_mirror row_mask:0xf bank_mask:0xf", "row_mirror row_mask:0xf bank_mask:0xf",
                    "row_bcast:15 row_mask:0xa bank_mask:0xf", "row_bcast:31 row_mask:0xc bank_mask:0xf"):
            for r in range(40, 44): A(f"v_add_f32_dpp v{r}, v{r}, v{r} {dpp}")
def get_nonce(tag, vz, vn):
    A(f"""v_readfirstlane_b32 s80, v{vn}
    s_mov_b32 s57, 0
    s_cmp_eq_u32 s80, 0
    s_cbranch_scc0 {tag}_GOTN""")
    A.label(f"{tag}_POLLN")
    A(f"""buffer_load_dword v{vn}, v{vz}, s[16:19], 0 offen sc1
    s_add_u32 s57, s57, 1
    s_waitcnt vmcnt(0)
    v_readfirstlane_b32 s80, v{vn}
    s_cmp_gt_u32 s57, {SPIN}
    s_cbranch_scc1 {tag}_GOTN
    s_cmp_eq_u32 s80, 0
    s_cbranch_scc1 {tag}_POLLN""")
    A.label(f"{tag}_GOTN")
def publish():
    get_nonce("H", 10, 11)
    A(f"""s_lshl_b32 s57, s48, 4
    s_add_u32 s57, s57, s47
    s_mul_i32 s57, s57, 2560
    s_lshl_b32 s58, s15, 8
    s_add_u32 s57, s57, s58
    s_add_u32 s57, s57, {WS_CS}
    v_lshlrev_b32 v16, 3, v1
    v_mov_b32 v73, s80
    v_mov_b32 v75, s80
    v_mov_b32 v77, s80
    s_mov_b32 exec_hi, 0
    buffer_store_dwordx2 v[72:73], v16, s[20:23], s57 offen sc1
    buffer_store_dwordx2 v[74:75], v16, s[20:23], s57 offen offset:1024 sc1
    s_cmp_ge_u32 s15, 2
    s_cbranch_scc1 H_NO3
    buffer_store_dwordx2 v[76:77], v16, s[20:23], s57 offen offset:2048 sc1""")
    A.label("H_NO3")
    A(f"""s_mov_b32 exec_lo, 0
    s_mov_b32 exec_hi, 0x80000000
    s_lshl_b32 s57, s69, 6
    s_lshl_b32 s58, s48, 7
    s_add_u32 s57, s57, s58
    s_lshl_b32 s58, s15, 5
    s_add_u32 s57, s57, s58
    s_add_u32 s57, s57, {WS_TOK}
    v_mov_b32 v48, v40
    v_mov_b32 v49, v41
    v_mov_b32 v50, s80
    v_mov_b32 v51, s80
    v_mov_b32 v52, v42
    v_mov_b32 v53, v43
    v_mov_b32 v54, s80
    v_mov_b32 v55, s80
    buffer_store_dwordx4 v[48:51], v10, s[20:23], s57 offen sc1
    buffer_store_dwordx4 v[52:55], v10, s[20:23], s57 offen offset:16 sc1
    s_mov_b64 exec, -1""")
def gather_loads(part=None):
    if part == 0:
        for m in range(6):
            A(f"s_add_u32 s59, s66, {m*5120}")
            A(f"buffer_load_dwordx4 {vr(64+4*m,4)}, v16, s[20:23], s59 offen sc1")
        return
    for m in range(6 if part == 1 else 0, 8):
        A(f"s_add_u32 s59, s66, {m*5120}")
        A(f"buffer_load_dwordx4 {vr(64+4*m,4)}, v16, s[20:23], s59 offen sc1")
    for m in range(2):
        A(f"s_add_u32 s59, s66, {m*8*2560}")
        A(f"buffer_load_dwordx4 {vr(96+4*m,4)}, v17, s[20:23], s59 offen sc1")
    A("buffer_load_dwordx4 v[104:107], v18, s[20:23], s67 offen sc1")
def gather_prep():
    A(f"""s_mul_i32 s66, s48, {16*2560}
    s_add_u32 s66, s66, {WS_CS}
    v_and_b32 v18, 31, v1
    v_lshlrev_b32 v18, 4, v18
    v_lshrrev_b32 v16, 5, v1
    v_mul_u32_u24 v16, 2560, v16
    s_lshl_b32 s58, s15, 9
    v_add3_u32 v16, v16, v18, s58
    v_and_b32 v17, 7, v1
    v_lshlrev_b32 v17, 4, v17
    v_lshrrev_b32 v19, 3, v1
    v_mul_u32_u24 v19, 2560, v19
    s_lshl_b32 s58, s15, 7
    s_add_u32 s58, s58, 2048
    v_add3_u32 v17, v17, v19, s58
    s_lshl_b32 s67, s69, 6
    s_lshl_b32 s59, s15, 9
    s_add_u32 s67, s67, s59
    s_add_u32 s67, s67, {WS_TOK}""")
def gather_check():
    A("s_mov_b32 s70, 0")
    Q.wait("GA")
    A.label("H_GCHK")
    tags = list(range(65, 104, 2)) + [106]
    A(f"v_and_b32 v19, v{tags[0]}, v{tags[1]}\nv_or_b32 v20, v{tags[0]}, v{tags[1]}")
    rest = tags[2:]
    for k in range(0, len(rest) - 1, 2):
        A(f"v_bitop3_b32 v19, v19, v{rest[k]}, v{rest[k+1]} bitop3:0x80\nv_or3_b32 v20, v20, v{rest[k]}, v{rest[k+1]}")
    if len(rest) % 2: A(f"v_and_b32 v19, v19, v{rest[-1]}\nv_or_b32 v20, v20, v{rest[-1]}")
    A(f"""v_xor_b32 v19, s80, v19
    v_xor_b32 v20, s80, v20
    v_or_b32 v19, v19, v20
    v_cmp_eq_u32 vcc, 0, v19
    s_add_u32 s70, s70, 1
    s_cmp_gt_u32 s70, {SPIN}
    s_cbranch_scc1 H_GOK
    s_cmp_eq_u64 vcc, -1
    s_cbranch_scc1 H_GOK
    s_sleep 4""")
    gather_loads()
    A("s_waitcnt vmcnt(0)")
    A("s_branch H_GCHK")
    A.label("H_GOK")
def gather_cols():
    st = 4
    while st <= 16:
        for r in range(64, 96, 2 * st):
            A(f"v_add_f32 v{r}, v{r}, v{r+st}\nv_add_f32 v{r+2}, v{r+2}, v{r+st+2}")
        st *= 2
    A("""v_add_f32 v96, v96, v100
    v_add_f32 v98, v98, v102
    v_mov_b32 v65, v64
    v_mov_b32 v67, v66
    v_add_f32_dpp v96, v96, v96 row_ror:8 row_mask:0xf bank_mask:0xf
    v_add_f32_dpp v98, v98, v98 row_ror:8 row_mask:0xf bank_mask:0xf
    v_permlane32_swap_b32 v65, v64
    v_permlane32_swap_b32 v67, v66
    v_mov_b32 v97, v96
    v_mov_b32 v99, v98
    v_add_f32 v64, v64, v65
    v_add_f32 v66, v66, v67
    v_permlane32_swap_b32 v97, v96
    v_permlane32_swap_b32 v99, v98
    s_nop 0
    v_add_f32 v96, v96, v97
    v_add_f32 v98, v98, v99
    v_mov_b32 v97, v96
    v_mov_b32 v99, v98
    s_nop 1
    v_permlane16_swap_b32 v97, v96
    v_permlane16_swap_b32 v99, v98
    s_nop 0
    v_add_f32 v96, v96, v97
    v_add_f32 v98, v98, v99""")
    for r, d in ((64, 68), (66, 69), (96, 70), (98, 71)):
        A(f"""v_cvt_pk_bf16_f32 v{r+1}, v{r}, v{r}
        v_and_b32 v{r+1}, 0xffff0000, v{r+1}
        v_sub_f32 v{r}, v{r}, v{r+1}
        v_cvt_pk_bf16_f32 v{d}, v{r+1}, v{r}""")
    A(f"""v_lshrrev_b32 v16, 1, v18
    s_lshl_b32 s58, s15, 8
    s_add_u32 s58, s58, {EX_COL}
    v_add_u32 v16, s58, v16
    ds_write_b64 v16, v[68:69]
    v_and_b32 v17, 7, v1
    v_lshlrev_b32 v17, 3, v17
    s_lshl_b32 s58, s15, 6
    s_add_u32 s58, s58, {EX_COL + 1024}
    v_add_u32 v17, s58, v17
    ds_write_b64 v17, v[70:71]""")
def gather_toks():
    c1 = -2.0 * math.sqrt(2.0 / math.pi) * LOG2E
    c3 = c1 * 0.044715
    A(f"""    v_mul_f32 v104, {f32(-1/512)}, v104
    v_mul_f32 v105, {f32(1/512)}, v105
    v_fma_f32 v105, -v104, v104, v105
    v_max_f32 v105, 0, v105
    v_add_f32 v113, {f32(1e-5)}, v105
    v_rsq_f32 v110, v113
    v_cvt_pk_bf16_f32 v108, v104, v104
    v_and_b32 v106, 0xffff0000, v108
    v_sub_f32 v106, v104, v106
    v_cvt_pk_bf16_f32 v109, v106, v106
    v_mul_f32 v111, {f32(c1)}, v110
    v_mul_f32 v112, v110, v110
    v_mul_f32 v112, v112, v110
    v_mul_f32 v112, {f32(c3)}, v112
    v_mov_b32 v114, s80
    v_lshlrev_b32 v18, 1, v18
    s_lshl_b32 s58, s15, 10
    s_add_u32 s58, s58, {EX_TOK}
    v_add_u32 v18, s58, v18
    ds_write_b128 v18, v[108:111]
    ds_write_b128 v18, v[112:115] offset:16
    s_waitcnt lgkmcnt(0)""")
WD = OPT["wd"]
UFB = [60, 61, 62, 76, 77, 78, 79]
def d_setup_w():
    A(f"""v_bfe_u32 v6, v1, 2, 3
    v_lshlrev_b32 v6, 10, v6
    v_lshrrev_b32 v7, 5, v1
    v_lshlrev_b32 v7, 6, v7
    v_add_u32 v6, v6, v7
    v_and_b32 v7, 3, v1
    v_lshlrev_b32 v7, 4, v7
    v_add_u32 v2, v6, v7
    s_lshl_b32 s43, s15, 11
    s_lshr_b32 s58, s2, 5
    s_lshl_b32 s40, s58, 7
    s_lshl_b32 s42, s15, 17
    s_add_u32 s42, s42, s40
    s_mul_i32 s57, s15, 24""")
    if OPT["rotd"]:
        A("""s_mul_i32 s59, s58, 11
        s_lshr_b32 s59, s59, 5
        s_mul_i32 s59, s59, 3
        s_sub_u32 s59, s58, s59""")
    else:
        A("s_mov_b32 s59, 0\ns_mov_b32 s58, 0")
    for u in range(3):
        A(f"""s_lshl_b32 s{UFB[u]}, s59, 3
        s_add_u32 s{UFB[u]}, s{UFB[u]}, s57
        s_add_u32 s{UFB[u]}, s{UFB[u]}, 4
        s_add_u32 s59, s59, 1
        s_cmp_eq_u32 s59, 3
        s_cselect_b32 s59, 0, s59""")
    A("s_lshl_b32 s41, s15, 2\ns_add_u32 s41, s41, 96")
    for u in range(4):
        A(f"""s_add_u32 s59, s58, {u}
        s_and_b32 s59, s59, 3
        s_lshl_b32 s44, s59, 3
        s_add_u32 s44, s44, s57
        s_cmp_eq_u32 s59, 3
        s_cselect_b32 s{UFB[3+u]}, s41, s44""")
    A("""s_waitcnt lgkmcnt(0)
    s_mov_b32 s26, 0x1c0000
    s_mov_b32 s27, 0x20000
    s_mov_b32 s30, 0x80000
    s_mov_b32 s31, 0x20000""")
def issw(s, q):
    slot = s % WD
    if s < 28:
        srd = 24
        o = [f"s_lshl_b32 s44, s{UFB[s>>2]}, 14", "s_add_u32 s44, s44, s40"]
        if s & 3: o.append(f"s_add_u32 s44, s44, {(s&3)*16384}")
    else:
        srd = 28
        o = [f"s_add_u32 s44, s42, {(s-28)*16384}"]
    a = o + [f"s_add_u32 m0, s43, {DREG[slot]}", "s_add_u32 s45, s44, 8192",
             f"buffer_load_dwordx4 v2, s[{srd}:{srd+3}], s44 offen lds"]
    b = [f"s_add_u32 m0, s43, {DREG[slot]+1024}", "s_nop 0",
         f"buffer_load_dwordx4 v2, s[{srd}:{srd+3}], s45 offen lds"]
    q.add(f"W{s}", 2)
    return [a, b]
P0 = max(NDELTA, 4)
wnext = [0]
GAT, GC = OPT['gat'], OPT['gc']
HP = OPT.get('hprof')
for s in range(17):
    if s < 16: Q.wait(f"S{s}")
    if HP and s >= 4: A(f"s_memtime s[100:101]\ns_waitcnt lgkmcnt(0)\ns_sub_u32 s99, s100, s98\ns_add_u32 s{84+s-4}, s99, s83")
    A("s_barrier")
    if HP: A("s_memtime s[100:101]\ns_waitcnt lgkmcnt(0)\ns_mov_b32 s98, s100")
    if s == 0 and not HP: PR.stamp()
    for k in sched.get(s, []): G(k)
    if s in BUR: pf_burst(*BUR[s])
    if s == 0:
        A("""s_lshl_b32 s57, s48, 13
        s_lshl_b32 s58, s15, 11
        s_add_u32 s57, s57, s58
        buffer_load_dwordx4 v[32:35], v9, s[72:75], s57 offen
        buffer_load_dwordx4 v[36:39], v9, s[72:75], s57 offen offset:1024
        buffer_load_dword v11, v10, s[16:19], 0 offen sc1""")
        Q.add("ST", 3)
    if s < NDELTA:
        lb = f"H_NOCS{s}"
        A(f"s_cmp_eq_u32 s55, {s}\ns_cbranch_scc0 {lb}\nv_add_u32 v12, {WR + (s%5)*WSL}, v12")
        for j in range(3):
            for t in range(4):
                A(f"ds_read_b64_tr_b16 {vr(48+8*j+2*t,2)}, v12 offset:{j*8192 + (t>>1)*2048 + (t&1)*256}")
        A("s_waitcnt lgkmcnt(0)")
        A.label(lb)
    if s == 4: row_valu(0); col_valu([0], False)
    if s == 5: col_valu([1], False)
    if s == 6: col_valu([2], True); row_valu(1)
    if s == OPT["pub"]: publish()
    if s == 3:
        A("s_load_dwordx2 s[4:5], s[0:1], 48\ns_load_dwordx2 s[8:9], s[0:1], 16")
    if OPT["vw"] and s == OPT["vw"]:
        A("""s_cmp_lg_u32 s15, 0
        s_cbranch_scc1 H_NOWARM
        s_mul_i32 s57, s2, 7168
        s_lshl_b32 s58, s2, 11
        v_lshlrev_b32 v20, 7, v1
        s_waitcnt lgkmcnt(0)
        s_add_u32 s6, s57, 7168
        s_mov_b32 s7, 0x20000
        s_add_u32 s10, s58, 2048
        s_mov_b32 s11, 0x20000
        buffer_load_dword v21, v20, s[4:7], s57 offen
        buffer_load_dword v22, v20, s[8:11], s58 offen""")
        A.label("H_NOWARM")
    if s == 5 and not OPT["vw"]:
        A("""s_lshl_b32 s57, s2, 2
        s_add_u32 s57, s57, s15
        s_mul_i32 s58, s57, 1792
        s_lshl_b32 s57, s57, 9
        s_waitcnt lgkmcnt(0)
        s_add_u32 s4, s4, s58
        s_addc_u32 s5, s5, 0
        s_add_u32 s8, s8, s57
        s_addc_u32 s9, s9, 0""")
    if s in (5, 7, 8, 9) and not OPT['vw']:
        k0 = {5: 0, 7: 9, 8: 18, 9: 27}[s]
        for i in range(k0, k0 + 9):
            if i < 28: A(f"s_load_dword s65, s[4:5], {i*64}")
            else: A(f"s_load_dword s65, s[8:9], {(i-28)*64}")
    if OPT["l2pf"] and s == OPT["warm"] + 1:
        A("""s_lshr_b32 s57, s2, 3
        s_lshl_b32 s57, s57, 2
        s_add_u32 s57, s57, s15
        s_lshr_b32 s58, s57, 3
        s_min_u32 s58, s58, 11
        s_lshr_b32 s59, s58, 1
        s_mul_i32 s59, s59, 6
        s_and_b32 s65, s58, 1
        s_lshl_b32 s65, s65, 1
        s_add_u32 s59, s59, s65
        s_add_u32 s59, s59, 2
        s_add_u32 s65, s58, 16
        s_cmp_lt_u32 s58, 8
        s_cselect_b32 s59, s59, s65
        s_lshl_b32 s59, s59, 16
        s_and_b32 s58, s57, 7
        s_lshl_b32 s58, s58, 13
        s_add_u32 s58, s58, s59
        s_lshl_b32 s57, s57, 12
        s_waitcnt lgkmcnt(0)
        s_add_u32 s4, s4, s58
        s_addc_u32 s5, s5, 0
        s_add_u32 s8, s8, s57
        s_addc_u32 s9, s9, 0""")
    if OPT["l2pf"] and OPT["warm"] + 1 <= s <= OPT["l2end"]:
        nst = OPT["l2end"] - OPT["warm"]
        tot = OPT["l2pf"]
        i0 = (s - OPT["warm"] - 1) * tot // nst; i1 = (s - OPT["warm"]) * tot // nst
        for i in range(i0, i1):
            if i < 64: A(f"s_load_dword s65, s[4:5], {i*128}")
            else: A(f"s_load_dword s65, s[8:9], {(i-64)*128}")
    if s == 8: gather_prep()
    if s == GAT: gather_loads(0); Q.add("GA0", 6)
    if s == GAT + OPT["gd"]: gather_loads(1); Q.add("GA", 5)
    if s == 12:
        A("s_load_dwordx2 s[24:25], s[0:1], 48\ns_load_dwordx2 s[28:29], s[0:1], 16")
        d_setup_w()
    if s == GC: gather_check()
    if s in DAVAIL:
        for _ in range(DAVAIL[s]):
            emit(issw(wnext[0], Q)); wnext[0] += 1
    if s == GC + 1: gather_cols()
    if s == GC + 2: gather_toks()
    if s in (4, 8, 12) and not HP: PR.stamp()
if HP:
    PR.n = 15; PR.dump(20); PR.n = 0
    OPT["prof"] = 0
PR.stamp()
PR.stamp()
import gen_cd
gen_cd.OPT = OPT
A("""s_and_b32 s57, s2, 7
s_lshr_b32 s58, s2, 3
s_and_b32 s58, s58, 3
s_lshl_b32 s50, s58, 3
s_add_u32 s50, s50, s57
s_lshr_b32 s51, s2, 5
s_lshl_b32 s51, s51, 2
s_add_u32 s51, s51, s15""")
gen_cd.attn_setup(A)
SH = OPT["share"]
LK, LVS, LFL = 16384, 49152, 49152 + 16384 + 1024
if SH:
    LONE = 49152 + 16384
    A(f"""s_lshr_b32 s49, s2, 5
    s_lshl_b32 s49, s49, 2
    s_lshl_b32 s57, s15, 1
    s_add_u32 s49, s49, s57
    s_sub_u32 s49, s49, 4
    v_and_b32 v9, 1, v1
    v_add_u32 v9, s49, v9
    v_max_i32 v9, 0, v9
    v_lshlrev_b32 v9, 8, v9
    v_bfe_u32 v10, v1, 1, 1
    v_lshlrev_b32 v10, 6, v10
    v_add3_u32 v9, v9, v10, 64
    s_lshl_b32 s57, s51, 8
    v_mov_b32 v10, s57
    v_cmp_gt_u32 vcc, 4, v1
    s_lshr_b32 s57, s50, 1
    s_lshl_b32 s57, s57, 7
    s_add_u32 s57, s57, {WS_FQ}
    v_cndmask_b32 v9, v10, v9, vcc
    v_lshlrev_b32 v9, 5, v9
    v_add_u32 v252, s57, v9""")
else:
    A(f"""v_min_u32 v9, 10, v1
    v_cmp_gt_u32 vcc, 5, v9
    v_subrev_u32 v10, 5, v9
    s_nop 0
    v_cndmask_b32 v10, v10, v9, vcc
    v_min_u32 v10, 4, v10
    s_sub_u32 s57, s51, 4
    v_add_u32 v10, s57, v10
    v_max_i32 v10, 0, v10
    v_lshlrev_b32 v10, 8, v10
    v_mov_b32 v11, 128
    v_cndmask_b32 v11, v11, 64, vcc
    v_cmp_eq_u32 vcc, 10, v9
    s_lshr_b32 s57, s50, 1
    s_lshl_b32 s57, s57, 7
    s_add_u32 s57, s57, {WS_FQ}
    v_cndmask_b32 v11, v11, 0, vcc
    v_add_u32 v10, v10, v11
    v_lshlrev_b32 v10, 5, v10
    v_add_u32 v252, s57, v10""")
A("s_barrier")
PR.stamp()
gen_cd.LONE = LONE
if SH:
    A(f"s_lshl_b32 s57, s15, 11\ns_add_u32 s57, s57, {LVS}")
else:
    A("""s_movk_i32 s57, 0x4000
    s_cmp_eq_u32 s15, 1
    s_cselect_b32 s57, 49152, s57
    s_cmp_eq_u32 s15, 2
    s_cselect_b32 s57, 59392, s57
    s_cmp_eq_u32 s15, 3
    s_cselect_b32 s57, 151552, s57""")
gen_cd.attn_setup2(A, None)
ld = "buffer_load_dword v253, v252, s[20:23], 0 offen sc1"
A("s_waitcnt vmcnt(0)")
PR.stamp()
A("s_barrier")
A(f"s_setprio {OPT['aprio']}")
A(f"s_sleep {OPT['hs']}")
A(ld)
A("s_waitcnt vmcnt(0)")
spin(A, "HQ", ld, 253)
PR.stamp()
if SH:
    A(f"""s_lshl_b32 s52, s50, 16
    s_lshl_b32 s53, s49, 11""")
    for which, base, r0 in ((0, WS_K, 188), (1, WS_V, 204)):
        for b in range(4):
            if b % 2 == 0:
                A(f"s_add_i32 s55, s53, {b*1024}\ns_max_i32 s55, s55, 0\ns_add_u32 s55, s55, s52\ns_add_u32 s55, s55, {base}")
            A(f"buffer_load_dwordx4 {vr(r0+4*b,4)}, v3, s[20:23], s55 offen offset:{(b%2)*1024} sc1")
    A(f"""s_lshl_b32 s53, s51, 11
    s_add_u32 s54, s52, s53
    buffer_load_dwordx4 v[12:15], v3, s[20:23], s54 offen sc1
    buffer_load_dwordx4 v[16:19], v3, s[20:23], s54 offen offset:1024 sc1
    s_lshl_b32 s57, s15, 12
    v_add_u32 v9, s57, v3
    v_add_u32 v10, s57, v2
    s_lshl_b32 s57, s15, 11
    v_add_u32 v11, s57, v3
    s_lshl_b32 s57, s15, 2
    s_add_u32 s57, s57, {LFL}
    v_mov_b32 v252, s57
    v_mov_b32 v253, s80
    v_mov_b32 v254, {LFL}""")
    for b in range(4):
        A(f"s_waitcnt vmcnt({9-b})\nds_write_b128 v9, {vr(188+4*b,4)} offset:{LK + b*1024}")
    for b in range(4):
        A(f"s_waitcnt vmcnt({5-b})\nds_write_b128 v10, {vr(204+4*b,4)} offset:{LVS + b*1024}")
    A("""s_waitcnt lgkmcnt(0)
    ds_write_b32 v252, v253
    s_mov_b32 s56, 0""")
    A.label("H_LW")
    A(f"""ds_read_b128 v[188:191], v254
    s_add_u32 s56, s56, 1
    s_waitcnt lgkmcnt(0)
    v_xor_b32 v188, s80, v188
    v_xor_b32 v189, s80, v189
    v_xor_b32 v190, s80, v190
    v_xor_b32 v191, s80, v191
    v_or3_b32 v188, v188, v189, v190
    v_or_b32 v188, v188, v191
    v_cmp_eq_u32 vcc, 0, v188
    s_cmp_gt_u32 s56, {SPIN*50}
    s_cbranch_scc1 H_LOK
    s_cmp_eq_u64 vcc, -1
    s_cbranch_scc1 H_LOK
    s_sleep 1
    s_branch H_LW""")
    A.label("H_LOK")
    for b in range(10):
        A(f"ds_read_b128 {vr(20+4*b,4)}, v11 offset:{LK + b*1024}")
    A("s_waitcnt vmcnt(0)")
A(f"s_setprio {OPT['aprio2']}")
if OPT.get("noattn"): A("s_branch H_AFIN")
A("s_cmp_lt_u32 s51, 4")
A("s_cbranch_scc1 H_SLOW")
n0 = PR.n
gen_cd.gen_attn(A, False, "AF", PR, "sc1", setup=False, bar=OPT["defer"] >= 4, loads=not SH, shared=SH)
A.label("H_AFIN")
PR.stamp()
A(f"""s_lshl_b32 s57, s51, 12
s_lshl_b32 s58, s50, 7
s_add_u32 s57, s57, s58
s_add_u32 s57, s57, {WS_FO}
v_mov_b32 v9, 0
v_mov_b32 v10, s80
s_waitcnt vmcnt(0)
s_mov_b64 exec, 1
buffer_store_dword v10, v9, s[20:23], s57 offen sc1
s_mov_b64 exec, -1""")
PR.stamp()
PR.dump(2)
A.label("L_END")
A("s_endpgm")
A.label("H_SLOW")
PR.n = n0
gen_cd.gen_attn(A, True, "AS", PR, "sc1", setup=False, bar=OPT["defer"] >= 4, loads=not SH, shared=SH)
A("s_branch H_AFIN")
A.label("L_M")
PR.n = 0
A("s_waitcnt lgkmcnt(0)")
PR.stamp(True); PR.stamp()
ws_srd()
if OPT["codepf"]:
    A("s_getpc_b64 s[24:25]")
    A.label("L_PC")
    A(f"""s_sub_u32 s24, s24, L_PC-{NAME}
    s_subb_u32 s25, s25, 0
    s_mov_b32 s26, L_CODE_END-{NAME}
    s_mov_b32 s27, 0x20000
    s_lshr_b32 s57, s2, 3
    s_lshl_b32 s57, s57, 2
    s_add_u32 s57, s57, s14
    s_lshl_b32 s57, s57, 9
    v_lshlrev_b32 v16, 7, v1
    s_mov_b64 exec, 15
    buffer_load_dword v31, v16, s[24:27], s57 offen
    s_mov_b64 exec, -1""")
vXa = [2, 3, 4, 5]; vWa = [6, 7, 8, 9, 10]; vWb = [11, 12, 13, 14, 15]
P = 32; QQ = 60; ACC = 88
A("s_setprio 2")
A("""s_and_b32 s12, s14, 1
s_lshr_b32 s13, s14, 1
v_and_b32 v16, 31, v1
v_lshrrev_b32 v17, 5, v1
v_bfe_u32 v18, v1, 1, 3
v_xor_b32 v17, v17, v18
v_lshlrev_b32 v17, 4, v17
v_lshlrev_b32 v16, 7, v16
v_add_u32 v16, v16, v17
s_lshl_b32 s57, s12, 13
v_add_u32 v2, s57, v16
v_xor_b32 v3, 32, v2
v_xor_b32 v4, 64, v2
v_xor_b32 v5, 96, v2""")
A(f"""v_lshrrev_b32 v16, 5, v1
v_lshlrev_b32 v16, 10, v16
v_bfe_u32 v17, v1, 2, 2
v_lshlrev_b32 v17, 6, v17
v_add_u32 v16, v16, v17
v_and_b32 v17, 3, v1
v_lshlrev_b32 v17, 3, v17
v_add_u32 v16, v16, v17
v_add_u32 v16, {WR}, v16
v_bfe_u32 v17, v1, 4, 1
s_sub_u32 s57, 2, s50
s_lshl_b32 s57, s57, 12
v_mul_u32_u24 v18, s57, v17
v_xor_b32 v19, s13, v17
v_lshlrev_b32 v19, 5, v19
v_add3_u32 v18, v18, v19, v16
v_lshlrev_b32 v19, 5, v17
s_lshl_b32 s57, s13, 9
v_add3_u32 v19, v19, s57, v16
s_cmp_eq_u32 s50, 1
s_cselect_b64 vcc, -1, 0""")
for n in range(5):
    fo = (n >> 1) * 4096 + (n & 1) * 512
    qo = n * 4096
    if n < 2: A(f"v_add_u32 v{vWa[n]}, {fo}, v18")
    elif n == 4: A(f"v_add_u32 v{vWa[n]}, {qo}, v19")
    else:
        A(f"v_add_u32 v20, {fo}, v18\nv_add_u32 v21, {qo}, v19\nv_cndmask_b32 v{vWa[n]}, v20, v21, vcc")
for n in range(5): A(f"v_add_u32 v{vWb[n]}, {4*WSL}, v{vWa[n]}")
def reads(s, kk, dst):
    xs = (s >> 1) % 3; q4 = (s & 1) * 2 + kk; sl = s % 5
    def xr(tt): return f"ds_read_b128 {vr(dst+4*tt,4)}, v{vXa[q4]} offset:{XR + xs*XS + tt*4096}"
    def wr(n, sec):
        a, o = (vWa[n], sl * WSL) if sl < 4 else (vWb[n], 0)
        return f"ds_read_b64_tr_b16 {vr(dst+8+4*n+2*sec,2)}, v{a} offset:{o + kk*2048 + sec*256}"
    R = [xr(0), wr(0, 0), wr(0, 1), xr(1)]
    for n in range(1, 5): R += [wr(n, 0), wr(n, 1)]
    return R
need = {0: 2, 1: 3, 2: 5, 4: 7, 6: 9, 8: 11}
def substep(cur, R, first=False):
    issued = 0
    for j in range(10):
        n, tt = j >> 1, j & 1
        if j in need: A(f"s_waitcnt lgkmcnt({min(15, 11 - need[j] + issued)})")
        a = ACC + 16 * (2 * n + tt)
        c = "0" if first else vr(a, 16)
        A(f"v_mfma_f32_32x32x16_bf16 {vr(a,16)}, {vr(cur+8+4*n,4)}, {vr(cur+4*tt,4)}, {c}")
        k = 2 if j < 2 else 1
        for r in R[issued:issued + k]: A(r)
        issued += len(R[issued:issued + k])
A(f"""v_and_b32 v16, 31, v1
v_lshlrev_b32 v22, 5, v16
s_lshl_b32 s57, s12, 11
s_add_u32 s57, s57, {EX_TOK}
v_add_u32 v22, s57, v22
v_and_b32 v16, 15, v1
s_sub_u32 s57, 2, s50
s_lshl_b32 s57, s57, 6
v_mul_u32_u24 v18, s57, v17
v_xor_b32 v19, s13, v17
v_lshlrev_b32 v19, 4, v19
v_add3_u32 v18, v18, v19, v16
v_lshlrev_b32 v18, 2, v18
v_and_b32 v19, 31, v1
s_lshl_b32 s57, s13, 5
v_add_u32 v19, s57, v19
v_lshlrev_b32 v19, 2, v19""")
for n in range(5):
    fo = EX_COL + ((n >> 1) * 64 + (n & 1) * 32) * 4
    qo = EX_COL + n * 256
    if n < 2: A(f"v_add_u32 v{23+n}, {fo}, v18")
    elif n == 4: A(f"v_add_u32 v{23+n}, {qo}, v19")
    else:
        A(f"v_add_u32 v20, {fo}, v18\nv_add_u32 v21, {qo}, v19\nv_cndmask_b32 v{23+n}, v20, v21, vcc")
A(f"""s_lshl_b32 s57, s47, 2
s_lshl_b32 s58, s12, 1
s_add_u32 s57, s57, s58
s_mul_i32 s70, s57, {112*1024}
s_lshl_b32 s59, s53, 12
s_add_u32 s70, s70, s59
s_lshl_b32 s59, s13, 10
s_add_u32 s70, s70, s59
s_add_u32 s70, s70, {WS_H}
s_lshl_b32 s59, s54, 2
s_lshl_b32 s60, s13, 1
s_add_u32 s59, s59, s60
s_lshl_b32 s71, s59, 6
s_add_u32 s71, s71, s57
s_lshl_b32 s71, s71, 10
s_lshl_b32 s57, s57, 7
s_lshl_b32 s72, s59, 1
s_add_u32 s72, s72, s57
s_lshl_b32 s72, s72, 5
s_add_u32 s72, s72, {WS_FQ}
s_lshl_b32 s73, s48, 3
s_lshl_b32 s60, s13, 2
s_add_u32 s73, s73, s60
s_add_u32 s73, s73, s57
s_lshl_b32 s73, s73, 5
s_add_u32 s73, s73, {WS_FH}
s_add_u32 s74, s73, 4096
s_load_dwordx2 s[24:25], s[0:1], 48
s_load_dwordx2 s[28:29], s[0:1], 16
s_load_dwordx2 s[36:37], s[0:1], 56
s_waitcnt lgkmcnt(0)""")
if OPT["tlb"]:
    A("""v_lshlrev_b32 v16, 21, v1
    v_mov_b32 v17, 0
    s_mov_b64 exec, 0x1ff
    buffer_load_dword v30, v16, s[20:23], 0 offen sc1
    s_mov_b64 exec, 1
    global_load_dword v30, v17, s[36:37] sc1
    global_load_dword v30, v17, s[24:25]
    global_load_dword v30, v17, s[28:29]
    s_mov_b64 exec, -1""")
A("s_waitcnt vmcnt(0)")
A("s_barrier")
PR.stamp()
for r in reads(0, 0, P): A(r)
A.raw(".p2align 3")
for s in range(16):
    substep(P, reads(s, 1, QQ), first=(s == 0))
    A("s_barrier")
    if s < 15: substep(QQ, reads(s + 1, 0, P))
    else:
        R = [f"ds_read_b128 {vr(P,4)}, v22", f"ds_read_b128 {vr(P+4,4)}, v22 offset:1024",
             f"ds_read_b128 v[16:19], v22 offset:16", f"ds_read_b128 v[28:31], v22 offset:1040"]
        R += [f"ds_read_b32 v{P+8+4*n}, v{23+n}" for n in range(5)]
        substep(QQ, R)
    if s in (11,): PR.stamp()
A("s_waitcnt lgkmcnt(0)")
A("s_barrier")
PR.stamp()
A(f"""v_mov_b32 v248, v{P+2}
v_mov_b32 v249, v{P+3}
v_mov_b32 v250, v16
v_mov_b32 v251, v17
v_mov_b32 v252, v{P+6}
v_mov_b32 v253, v{P+7}
v_mov_b32 v254, v28
v_mov_b32 v255, v29
v_cmp_gt_u32 vcc, 32, v1
v_readfirstlane_b32 s80, v18
v_mov_b32 v{P+2}, 0
v_mov_b32 v{P+3}, 0
v_mov_b32 v{P+6}, 0
v_mov_b32 v{P+7}, 0
v_cndmask_b32 v{P}, 0, v{P}, vcc
v_cndmask_b32 v{P+1}, 0, v{P+1}, vcc
v_cndmask_b32 v{P+4}, 0, v{P+4}, vcc
v_cndmask_b32 v{P+5}, 0, v{P+5}, vcc""")
for n in (4, 3, 2, 1, 0):
    w = P + 8 + 4 * n
    A(f"v_mov_b32 v{w+1}, v{w}\nv_mov_b32 v{w+2}, 0\nv_mov_b32 v{w+3}, 0")
for n in (4, 3, 2, 1, 0):
    for tt in range(2):
        a = ACC + 16 * (2 * n + tt)
        A(f"v_mfma_f32_32x32x16_bf16 {vr(a,16)}, {vr(P+8+4*n,4)}, {vr(P+4*tt,4)}, {vr(a,16)}")
A(f"""v_lshlrev_b32 v2, 4, v1
v_and_b32 v3, 31, v1
v_lshlrev_b32 v3, 5, v3
v_lshrrev_b32 v4, 5, v1
v_lshlrev_b32 v4, 4, v4
v_add_u32 v3, v3, v4
v_lshlrev_b32 v8, 8, v1
v_mov_b32 v9, s80""")
T = QQ
for tt in range(2):
    for k in range(3):
        A(f"v_mov_b32 v{68+6*tt+2*k}, v{248+4*tt+1+k}\nv_mov_b32 v{69+6*tt+2*k}, v{248+4*tt+1+k}")
def ffn(n, tt):
    a = ACC + 16 * (2 * n + tt); c = 68 + 6 * tt
    for r in range(0, 8, 2): A(f"v_pk_mul_f32 {vr(T+r,2)}, {vr(a+r,2)}, {vr(a+r,2)}")
    for r in range(0, 8, 2): A(f"v_pk_fma_f32 {vr(T+r,2)}, {vr(T+r,2)}, {vr(c+2,2)}, {vr(c,2)}")
    for r in range(0, 8, 2): A(f"v_pk_mul_f32 {vr(T+r,2)}, {vr(T+r,2)}, {vr(a+r,2)}")
    for r in range(8): A(f"v_exp_f32 v{T+r}, v{T+r}")
    for r in range(0, 8, 2): A(f"v_pk_mul_f32 {vr(a+r,2)}, {vr(a+r,2)}, {vr(a+8+r,2)}")
    for r in range(0, 8, 2): A(f"v_pk_fma_f32 {vr(T+r,2)}, {vr(T+r,2)}, {vr(c+4,2)}, {vr(c+4,2)}")
    for r in range(8): A(f"v_rcp_f32 v{T+r}, v{T+r}")
    A("s_nop 0")
    for r in range(0, 8, 2): A(f"v_pk_mul_f32 {vr(a+r,2)}, {vr(a+r,2)}, {vr(T+r,2)}")
    for d in range(4): A(f"v_cvt_pk_bf16_f32 v{a+8+d}, v{a+2*d}, v{a+2*d+1}")
def ffn_st(n, tt):
    a = ACC + 16 * (2 * n + tt)
    A(f"s_add_u32 s63, s70, {2048*n + tt*112*1024}")
    A(f"buffer_store_dwordx4 {vr(a+8,4)}, v2, s[20:23], s63 offen sc1")
def qkv(n, zoff):
    A(f"""s_add_u32 s60, s54, {zoff}
    s_cmp_lt_u32 s60, 8
    s_mov_b32 s62, {f32(0.25*LOG2E)}
    s_cselect_b32 s62, s62, 1.0
    v_mul_f32 v4, s62, v248
    v_mul_f32 v6, s62, v252
    v_mul_f32 v5, s62, v248
    v_mul_f32 v7, s62, v252""")
    for tt in range(2):
        a = ACC + 16 * (2 * n + tt)
        for r in range(0, 16, 2): A(f"v_pk_mul_f32 {vr(a+r,2)}, {vr(a+r,2)}, {vr(4+2*tt,2)}")
        for d in range(8): A(f"v_cvt_pk_bf16_f32 v{a+d}, v{a+2*d}, v{a+2*d+1}")
        A(f"s_add_u32 s63, s71, {zoff*4*65536 + tt*1024}")
        A(f"buffer_store_dwordx4 {vr(a,4)}, v2, s[20:23], s63 offen sc1")
        A(f"s_add_u32 s63, s63, 65536")
        A(f"buffer_store_dwordx4 {vr(a+4,4)}, v2, s[20:23], s63 offen sc1")
def flag(vm, mask, soff, imm=0, voff=8):
    A(f"s_waitcnt vmcnt({vm})\ns_mov_b64 exec, {mask}\nbuffer_store_dword v9, v{voff}, s[20:23], s{soff} offen offset:{imm} sc1\ns_mov_b64 exec, -1")
A("s_cmp_eq_u32 s50, 1")
A("s_cbranch_scc1 M_TC")
def ffs(n, tt): ffn(n, tt); ffn_st(n, tt)
DF = OPT["defer"]
qkv(4, 0)
if DF:
    ffn(3, 0); ffn(3, 1)
    A("s_barrier")
    ffn(2, 0); ffn(2, 1)
    if DF == 5: flag(0, 1, 72)
    if DF >= 2: ffn(1, 0); ffn(1, 1)
    if DF != 5: flag(0, 1, 72)
    nq = PR.n; PR.stamp()
    if DF >= 3: ffn(0, 0); ffn(0, 1)
    if DF >= 4: A("s_barrier")
    for n in (3, 2):
        for tt in range(2): ffn_st(n, tt)
    if DF == 1: ffs(1, 0); ffs(1, 1); ffs(0, 0); ffs(0, 1)
    elif DF == 2: ffn_st(1, 0); ffn_st(1, 1); ffs(0, 0); ffs(0, 1)
    else: ffn_st(1, 0); ffn_st(1, 1); ffn_st(0, 0); ffn_st(0, 1)
    flag(4, 1, 73)
else:
    ffs(3, 0); ffs(3, 1)
    A("s_barrier")
    ffs(2, 0); ffs(2, 1)
    flag(4, 1, 72)
    ffs(1, 0); ffs(1, 1); ffs(0, 0); ffs(0, 1)
    flag(4, 1, 73)
A("s_branch M_TJ")
A.label("M_TC")
qkv(4, 2); qkv(3, 1); qkv(2, 0)
A("s_barrier")
if DF:
    order = [(1, 0), (1, 1), (0, 0), (0, 1)]
    for t in order[:OPT["cq"]]: ffn(*t)
    flag(0, 7, 72)
    PR.n = nq; PR.stamp()
    for t in order[OPT["cq"]:]: ffn(*t)
    if DF >= 4: A("s_barrier")
    ffn_st(1, 0); ffn_st(1, 1); ffn_st(0, 0); ffn_st(0, 1)
else:
    ffs(1, 0); ffs(1, 1); ffs(0, 0); ffs(0, 1)
    flag(4, 7, 72)
A.label("M_TJ")
PR.stamp()
A("s_mov_b32 s15, s14")
d_setup_w()
XRr, BF, WF, AD, AS = 8, 16, 80, 96, 160
BD, NS = 8, 36
flag(0, 1, 74)
PR.stamp()
DQ = VQ(A)
A(f"""s_and_b32 s57, s2, 7
s_lshl_b32 s50, s57, 2
s_lshr_b32 s57, s2, 3
s_and_b32 s57, s57, 3
s_add_u32 s50, s50, s57
s_lshr_b32 s51, s2, 5
v_lshlrev_b32 v3, 4, v1
s_lshl_b32 s55, s50, 13
s_lshl_b32 s57, s15, 10
s_add_u32 s55, s55, s57
s_add_u32 s55, s55, {WS_FH}
s_add_u32 s75, s55, 4096
v_min_u32 v226, 5, v1
v_lshlrev_b32 v226, 7, v226
v_min_u32 v227, 7, v1
v_lshlrev_b32 v227, 7, v227""")
ld0 = "buffer_load_dword v228, v226, s[20:23], s55 offen sc1"
ld1 = "buffer_load_dword v228, v227, s[20:23], s75 offen sc1"
RP = OPT["rpf"]
for k in range(RP):
    st = WD + k
    A(f"s_lshl_b32 s44, s{UFB[st>>2]}, 14\ns_add_u32 s44, s44, s40")
    if st & 3: A(f"s_add_u32 s44, s44, {(st&3)*16384}")
    A(f"s_add_u32 s45, s44, 8192")
    A(f"buffer_load_dwordx4 {vr(160+8*k,4)}, v2, s[24:27], s44 offen")
    A(f"buffer_load_dwordx4 {vr(164+8*k,4)}, v2, s[24:27], s45 offen")
if OPT["ms"]: A(f"s_sleep {OPT['ms']}")
A(ld0)
A(f"""s_lshl_b32 s57, s50, 1
s_and_b32 s58, s15, 1
s_add_u32 s59, s57, s58
s_xor_b32 s58, s58, 1
s_add_u32 s57, s57, s58
s_mul_i32 s64, s59, {112*1024}
s_add_u32 s64, s64, {WS_H}
s_mul_i32 s65, s57, {112*1024}
s_add_u32 s65, s65, {WS_H}
s_lshl_b32 s58, s15, 13
s_add_u32 s58, s58, {WS_O}
s_lshl_b32 s67, s59, 15
s_add_u32 s67, s67, s58
s_lshl_b32 s53, s57, 15
s_add_u32 s53, s53, s58
v_and_b32 v6, 31, v1
v_lshlrev_b32 v6, 10, v6
v_lshrrev_b32 v7, 5, v1
v_lshlrev_b32 v7, 4, v7
v_add_u32 v224, v6, v7
s_lshl_b32 s54, s59, 15
s_lshl_b32 s57, s51, 7
s_add_u32 s54, s54, s57
s_lshr_b32 s57, s15, 1
s_lshl_b32 s57, s57, 6
s_add_u32 s54, s54, s57
v_lshrrev_b32 v6, 5, v1
v_lshlrev_b32 v6, 8, v6
v_bfe_u32 v7, v1, 2, 2
v_lshlrev_b32 v7, 6, v7
v_add_u32 v6, v6, v7
v_and_b32 v7, 3, v1
v_lshlrev_b32 v7, 3, v7
v_add_u32 v6, v6, v7
v_bfe_u32 v7, v1, 4, 1
v_lshlrev_b32 v7, 5, v7
v_add_u32 v6, v6, v7
s_lshl_b32 s57, s57, 3
v_add_u32 v6, s57, v6
v_xor_b32 v7, 512, v6
v_add_u32 v4, s43, v6
v_add_u32 v5, s43, v7
v_add_u32 v232, 0x10000, v4
v_add_u32 v233, 0x10000, v5
v_add_u32 v234, 0x20000, v4
v_add_u32 v235, 0x20000, v5
s_mov_b32 s32, s4
s_mov_b32 s33, s5
s_mov_b32 s34, 0x200000
s_mov_b32 s35, 0x20000
s_mov_b32 s38, 0x200000
s_mov_b32 s39, 0x20000
s_setprio {OPT['dprio']}
s_waitcnt vmcnt(0)""")
PR.stamp()
spin(A, "MH0", ld0, 228)
PR.stamp()
def htouch(lvl):
    if not OPT["htouch"]: return
    A(f"""v_bfe_u32 v229, v1, 2, 2
    v_lshlrev_b32 v230, 13, v229
    s_mul_i32 s57, s15, {24*1024}
    s_add_u32 s57, s57, {4096 if lvl == 0 else 0}
    v_add_u32 v230, s57, v230
    s_lshl_b32 s58, s15, 12
    s_add_u32 s58, s58, {96*1024}
    v_mov_b32 v231, {'s58' if lvl else 's57'}
    v_cmp_eq_u32 vcc, 3, v229
    v_and_b32 v229, 3, v1
    v_lshlrev_b32 v229, 10, v229
    v_cndmask_b32 v230, v230, v231, vcc
    v_add_u32 v230, v230, v229
    v_bfe_u32 v229, v1, 4, 1
    v_mul_u32_u24 v229, {112*1024}, v229
    v_add_u32 v230, v230, v229
    s_min_u32 s57, s64, s65
    s_lshl_b32 s58, s51, 7
    s_add_u32 s57, s57, s58
    s_mov_b32 exec_hi, 0
    buffer_load_dword v248, v230, s[20:23], s57 offen sc1
    s_mov_b64 exec, -1""")
    DQ.add("HT", 1)
htouch(0)
def issb(s):
    r = BF + 8 * (s % BD)
    if s < 28:
        o = [f"s_lshl_b32 s48, s{UFB[s>>2]}, 10", "s_add_u32 s49, s48, s65", "s_add_u32 s48, s48, s64"] if (s & 3) == 0 else []
    else:
        o = [f"s_add_u32 s48, s67, {(s-28)*1024}", f"s_add_u32 s49, s53, {(s-28)*1024}"] if (s & 3) == 0 else []
    DQ.add(f"B{s}", 2)
    return [o + [f"buffer_load_dwordx4 {vr(r,4)}, v3, s[20:23], s48 offen offset:{(s&3)*1024} sc1"],
            [f"buffer_load_dwordx4 {vr(r+4,4)}, v3, s[20:23], s49 offen offset:{(s&3)*1024} sc1"]]
for s in range(BD - 1): emit(issb(s))
def wtouch2():
    A(f"""v_lshrrev_b32 v229, 4, v1
    v_mov_b32 v230, s{UFB[3]}
    v_mov_b32 v231, s{UFB[4]}
    v_cmp_eq_u32 vcc, 1, v229
    s_lshr_b32 s57, s2, 3
    s_and_b32 s57, s57, 3
    v_cndmask_b32 v230, v230, v231, vcc
    v_mov_b32 v231, s{UFB[5]}
    v_cmp_eq_u32 vcc, 2, v229
    s_lshl_b32 s57, s57, 10
    s_add_u32 s58, s57, s40
    v_cndmask_b32 v230, v230, v231, vcc
    v_mov_b32 v231, s{UFB[6]}
    v_cmp_eq_u32 vcc, 3, v229
    v_and_b32 v229, 15, v1
    v_lshlrev_b32 v229, 12, v229
    v_cndmask_b32 v230, v230, v231, vcc
    v_lshlrev_b32 v230, 14, v230
    v_add_u32 v230, v230, v229
    buffer_load_dword v246, v230, s[24:27], s58 offen
    v_lshlrev_b32 v229, 12, v1
    s_add_u32 s58, s57, s42
    s_mov_b32 exec_hi, 0
    buffer_load_dword v247, v229, s[28:31], s58 offen
    s_mov_b64 exec, -1""")
    DQ.add("WT", 2)
if OPT["wt2"] == 1: wtouch2()
A(f"buffer_load_dwordx4 {vr(XRr,4)}, v224, s[32:35], s54 offen")
A(f"buffer_load_dwordx4 {vr(XRr+4,4)}, v224, s[32:35], s54 offen offset:32")
DQ.add("X", 2)
def rdw(s):
    slot = s % WD; w = WF + 8 * (s & 1)
    hi, lo = DREG[slot] >> 16, DREG[slot] & 0xffff
    vb = [4, 232, 234][hi]
    return [f"ds_read_b64_tr_b16 {vr(w+4*u+2*sec,2)}, v{vb+u} offset:{lo+sec*1024}" for u in range(2) for sec in range(2)]
for i in rdw(0): A(i)
DQ.wait("B0")
L1S = OPT["l1s"]
def tB(sp): return max(sp - (BD - 1), L1S) if sp >= 12 else sp - (BD - 1)
def xaddr(base3, which, a, qd):
    k = (a - 1) * 4 + qd
    reg = DREG[(8 if which == 0 else 0) + (k >> 1)] + (k & 1) * 1024
    return base3[reg >> 16], reg & 0xffff
def dump(which, acc):
    for a in range(1, 4):
        for qd in range(4):
            vb, off = xaddr([236, 6, 7], which, a, qd)
            A(f"ds_write_b128 v{vb}, {vr(acc+16*a+4*qd,4)} offset:{off}")
def fetch(which, acc):
    for a in range(1, 4):
        b = 237 + 3 * (a - 1)
        for qd in range(4):
            vb, off = xaddr([b, b + 1, b + 2], which, a, qd)
            A(f"ds_read_b128 {vr(acc+16*a+4*qd,4)}, v{vb} offset:{off}")
def sum4(acc):
    for r in range(0, 16, 2):
        A(f"v_pk_add_f32 {vr(acc+r,2)}, {vr(acc+r,2)}, {vr(acc+16+r,2)}\nv_pk_add_f32 {vr(acc+32+r,2)}, {vr(acc+32+r,2)}, {vr(acc+48+r,2)}")
    for r in range(0, 16, 2): A(f"v_pk_add_f32 {vr(acc+r,2)}, {vr(acc+r,2)}, {vr(acc+32+r,2)}")
for s in range(NS):
    w = WF + 8 * (s & 1); b = BF + 8 * (s % BD)
    acc = AD if s < 28 else AS
    if s == 12: PR.stamp()
    if s == 28:
        PR.stamp()
        A("s_nop 7\ns_nop 1")
        dump(0, AD)
        DQ.wait("PO")
        A("""v_cmp_eq_u32 vcc, s80, v228
        s_mov_b32 s46, 0
        s_cmp_eq_u64 vcc, -1
        s_cbranch_scc1 M_OOK
        s_mov_b32 s46, 1""")
        A(ld2)
        A("s_call_b64 s[66:67], M_GATE" if False else "s_call_b64 s[70:71], M_GATE")
        A("s_waitcnt vmcnt(0)")
        spin(A, "MO", ld2, 228)
        A.label("M_OOK")
        PR.stamp()
        for sp in range(28, 36): emit(issb(sp))
        A("s_cmp_eq_u32 s46, 1\ns_cbranch_scc1 M_GDONE\ns_call_b64 s[70:71], M_GATE")
        A.label("M_GDONE")
        DQ.wait("B28")
    if s + 1 < NS:
        DQ.wait([f"W{s+1}", f"B{s+1}"])
        for i in rdw(s + 1): A(i)
        A("s_waitcnt lgkmcnt(4)")
    else:
        A("s_waitcnt lgkmcnt(0)")
    if s == L1S - 3:
        A(ld1); DQ.add("P1", 1)
    if s == L1S:
        DQ.wait("P1")
        spin(A, "MH1", ld1, 228)
        htouch(1)
    if s == 0:
        A("v_add_u32 v236, s43, v3\nv_add_u32 v6, 0x10000, v236\nv_add_u32 v7, 0x20000, v236")
    if s == 20:
        for a in range(1, 4):
            bb = 237 + 3 * (a - 1)
            A(f"s_xor_b32 s57, s15, {a}\ns_lshl_b32 s57, s57, 11\nv_add_u32 v{bb}, s57, v3\nv_add_u32 v{bb+1}, 0x10000, v{bb}\nv_add_u32 v{bb+2}, 0x20000, v{bb}")
    if s == 25:
        A(f"""s_lshl_b32 s55, s50, 12
        s_lshl_b32 s57, s15, 10
        s_add_u32 s55, s55, s57
        s_add_u32 s55, s55, {WS_FO}""")
        ld2 = "buffer_load_dword v228, v227, s[20:23], s55 offen sc1"
        A(ld2); DQ.add("PO", 1)
    grp = []
    for sp in range(BD - 1, 28):
        if tB(sp) == s: grp += issb(sp)
    if 1 <= s <= RP:
        reg = DREG[s - 1]; vb = [236, 6, 7][reg >> 16]
        grp += [[f"ds_write_b128 v{vb}, {vr(160+8*(s-1),4)} offset:{reg & 0xffff}"], [f"ds_write_b128 v{vb}, {vr(164+8*(s-1),4)} offset:{(reg & 0xffff)+1024}"]]
    elif s >= 1 and s + WD - 1 < NS: grp += issw(s + WD - 1, DQ)
    per = [grp[(len(grp) * a) // 4:(len(grp) * (a + 1)) // 4] for a in range(4)]
    for a in range(4):
        u, tt = a >> 1, a & 1
        r = acc + 16 * a
        c = "0" if s in (0, 28) else vr(r, 16)
        A(f"v_mfma_f32_32x32x16_bf16 {vr(r,16)}, {vr(w+4*u,4)}, {vr(b+4*tt,4)}, {c}")
        for g in per[a]:
            for i in g: A(i)
PR.stamp()
A("s_nop 7\ns_nop 1")
dump(1, AS)
A("s_waitcnt lgkmcnt(0)")
A("s_barrier")
fetch(1, AS)
A("s_waitcnt lgkmcnt(0)")
sum4(AS)
for r in range(0, 16, 2): A(f"v_pk_fma_f32 {vr(AD+r,2)}, {vr(AD+r,2)}, {vr(AS+r,2)}, {vr(AD+32+r,2)}")
for d in range(8): A(f"v_cvt_pk_bf16_f32 v{XRr+d}, v{AD+2*d}, v{AD+2*d+1}")
A("s_nop 1")
for j in range(2):
    A(f"v_permlane32_swap_b32 v{XRr+4*j}, v{XRr+4*j+2}\nv_permlane32_swap_b32 v{XRr+4*j+1}, v{XRr+4*j+3}")
osc = "sc1" if OPT["osc"] else ""
A(f"buffer_store_dwordx4 {vr(XRr,4)}, v224, s[36:39], s54 offen {osc}")
A(f"buffer_store_dwordx4 {vr(XRr+4,4)}, v224, s[36:39], s54 offen offset:32 {osc}")
PR.stamp()
PR.dump(2)
A("s_endpgm")
def gate():
    A("s_waitcnt lgkmcnt(0)")
    A("s_barrier")
    fetch(0, AD)
    for j in range(2):
        A(f"v_permlane32_swap_b32 v{XRr+4*j}, v{XRr+4*j+2}\nv_permlane32_swap_b32 v{XRr+4*j+1}, v{XRr+4*j+3}")
    A("s_waitcnt lgkmcnt(0)")
    sum4(AD)
    T = AD + 16
    for r in range(16): A(f"v_mul_f32 v{T+r}, {f32(-LOG2E)}, v{AD+r}")
    for r in range(16): A(f"v_exp_f32 v{T+r}, v{T+r}")
    for d in range(8): A(f"v_lshlrev_b32 v{T+16+2*d}, 16, v{XRr+d}\nv_and_b32 v{T+17+2*d}, 0xffff0000, v{XRr+d}")
    for r in range(16): A(f"v_add_f32 v{T+r}, 1.0, v{T+r}")
    for r in range(16): A(f"v_rcp_f32 v{T+r}, v{T+r}")
    A("s_nop 0")
    for r in range(0, 16, 2): A(f"v_pk_mul_f32 {vr(AD+r,2)}, {vr(AD+r,2)}, {vr(T+r,2)}")
A.label("M_GATE")
gate()
A("s_setpc_b64 s[70:71]")
A.label("L_CODE_END")
A.raw('.section .rodata,"a"')
A.raw(kernel_desc(NAME, 256))
txt = A.text()
if OPT.get("plainst"):
    import re
    txt = re.sub(r"(buffer_store_dwordx4 .*s63 offen) sc1", r"\1", txt)
if OPT.get("align", 1):
    import align
    txt = align.align(txt)
print(txt)
```

```python
import sys, math
from asmlib import *

NAME = "recurrent_scan__sliding_block__geglu_ffn__prompt_kernel"
WS_Q = 0; WS_K = 2 << 20; WS_V = 4 << 20; WS_O = 6 << 20; WS_H = 8 << 20
WS_TOK = 16 << 20
WS_CS = (16 << 20) + 65536
WS_FO = 17 << 20
WS_FH = (17 << 20) + (1 << 18)
WS_FQ = (17 << 20) + (2 << 18)
LOG2E = 1.4426950408889634
OPT = dict(prof=0, rot=2, codepf=1, wd=14, sleep=8, warm=7, thr=6, aprio=3, l2pf=0, rotd=1, hs=56, dprio=0, wtouch=0, htouch=1, wts=10, defer=1, gat=10, gc=13, hprio=0, l1s=10, osc=0, cq=2, ms=16, ntx=0, ntw=0, share=1, l2end=11, aprio2=3, rpf=0, pub=7, gd=1, vw=4, epf=16, tlb=0, wt2=0)
for a in sys.argv[1:]:
    k, v = a.split("="); OPT[k] = int(v)
XR = 0; XS = 16384; WR = 49152; WSL = 20480; EX = 151552
EX_TOK = EX; EX_COL = EX + 4096
DREG = [32768, 40960, 69632, 77824,   86016, 94208, 102400,   110592, 118784, 0, 8192,   126976, 135168, 143360]
DAVAIL = {13: 4, 14: 3, 15: 4, 16: 3}
LONE = 26624
SPIN = 20000

class Prof:
    def __init__(self, A, base=82): self.A = A; self.n = 0; self.base = base
    def stamp(self, real=False):
        if not OPT["prof"]: return
        i = self.n; self.n += 1
        assert i < 16
        self.A(f"{'s_memrealtime' if (real or OPT['prof'] == 2) else 's_memtime'} s[100:101]")
        self.A("s_waitcnt lgkmcnt(0)")
        self.A(f"s_mov_b32 s{self.base+i}, s100")
    def dump(self, vt):
        if not OPT["prof"]: return
        A = self.A
        while self.n < 15: self.stamp()
        self.stamp(True)
        A(f"s_lshl_b32 s68, s2, 3\ns_add_u32 s68, s68, s14\ns_lshl_b32 s68, s68, 6\ns_add_u32 s68, s68, {32<<20}")
        A(f"v_mov_b32 v{vt}, 0")
        for i in range(self.n):
            A(f"v_mov_b32 v{vt+1}, s{self.base+i}")
            A(f"buffer_store_dword v{vt+1}, v{vt}, s[20:23], s68 offen offset:{4*i}")

class VQ:
    def __init__(self, A): self.A = A; self.q = []
    def add(self, tag, n): self.q.append((tag, n))
    def wait(self, tags):
        if isinstance(tags, str): tags = [tags]
        idx = max([i for i, (t, _) in enumerate(self.q) if t in tags], default=-1)
        if idx < 0: return
        rest = sum(c for _, c in self.q[idx + 1:])
        assert rest < 64
        self.A(f"s_waitcnt vmcnt({rest})")
        del self.q[:idx + 1]
    def has(self, tag): return tag in [t for t, _ in self.q]
    def clear(self): self.q = []

def spin(A, name, load, vval, maskexpr=None, cnt=56):
    A(f"""v_cmp_eq_u32 vcc, s80, v{vval}
    s_mov_b32 s{cnt}, 0
    s_cmp_eq_u64 vcc, -1
    s_cbranch_scc1 {name}_OK""")
    A.label(f"{name}_P")
    A(f"""s_sleep {OPT['sleep']}
    {load}
    s_add_u32 s{cnt}, s{cnt}, 1
    s_waitcnt vmcnt(0)
    v_cmp_eq_u32 vcc, s80, v{vval}
    s_cmp_gt_u32 s{cnt}, {SPIN}
    s_cbranch_scc1 {name}_OK
    s_cmp_eq_u64 vcc, -1
    s_cbranch_scc0 {name}_P""")
    A.label(f"{name}_OK")

A = Asm()
A.raw(f"""; recurrent_scan__sliding_block__geglu_ffn__prompt -- hand-designed gfx950 kernel, emitted by my own python generator.
; @launch grid=(256,1,1) block=(512,1,1) lds=163840
.amdgcn_target "amdgcn-amd-amdhsa--gfx950"
.text""")
kernel_header(A, NAME)
PR = Prof(A)
A("""s_load_dwordx4 s[4:7], s[0:1], 0
s_load_dwordx4 s[8:11], s[0:1], 32
s_load_dwordx4 s[16:19], s[0:1], 64""")
if OPT["epf"]:
    A("s_getpc_b64 s[24:25]")
    A.label("L_PC0")
    nl = OPT["epf"]
    A(f"""v_and_b32 v16, {nl-1}, v0
    v_bfe_u32 v17, v0, 6, 2
    v_mul_u32_u24 v17, {nl}, v17
    v_add_lshl_u32 v16, v16, v17, 7
    v_add_u32 v17, L_M-L_PC0, v16
    v_cmp_gt_u32 vcc, 256, v0
    s_mov_b64 exec, {(1<<nl)-1}
    s_nop 0
    v_cndmask_b32 v16, v16, v17, vcc
    global_load_dword v29, v16, s[24:25]
    s_mov_b64 exec, -1""")
A("""s_cmp_ge_u32 s2, 256
s_cbranch_scc1 L_END
v_and_b32 v1, 63, v0
v_lshrrev_b32 v16, 6, v0
s_and_b32 s57, s2, 7
v_readfirstlane_b32 s14, v16
s_lshr_b32 s58, s2, 3
s_and_b32 s44, s57, 1
s_and_b32 s45, s58, 7
s_lshl_b32 s47, s44, 3
s_add_u32 s47, s47, s45
s_lshr_b32 s46, s57, 1
s_lshr_b32 s49, s58, 3
s_lshl_b32 s48, s46, 2
s_add_u32 s48, s48, s49
s_mul_i32 s51, s46, 3
s_add_u32 s52, s51, s49
s_lshl_b32 s53, s52, 1
s_add_u32 s57, s46, 24
s_add_u32 s54, s51, 12
s_cmp_eq_u32 s49, 3
s_cselect_b32 s50, 1, 0
s_cselect_b32 s53, s57, s53
s_cselect_b32 s54, s54, s52
s_and_b32 s15, s14, 3
s_cmp_lt_u32 s14, 4
s_cbranch_scc1 L_M""")
def ws_srd():
    A("""s_mov_b32 s20, s18
    s_mov_b32 s21, s19
    s_mov_b32 s22, 0x10000000
    s_mov_b32 s23, 0x20000
    s_mov_b32 s18, 256
    s_mov_b32 s19, 0x20000""")
vDW = [2, 3, 4, 5, 6]; vDX = [7, 8]
ROT = OPT["rot"]
A("""s_lshl_b32 s58, s15, 15
v_lshrrev_b32 v16, 3, v1
v_lshlrev_b32 v16, 10, v16
v_add_u32 v16, s58, v16
v_lshrrev_b32 v17, 4, v1
v_xor_b32 v17, v17, v1
v_and_b32 v17, 7, v17
v_lshlrev_b32 v17, 4, v17
v_add_u32 v7, v16, v17
v_xor_b32 v8, 64, v7
s_lshl_b32 s12, s15, 12
s_lshl_b32 s13, s15, 10
s_lshl_b32 s57, s47, 17""")
if ROT == 1: A("s_lshl_b32 s81, s49, 2\ns_lshl_b32 s58, s45, 1\ns_add_u32 s81, s81, s58")
elif ROT == 2: A("s_add_u32 s81, s49, s45\ns_lshl_b32 s81, s81, 2")
elif ROT == 3: A("s_add_u32 s81, s49, s45\ns_lshl_b32 s81, s81, 3")
elif ROT == 0: A("s_mov_b32 s81, 0")
A("""s_waitcnt lgkmcnt(0)
s_add_u32 s72, s4, s57
s_addc_u32 s73, s5, 0
s_mov_b32 s74, 0x20000
s_mov_b32 s75, 0x20000""")
PR.stamp(True); PR.stamp()
def dma_x(u):
    o = []
    for jj in range(4):
        pre = [f"s_add_u32 s56, s81, {2*u}", "s_and_b32 s56, s56, 15", "s_lshl_b32 s56, s56, 6"] if jj == 0 else []
        o.append(pre + [f"s_add_u32 m0, s12, {XR + (u%3)*XS + jj*1024}", f"s_add_u32 s59, s56, {jj*8192}",
                        f"buffer_load_dwordx4 v{vDX[jj&1]}, s[72:75], s59 offen {'nt ' if 2*u < OPT['ntx'] else ''}lds"])
    return o
def emit(groups):
    for g in groups:
        for i in g: A(i)
    return len(groups)
A(f"s_setprio {OPT['hprio']}")
Q = VQ(A)
n0 = emit(dma_x(0))
A("s_lshl_b32 s55, s53, 7\ns_lshl_b32 s56, s54, 7")
tabA = [(8, 55, 0), (8, 55, 128), (10, 55, 0), (10, 55, 128), (6, 56, 0)]
tabC = [(8, 55, 0), (10, 55, 0), (6, 56, 0), (6, 56, 128), (6, 56, 256)]
A("""v_bfe_u32 v16, v1, 2, 3
s_lshl_b32 s57, s15, 3
v_add_u32 v16, s57, v16
v_lshrrev_b32 v17, 5, v1
v_lshlrev_b32 v17, 6, v17
v_and_b32 v18, 3, v1
v_lshlrev_b32 v18, 4, v18
v_add_u32 v17, v17, v18
s_lshl_b32 s66, s50, 5
s_xor_b32 s67, s66, 32""")
swap = {0: None, 1: 66, 2: 67, 3: 67, 4: None}
for D in range(5):
    S = 24 + 4 * D
    (pa, ca, oa), (pc, cc_, oc) = tabA[D], tabC[D]
    A("s_cmp_eq_u32 s50, 1")
    if pa != pc:
        A(f"s_cselect_b32 s{S}, s{pc}, s{pa}\ns_cselect_b32 s{S+1}, s{pc+1}, s{pa+1}")
        src = S
    else: src = pa
    if ca != cc_: A(f"s_cselect_b32 s57, s{cc_}, s{ca}"); cs = 57
    else: cs = ca
    if oa != oc: A(f"s_cselect_b32 s58, {oc}, {oa}")
    sa = 3072 if pa == 6 else 3584; sc = 3072 if pc == 6 else 3584
    A(f"s_movk_i32 s{60+D}, {sa}")
    if sa != sc: A(f"s_cselect_b32 s{60+D}, {sc}, s{60+D}")
    if oa != oc: A(f"s_add_u32 s57, s{cs}, s58"); cs = 57
    elif oa: A(f"s_add_u32 s57, s{cs}, {oa}"); cs = 57
    A(f"s_add_u32 s{S}, s{src}, s{cs}\ns_addc_u32 s{S+1}, s{src+1}, 0")
    A(f"v_mul_u32_u24 v18, s{60+D}, v16")
    if swap[D]:
        A(f"v_xor_b32 v19, s{swap[D]}, v17\nv_add_u32 v{vDW[D]}, v18, v19")
    else:
        A(f"v_add_u32 v{vDW[D]}, v18, v17")
    A(f"s_lshl_b32 s{S+2}, s{60+D}, 9\ns_mov_b32 s{S+3}, 0x20000")
def dma_w(k):
    o = []
    for D in range(5):
        S = 24 + 4 * D
        pre = [f"s_add_u32 s56, s81, {k}", "s_and_b32 s56, s56, 15", "s_lshl_b32 s56, s56, 5"] if D == 0 else []
        o.append(pre + [f"s_add_u32 m0, s13, {WR + (k%5)*WSL + D*4096}", f"s_mul_i32 s59, s{60+D}, s56",
                        f"buffer_load_dwordx4 v{vDW[D]}, s[{S}:{S+3}], s59 offen {'nt ' if k < OPT['ntw'] else ''}lds"])
    return o
def G(k):
    g = (dma_x(k // 2) if k % 2 == 0 else []) + dma_w(k)
    Q.add(f"S{k}", emit(g))
Q.add("S0", n0 + emit(dma_w(0)))
G(1)
ws_srd()
A("""s_or_b32 s57, s2, s15
s_cmp_lg_u32 s57, 0
s_cbranch_scc1 H_NONONCE
s_memrealtime s[56:57]
s_waitcnt lgkmcnt(0)
s_mul_i32 s56, s56, 0x9e3779b1
s_or_b32 s56, s56, 1
v_mov_b32 v16, 0
v_mov_b32 v17, s56
buffer_store_dword v17, v16, s[16:19], 0 offen sc1""")
A.label("H_NONONCE")
A("s_lshl_b32 s69, s47, 5")
if ROT == 2: A("s_lshr_b32 s55, s45, 2\ns_lshl_b32 s57, s44, 1\ns_add_u32 s55, s55, s57")
elif ROT == 1: A("s_mov_b32 s55, s44")
elif ROT == 3: A("s_lshr_b32 s55, s45, 1\ns_lshl_b32 s57, s44, 2\ns_add_u32 s55, s55, s57")
if ROT == 0: A("s_and_b32 s55, s45, 3")
NDELTA = {0: 4, 1: 2, 2: 4, 3: 8}[ROT]
def pf_setup():
    A("""v_lshrrev_b32 v20, 3, v1
    v_and_b32 v21, 3, v20
    v_lshrrev_b32 v20, 2, v20
    v_lshlrev_b32 v20, 5, v20
    v_add_u32 v20, v20, v21
    s_lshl_b32 s57, s45, 2
    v_add_u32 v20, s57, v20
    v_and_b32 v21, 7, v1
    v_lshlrev_b32 v21, 4, v21""")
    for D in range(5):
        A(f"v_mul_u32_u24 v{116+D}, s{60+D}, v20\nv_add_u32 v{116+D}, v{116+D}, v21")
    A("""v_lshrrev_b32 v20, 3, v1
    v_lshlrev_b32 v20, 10, v20
    s_lshl_b32 s57, s49, 15
    s_lshl_b32 s58, s15, 13
    s_add_u32 s57, s57, s58
    v_add3_u32 v121, v20, v21, s57""")
def pf_burst(u0, u1):
    n = 0
    for u in range(u0, u1):
        A(f"s_movk_i32 s59, {u*128}\nbuffer_load_dwordx4 {vr(128+4*u,4)}, v121, s[72:75], s59 offen"); n += 1
    for u in range(u0, u1):
        A(f"s_mul_i32 s59, s{PFS}, {64*u}\nbuffer_load_dwordx4 {vr(160+4*u,4)}, v122, s[{PFR}:{PFR+3}], s59 offen"); n += 1
        lb = f"H_PF{u}"
        A(f"s_cmp_eq_u32 s15, {u%4}\ns_cbranch_scc0 {lb}\ns_mul_i32 s59, s64, {64*u}\nbuffer_load_dwordx4 {vr(192+4*(u>>2),4)}, v120, s[40:43], s59 offen")
        A.label(lb)
    Q.add("PF", n)
PFR, PFS = 76, 71
BUR = {}
if OPT.get("burst"):
    pf_setup()
    A(f"s_mov_b32 s{PFR}, s24\ns_mov_b32 s{PFR+1}, s25\ns_mov_b32 s{PFR+2}, s26\ns_mov_b32 s{PFR+3}, 0x20000\ns_mov_b32 s{PFS}, s60\nv_mov_b32 v122, v116")
    for D in (1, 2, 3):
        A(f"""s_cmp_eq_u32 s15, {D}
        s_cselect_b32 s{PFR}, s{24+4*D}, s{PFR}
        s_cselect_b32 s{PFR+1}, s{25+4*D}, s{PFR+1}
        s_cselect_b32 s{PFR+2}, s{26+4*D}, s{PFR+2}
        s_cselect_b32 s{PFS}, s{60+D}, s{PFS}
        s_cselect_b64 vcc, -1, 0
        v_cndmask_b32 v122, v122, v{116+D}, vcc""")
    BUR = {1: {-1: (1, 3), 1: (3, 6), 5: (6, 8)}, 2: {-1: (1, 4), 2: (4, 8)}, 3: {-1: (1, 2), 0: (2, 3), 1: (3, 4), 3: (4, 5), 5: (5, 6), 7: (6, 7), 9: (7, 8)}, 4: {-1: (1, 8)}}[OPT["burst"]]
    pf_burst(*BUR[-1])
A(f"""v_lshrrev_b32 v16, 5, v1
v_lshlrev_b32 v16, 10, v16
v_bfe_u32 v17, v1, 2, 2
v_lshlrev_b32 v17, 6, v17
v_add_u32 v16, v16, v17
v_and_b32 v17, 3, v1
v_lshlrev_b32 v17, 3, v17
v_add_u32 v16, v16, v17
v_bfe_u32 v17, v1, 4, 1
v_lshlrev_b32 v17, 5, v17
s_lshr_b32 s58, s15, 1
s_lshl_b32 s58, s58, 12
s_and_b32 s59, s15, 1
s_lshl_b32 s59, s59, 9
s_add_u32 s58, s58, s59
v_add3_u32 v12, v16, v17, s58
v_lshlrev_b32 v9, 4, v1
v_mov_b32 v10, 0""")
sched = {0: [2], 1: [3], 2: [4, 5]}
for s in range(3, 13): sched[s] = [s + 3]
def col_valu(js, fin):
    for j in js:
        b = 48 + 8 * j; acc = 44 + j
        for d in range(8):
            A(f"v_lshlrev_b32 v18, 16, v{b+d}\nv_and_b32 v19, 0xffff0000, v{b+d}")
            if d == 0: A(f"v_add_f32 v{acc}, v18, v19")
            else: A(f"v_add_f32 v{acc}, v{acc}, v18\nv_add_f32 v{acc}, v{acc}, v19")
    if fin:
        for j in range(3): A(f"v_mov_b32 v{72+2*j}, v{44+j}")
        A("s_nop 1")
        for j in range(3): A(f"v_permlane32_swap_b32 v{72+2*j}, v{44+j}")
        A("s_nop 1")
        for j in range(3): A(f"v_add_f32 v{72+2*j}, v{72+2*j}, v{44+j}")
def row_valu(part):
    if part == 0:
        for rrow in range(2):
            b = 32 + 4 * rrow; sx = 40 + 2 * rrow; sq = sx + 1
            for d in range(4):
                A(f"v_lshlrev_b32 v18, 16, v{b+d}\nv_and_b32 v19, 0xffff0000, v{b+d}")
                if d == 0: A(f"v_add_f32 v{sx}, v18, v19\nv_mul_f32 v{sq}, v18, v18\nv_fmac_f32 v{sq}, v19, v19")
                else: A(f"v_add_f32 v{sx}, v{sx}, v18\nv_fmac_f32 v{sq}, v18, v18\nv_add_f32 v{sx}, v{sx}, v19\nv_fmac_f32 v{sq}, v19, v19")
    else:
        for dpp in ("quad_perm:[1,0,3,2] row_mask:0xf bank_mask:0xf", "quad_perm:[2,3,0,1] row_mask:0xf bank_mask:0xf",
                    "row_half_mirror row_mask:0xf bank_mask:0xf", "row_mirror row_mask:0xf bank_mask:0xf",
                    "row_bcast:15 row_mask:0xa bank_mask:0xf", "row_bcast:31 row_mask:0xc bank_mask:0xf"):
            for r in range(40, 44): A(f"v_add_f32_dpp v{r}, v{r}, v{r} {dpp}")
def get_nonce(tag, vz, vn):
    A(f"""v_readfirstlane_b32 s80, v{vn}
    s_mov_b32 s57, 0
    s_cmp_eq_u32 s80, 0
    s_cbranch_scc0 {tag}_GOTN""")
    A.label(f"{tag}_POLLN")
    A(f"""buffer_load_dword v{vn}, v{vz}, s[16:19], 0 offen sc1
    s_add_u32 s57, s57, 1
    s_waitcnt vmcnt(0)
    v_readfirstlane_b32 s80, v{vn}
    s_cmp_gt_u32 s57, {SPIN}
    s_cbranch_scc1 {tag}_GOTN
    s_cmp_eq_u32 s80, 0
    s_cbranch_scc1 {tag}_POLLN""")
    A.label(f"{tag}_GOTN")
def publish():
    get_nonce("H", 10, 11)
    A(f"""s_lshl_b32 s57, s48, 4
    s_add_u32 s57, s57, s47
    s_mul_i32 s57, s57, 2560
    s_lshl_b32 s58, s15, 8
    s_add_u32 s57, s57, s58
    s_add_u32 s57, s57, {WS_CS}
    v_lshlrev_b32 v16, 3, v1
    v_mov_b32 v73, s80
    v_mov_b32 v75, s80
    v_mov_b32 v77, s80
    s_mov_b32 exec_hi, 0
    buffer_store_dwordx2 v[72:73], v16, s[20:23], s57 offen sc1
    buffer_store_dwordx2 v[74:75], v16, s[20:23], s57 offen offset:1024 sc1
    s_cmp_ge_u32 s15, 2
    s_cbranch_scc1 H_NO3
    buffer_store_dwordx2 v[76:77], v16, s[20:23], s57 offen offset:2048 sc1""")
    A.label("H_NO3")
    A(f"""s_mov_b32 exec_lo, 0
    s_mov_b32 exec_hi, 0x80000000
    s_lshl_b32 s57, s69, 6
    s_lshl_b32 s58, s48, 7
    s_add_u32 s57, s57, s58
    s_lshl_b32 s58, s15, 5
    s_add_u32 s57, s57, s58
    s_add_u32 s57, s57, {WS_TOK}
    v_mov_b32 v48, v40
    v_mov_b32 v49, v41
    v_mov_b32 v50, s80
    v_mov_b32 v51, s80
    v_mov_b32 v52, v42
    v_mov_b32 v53, v43
    v_mov_b32 v54, s80
    v_mov_b32 v55, s80
    buffer_store_dwordx4 v[48:51], v10, s[20:23], s57 offen sc1
    buffer_store_dwordx4 v[52:55], v10, s[20:23], s57 offen offset:16 sc1
    s_mov_b64 exec, -1""")
def gather_loads(part=None):
    if part == 0:
        for m in range(6):
            A(f"s_add_u32 s59, s66, {m*5120}")
            A(f"buffer_load_dwordx4 {vr(64+4*m,4)}, v16, s[20:23], s59 offen sc1")
        return
    for m in range(6 if part == 1 else 0, 8):
        A(f"s_add_u32 s59, s66, {m*5120}")
        A(f"buffer_load_dwordx4 {vr(64+4*m,4)}, v16, s[20:23], s59 offen sc1")
    for m in range(2):
        A(f"s_add_u32 s59, s66, {m*8*2560}")
        A(f"buffer_load_dwordx4 {vr(96+4*m,4)}, v17, s[20:23], s59 offen sc1")
    A("buffer_load_dwordx4 v[104:107], v18, s[20:23], s67 offen sc1")
def gather_prep():
    A(f"""s_mul_i32 s66, s48, {16*2560}
    s_add_u32 s66, s66, {WS_CS}
    v_and_b32 v18, 31, v1
    v_lshlrev_b32 v18, 4, v18
    v_lshrrev_b32 v16, 5, v1
    v_mul_u32_u24 v16, 2560, v16
    s_lshl_b32 s58, s15, 9
    v_add3_u32 v16, v16, v18, s58
    v_and_b32 v17, 7, v1
    v_lshlrev_b32 v17, 4, v17
    v_lshrrev_b32 v19, 3, v1
    v_mul_u32_u24 v19, 2560, v19
    s_lshl_b32 s58, s15, 7
    s_add_u32 s58, s58, 2048
    v_add3_u32 v17, v17, v19, s58
    s_lshl_b32 s67, s69, 6
    s_lshl_b32 s59, s15, 9
    s_add_u32 s67, s67, s59
    s_add_u32 s67, s67, {WS_TOK}""")
def gather_tags():
    tags = list(range(65, 104, 2)) + [106]
    A(f"v_and_b32 v19, v{tags[0]}, v{tags[1]}\nv_or_b32 v20, v{tags[0]}, v{tags[1]}")
    rest = tags[2:]
    for k in range(0, len(rest) - 1, 2):
        A(f"v_bitop3_b32 v19, v19, v{rest[k]}, v{rest[k+1]} bitop3:0x80\nv_or3_b32 v20, v20, v{rest[k]}, v{rest[k+1]}")
    if len(rest) % 2: A(f"v_and_b32 v19, v19, v{rest[-1]}\nv_or_b32 v20, v20, v{rest[-1]}")
    A("""v_xor_b32 v19, s80, v19
    v_xor_b32 v20, s80, v20
    v_or_b32 v19, v19, v20
    v_cmp_eq_u32 vcc, 0, v19
    s_nop 0
    s_cmp_eq_u64 vcc, -1""")
def gather_check():
    Q.wait("GA")
    gather_tags()
    A("s_cselect_b32 s70, 1, 0")
def gather_slow():
    A.label("H_GSLOW")
    A("s_mov_b32 s70, 0")
    A.label("H_GS1")
    gather_loads()
    A("s_waitcnt vmcnt(0)")
    gather_tags()
    A(f"""s_cbranch_scc1 H_GS2
    s_add_u32 s70, s70, 1
    s_cmp_gt_u32 s70, {SPIN}
    s_cbranch_scc1 H_GS2
    s_sleep 4
    s_branch H_GS1""")
    A.label("H_GS2")
    gather_cols()
    A("s_branch H_GTOK")
def gather_cols():
    st = 4
    while st <= 16:
        for r in range(64, 96, 2 * st):
            A(f"v_add_f32 v{r}, v{r}, v{r+st}\nv_add_f32 v{r+2}, v{r+2}, v{r+st+2}")
        st *= 2
    A("""v_add_f32 v96, v96, v100
    v_add_f32 v98, v98, v102
    v_mov_b32 v65, v64
    v_mov_b32 v67, v66
    v_add_f32_dpp v96, v96, v96 row_ror:8 row_mask:0xf bank_mask:0xf
    v_add_f32_dpp v98, v98, v98 row_ror:8 row_mask:0xf bank_mask:0xf
    v_permlane32_swap_b32 v65, v64
    v_permlane32_swap_b32 v67, v66
    v_mov_b32 v97, v96
    v_mov_b32 v99, v98
    v_add_f32 v64, v64, v65
    v_add_f32 v66, v66, v67
    v_permlane32_swap_b32 v97, v96
    v_permlane32_swap_b32 v99, v98
    s_nop 0
    v_add_f32 v96, v96, v97
    v_add_f32 v98, v98, v99
    v_mov_b32 v97, v96
    v_mov_b32 v99, v98
    s_nop 1
    v_permlane16_swap_b32 v97, v96
    v_permlane16_swap_b32 v99, v98
    s_nop 0
    v_add_f32 v96, v96, v97
    v_add_f32 v98, v98, v99""")
    for r, d in ((64, 68), (66, 69), (96, 70), (98, 71)):
        A(f"""v_cvt_pk_bf16_f32 v{r+1}, v{r}, v{r}
        v_and_b32 v{r+1}, 0xffff0000, v{r+1}
        v_sub_f32 v{r}, v{r}, v{r+1}
        v_cvt_pk_bf16_f32 v{d}, v{r+1}, v{r}""")
    A(f"""v_lshrrev_b32 v16, 1, v18
    s_lshl_b32 s58, s15, 8
    s_add_u32 s58, s58, {EX_COL}
    v_add_u32 v16, s58, v16
    ds_write_b64 v16, v[68:69]
    v_and_b32 v17, 7, v1
    v_lshlrev_b32 v17, 3, v17
    s_lshl_b32 s58, s15, 6
    s_add_u32 s58, s58, {EX_COL + 1024}
    v_add_u32 v17, s58, v17
    ds_write_b64 v17, v[70:71]""")
def gather_toks():
    c1 = -2.0 * math.sqrt(2.0 / math.pi) * LOG2E
    c3 = c1 * 0.044715
    A(f"""    v_mul_f32 v104, {f32(-1/512)}, v104
    v_mul_f32 v105, {f32(1/512)}, v105
    v_fma_f32 v105, -v104, v104, v105
    v_max_f32 v105, 0, v105
    v_add_f32 v113, {f32(1e-5)}, v105
    v_rsq_f32 v110, v113
    v_cvt_pk_bf16_f32 v108, v104, v104
    v_and_b32 v106, 0xffff0000, v108
    v_sub_f32 v106, v104, v106
    v_cvt_pk_bf16_f32 v109, v106, v106
    v_mul_f32 v111, {f32(c1)}, v110
    v_mul_f32 v112, v110, v110
    v_mul_f32 v112, v112, v110
    v_mul_f32 v112, {f32(c3)}, v112
    v_mov_b32 v114, s80
    v_lshlrev_b32 v18, 1, v18
    s_lshl_b32 s58, s15, 10
    s_add_u32 s58, s58, {EX_TOK}
    v_add_u32 v18, s58, v18
    ds_write_b128 v18, v[108:111]
    ds_write_b128 v18, v[112:115] offset:16
    s_waitcnt lgkmcnt(0)""")
WD = OPT["wd"]
UFB = [60, 61, 62, 76, 77, 78, 79]
def d_setup_w():
    A(f"""v_bfe_u32 v6, v1, 2, 3
    v_lshlrev_b32 v6, 10, v6
    v_lshrrev_b32 v7, 5, v1
    v_lshlrev_b32 v7, 6, v7
    v_add_u32 v6, v6, v7
    v_and_b32 v7, 3, v1
    v_lshlrev_b32 v7, 4, v7
    v_add_u32 v2, v6, v7
    s_lshl_b32 s43, s15, 11
    s_lshr_b32 s58, s2, 5
    s_lshl_b32 s40, s58, 7
    s_lshl_b32 s42, s15, 17
    s_add_u32 s42, s42, s40
    s_mul_i32 s57, s15, 24""")
    if OPT["rotd"]:
        A("""s_mul_i32 s59, s58, 11
        s_lshr_b32 s59, s59, 5
        s_mul_i32 s59, s59, 3
        s_sub_u32 s59, s58, s59""")
    else:
        A("s_mov_b32 s59, 0\ns_mov_b32 s58, 0")
    for u in range(3):
        A(f"""s_lshl_b32 s{UFB[u]}, s59, 3
        s_add_u32 s{UFB[u]}, s{UFB[u]}, s57
        s_add_u32 s{UFB[u]}, s{UFB[u]}, 4
        s_add_u32 s59, s59, 1
        s_cmp_eq_u32 s59, 3
        s_cselect_b32 s59, 0, s59""")
    A("s_lshl_b32 s41, s15, 2\ns_add_u32 s41, s41, 96")
    for u in range(4):
        A(f"""s_add_u32 s59, s58, {u}
        s_and_b32 s59, s59, 3
        s_lshl_b32 s44, s59, 3
        s_add_u32 s44, s44, s57
        s_cmp_eq_u32 s59, 3
        s_cselect_b32 s{UFB[3+u]}, s41, s44""")
    A("""s_waitcnt lgkmcnt(0)
    s_mov_b32 s26, 0x1c0000
    s_mov_b32 s27, 0x20000
    s_mov_b32 s30, 0x80000
    s_mov_b32 s31, 0x20000""")
def issw(s, q):
    slot = s % WD
    if s < 28:
        srd = 24
        o = [f"s_lshl_b32 s44, s{UFB[s>>2]}, 14", "s_add_u32 s44, s44, s40"]
        if s & 3: o.append(f"s_add_u32 s44, s44, {(s&3)*16384}")
    else:
        srd = 28
        o = [f"s_add_u32 s44, s42, {(s-28)*16384}"]
    a = o + [f"s_add_u32 m0, s43, {DREG[slot]}", "s_add_u32 s45, s44, 8192",
             f"buffer_load_dwordx4 v2, s[{srd}:{srd+3}], s44 offen lds"]
    b = [f"s_add_u32 m0, s43, {DREG[slot]+1024}", "s_nop 0",
         f"buffer_load_dwordx4 v2, s[{srd}:{srd+3}], s45 offen lds"]
    q.add(f"W{s}", 2)
    return [a, b]
P0 = max(NDELTA, 4)
wnext = [0]
GAT, GC = OPT['gat'], OPT['gc']
HP = OPT.get('hprof')
for s in range(17):
    if s < 16: Q.wait(f"S{s}")
    if HP and s >= 4: A(f"s_memtime s[100:101]\ns_waitcnt lgkmcnt(0)\ns_sub_u32 s99, s100, s98\ns_add_u32 s{84+s-4}, s99, s83")
    A("s_barrier")
    if HP: A("s_memtime s[100:101]\ns_waitcnt lgkmcnt(0)\ns_mov_b32 s98, s100")
    if s == 0 and not HP: PR.stamp()
    for k in sched.get(s, []): G(k)
    if s in BUR: pf_burst(*BUR[s])
    if s == 0:
        A("""s_lshl_b32 s57, s48, 13
        s_lshl_b32 s58, s15, 11
        s_add_u32 s57, s57, s58
        buffer_load_dwordx4 v[32:35], v9, s[72:75], s57 offen
        buffer_load_dwordx4 v[36:39], v9, s[72:75], s57 offen offset:1024
        buffer_load_dword v11, v10, s[16:19], 0 offen sc1""")
        Q.add("ST", 3)
    if s < NDELTA:
        lb = f"H_NOCS{s}"
        A(f"s_cmp_eq_u32 s55, {s}\ns_cbranch_scc0 {lb}\nv_add_u32 v12, {WR + (s%5)*WSL}, v12")
        for j in range(3):
            for t in range(4):
                A(f"ds_read_b64_tr_b16 {vr(48+8*j+2*t,2)}, v12 offset:{j*8192 + (t>>1)*2048 + (t&1)*256}")
        A("s_waitcnt lgkmcnt(0)")
        A.label(lb)
    if s == 4: row_valu(0); col_valu([0], False)
    if s == 5: col_valu([1], False)
    if s == 6: col_valu([2], True); row_valu(1)
    if s == OPT["pub"]: publish()
    if s == 3:
        A("s_load_dwordx2 s[4:5], s[0:1], 48\ns_load_dwordx2 s[8:9], s[0:1], 16")
    if OPT["vw"] and s == OPT["vw"]:
        A("""s_cmp_lg_u32 s15, 0
        s_cbranch_scc1 H_NOWARM
        s_mul_i32 s57, s2, 7168
        s_lshl_b32 s58, s2, 11
        v_lshlrev_b32 v20, 7, v1
        s_waitcnt lgkmcnt(0)
        s_add_u32 s6, s57, 7168
        s_mov_b32 s7, 0x20000
        s_add_u32 s10, s58, 2048
        s_mov_b32 s11, 0x20000
        buffer_load_dword v21, v20, s[4:7], s57 offen
        buffer_load_dword v22, v20, s[8:11], s58 offen""")
        A.label("H_NOWARM")
    if s == 5 and not OPT["vw"]:
        A("""s_lshl_b32 s57, s2, 2
        s_add_u32 s57, s57, s15
        s_mul_i32 s58, s57, 1792
        s_lshl_b32 s57, s57, 9
        s_waitcnt lgkmcnt(0)
        s_add_u32 s4, s4, s58
        s_addc_u32 s5, s5, 0
        s_add_u32 s8, s8, s57
        s_addc_u32 s9, s9, 0""")
    if s in (5, 7, 8, 9) and not OPT['vw']:
        k0 = {5: 0, 7: 9, 8: 18, 9: 27}[s]
        for i in range(k0, k0 + 9):
            if i < 28: A(f"s_load_dword s65, s[4:5], {i*64}")
            else: A(f"s_load_dword s65, s[8:9], {(i-28)*64}")
    if OPT["l2pf"] and s == OPT["warm"] + 1:
        A("""s_lshr_b32 s57, s2, 3
        s_lshl_b32 s57, s57, 2
        s_add_u32 s57, s57, s15
        s_lshr_b32 s58, s57, 3
        s_min_u32 s58, s58, 11
        s_lshr_b32 s59, s58, 1
        s_mul_i32 s59, s59, 6
        s_and_b32 s65, s58, 1
        s_lshl_b32 s65, s65, 1
        s_add_u32 s59, s59, s65
        s_add_u32 s59, s59, 2
        s_add_u32 s65, s58, 16
        s_cmp_lt_u32 s58, 8
        s_cselect_b32 s59, s59, s65
        s_lshl_b32 s59, s59, 16
        s_and_b32 s58, s57, 7
        s_lshl_b32 s58, s58, 13
        s_add_u32 s58, s58, s59
        s_lshl_b32 s57, s57, 12
        s_waitcnt lgkmcnt(0)
        s_add_u32 s4, s4, s58
        s_addc_u32 s5, s5, 0
        s_add_u32 s8, s8, s57
        s_addc_u32 s9, s9, 0""")
    if OPT["l2pf"] and OPT["warm"] + 1 <= s <= OPT["l2end"]:
        nst = OPT["l2end"] - OPT["warm"]
        tot = OPT["l2pf"]
        i0 = (s - OPT["warm"] - 1) * tot // nst; i1 = (s - OPT["warm"]) * tot // nst
        for i in range(i0, i1):
            if i < 64: A(f"s_load_dword s65, s[4:5], {i*128}")
            else: A(f"s_load_dword s65, s[8:9], {(i-64)*128}")
    if s == 8: gather_prep()
    if s == GAT: gather_loads(0); Q.add("GA0", 6)
    if s == GAT + OPT["gd"]: gather_loads(1); Q.add("GA", 5)
    if s == 12:
        A("s_load_dwordx2 s[24:25], s[0:1], 48\ns_load_dwordx2 s[28:29], s[0:1], 16")
        d_setup_w()
    if s == GC: gather_check()
    if s in DAVAIL:
        for _ in range(DAVAIL[s]):
            emit(issw(wnext[0], Q)); wnext[0] += 1
    if s == GC + 1:
        A("s_cmp_eq_u32 s70, 0\ns_cbranch_scc1 H_NOCOLS")
        gather_cols()
        A.label("H_NOCOLS")
    if s == 15:
        A("s_cmp_eq_u32 s70, 0\ns_cbranch_scc1 H_GSLOW")
        A.label("H_GTOK")
        gather_toks()
    if s in (4, 8, 12) and not HP: PR.stamp()
if HP:
    PR.n = 15; PR.dump(20); PR.n = 0
    OPT["prof"] = 0
PR.stamp()
PR.stamp()
import gen_cd
gen_cd.OPT = OPT
A("""s_and_b32 s57, s2, 7
s_lshr_b32 s58, s2, 3
s_and_b32 s58, s58, 3
s_lshl_b32 s50, s58, 3
s_add_u32 s50, s50, s57
s_lshr_b32 s51, s2, 5
s_lshl_b32 s51, s51, 2
s_add_u32 s51, s51, s15""")
gen_cd.attn_setup(A)
SH = OPT["share"]
LK, LVS, LFL = 16384, 49152, 49152 + 16384 + 1024
if SH:
    LONE = 49152 + 16384
    A(f"""s_lshr_b32 s49, s2, 5
    s_lshl_b32 s49, s49, 2
    s_lshl_b32 s57, s15, 1
    s_add_u32 s49, s49, s57
    s_sub_u32 s49, s49, 4
    v_and_b32 v9, 1, v1
    v_add_u32 v9, s49, v9
    v_max_i32 v9, 0, v9
    v_lshlrev_b32 v9, 8, v9
    v_bfe_u32 v10, v1, 1, 1
    v_lshlrev_b32 v10, 6, v10
    v_add3_u32 v9, v9, v10, 64
    s_lshl_b32 s57, s51, 8
    v_mov_b32 v10, s57
    v_cmp_gt_u32 vcc, 4, v1
    s_lshr_b32 s57, s50, 1
    s_lshl_b32 s57, s57, 7
    s_add_u32 s57, s57, {WS_FQ}
    v_cndmask_b32 v9, v10, v9, vcc
    v_lshlrev_b32 v9, 5, v9
    v_add_u32 v252, s57, v9""")
else:
    A(f"""v_min_u32 v9, 10, v1
    v_cmp_gt_u32 vcc, 5, v9
    v_subrev_u32 v10, 5, v9
    s_nop 0
    v_cndmask_b32 v10, v10, v9, vcc
    v_min_u32 v10, 4, v10
    s_sub_u32 s57, s51, 4
    v_add_u32 v10, s57, v10
    v_max_i32 v10, 0, v10
    v_lshlrev_b32 v10, 8, v10
    v_mov_b32 v11, 128
    v_cndmask_b32 v11, v11, 64, vcc
    v_cmp_eq_u32 vcc, 10, v9
    s_lshr_b32 s57, s50, 1
    s_lshl_b32 s57, s57, 7
    s_add_u32 s57, s57, {WS_FQ}
    v_cndmask_b32 v11, v11, 0, vcc
    v_add_u32 v10, v10, v11
    v_lshlrev_b32 v10, 5, v10
    v_add_u32 v252, s57, v10""")
A("s_barrier")
PR.stamp()
gen_cd.LONE = LONE
if SH:
    A(f"s_lshl_b32 s57, s15, 11\ns_add_u32 s57, s57, {LVS}")
else:
    A("""s_movk_i32 s57, 0x4000
    s_cmp_eq_u32 s15, 1
    s_cselect_b32 s57, 49152, s57
    s_cmp_eq_u32 s15, 2
    s_cselect_b32 s57, 59392, s57
    s_cmp_eq_u32 s15, 3
    s_cselect_b32 s57, 151552, s57""")
gen_cd.attn_setup2(A, None)
ld = "buffer_load_dword v253, v252, s[20:23], 0 offen sc1"
A("s_waitcnt vmcnt(0)")
PR.stamp()
A("s_barrier")
A(f"s_setprio {OPT['aprio']}")
A(f"s_sleep {OPT['hs']}")
A(ld)
A("s_waitcnt vmcnt(0)")
spin(A, "HQ", ld, 253)
PR.stamp()
if SH:
    A(f"""s_lshl_b32 s52, s50, 16
    s_lshl_b32 s53, s49, 11""")
    for which, base, r0 in ((0, WS_K, 188), (1, WS_V, 204)):
        for b in range(4):
            if b % 2 == 0:
                A(f"s_add_i32 s55, s53, {b*1024}\ns_max_i32 s55, s55, 0\ns_add_u32 s55, s55, s52\ns_add_u32 s55, s55, {base}")
            A(f"buffer_load_dwordx4 {vr(r0+4*b,4)}, v3, s[20:23], s55 offen offset:{(b%2)*1024} sc1")
    A(f"""s_lshl_b32 s53, s51, 11
    s_add_u32 s54, s52, s53
    buffer_load_dwordx4 v[12:15], v3, s[20:23], s54 offen sc1
    buffer_load_dwordx4 v[16:19], v3, s[20:23], s54 offen offset:1024 sc1
    s_lshl_b32 s57, s15, 12
    v_add_u32 v9, s57, v3
    v_add_u32 v10, s57, v2
    s_lshl_b32 s57, s15, 11
    v_add_u32 v11, s57, v3
    s_lshl_b32 s57, s15, 2
    s_add_u32 s57, s57, {LFL}
    v_mov_b32 v252, s57
    v_mov_b32 v253, s80
    v_mov_b32 v254, {LFL}""")
    for b in range(4):
        A(f"s_waitcnt vmcnt({9-b})\nds_write_b128 v9, {vr(188+4*b,4)} offset:{LK + b*1024}")
    for b in range(4):
        A(f"s_waitcnt vmcnt({5-b})\nds_write_b128 v10, {vr(204+4*b,4)} offset:{LVS + b*1024}")
    A("""s_waitcnt lgkmcnt(0)
    ds_write_b32 v252, v253
    s_mov_b32 s56, 0""")
    A.label("H_LW")
    A(f"""ds_read_b128 v[188:191], v254
    s_add_u32 s56, s56, 1
    s_waitcnt lgkmcnt(0)
    v_xor_b32 v188, s80, v188
    v_xor_b32 v189, s80, v189
    v_xor_b32 v190, s80, v190
    v_xor_b32 v191, s80, v191
    v_or3_b32 v188, v188, v189, v190
    v_or_b32 v188, v188, v191
    v_cmp_eq_u32 vcc, 0, v188
    s_cmp_gt_u32 s56, {SPIN*50}
    s_cbranch_scc1 H_LOK
    s_cmp_eq_u64 vcc, -1
    s_cbranch_scc1 H_LOK
    s_sleep 1
    s_branch H_LW""")
    A.label("H_LOK")
    for b in range(10):
        A(f"ds_read_b128 {vr(20+4*b,4)}, v11 offset:{LK + b*1024}")
    A("s_waitcnt vmcnt(0)")
A(f"s_setprio {OPT['aprio2']}")
if OPT.get("noattn"): A("s_branch H_AFIN")
A("s_cmp_lt_u32 s51, 4")
A("s_cbranch_scc1 H_SLOW")
n0 = PR.n
gen_cd.gen_attn(A, False, "AF", PR, "sc1", setup=False, bar=OPT["defer"] >= 4, loads=not SH, shared=SH)
A.label("H_AFIN")
PR.stamp()
A(f"""s_lshl_b32 s57, s51, 12
s_lshl_b32 s58, s50, 7
s_add_u32 s57, s57, s58
s_add_u32 s57, s57, {WS_FO}
v_mov_b32 v9, 0
v_mov_b32 v10, s80
s_waitcnt vmcnt(0)
s_mov_b64 exec, 1
buffer_store_dword v10, v9, s[20:23], s57 offen sc1
s_mov_b64 exec, -1""")
PR.stamp()
PR.dump(2)
A.label("L_END")
A("s_endpgm")
gather_slow()
A.label("H_SLOW")
PR.n = n0
gen_cd.gen_attn(A, True, "AS", PR, "sc1", setup=False, bar=OPT["defer"] >= 4, loads=not SH, shared=SH)
A("s_branch H_AFIN")
A.label("L_M")
PR.n = 0
A("s_waitcnt lgkmcnt(0)")
PR.stamp(True); PR.stamp()
ws_srd()
if OPT["codepf"]:
    A("s_getpc_b64 s[24:25]")
    A.label("L_PC")
    A(f"""s_sub_u32 s24, s24, L_PC-{NAME}
    s_subb_u32 s25, s25, 0
    s_mov_b32 s26, L_CODE_END-{NAME}
    s_mov_b32 s27, 0x20000
    s_lshr_b32 s57, s2, 3
    s_lshl_b32 s57, s57, 2
    s_add_u32 s57, s57, s14
    s_lshl_b32 s57, s57, 9
    v_lshlrev_b32 v16, 7, v1
    s_mov_b64 exec, 15
    buffer_load_dword v31, v16, s[24:27], s57 offen
    s_mov_b64 exec, -1""")
vXa = [2, 3, 4, 5]; vWa = [6, 7, 8, 9, 10]; vWb = [11, 12, 13, 14, 15]
P = 32; QQ = 60; ACC = 88
A("s_setprio 2")
A("""s_and_b32 s12, s14, 1
s_lshr_b32 s13, s14, 1
v_and_b32 v16, 31, v1
v_lshrrev_b32 v17, 5, v1
v_bfe_u32 v18, v1, 1, 3
v_xor_b32 v17, v17, v18
v_lshlrev_b32 v17, 4, v17
v_lshlrev_b32 v16, 7, v16
v_add_u32 v16, v16, v17
s_lshl_b32 s57, s12, 13
v_add_u32 v2, s57, v16
v_xor_b32 v3, 32, v2
v_xor_b32 v4, 64, v2
v_xor_b32 v5, 96, v2""")
A(f"""v_lshrrev_b32 v16, 5, v1
v_lshlrev_b32 v16, 10, v16
v_bfe_u32 v17, v1, 2, 2
v_lshlrev_b32 v17, 6, v17
v_add_u32 v16, v16, v17
v_and_b32 v17, 3, v1
v_lshlrev_b32 v17, 3, v17
v_add_u32 v16, v16, v17
v_add_u32 v16, {WR}, v16
v_bfe_u32 v17, v1, 4, 1
s_sub_u32 s57, 2, s50
s_lshl_b32 s57, s57, 12
v_mul_u32_u24 v18, s57, v17
v_xor_b32 v19, s13, v17
v_lshlrev_b32 v19, 5, v19
v_add3_u32 v18, v18, v19, v16
v_lshlrev_b32 v19, 5, v17
s_lshl_b32 s57, s13, 9
v_add3_u32 v19, v19, s57, v16
s_cmp_eq_u32 s50, 1
s_cselect_b64 vcc, -1, 0""")
for n in range(5):
    fo = (n >> 1) * 4096 + (n & 1) * 512
    qo = n * 4096
    if n < 2: A(f"v_add_u32 v{vWa[n]}, {fo}, v18")
    elif n == 4: A(f"v_add_u32 v{vWa[n]}, {qo}, v19")
    else:
        A(f"v_add_u32 v20, {fo}, v18\nv_add_u32 v21, {qo}, v19\nv_cndmask_b32 v{vWa[n]}, v20, v21, vcc")
for n in range(5): A(f"v_add_u32 v{vWb[n]}, {4*WSL}, v{vWa[n]}")
def reads(s, kk, dst):
    xs = (s >> 1) % 3; q4 = (s & 1) * 2 + kk; sl = s % 5
    def xr(tt): return f"ds_read_b128 {vr(dst+4*tt,4)}, v{vXa[q4]} offset:{XR + xs*XS + tt*4096}"
    def wr(n, sec):
        a, o = (vWa[n], sl * WSL) if sl < 4 else (vWb[n], 0)
        return f"ds_read_b64_tr_b16 {vr(dst+8+4*n+2*sec,2)}, v{a} offset:{o + kk*2048 + sec*256}"
    R = [xr(0), wr(0, 0), wr(0, 1), xr(1)]
    for n in range(1, 5): R += [wr(n, 0), wr(n, 1)]
    return R
need = {0: 2, 1: 3, 2: 5, 4: 7, 6: 9, 8: 11}
def substep(cur, R, first=False):
    issued = 0
    for j in range(10):
        n, tt = j >> 1, j & 1
        if j in need: A(f"s_waitcnt lgkmcnt({min(15, 11 - need[j] + issued)})")
        a = ACC + 16 * (2 * n + tt)
        c = "0" if first else vr(a, 16)
        A(f"v_mfma_f32_32x32x16_bf16 {vr(a,16)}, {vr(cur+8+4*n,4)}, {vr(cur+4*tt,4)}, {c}")
        k = 2 if j < 2 else 1
        for r in R[issued:issued + k]: A(r)
        issued += len(R[issued:issued + k])
A(f"""v_and_b32 v16, 31, v1
v_lshlrev_b32 v22, 5, v16
s_lshl_b32 s57, s12, 11
s_add_u32 s57, s57, {EX_TOK}
v_add_u32 v22, s57, v22
v_and_b32 v16, 15, v1
s_sub_u32 s57, 2, s50
s_lshl_b32 s57, s57, 6
v_mul_u32_u24 v18, s57, v17
v_xor_b32 v19, s13, v17
v_lshlrev_b32 v19, 4, v19
v_add3_u32 v18, v18, v19, v16
v_lshlrev_b32 v18, 2, v18
v_and_b32 v19, 31, v1
s_lshl_b32 s57, s13, 5
v_add_u32 v19, s57, v19
v_lshlrev_b32 v19, 2, v19""")
for n in range(5):
    fo = EX_COL + ((n >> 1) * 64 + (n & 1) * 32) * 4
    qo = EX_COL + n * 256
    if n < 2: A(f"v_add_u32 v{23+n}, {fo}, v18")
    elif n == 4: A(f"v_add_u32 v{23+n}, {qo}, v19")
    else:
        A(f"v_add_u32 v20, {fo}, v18\nv_add_u32 v21, {qo}, v19\nv_cndmask_b32 v{23+n}, v20, v21, vcc")
A(f"""s_lshl_b32 s57, s47, 2
s_lshl_b32 s58, s12, 1
s_add_u32 s57, s57, s58
s_mul_i32 s70, s57, {112*1024}
s_lshl_b32 s59, s53, 12
s_add_u32 s70, s70, s59
s_lshl_b32 s59, s13, 10
s_add_u32 s70, s70, s59
s_add_u32 s70, s70, {WS_H}
s_lshl_b32 s59, s54, 2
s_lshl_b32 s60, s13, 1
s_add_u32 s59, s59, s60
s_lshl_b32 s71, s59, 6
s_add_u32 s71, s71, s57
s_lshl_b32 s71, s71, 10
s_lshl_b32 s57, s57, 7
s_lshl_b32 s72, s59, 1
s_add_u32 s72, s72, s57
s_lshl_b32 s72, s72, 5
s_add_u32 s72, s72, {WS_FQ}
s_lshl_b32 s73, s48, 3
s_lshl_b32 s60, s13, 2
s_add_u32 s73, s73, s60
s_add_u32 s73, s73, s57
s_lshl_b32 s73, s73, 5
s_add_u32 s73, s73, {WS_FH}
s_add_u32 s74, s73, 4096
s_load_dwordx2 s[24:25], s[0:1], 48
s_load_dwordx2 s[28:29], s[0:1], 16
s_load_dwordx2 s[36:37], s[0:1], 56
s_waitcnt lgkmcnt(0)""")
if OPT["tlb"]:
    A("""v_lshlrev_b32 v16, 21, v1
    v_mov_b32 v17, 0
    s_mov_b64 exec, 0x1ff
    buffer_load_dword v30, v16, s[20:23], 0 offen sc1
    s_mov_b64 exec, 1
    global_load_dword v30, v17, s[36:37] sc1
    global_load_dword v30, v17, s[24:25]
    global_load_dword v30, v17, s[28:29]
    s_mov_b64 exec, -1""")
A("s_waitcnt vmcnt(0)")
A("s_barrier")
PR.stamp()
for r in reads(0, 0, P): A(r)
A.raw(".p2align 3")
for s in range(16):
    substep(P, reads(s, 1, QQ), first=(s == 0))
    A("s_barrier")
    if s < 15: substep(QQ, reads(s + 1, 0, P))
    else:
        R = [f"ds_read_b128 {vr(P,4)}, v22", f"ds_read_b128 {vr(P+4,4)}, v22 offset:1024",
             f"ds_read_b128 v[16:19], v22 offset:16", f"ds_read_b128 v[28:31], v22 offset:1040"]
        R += [f"ds_read_b32 v{P+8+4*n}, v{23+n}" for n in range(5)]
        substep(QQ, R)
    if s in (11,): PR.stamp()
A("s_waitcnt lgkmcnt(0)")
A("s_barrier")
PR.stamp()
A(f"""v_mov_b32 v248, v{P+2}
v_mov_b32 v249, v{P+3}
v_mov_b32 v250, v16
v_mov_b32 v251, v17
v_mov_b32 v252, v{P+6}
v_mov_b32 v253, v{P+7}
v_mov_b32 v254, v28
v_mov_b32 v255, v29
v_cmp_gt_u32 vcc, 32, v1
v_readfirstlane_b32 s80, v18
v_mov_b32 v{P+2}, 0
v_mov_b32 v{P+3}, 0
v_mov_b32 v{P+6}, 0
v_mov_b32 v{P+7}, 0
v_cndmask_b32 v{P}, 0, v{P}, vcc
v_cndmask_b32 v{P+1}, 0, v{P+1}, vcc
v_cndmask_b32 v{P+4}, 0, v{P+4}, vcc
v_cndmask_b32 v{P+5}, 0, v{P+5}, vcc""")
for n in (4, 3, 2, 1, 0):
    w = P + 8 + 4 * n
    A(f"v_mov_b32 v{w+1}, v{w}\nv_mov_b32 v{w+2}, 0\nv_mov_b32 v{w+3}, 0")
for n in (4, 3, 2, 1, 0):
    for tt in range(2):
        a = ACC + 16 * (2 * n + tt)
        A(f"v_mfma_f32_32x32x16_bf16 {vr(a,16)}, {vr(P+8+4*n,4)}, {vr(P+4*tt,4)}, {vr(a,16)}")
A(f"""v_lshlrev_b32 v2, 4, v1
v_and_b32 v3, 31, v1
v_lshlrev_b32 v3, 5, v3
v_lshrrev_b32 v4, 5, v1
v_lshlrev_b32 v4, 4, v4
v_add_u32 v3, v3, v4
v_lshlrev_b32 v8, 8, v1
v_mov_b32 v9, s80""")
T = QQ
for tt in range(2):
    for k in range(3):
        A(f"v_mov_b32 v{68+6*tt+2*k}, v{248+4*tt+1+k}\nv_mov_b32 v{69+6*tt+2*k}, v{248+4*tt+1+k}")
def ffn(n, tt):
    a = ACC + 16 * (2 * n + tt); c = 68 + 6 * tt
    for r in range(0, 8, 2): A(f"v_pk_mul_f32 {vr(T+r,2)}, {vr(a+r,2)}, {vr(a+r,2)}")
    for r in range(0, 8, 2): A(f"v_pk_fma_f32 {vr(T+r,2)}, {vr(T+r,2)}, {vr(c+2,2)}, {vr(c,2)}")
    for r in range(0, 8, 2): A(f"v_pk_mul_f32 {vr(T+r,2)}, {vr(T+r,2)}, {vr(a+r,2)}")
    for r in range(8): A(f"v_exp_f32 v{T+r}, v{T+r}")
    for r in range(0, 8, 2): A(f"v_pk_mul_f32 {vr(a+r,2)}, {vr(a+r,2)}, {vr(a+8+r,2)}")
    for r in range(0, 8, 2): A(f"v_pk_fma_f32 {vr(T+r,2)}, {vr(T+r,2)}, {vr(c+4,2)}, {vr(c+4,2)}")
    for r in range(8): A(f"v_rcp_f32 v{T+r}, v{T+r}")
    A("s_nop 0")
    for r in range(0, 8, 2): A(f"v_pk_mul_f32 {vr(a+r,2)}, {vr(a+r,2)}, {vr(T+r,2)}")
    for d in range(4): A(f"v_cvt_pk_bf16_f32 v{a+8+d}, v{a+2*d}, v{a+2*d+1}")
def ffn_st(n, tt):
    a = ACC + 16 * (2 * n + tt)
    A(f"s_add_u32 s63, s70, {2048*n + tt*112*1024}")
    A(f"buffer_store_dwordx4 {vr(a+8,4)}, v2, s[20:23], s63 offen sc1")
def qkv(n, zoff):
    A(f"""s_add_u32 s60, s54, {zoff}
    s_cmp_lt_u32 s60, 8
    s_mov_b32 s62, {f32(0.25*LOG2E)}
    s_cselect_b32 s62, s62, 1.0
    v_mul_f32 v4, s62, v248
    v_mul_f32 v6, s62, v252
    v_mul_f32 v5, s62, v248
    v_mul_f32 v7, s62, v252""")
    for tt in range(2):
        a = ACC + 16 * (2 * n + tt)
        for r in range(0, 16, 2): A(f"v_pk_mul_f32 {vr(a+r,2)}, {vr(a+r,2)}, {vr(4+2*tt,2)}")
        for d in range(8): A(f"v_cvt_pk_bf16_f32 v{a+d}, v{a+2*d}, v{a+2*d+1}")
        A(f"s_add_u32 s63, s71, {zoff*4*65536 + tt*1024}")
        A(f"buffer_store_dwordx4 {vr(a,4)}, v2, s[20:23], s63 offen sc1")
        A(f"s_add_u32 s63, s63, 65536")
        A(f"buffer_store_dwordx4 {vr(a+4,4)}, v2, s[20:23], s63 offen sc1")
def flag(vm, mask, soff, imm=0, voff=8):
    A(f"s_waitcnt vmcnt({vm})\ns_mov_b64 exec, {mask}\nbuffer_store_dword v9, v{voff}, s[20:23], s{soff} offen offset:{imm} sc1\ns_mov_b64 exec, -1")
A("s_cmp_eq_u32 s50, 1")
A("s_cbranch_scc1 M_TC")
def ffs(n, tt): ffn(n, tt); ffn_st(n, tt)
DF = OPT["defer"]
qkv(4, 0)
if DF:
    ffn(3, 0); ffn(3, 1)
    A("s_barrier")
    ffn(2, 0); ffn(2, 1)
    if DF == 5: flag(0, 1, 72)
    if DF >= 2: ffn(1, 0); ffn(1, 1)
    if DF != 5: flag(0, 1, 72)
    nq = PR.n; PR.stamp()
    if DF >= 3: ffn(0, 0); ffn(0, 1)
    if DF >= 4: A("s_barrier")
    for n in (3, 2):
        for tt in range(2): ffn_st(n, tt)
    if DF == 1: ffs(1, 0); ffs(1, 1); ffs(0, 0); ffs(0, 1)
    elif DF == 2: ffn_st(1, 0); ffn_st(1, 1); ffs(0, 0); ffs(0, 1)
    else: ffn_st(1, 0); ffn_st(1, 1); ffn_st(0, 0); ffn_st(0, 1)
    flag(4, 1, 73)
else:
    ffs(3, 0); ffs(3, 1)
    A("s_barrier")
    ffs(2, 0); ffs(2, 1)
    flag(4, 1, 72)
    ffs(1, 0); ffs(1, 1); ffs(0, 0); ffs(0, 1)
    flag(4, 1, 73)
A("s_branch M_TJ")
A.label("M_TC")
qkv(4, 2); qkv(3, 1); qkv(2, 0)
A("s_barrier")
if DF:
    order = [(1, 0), (1, 1), (0, 0), (0, 1)]
    for t in order[:OPT["cq"]]: ffn(*t)
    flag(0, 7, 72)
    PR.n = nq; PR.stamp()
    for t in order[OPT["cq"]:]: ffn(*t)
    if DF >= 4: A("s_barrier")
    ffn_st(1, 0); ffn_st(1, 1); ffn_st(0, 0); ffn_st(0, 1)
else:
    ffs(1, 0); ffs(1, 1); ffs(0, 0); ffs(0, 1)
    flag(4, 7, 72)
A.label("M_TJ")
PR.stamp()
A("s_mov_b32 s15, s14")
d_setup_w()
XRr, BF, WF, AD, AS = 8, 16, 80, 96, 160
BD, NS = 8, 36
flag(0, 1, 74)
PR.stamp()
DQ = VQ(A)
A(f"""s_and_b32 s57, s2, 7
s_lshl_b32 s50, s57, 2
s_lshr_b32 s57, s2, 3
s_and_b32 s57, s57, 3
s_add_u32 s50, s50, s57
s_lshr_b32 s51, s2, 5
v_lshlrev_b32 v3, 4, v1
s_lshl_b32 s55, s50, 13
s_lshl_b32 s57, s15, 10
s_add_u32 s55, s55, s57
s_add_u32 s55, s55, {WS_FH}
s_add_u32 s75, s55, 4096
v_min_u32 v226, 5, v1
v_lshlrev_b32 v226, 7, v226
v_min_u32 v227, 7, v1
v_lshlrev_b32 v227, 7, v227""")
ld0 = "buffer_load_dword v228, v226, s[20:23], s55 offen sc1"
ld1 = "buffer_load_dword v228, v227, s[20:23], s75 offen sc1"
RP = OPT["rpf"]
for k in range(RP):
    st = WD + k
    A(f"s_lshl_b32 s44, s{UFB[st>>2]}, 14\ns_add_u32 s44, s44, s40")
    if st & 3: A(f"s_add_u32 s44, s44, {(st&3)*16384}")
    A(f"s_add_u32 s45, s44, 8192")
    A(f"buffer_load_dwordx4 {vr(160+8*k,4)}, v2, s[24:27], s44 offen")
    A(f"buffer_load_dwordx4 {vr(164+8*k,4)}, v2, s[24:27], s45 offen")
if OPT["ms"]: A(f"s_sleep {OPT['ms']}")
A(ld0)
A(f"""s_lshl_b32 s57, s50, 1
s_and_b32 s58, s15, 1
s_add_u32 s59, s57, s58
s_xor_b32 s58, s58, 1
s_add_u32 s57, s57, s58
s_mul_i32 s64, s59, {112*1024}
s_add_u32 s64, s64, {WS_H}
s_mul_i32 s65, s57, {112*1024}
s_add_u32 s65, s65, {WS_H}
s_lshl_b32 s58, s15, 13
s_add_u32 s58, s58, {WS_O}
s_lshl_b32 s67, s59, 15
s_add_u32 s67, s67, s58
s_lshl_b32 s53, s57, 15
s_add_u32 s53, s53, s58
v_and_b32 v6, 31, v1
v_lshlrev_b32 v6, 10, v6
v_lshrrev_b32 v7, 5, v1
v_lshlrev_b32 v7, 4, v7
v_add_u32 v224, v6, v7
s_lshl_b32 s54, s59, 15
s_lshl_b32 s57, s51, 7
s_add_u32 s54, s54, s57
s_lshr_b32 s57, s15, 1
s_lshl_b32 s57, s57, 6
s_add_u32 s54, s54, s57
v_lshrrev_b32 v6, 5, v1
v_lshlrev_b32 v6, 8, v6
v_bfe_u32 v7, v1, 2, 2
v_lshlrev_b32 v7, 6, v7
v_add_u32 v6, v6, v7
v_and_b32 v7, 3, v1
v_lshlrev_b32 v7, 3, v7
v_add_u32 v6, v6, v7
v_bfe_u32 v7, v1, 4, 1
v_lshlrev_b32 v7, 5, v7
v_add_u32 v6, v6, v7
s_lshl_b32 s57, s57, 3
v_add_u32 v6, s57, v6
v_xor_b32 v7, 512, v6
v_add_u32 v4, s43, v6
v_add_u32 v5, s43, v7
v_add_u32 v232, 0x10000, v4
v_add_u32 v233, 0x10000, v5
v_add_u32 v234, 0x20000, v4
v_add_u32 v235, 0x20000, v5
s_mov_b32 s32, s4
s_mov_b32 s33, s5
s_mov_b32 s34, 0x200000
s_mov_b32 s35, 0x20000
s_mov_b32 s38, 0x200000
s_mov_b32 s39, 0x20000
s_setprio {OPT['dprio']}
s_waitcnt vmcnt(0)""")
PR.stamp()
spin(A, "MH0", ld0, 228)
PR.stamp()
def htouch(lvl):
    if not OPT["htouch"]: return
    A(f"""v_bfe_u32 v229, v1, 2, 2
    v_lshlrev_b32 v230, 13, v229
    s_mul_i32 s57, s15, {24*1024}
    s_add_u32 s57, s57, {4096 if lvl == 0 else 0}
    v_add_u32 v230, s57, v230
    s_lshl_b32 s58, s15, 12
    s_add_u32 s58, s58, {96*1024}
    v_mov_b32 v231, {'s58' if lvl else 's57'}
    v_cmp_eq_u32 vcc, 3, v229
    v_and_b32 v229, 3, v1
    v_lshlrev_b32 v229, 10, v229
    v_cndmask_b32 v230, v230, v231, vcc
    v_add_u32 v230, v230, v229
    v_bfe_u32 v229, v1, 4, 1
    v_mul_u32_u24 v229, {112*1024}, v229
    v_add_u32 v230, v230, v229
    s_min_u32 s57, s64, s65
    s_lshl_b32 s58, s51, 7
    s_add_u32 s57, s57, s58
    s_mov_b32 exec_hi, 0
    buffer_load_dword v248, v230, s[20:23], s57 offen sc1
    s_mov_b64 exec, -1""")
    DQ.add("HT", 1)
htouch(0)
def issb(s):
    r = BF + 8 * (s % BD)
    if s < 28:
        o = [f"s_lshl_b32 s48, s{UFB[s>>2]}, 10", "s_add_u32 s49, s48, s65", "s_add_u32 s48, s48, s64"] if (s & 3) == 0 else []
    else:
        o = [f"s_add_u32 s48, s67, {(s-28)*1024}", f"s_add_u32 s49, s53, {(s-28)*1024}"] if (s & 3) == 0 else []
    DQ.add(f"B{s}", 2)
    return [o + [f"buffer_load_dwordx4 {vr(r,4)}, v3, s[20:23], s48 offen offset:{(s&3)*1024} sc1"],
            [f"buffer_load_dwordx4 {vr(r+4,4)}, v3, s[20:23], s49 offen offset:{(s&3)*1024} sc1"]]
for s in range(BD - 1): emit(issb(s))
def wtouch2():
    A(f"""v_lshrrev_b32 v229, 4, v1
    v_mov_b32 v230, s{UFB[3]}
    v_mov_b32 v231, s{UFB[4]}
    v_cmp_eq_u32 vcc, 1, v229
    s_lshr_b32 s57, s2, 3
    s_and_b32 s57, s57, 3
    v_cndmask_b32 v230, v230, v231, vcc
    v_mov_b32 v231, s{UFB[5]}
    v_cmp_eq_u32 vcc, 2, v229
    s_lshl_b32 s57, s57, 10
    s_add_u32 s58, s57, s40
    v_cndmask_b32 v230, v230, v231, vcc
    v_mov_b32 v231, s{UFB[6]}
    v_cmp_eq_u32 vcc, 3, v229
    v_and_b32 v229, 15, v1
    v_lshlrev_b32 v229, 12, v229
    v_cndmask_b32 v230, v230, v231, vcc
    v_lshlrev_b32 v230, 14, v230
    v_add_u32 v230, v230, v229
    buffer_load_dword v246, v230, s[24:27], s58 offen
    v_lshlrev_b32 v229, 12, v1
    s_add_u32 s58, s57, s42
    s_mov_b32 exec_hi, 0
    buffer_load_dword v247, v229, s[28:31], s58 offen
    s_mov_b64 exec, -1""")
    DQ.add("WT", 2)
if OPT["wt2"] == 1: wtouch2()
A(f"buffer_load_dwordx4 {vr(XRr,4)}, v224, s[32:35], s54 offen")
A(f"buffer_load_dwordx4 {vr(XRr+4,4)}, v224, s[32:35], s54 offen offset:32")
DQ.add("X", 2)
def rdw(s):
    slot = s % WD; w = WF + 8 * (s & 1)
    hi, lo = DREG[slot] >> 16, DREG[slot] & 0xffff
    vb = [4, 232, 234][hi]
    return [f"ds_read_b64_tr_b16 {vr(w+4*u+2*sec,2)}, v{vb+u} offset:{lo+sec*1024}" for u in range(2) for sec in range(2)]
for i in rdw(0): A(i)
DQ.wait("B0")
L1S = OPT["l1s"]
def tB(sp): return max(sp - (BD - 1), L1S) if sp >= 12 else sp - (BD - 1)
def xaddr(base3, which, a, qd):
    k = (a - 1) * 4 + qd
    reg = DREG[(8 if which == 0 else 0) + (k >> 1)] + (k & 1) * 1024
    return base3[reg >> 16], reg & 0xffff
def dump(which, acc):
    for a in range(1, 4):
        for qd in range(4):
            vb, off = xaddr([236, 6, 7], which, a, qd)
            A(f"ds_write_b128 v{vb}, {vr(acc+16*a+4*qd,4)} offset:{off}")
def fetch(which, acc):
    for a in range(1, 4):
        b = 237 + 3 * (a - 1)
        for qd in range(4):
            vb, off = xaddr([b, b + 1, b + 2], which, a, qd)
            A(f"ds_read_b128 {vr(acc+16*a+4*qd,4)}, v{vb} offset:{off}")
def sum4(acc):
    for r in range(0, 16, 2):
        A(f"v_pk_add_f32 {vr(acc+r,2)}, {vr(acc+r,2)}, {vr(acc+16+r,2)}\nv_pk_add_f32 {vr(acc+32+r,2)}, {vr(acc+32+r,2)}, {vr(acc+48+r,2)}")
    for r in range(0, 16, 2): A(f"v_pk_add_f32 {vr(acc+r,2)}, {vr(acc+r,2)}, {vr(acc+32+r,2)}")
for s in range(NS):
    w = WF + 8 * (s & 1); b = BF + 8 * (s % BD)
    acc = AD if s < 28 else AS
    if s == 12: PR.stamp()
    if s == 28:
        PR.stamp()
        A("s_nop 7\ns_nop 1")
        dump(0, AD)
        DQ.wait("PO")
        A("""v_cmp_eq_u32 vcc, s80, v228
        s_mov_b32 s46, 0
        s_cmp_eq_u64 vcc, -1
        s_cbranch_scc1 M_OOK
        s_mov_b32 s46, 1""")
        A(ld2)
        A("s_call_b64 s[66:67], M_GATE" if False else "s_call_b64 s[70:71], M_GATE")
        A("s_waitcnt vmcnt(0)")
        spin(A, "MO", ld2, 228)
        A.label("M_OOK")
        PR.stamp()
        for sp in range(28, 36): emit(issb(sp))
        A("s_cmp_eq_u32 s46, 1\ns_cbranch_scc1 M_GDONE\ns_call_b64 s[70:71], M_GATE")
        A.label("M_GDONE")
        DQ.wait("B28")
    if s + 1 < NS:
        DQ.wait([f"W{s+1}", f"B{s+1}"])
        for i in rdw(s + 1): A(i)
        A("s_waitcnt lgkmcnt(4)")
    else:
        A("s_waitcnt lgkmcnt(0)")
    if s == L1S - 3:
        A(ld1); DQ.add("P1", 1)
    if s == L1S:
        DQ.wait("P1")
        spin(A, "MH1", ld1, 228)
        htouch(1)
    if s == 0:
        A("v_add_u32 v236, s43, v3\nv_add_u32 v6, 0x10000, v236\nv_add_u32 v7, 0x20000, v236")
    if s == 20:
        for a in range(1, 4):
            bb = 237 + 3 * (a - 1)
            A(f"s_xor_b32 s57, s15, {a}\ns_lshl_b32 s57, s57, 11\nv_add_u32 v{bb}, s57, v3\nv_add_u32 v{bb+1}, 0x10000, v{bb}\nv_add_u32 v{bb+2}, 0x20000, v{bb}")
    if s == 25:
        A(f"""s_lshl_b32 s55, s50, 12
        s_lshl_b32 s57, s15, 10
        s_add_u32 s55, s55, s57
        s_add_u32 s55, s55, {WS_FO}""")
        ld2 = "buffer_load_dword v228, v227, s[20:23], s55 offen sc1"
        A(ld2); DQ.add("PO", 1)
    grp = []
    for sp in range(BD - 1, 28):
        if tB(sp) == s: grp += issb(sp)
    if 1 <= s <= RP:
        reg = DREG[s - 1]; vb = [236, 6, 7][reg >> 16]
        grp += [[f"ds_write_b128 v{vb}, {vr(160+8*(s-1),4)} offset:{reg & 0xffff}"], [f"ds_write_b128 v{vb}, {vr(164+8*(s-1),4)} offset:{(reg & 0xffff)+1024}"]]
    elif s >= 1 and s + WD - 1 < NS: grp += issw(s + WD - 1, DQ)
    per = [grp[(len(grp) * a) // 4:(len(grp) * (a + 1)) // 4] for a in range(4)]
    for a in range(4):
        u, tt = a >> 1, a & 1
        r = acc + 16 * a
        c = "0" if s in (0, 28) else vr(r, 16)
        A(f"v_mfma_f32_32x32x16_bf16 {vr(r,16)}, {vr(w+4*u,4)}, {vr(b+4*tt,4)}, {c}")
        for g in per[a]:
            for i in g: A(i)
PR.stamp()
A("s_nop 7\ns_nop 1")
dump(1, AS)
A("s_waitcnt lgkmcnt(0)")
A("s_barrier")
fetch(1, AS)
A("s_waitcnt lgkmcnt(0)")
sum4(AS)
for r in range(0, 16, 2): A(f"v_pk_fma_f32 {vr(AD+r,2)}, {vr(AD+r,2)}, {vr(AS+r,2)}, {vr(AD+32+r,2)}")
for d in range(8): A(f"v_cvt_pk_bf16_f32 v{XRr+d}, v{AD+2*d}, v{AD+2*d+1}")
A("s_nop 1")
for j in range(2):
    A(f"v_permlane32_swap_b32 v{XRr+4*j}, v{XRr+4*j+2}\nv_permlane32_swap_b32 v{XRr+4*j+1}, v{XRr+4*j+3}")
osc = "sc1" if OPT["osc"] else ""
A(f"buffer_store_dwordx4 {vr(XRr,4)}, v224, s[36:39], s54 offen {osc}")
A(f"buffer_store_dwordx4 {vr(XRr+4,4)}, v224, s[36:39], s54 offen offset:32 {osc}")
PR.stamp()
PR.dump(2)
A("s_endpgm")
def gate():
    A("s_waitcnt lgkmcnt(0)")
    A("s_barrier")
    fetch(0, AD)
    for j in range(2):
        A(f"v_permlane32_swap_b32 v{XRr+4*j}, v{XRr+4*j+2}\nv_permlane32_swap_b32 v{XRr+4*j+1}, v{XRr+4*j+3}")
    A("s_waitcnt lgkmcnt(0)")
    sum4(AD)
    T = AD + 16
    for r in range(16): A(f"v_mul_f32 v{T+r}, {f32(-LOG2E)}, v{AD+r}")
    for r in range(16): A(f"v_exp_f32 v{T+r}, v{T+r}")
    for d in range(8): A(f"v_lshlrev_b32 v{T+16+2*d}, 16, v{XRr+d}\nv_and_b32 v{T+17+2*d}, 0xffff0000, v{XRr+d}")
    for r in range(16): A(f"v_add_f32 v{T+r}, 1.0, v{T+r}")
    for r in range(16): A(f"v_rcp_f32 v{T+r}, v{T+r}")
    A("s_nop 0")
    for r in range(0, 16, 2): A(f"v_pk_mul_f32 {vr(AD+r,2)}, {vr(AD+r,2)}, {vr(T+r,2)}")
A.label("M_GATE")
gate()
A("s_setpc_b64 s[70:71]")
A.label("L_CODE_END")
A.raw('.section .rodata,"a"')
A.raw(kernel_desc(NAME, 256))
txt = A.text()
if OPT.get("plainst"):
    import re
    txt = re.sub(r"(buffer_store_dwordx4 .*s63 offen) sc1", r"\1", txt)
if OPT.get("align", 1):
    import align
    txt = align.align(txt)
print(txt)
```

```python
import sys, math
from asmlib import *

NAME = "recurrent_scan__sliding_block__geglu_ffn__prompt_kernel"
WS_Q = 0; WS_K = 2 << 20; WS_V = 4 << 20; WS_O = 6 << 20; WS_H = 8 << 20
WS_TOK = 16 << 20
WS_CS = (16 << 20) + 65536
WS_FO = 17 << 20
WS_FH = (17 << 20) + (1 << 18)
WS_FQ = (17 << 20) + (2 << 18)
LOG2E = 1.4426950408889634
OPT = dict(prof=0, rot=2, codepf=1, wd=14, sleep=8, warm=7, thr=6, aprio=3, l2pf=0, rotd=1, hs=56, dprio=0, wtouch=0, htouch=1, wts=10, defer=1, gat=10, gc=13, hprio=0, l1s=10, osc=0, cq=2, ms=16, ntx=0, ntw=0, share=1, l2end=11, aprio2=3, rpf=0, pub=6, gd=1, vw=4, epf=16, tlb=0, wt2=0)
for a in sys.argv[1:]:
    k, v = a.split("="); OPT[k] = int(v)
XR = 0; XS = 16384; WR = 49152; WSL = 20480; EX = 151552
EX_TOK = EX; EX_COL = EX + 4096
DREG = [32768, 40960, 69632, 77824,   86016, 94208, 102400,   110592, 118784, 0, 8192,   126976, 135168, 143360]
DAVAIL = {13: 4, 14: 3, 15: 4, 16: 3}
LONE = 26624
SPIN = 20000

class Prof:
    def __init__(self, A, base=82): self.A = A; self.n = 0; self.base = base
    def stamp(self, real=False):
        if not OPT["prof"]: return
        i = self.n; self.n += 1
        assert i < 16
        self.A(f"{'s_memrealtime' if (real or OPT['prof'] == 2) else 's_memtime'} s[100:101]")
        self.A("s_waitcnt lgkmcnt(0)")
        self.A(f"s_mov_b32 s{self.base+i}, s100")
    def dump(self, vt):
        if not OPT["prof"]: return
        A = self.A
        while self.n < 15: self.stamp()
        self.stamp(True)
        A(f"s_lshl_b32 s68, s2, 3\ns_add_u32 s68, s68, s14\ns_lshl_b32 s68, s68, 6\ns_add_u32 s68, s68, {32<<20}")
        A(f"v_mov_b32 v{vt}, 0")
        for i in range(self.n):
            A(f"v_mov_b32 v{vt+1}, s{self.base+i}")
            A(f"buffer_store_dword v{vt+1}, v{vt}, s[20:23], s68 offen offset:{4*i}")

class VQ:
    def __init__(self, A): self.A = A; self.q = []
    def add(self, tag, n): self.q.append((tag, n))
    def wait(self, tags):
        if isinstance(tags, str): tags = [tags]
        idx = max([i for i, (t, _) in enumerate(self.q) if t in tags], default=-1)
        if idx < 0: return
        rest = sum(c for _, c in self.q[idx + 1:])
        assert rest < 64
        self.A(f"s_waitcnt vmcnt({rest})")
        del self.q[:idx + 1]
    def has(self, tag): return tag in [t for t, _ in self.q]
    def clear(self): self.q = []

def spin(A, name, load, vval, maskexpr=None, cnt=56):
    A(f"""v_cmp_eq_u32 vcc, s80, v{vval}
    s_mov_b32 s{cnt}, 0
    s_cmp_eq_u64 vcc, -1
    s_cbranch_scc1 {name}_OK""")
    A.label(f"{name}_P")
    A(f"""s_sleep {OPT['sleep']}
    {load}
    s_add_u32 s{cnt}, s{cnt}, 1
    s_waitcnt vmcnt(0)
    v_cmp_eq_u32 vcc, s80, v{vval}
    s_cmp_gt_u32 s{cnt}, {SPIN}
    s_cbranch_scc1 {name}_OK
    s_cmp_eq_u64 vcc, -1
    s_cbranch_scc0 {name}_P""")
    A.label(f"{name}_OK")

A = Asm()
A.raw(f"""; recurrent_scan__sliding_block__geglu_ffn__prompt -- hand-designed gfx950 kernel, emitted by my own python generator.
; @launch grid=(256,1,1) block=(512,1,1) lds=163840
.amdgcn_target "amdgcn-amd-amdhsa--gfx950"
.text""")
kernel_header(A, NAME)
PR = Prof(A)
A("""s_load_dwordx4 s[4:7], s[0:1], 0
s_load_dwordx4 s[8:11], s[0:1], 32
s_load_dwordx4 s[16:19], s[0:1], 64""")
if OPT["epf"]:
    A("s_getpc_b64 s[24:25]")
    A.label("L_PC0")
    nl = OPT["epf"]
    A(f"""v_and_b32 v16, {nl-1}, v0
    v_bfe_u32 v17, v0, 6, 2
    v_mul_u32_u24 v17, {nl}, v17
    v_add_lshl_u32 v16, v16, v17, 7
    v_add_u32 v17, L_M-L_PC0, v16
    v_cmp_gt_u32 vcc, 256, v0
    s_mov_b64 exec, {(1<<nl)-1}
    s_nop 0
    v_cndmask_b32 v16, v16, v17, vcc
    global_load_dword v29, v16, s[24:25]
    s_mov_b64 exec, -1""")
A("""s_cmp_ge_u32 s2, 256
s_cbranch_scc1 L_END""")
if OPT.get("scramble"):
    A("s_lshr_b32 s57, s2, 3\ns_lshl_b32 s58, s2, 5\ns_or_b32 s2, s57, s58\ns_and_b32 s2, s2, 255")
A("""v_and_b32 v1, 63, v0
v_lshrrev_b32 v16, 6, v0
s_and_b32 s57, s2, 7
v_readfirstlane_b32 s14, v16
s_lshr_b32 s58, s2, 3
s_and_b32 s44, s57, 1
s_and_b32 s45, s58, 7
s_lshl_b32 s47, s44, 3
s_add_u32 s47, s47, s45
s_lshr_b32 s46, s57, 1
s_lshr_b32 s49, s58, 3
s_lshl_b32 s48, s46, 2
s_add_u32 s48, s48, s49
s_mul_i32 s51, s46, 3
s_add_u32 s52, s51, s49
s_lshl_b32 s53, s52, 1
s_add_u32 s57, s46, 24
s_add_u32 s54, s51, 12
s_cmp_eq_u32 s49, 3
s_cselect_b32 s50, 1, 0
s_cselect_b32 s53, s57, s53
s_cselect_b32 s54, s54, s52
s_and_b32 s15, s14, 3
s_cmp_lt_u32 s14, 4
s_cbranch_scc1 L_M""")
def ws_srd():
    A("""s_mov_b32 s20, s18
    s_mov_b32 s21, s19
    s_mov_b32 s22, 0x10000000
    s_mov_b32 s23, 0x20000
    s_mov_b32 s18, 256
    s_mov_b32 s19, 0x20000""")
vDW = [2, 3, 4, 5, 6]; vDX = [7, 8]
ROT = OPT["rot"]
A("""s_lshl_b32 s58, s15, 15
v_lshrrev_b32 v16, 3, v1
v_lshlrev_b32 v16, 10, v16
v_add_u32 v16, s58, v16
v_lshrrev_b32 v17, 4, v1
v_xor_b32 v17, v17, v1
v_and_b32 v17, 7, v17
v_lshlrev_b32 v17, 4, v17
v_add_u32 v7, v16, v17
v_xor_b32 v8, 64, v7
s_lshl_b32 s12, s15, 12
s_lshl_b32 s13, s15, 10
s_lshl_b32 s57, s47, 17""")
if ROT == 1: A("s_lshl_b32 s81, s49, 2\ns_lshl_b32 s58, s45, 1\ns_add_u32 s81, s81, s58")
elif ROT == 2: A("s_add_u32 s81, s49, s45\ns_lshl_b32 s81, s81, 2")
elif ROT == 3: A("s_add_u32 s81, s49, s45\ns_lshl_b32 s81, s81, 3")
elif ROT == 0: A("s_mov_b32 s81, 0")
A("""s_waitcnt lgkmcnt(0)
s_add_u32 s72, s4, s57
s_addc_u32 s73, s5, 0
s_mov_b32 s74, 0x20000
s_mov_b32 s75, 0x20000""")
PR.stamp(True); PR.stamp()
def dma_x(u):
    o = []
    for jj in range(4):
        pre = [f"s_add_u32 s56, s81, {2*u}", "s_and_b32 s56, s56, 15", "s_lshl_b32 s56, s56, 6"] if jj == 0 else []
        o.append(pre + [f"s_add_u32 m0, s12, {XR + (u%3)*XS + jj*1024}", f"s_add_u32 s59, s56, {jj*8192}",
                        f"buffer_load_dwordx4 v{vDX[jj&1]}, s[72:75], s59 offen {'nt ' if 2*u < OPT['ntx'] else ''}lds"])
    return o
def emit(groups):
    for g in groups:
        for i in g: A(i)
    return len(groups)
A(f"s_setprio {OPT['hprio']}")
Q = VQ(A)
n0 = emit(dma_x(0))
A("s_lshl_b32 s55, s53, 7\ns_lshl_b32 s56, s54, 7")
tabA = [(8, 55, 0), (8, 55, 128), (10, 55, 0), (10, 55, 128), (6, 56, 0)]
tabC = [(8, 55, 0), (10, 55, 0), (6, 56, 0), (6, 56, 128), (6, 56, 256)]
A("""v_bfe_u32 v16, v1, 2, 3
s_lshl_b32 s57, s15, 3
v_add_u32 v16, s57, v16
v_lshrrev_b32 v17, 5, v1
v_lshlrev_b32 v17, 6, v17
v_and_b32 v18, 3, v1
v_lshlrev_b32 v18, 4, v18
v_add_u32 v17, v17, v18
s_lshl_b32 s66, s50, 5
s_xor_b32 s67, s66, 32""")
swap = {0: None, 1: 66, 2: 67, 3: 67, 4: None}
for D in range(5):
    S = 24 + 4 * D
    (pa, ca, oa), (pc, cc_, oc) = tabA[D], tabC[D]
    A("s_cmp_eq_u32 s50, 1")
    if pa != pc:
        A(f"s_cselect_b32 s{S}, s{pc}, s{pa}\ns_cselect_b32 s{S+1}, s{pc+1}, s{pa+1}")
        src = S
    else: src = pa
    if ca != cc_: A(f"s_cselect_b32 s57, s{cc_}, s{ca}"); cs = 57
    else: cs = ca
    if oa != oc: A(f"s_cselect_b32 s58, {oc}, {oa}")
    sa = 3072 if pa == 6 else 3584; sc = 3072 if pc == 6 else 3584
    A(f"s_movk_i32 s{60+D}, {sa}")
    if sa != sc: A(f"s_cselect_b32 s{60+D}, {sc}, s{60+D}")
    if oa != oc: A(f"s_add_u32 s57, s{cs}, s58"); cs = 57
    elif oa: A(f"s_add_u32 s57, s{cs}, {oa}"); cs = 57
    A(f"s_add_u32 s{S}, s{src}, s{cs}\ns_addc_u32 s{S+1}, s{src+1}, 0")
    A(f"v_mul_u32_u24 v18, s{60+D}, v16")
    if swap[D]:
        A(f"v_xor_b32 v19, s{swap[D]}, v17\nv_add_u32 v{vDW[D]}, v18, v19")
    else:
        A(f"v_add_u32 v{vDW[D]}, v18, v17")
    A(f"s_lshl_b32 s{S+2}, s{60+D}, 9\ns_mov_b32 s{S+3}, 0x20000")
def dma_w(k):
    o = []
    for D in range(5):
        S = 24 + 4 * D
        pre = [f"s_add_u32 s56, s81, {k}", "s_and_b32 s56, s56, 15", "s_lshl_b32 s56, s56, 5"] if D == 0 else []
        o.append(pre + [f"s_add_u32 m0, s13, {WR + (k%5)*WSL + D*4096}", f"s_mul_i32 s59, s{60+D}, s56",
                        f"buffer_load_dwordx4 v{vDW[D]}, s[{S}:{S+3}], s59 offen {'nt ' if k < OPT['ntw'] else ''}lds"])
    return o
def G(k):
    g = (dma_x(k // 2) if k % 2 == 0 else []) + dma_w(k)
    Q.add(f"S{k}", emit(g))
Q.add("S0", n0 + emit(dma_w(0)))
G(1)
ws_srd()
A("""s_or_b32 s57, s2, s15
s_cmp_lg_u32 s57, 0
s_cbranch_scc1 H_NONONCE
s_memrealtime s[56:57]
s_waitcnt lgkmcnt(0)
s_mul_i32 s56, s56, 0x9e3779b1
s_or_b32 s56, s56, 1
v_mov_b32 v16, 0
v_mov_b32 v17, s56
buffer_store_dword v17, v16, s[16:19], 0 offen sc1""")
A.label("H_NONONCE")
A("s_lshl_b32 s69, s47, 5")
if ROT == 2: A("s_lshr_b32 s55, s45, 2\ns_lshl_b32 s57, s44, 1\ns_add_u32 s55, s55, s57")
elif ROT == 1: A("s_mov_b32 s55, s44")
elif ROT == 3: A("s_lshr_b32 s55, s45, 1\ns_lshl_b32 s57, s44, 2\ns_add_u32 s55, s55, s57")
if ROT == 0: A("s_and_b32 s55, s45, 3")
NDELTA = {0: 4, 1: 2, 2: 4, 3: 8}[ROT]
def pf_setup():
    A("""v_lshrrev_b32 v20, 3, v1
    v_and_b32 v21, 3, v20
    v_lshrrev_b32 v20, 2, v20
    v_lshlrev_b32 v20, 5, v20
    v_add_u32 v20, v20, v21
    s_lshl_b32 s57, s45, 2
    v_add_u32 v20, s57, v20
    v_and_b32 v21, 7, v1
    v_lshlrev_b32 v21, 4, v21""")
    for D in range(5):
        A(f"v_mul_u32_u24 v{116+D}, s{60+D}, v20\nv_add_u32 v{116+D}, v{116+D}, v21")
    A("""v_lshrrev_b32 v20, 3, v1
    v_lshlrev_b32 v20, 10, v20
    s_lshl_b32 s57, s49, 15
    s_lshl_b32 s58, s15, 13
    s_add_u32 s57, s57, s58
    v_add3_u32 v121, v20, v21, s57""")
def pf_burst(u0, u1):
    n = 0
    for u in range(u0, u1):
        A(f"s_movk_i32 s59, {u*128}\nbuffer_load_dwordx4 {vr(128+4*u,4)}, v121, s[72:75], s59 offen"); n += 1
    for u in range(u0, u1):
        A(f"s_mul_i32 s59, s{PFS}, {64*u}\nbuffer_load_dwordx4 {vr(160+4*u,4)}, v122, s[{PFR}:{PFR+3}], s59 offen"); n += 1
        lb = f"H_PF{u}"
        A(f"s_cmp_eq_u32 s15, {u%4}\ns_cbranch_scc0 {lb}\ns_mul_i32 s59, s64, {64*u}\nbuffer_load_dwordx4 {vr(192+4*(u>>2),4)}, v120, s[40:43], s59 offen")
        A.label(lb)
    Q.add("PF", n)
PFR, PFS = 76, 71
BUR = {}
if OPT.get("burst"):
    pf_setup()
    A(f"s_mov_b32 s{PFR}, s24\ns_mov_b32 s{PFR+1}, s25\ns_mov_b32 s{PFR+2}, s26\ns_mov_b32 s{PFR+3}, 0x20000\ns_mov_b32 s{PFS}, s60\nv_mov_b32 v122, v116")
    for D in (1, 2, 3):
        A(f"""s_cmp_eq_u32 s15, {D}
        s_cselect_b32 s{PFR}, s{24+4*D}, s{PFR}
        s_cselect_b32 s{PFR+1}, s{25+4*D}, s{PFR+1}
        s_cselect_b32 s{PFR+2}, s{26+4*D}, s{PFR+2}
        s_cselect_b32 s{PFS}, s{60+D}, s{PFS}
        s_cselect_b64 vcc, -1, 0
        v_cndmask_b32 v122, v122, v{116+D}, vcc""")
    BUR = {1: {-1: (1, 3), 1: (3, 6), 5: (6, 8)}, 2: {-1: (1, 4), 2: (4, 8)}, 3: {-1: (1, 2), 0: (2, 3), 1: (3, 4), 3: (4, 5), 5: (5, 6), 7: (6, 7), 9: (7, 8)}, 4: {-1: (1, 8)}}[OPT["burst"]]
    pf_burst(*BUR[-1])
A(f"""v_lshrrev_b32 v16, 5, v1
v_lshlrev_b32 v16, 10, v16
v_bfe_u32 v17, v1, 2, 2
v_lshlrev_b32 v17, 6, v17
v_add_u32 v16, v16, v17
v_and_b32 v17, 3, v1
v_lshlrev_b32 v17, 3, v17
v_add_u32 v16, v16, v17
v_bfe_u32 v17, v1, 4, 1
v_lshlrev_b32 v17, 5, v17
s_lshr_b32 s58, s15, 1
s_lshl_b32 s58, s58, 12
s_and_b32 s59, s15, 1
s_lshl_b32 s59, s59, 9
s_add_u32 s58, s58, s59
v_add3_u32 v12, v16, v17, s58
v_lshlrev_b32 v9, 4, v1
v_mov_b32 v10, 0""")
sched = {0: [2], 1: [3], 2: [4, 5]}
for s in range(3, 13): sched[s] = [s + 3]
def col_valu(js, fin):
    for j in js:
        b = 48 + 8 * j; acc = 44 + j
        for d in range(8):
            A(f"v_lshlrev_b32 v18, 16, v{b+d}\nv_and_b32 v19, 0xffff0000, v{b+d}")
            if d == 0: A(f"v_add_f32 v{acc}, v18, v19")
            else: A(f"v_add_f32 v{acc}, v{acc}, v18\nv_add_f32 v{acc}, v{acc}, v19")
    if fin:
        for j in range(3): A(f"v_mov_b32 v{72+2*j}, v{44+j}")
        A("s_nop 1")
        for j in range(3): A(f"v_permlane32_swap_b32 v{72+2*j}, v{44+j}")
        A("s_nop 1")
        for j in range(3): A(f"v_add_f32 v{72+2*j}, v{72+2*j}, v{44+j}")
def row_valu(part):
    if part == 0:
        for rrow in range(2):
            b = 32 + 4 * rrow; sx = 40 + 2 * rrow; sq = sx + 1
            for d in range(4):
                A(f"v_lshlrev_b32 v18, 16, v{b+d}\nv_and_b32 v19, 0xffff0000, v{b+d}")
                if d == 0: A(f"v_add_f32 v{sx}, v18, v19\nv_mul_f32 v{sq}, v18, v18\nv_fmac_f32 v{sq}, v19, v19")
                else: A(f"v_add_f32 v{sx}, v{sx}, v18\nv_fmac_f32 v{sq}, v18, v18\nv_add_f32 v{sx}, v{sx}, v19\nv_fmac_f32 v{sq}, v19, v19")
    else:
        for dpp in ("quad_perm:[1,0,3,2] row_mask:0xf bank_mask:0xf", "quad_perm:[2,3,0,1] row_mask:0xf bank_mask:0xf",
                    "row_half_mirror row_mask:0xf bank_mask:0xf", "row_mirror row_mask:0xf bank_mask:0xf",
                    "row_bcast:15 row_mask:0xa bank_mask:0xf", "row_bcast:31 row_mask:0xc bank_mask:0xf"):
            for r in range(40, 44): A(f"v_add_f32_dpp v{r}, v{r}, v{r} {dpp}")
def get_nonce(tag, vz, vn):
    A(f"""v_readfirstlane_b32 s80, v{vn}
    s_mov_b32 s57, 0
    s_cmp_eq_u32 s80, 0
    s_cbranch_scc0 {tag}_GOTN""")
    A.label(f"{tag}_POLLN")
    A(f"""buffer_load_dword v{vn}, v{vz}, s[16:19], 0 offen sc1
    s_add_u32 s57, s57, 1
    s_waitcnt vmcnt(0)
    v_readfirstlane_b32 s80, v{vn}
    s_cmp_gt_u32 s57, {SPIN}
    s_cbranch_scc1 {tag}_GOTN
    s_cmp_eq_u32 s80, 0
    s_cbranch_scc1 {tag}_POLLN""")
    A.label(f"{tag}_GOTN")
def publish():
    get_nonce("H", 10, 11)
    A(f"""s_lshl_b32 s57, s48, 4
    s_add_u32 s57, s57, s47
    s_mul_i32 s57, s57, 2560
    s_lshl_b32 s58, s15, 8
    s_add_u32 s57, s57, s58
    s_add_u32 s57, s57, {WS_CS}
    v_lshlrev_b32 v16, 3, v1
    v_mov_b32 v73, s80
    v_mov_b32 v75, s80
    v_mov_b32 v77, s80
    s_mov_b32 exec_hi, 0
    buffer_store_dwordx2 v[72:73], v16, s[20:23], s57 offen sc1
    buffer_store_dwordx2 v[74:75], v16, s[20:23], s57 offen offset:1024 sc1
    s_cmp_ge_u32 s15, 2
    s_cbranch_scc1 H_NO3
    buffer_store_dwordx2 v[76:77], v16, s[20:23], s57 offen offset:2048 sc1""")
    A.label("H_NO3")
    A(f"""s_mov_b32 exec_lo, 0
    s_mov_b32 exec_hi, 0x80000000
    s_lshl_b32 s57, s69, 6
    s_lshl_b32 s58, s48, 7
    s_add_u32 s57, s57, s58
    s_lshl_b32 s58, s15, 5
    s_add_u32 s57, s57, s58
    s_add_u32 s57, s57, {WS_TOK}
    v_mov_b32 v48, v40
    v_mov_b32 v49, v41
    v_mov_b32 v50, s80
    v_mov_b32 v51, s80
    v_mov_b32 v52, v42
    v_mov_b32 v53, v43
    v_mov_b32 v54, s80
    v_mov_b32 v55, s80
    buffer_store_dwordx4 v[48:51], v10, s[20:23], s57 offen sc1
    buffer_store_dwordx4 v[52:55], v10, s[20:23], s57 offen offset:16 sc1
    s_mov_b64 exec, -1""")
def gather_loads(part=None):
    if part == 0:
        for m in range(6):
            A(f"s_add_u32 s59, s66, {m*5120}")
            A(f"buffer_load_dwordx4 {vr(64+4*m,4)}, v16, s[20:23], s59 offen sc1")
        return
    for m in range(6 if part == 1 else 0, 8):
        A(f"s_add_u32 s59, s66, {m*5120}")
        A(f"buffer_load_dwordx4 {vr(64+4*m,4)}, v16, s[20:23], s59 offen sc1")
    for m in range(2):
        A(f"s_add_u32 s59, s66, {m*8*2560}")
        A(f"buffer_load_dwordx4 {vr(96+4*m,4)}, v17, s[20:23], s59 offen sc1")
    A("buffer_load_dwordx4 v[104:107], v18, s[20:23], s67 offen sc1")
def gather_prep():
    A(f"""s_mul_i32 s66, s48, {16*2560}
    s_add_u32 s66, s66, {WS_CS}
    v_and_b32 v18, 31, v1
    v_lshlrev_b32 v18, 4, v18
    v_lshrrev_b32 v16, 5, v1
    v_mul_u32_u24 v16, 2560, v16
    s_lshl_b32 s58, s15, 9
    v_add3_u32 v16, v16, v18, s58
    v_and_b32 v17, 7, v1
    v_lshlrev_b32 v17, 4, v17
    v_lshrrev_b32 v19, 3, v1
    v_mul_u32_u24 v19, 2560, v19
    s_lshl_b32 s58, s15, 7
    s_add_u32 s58, s58, 2048
    v_add3_u32 v17, v17, v19, s58
    s_lshl_b32 s67, s69, 6
    s_lshl_b32 s59, s15, 9
    s_add_u32 s67, s67, s59
    s_add_u32 s67, s67, {WS_TOK}""")
def gather_tags():
    tags = list(range(65, 104, 2)) + [106]
    A(f"v_and_b32 v19, v{tags[0]}, v{tags[1]}\nv_or_b32 v20, v{tags[0]}, v{tags[1]}")
    rest = tags[2:]
    for k in range(0, len(rest) - 1, 2):
        A(f"v_bitop3_b32 v19, v19, v{rest[k]}, v{rest[k+1]} bitop3:0x80\nv_or3_b32 v20, v20, v{rest[k]}, v{rest[k+1]}")
    if len(rest) % 2: A(f"v_and_b32 v19, v19, v{rest[-1]}\nv_or_b32 v20, v20, v{rest[-1]}")
    A("""v_xor_b32 v19, s80, v19
    v_xor_b32 v20, s80, v20
    v_or_b32 v19, v19, v20
    v_cmp_eq_u32 vcc, 0, v19
    s_nop 0
    s_cmp_eq_u64 vcc, -1""")
def gather_check():
    Q.wait("GA")
    gather_tags()
    A("s_cselect_b32 s70, 1, 0")
def gather_slow():
    A.label("H_GSLOW")
    A("s_mov_b32 s70, 0")
    A.label("H_GS1")
    gather_loads()
    A("s_waitcnt vmcnt(0)")
    gather_tags()
    A(f"""s_cbranch_scc1 H_GS2
    s_add_u32 s70, s70, 1
    s_cmp_gt_u32 s70, {SPIN}
    s_cbranch_scc1 H_GS2
    s_sleep 4
    s_branch H_GS1""")
    A.label("H_GS2")
    gather_cols()
    A("s_branch H_GTOK")
def gather_cols():
    st = 4
    while st <= 16:
        for r in range(64, 96, 2 * st):
            A(f"v_add_f32 v{r}, v{r}, v{r+st}\nv_add_f32 v{r+2}, v{r+2}, v{r+st+2}")
        st *= 2
    A("""v_add_f32 v96, v96, v100
    v_add_f32 v98, v98, v102
    v_mov_b32 v65, v64
    v_mov_b32 v67, v66
    v_add_f32_dpp v96, v96, v96 row_ror:8 row_mask:0xf bank_mask:0xf
    v_add_f32_dpp v98, v98, v98 row_ror:8 row_mask:0xf bank_mask:0xf
    v_permlane32_swap_b32 v65, v64
    v_permlane32_swap_b32 v67, v66
    v_mov_b32 v97, v96
    v_mov_b32 v99, v98
    v_add_f32 v64, v64, v65
    v_add_f32 v66, v66, v67
    v_permlane32_swap_b32 v97, v96
    v_permlane32_swap_b32 v99, v98
    s_nop 0
    v_add_f32 v96, v96, v97
    v_add_f32 v98, v98, v99
    v_mov_b32 v97, v96
    v_mov_b32 v99, v98
    s_nop 1
    v_permlane16_swap_b32 v97, v96
    v_permlane16_swap_b32 v99, v98
    s_nop 0
    v_add_f32 v96, v96, v97
    v_add_f32 v98, v98, v99""")
    for r, d in ((64, 68), (66, 69), (96, 70), (98, 71)):
        A(f"""v_cvt_pk_bf16_f32 v{r+1}, v{r}, v{r}
        v_and_b32 v{r+1}, 0xffff0000, v{r+1}
        v_sub_f32 v{r}, v{r}, v{r+1}
        v_cvt_pk_bf16_f32 v{d}, v{r+1}, v{r}""")
    A(f"""v_lshrrev_b32 v16, 1, v18
    s_lshl_b32 s58, s15, 8
    s_add_u32 s58, s58, {EX_COL}
    v_add_u32 v16, s58, v16
    ds_write_b64 v16, v[68:69]
    v_and_b32 v17, 7, v1
    v_lshlrev_b32 v17, 3, v17
    s_lshl_b32 s58, s15, 6
    s_add_u32 s58, s58, {EX_COL + 1024}
    v_add_u32 v17, s58, v17
    ds_write_b64 v17, v[70:71]""")
def gather_toks():
    c1 = -2.0 * math.sqrt(2.0 / math.pi) * LOG2E
    c3 = c1 * 0.044715
    A(f"""    v_mul_f32 v104, {f32(-1/512)}, v104
    v_mul_f32 v105, {f32(1/512)}, v105
    v_fma_f32 v105, -v104, v104, v105
    v_max_f32 v105, 0, v105
    v_add_f32 v113, {f32(1e-5)}, v105
    v_rsq_f32 v110, v113
    v_cvt_pk_bf16_f32 v108, v104, v104
    v_and_b32 v106, 0xffff0000, v108
    v_sub_f32 v106, v104, v106
    v_cvt_pk_bf16_f32 v109, v106, v106
    v_mul_f32 v111, {f32(c1)}, v110
    v_mul_f32 v112, v110, v110
    v_mul_f32 v112, v112, v110
    v_mul_f32 v112, {f32(c3)}, v112
    v_mov_b32 v114, s80
    v_lshlrev_b32 v18, 1, v18
    s_lshl_b32 s58, s15, 10
    s_add_u32 s58, s58, {EX_TOK}
    v_add_u32 v18, s58, v18
    ds_write_b128 v18, v[108:111]
    ds_write_b128 v18, v[112:115] offset:16
    s_waitcnt lgkmcnt(0)""")
WD = OPT["wd"]
UFB = [60, 61, 62, 76, 77, 78, 79]
def d_setup_w():
    A(f"""v_bfe_u32 v6, v1, 2, 3
    v_lshlrev_b32 v6, 10, v6
    v_lshrrev_b32 v7, 5, v1
    v_lshlrev_b32 v7, 6, v7
    v_add_u32 v6, v6, v7
    v_and_b32 v7, 3, v1
    v_lshlrev_b32 v7, 4, v7
    v_add_u32 v2, v6, v7
    s_lshl_b32 s43, s15, 11
    s_lshr_b32 s58, s2, 5
    s_lshl_b32 s40, s58, 7
    s_lshl_b32 s42, s15, 17
    s_add_u32 s42, s42, s40
    s_mul_i32 s57, s15, 24""")
    if OPT["rotd"]:
        A("""s_mul_i32 s59, s58, 11
        s_lshr_b32 s59, s59, 5
        s_mul_i32 s59, s59, 3
        s_sub_u32 s59, s58, s59""")
    else:
        A("s_mov_b32 s59, 0\ns_mov_b32 s58, 0")
    for u in range(3):
        A(f"""s_lshl_b32 s{UFB[u]}, s59, 3
        s_add_u32 s{UFB[u]}, s{UFB[u]}, s57
        s_add_u32 s{UFB[u]}, s{UFB[u]}, 4
        s_add_u32 s59, s59, 1
        s_cmp_eq_u32 s59, 3
        s_cselect_b32 s59, 0, s59""")
    A("s_lshl_b32 s41, s15, 2\ns_add_u32 s41, s41, 96")
    for u in range(4):
        A(f"""s_add_u32 s59, s58, {u}
        s_and_b32 s59, s59, 3
        s_lshl_b32 s44, s59, 3
        s_add_u32 s44, s44, s57
        s_cmp_eq_u32 s59, 3
        s_cselect_b32 s{UFB[3+u]}, s41, s44""")
    A("""s_waitcnt lgkmcnt(0)
    s_mov_b32 s26, 0x1c0000
    s_mov_b32 s27, 0x20000
    s_mov_b32 s30, 0x80000
    s_mov_b32 s31, 0x20000""")
def issw(s, q):
    slot = s % WD
    if s < 28:
        srd = 24
        o = [f"s_lshl_b32 s44, s{UFB[s>>2]}, 14", "s_add_u32 s44, s44, s40"]
        if s & 3: o.append(f"s_add_u32 s44, s44, {(s&3)*16384}")
    else:
        srd = 28
        o = [f"s_add_u32 s44, s42, {(s-28)*16384}"]
    a = o + [f"s_add_u32 m0, s43, {DREG[slot]}", "s_add_u32 s45, s44, 8192",
             f"buffer_load_dwordx4 v2, s[{srd}:{srd+3}], s44 offen lds"]
    b = [f"s_add_u32 m0, s43, {DREG[slot]+1024}", "s_nop 0",
         f"buffer_load_dwordx4 v2, s[{srd}:{srd+3}], s45 offen lds"]
    q.add(f"W{s}", 2)
    return [a, b]
P0 = max(NDELTA, 4)
wnext = [0]
GAT, GC = OPT['gat'], OPT['gc']
HP = OPT.get('hprof')
for s in range(17):
    if s < 16: Q.wait(f"S{s}")
    if HP and s >= 4: A(f"s_memtime s[100:101]\ns_waitcnt lgkmcnt(0)\ns_sub_u32 s99, s100, s98\ns_add_u32 s{84+s-4}, s99, s83")
    A("s_barrier")
    if HP: A("s_memtime s[100:101]\ns_waitcnt lgkmcnt(0)\ns_mov_b32 s98, s100")
    if s == 0 and not HP: PR.stamp()
    for k in sched.get(s, []): G(k)
    if s in BUR: pf_burst(*BUR[s])
    if s == 0:
        A("""s_lshl_b32 s57, s48, 13
        s_lshl_b32 s58, s15, 11
        s_add_u32 s57, s57, s58
        buffer_load_dwordx4 v[32:35], v9, s[72:75], s57 offen
        buffer_load_dwordx4 v[36:39], v9, s[72:75], s57 offen offset:1024
        buffer_load_dword v11, v10, s[16:19], 0 offen sc1""")
        Q.add("ST", 3)
    if s < NDELTA:
        lb = f"H_NOCS{s}"
        A(f"s_cmp_eq_u32 s55, {s}\ns_cbranch_scc0 {lb}\nv_add_u32 v12, {WR + (s%5)*WSL}, v12")
        for j in range(3):
            for t in range(4):
                A(f"ds_read_b64_tr_b16 {vr(48+8*j+2*t,2)}, v12 offset:{j*8192 + (t>>1)*2048 + (t&1)*256}")
        A("s_waitcnt lgkmcnt(0)")
        A.label(lb)
    if s == 4: row_valu(0); col_valu([0], False)
    if s == 5: col_valu([1], False)
    if s == 6: col_valu([2], True); row_valu(1)
    if s == OPT["pub"]: publish()
    if s == 3:
        A("s_load_dwordx2 s[4:5], s[0:1], 48\ns_load_dwordx2 s[8:9], s[0:1], 16")
    if OPT["vw"] and s == OPT["vw"]:
        A("""s_cmp_lg_u32 s15, 0
        s_cbranch_scc1 H_NOWARM
        s_mul_i32 s57, s2, 7168
        s_lshl_b32 s58, s2, 11
        v_lshlrev_b32 v20, 7, v1
        s_waitcnt lgkmcnt(0)
        s_add_u32 s6, s57, 7168
        s_mov_b32 s7, 0x20000
        s_add_u32 s10, s58, 2048
        s_mov_b32 s11, 0x20000
        buffer_load_dword v21, v20, s[4:7], s57 offen
        buffer_load_dword v22, v20, s[8:11], s58 offen""")
        A.label("H_NOWARM")
    if s == 5 and not OPT["vw"]:
        A("""s_lshl_b32 s57, s2, 2
        s_add_u32 s57, s57, s15
        s_mul_i32 s58, s57, 1792
        s_lshl_b32 s57, s57, 9
        s_waitcnt lgkmcnt(0)
        s_add_u32 s4, s4, s58
        s_addc_u32 s5, s5, 0
        s_add_u32 s8, s8, s57
        s_addc_u32 s9, s9, 0""")
    if s in (5, 7, 8, 9) and not OPT['vw']:
        k0 = {5: 0, 7: 9, 8: 18, 9: 27}[s]
        for i in range(k0, k0 + 9):
            if i < 28: A(f"s_load_dword s65, s[4:5], {i*64}")
            else: A(f"s_load_dword s65, s[8:9], {(i-28)*64}")
    if OPT["l2pf"] and s == OPT["warm"] + 1:
        A("""s_lshr_b32 s57, s2, 3
        s_lshl_b32 s57, s57, 2
        s_add_u32 s57, s57, s15
        s_lshr_b32 s58, s57, 3
        s_min_u32 s58, s58, 11
        s_lshr_b32 s59, s58, 1
        s_mul_i32 s59, s59, 6
        s_and_b32 s65, s58, 1
        s_lshl_b32 s65, s65, 1
        s_add_u32 s59, s59, s65
        s_add_u32 s59, s59, 2
        s_add_u32 s65, s58, 16
        s_cmp_lt_u32 s58, 8
        s_cselect_b32 s59, s59, s65
        s_lshl_b32 s59, s59, 16
        s_and_b32 s58, s57, 7
        s_lshl_b32 s58, s58, 13
        s_add_u32 s58, s58, s59
        s_lshl_b32 s57, s57, 12
        s_waitcnt lgkmcnt(0)
        s_add_u32 s4, s4, s58
        s_addc_u32 s5, s5, 0
        s_add_u32 s8, s8, s57
        s_addc_u32 s9, s9, 0""")
    if OPT["l2pf"] and OPT["warm"] + 1 <= s <= OPT["l2end"]:
        nst = OPT["l2end"] - OPT["warm"]
        tot = OPT["l2pf"]
        i0 = (s - OPT["warm"] - 1) * tot // nst; i1 = (s - OPT["warm"]) * tot // nst
        for i in range(i0, i1):
            if i < 64: A(f"s_load_dword s65, s[4:5], {i*128}")
            else: A(f"s_load_dword s65, s[8:9], {(i-64)*128}")
    if s == 8: gather_prep()
    if s == GAT: gather_loads(0); Q.add("GA0", 6)
    if s == GAT + OPT["gd"]: gather_loads(1); Q.add("GA", 5)
    if s == 12:
        A("s_load_dwordx2 s[24:25], s[0:1], 48\ns_load_dwordx2 s[28:29], s[0:1], 16")
        d_setup_w()
    if s == GC: gather_check()
    if s in DAVAIL:
        for _ in range(DAVAIL[s]):
            emit(issw(wnext[0], Q)); wnext[0] += 1
    if s == GC + 1:
        A("s_cmp_eq_u32 s70, 0\ns_cbranch_scc1 H_NOCOLS")
        gather_cols()
        A.label("H_NOCOLS")
    if s == 15:
        A("s_cmp_eq_u32 s70, 0\ns_cbranch_scc1 H_GSLOW")
        A.label("H_GTOK")
        gather_toks()
    if s in (4, 8, 12) and not HP: PR.stamp()
if HP:
    PR.n = 15; PR.dump(20); PR.n = 0
    OPT["prof"] = 0
PR.stamp()
PR.stamp()
import gen_cd
gen_cd.OPT = OPT
A("""s_and_b32 s57, s2, 7
s_lshr_b32 s58, s2, 3
s_and_b32 s58, s58, 3
s_lshl_b32 s50, s58, 3
s_add_u32 s50, s50, s57
s_lshr_b32 s51, s2, 5
s_lshl_b32 s51, s51, 2
s_add_u32 s51, s51, s15""")
gen_cd.attn_setup(A)
SH = OPT["share"]
LK, LVS, LFL = 16384, 49152, 49152 + 16384 + 1024
if SH:
    LONE = 49152 + 16384
    A(f"""s_lshr_b32 s49, s2, 5
    s_lshl_b32 s49, s49, 2
    s_lshl_b32 s57, s15, 1
    s_add_u32 s49, s49, s57
    s_sub_u32 s49, s49, 4
    v_and_b32 v9, 1, v1
    v_add_u32 v9, s49, v9
    v_max_i32 v9, 0, v9
    v_lshlrev_b32 v9, 8, v9
    v_bfe_u32 v10, v1, 1, 1
    v_lshlrev_b32 v10, 6, v10
    v_add3_u32 v9, v9, v10, 64
    s_lshl_b32 s57, s51, 8
    v_mov_b32 v10, s57
    v_cmp_gt_u32 vcc, 4, v1
    s_lshr_b32 s57, s50, 1
    s_lshl_b32 s57, s57, 7
    s_add_u32 s57, s57, {WS_FQ}
    v_cndmask_b32 v9, v10, v9, vcc
    v_lshlrev_b32 v9, 5, v9
    v_add_u32 v252, s57, v9""")
else:
    A(f"""v_min_u32 v9, 10, v1
    v_cmp_gt_u32 vcc, 5, v9
    v_subrev_u32 v10, 5, v9
    s_nop 0
    v_cndmask_b32 v10, v10, v9, vcc
    v_min_u32 v10, 4, v10
    s_sub_u32 s57, s51, 4
    v_add_u32 v10, s57, v10
    v_max_i32 v10, 0, v10
    v_lshlrev_b32 v10, 8, v10
    v_mov_b32 v11, 128
    v_cndmask_b32 v11, v11, 64, vcc
    v_cmp_eq_u32 vcc, 10, v9
    s_lshr_b32 s57, s50, 1
    s_lshl_b32 s57, s57, 7
    s_add_u32 s57, s57, {WS_FQ}
    v_cndmask_b32 v11, v11, 0, vcc
    v_add_u32 v10, v10, v11
    v_lshlrev_b32 v10, 5, v10
    v_add_u32 v252, s57, v10""")
A("s_barrier")
PR.stamp()
gen_cd.LONE = LONE
if SH:
    A(f"s_lshl_b32 s57, s15, 11\ns_add_u32 s57, s57, {LVS}")
else:
    A("""s_movk_i32 s57, 0x4000
    s_cmp_eq_u32 s15, 1
    s_cselect_b32 s57, 49152, s57
    s_cmp_eq_u32 s15, 2
    s_cselect_b32 s57, 59392, s57
    s_cmp_eq_u32 s15, 3
    s_cselect_b32 s57, 151552, s57""")
gen_cd.attn_setup2(A, None)
ld = "buffer_load_dword v253, v252, s[20:23], 0 offen sc1"
A("s_waitcnt vmcnt(0)")
PR.stamp()
A("s_barrier")
A(f"s_setprio {OPT['aprio']}")
A(f"s_sleep {OPT['hs']}")
A(ld)
A("s_waitcnt vmcnt(0)")
spin(A, "HQ", ld, 253)
PR.stamp()
if SH:
    A(f"""s_lshl_b32 s52, s50, 16
    s_lshl_b32 s53, s49, 11""")
    for which, base, r0 in ((0, WS_K, 188), (1, WS_V, 204)):
        for b in range(4):
            if b % 2 == 0:
                A(f"s_add_i32 s55, s53, {b*1024}\ns_max_i32 s55, s55, 0\ns_add_u32 s55, s55, s52\ns_add_u32 s55, s55, {base}")
            A(f"buffer_load_dwordx4 {vr(r0+4*b,4)}, v3, s[20:23], s55 offen offset:{(b%2)*1024} sc1")
    A(f"""s_lshl_b32 s53, s51, 11
    s_add_u32 s54, s52, s53
    buffer_load_dwordx4 v[12:15], v3, s[20:23], s54 offen sc1
    buffer_load_dwordx4 v[16:19], v3, s[20:23], s54 offen offset:1024 sc1
    s_lshl_b32 s57, s15, 12
    v_add_u32 v9, s57, v3
    v_add_u32 v10, s57, v2
    s_lshl_b32 s57, s15, 11
    v_add_u32 v11, s57, v3
    s_lshl_b32 s57, s15, 2
    s_add_u32 s57, s57, {LFL}
    v_mov_b32 v252, s57
    v_mov_b32 v253, s80
    v_mov_b32 v254, {LFL}""")
    for b in range(4):
        A(f"s_waitcnt vmcnt({9-b})\nds_write_b128 v9, {vr(188+4*b,4)} offset:{LK + b*1024}")
    for b in range(4):
        A(f"s_waitcnt vmcnt({5-b})\nds_write_b128 v10, {vr(204+4*b,4)} offset:{LVS + b*1024}")
    A("""s_waitcnt lgkmcnt(0)
    ds_write_b32 v252, v253
    s_mov_b32 s56, 0""")
    A.label("H_LW")
    A(f"""ds_read_b128 v[188:191], v254
    s_add_u32 s56, s56, 1
    s_waitcnt lgkmcnt(0)
    v_xor_b32 v188, s80, v188
    v_xor_b32 v189, s80, v189
    v_xor_b32 v190, s80, v190
    v_xor_b32 v191, s80, v191
    v_or3_b32 v188, v188, v189, v190
    v_or_b32 v188, v188, v191
    v_cmp_eq_u32 vcc, 0, v188
    s_cmp_gt_u32 s56, {SPIN*50}
    s_cbranch_scc1 H_LOK
    s_cmp_eq_u64 vcc, -1
    s_cbranch_scc1 H_LOK
    s_sleep 1
    s_branch H_LW""")
    A.label("H_LOK")
    for b in range(10):
        A(f"ds_read_b128 {vr(20+4*b,4)}, v11 offset:{LK + b*1024}")
    A("s_waitcnt vmcnt(0)")
A(f"s_setprio {OPT['aprio2']}")
if OPT.get("noattn"): A("s_branch H_AFIN")
A("s_cmp_lt_u32 s51, 4")
A("s_cbranch_scc1 H_SLOW")
n0 = PR.n
gen_cd.gen_attn(A, False, "AF", PR, "sc1", setup=False, bar=OPT["defer"] >= 4, loads=not SH, shared=SH)
A.label("H_AFIN")
PR.stamp()
A(f"""s_lshl_b32 s57, s51, 12
s_lshl_b32 s58, s50, 7
s_add_u32 s57, s57, s58
s_add_u32 s57, s57, {WS_FO}
v_mov_b32 v9, 0
v_mov_b32 v10, s80
s_waitcnt vmcnt(0)
s_mov_b64 exec, 1
buffer_store_dword v10, v9, s[20:23], s57 offen sc1
s_mov_b64 exec, -1""")
PR.stamp()
PR.dump(2)
A.label("L_END")
A("s_endpgm")
gather_slow()
A.label("H_SLOW")
PR.n = n0
gen_cd.gen_attn(A, True, "AS", PR, "sc1", setup=False, bar=OPT["defer"] >= 4, loads=not SH, shared=SH)
A("s_branch H_AFIN")
A.label("L_M")
PR.n = 0
A("s_waitcnt lgkmcnt(0)")
PR.stamp(True); PR.stamp()
ws_srd()
if OPT["codepf"]:
    A("s_getpc_b64 s[24:25]")
    A.label("L_PC")
    A(f"""s_sub_u32 s24, s24, L_PC-{NAME}
    s_subb_u32 s25, s25, 0
    s_mov_b32 s26, L_CODE_END-{NAME}
    s_mov_b32 s27, 0x20000
    s_lshr_b32 s57, s2, 3
    s_lshl_b32 s57, s57, 2
    s_add_u32 s57, s57, s14
    s_lshl_b32 s57, s57, 9
    v_lshlrev_b32 v16, 7, v1
    s_mov_b64 exec, 15
    buffer_load_dword v31, v16, s[24:27], s57 offen
    s_mov_b64 exec, -1""")
vXa = [2, 3, 4, 5]; vWa = [6, 7, 8, 9, 10]; vWb = [11, 12, 13, 14, 15]
P = 32; QQ = 60; ACC = 88
A("s_setprio 2")
A("""s_and_b32 s12, s14, 1
s_lshr_b32 s13, s14, 1
v_and_b32 v16, 31, v1
v_lshrrev_b32 v17, 5, v1
v_bfe_u32 v18, v1, 1, 3
v_xor_b32 v17, v17, v18
v_lshlrev_b32 v17, 4, v17
v_lshlrev_b32 v16, 7, v16
v_add_u32 v16, v16, v17
s_lshl_b32 s57, s12, 13
v_add_u32 v2, s57, v16
v_xor_b32 v3, 32, v2
v_xor_b32 v4, 64, v2
v_xor_b32 v5, 96, v2""")
A(f"""v_lshrrev_b32 v16, 5, v1
v_lshlrev_b32 v16, 10, v16
v_bfe_u32 v17, v1, 2, 2
v_lshlrev_b32 v17, 6, v17
v_add_u32 v16, v16, v17
v_and_b32 v17, 3, v1
v_lshlrev_b32 v17, 3, v17
v_add_u32 v16, v16, v17
v_add_u32 v16, {WR}, v16
v_bfe_u32 v17, v1, 4, 1
s_sub_u32 s57, 2, s50
s_lshl_b32 s57, s57, 12
v_mul_u32_u24 v18, s57, v17
v_xor_b32 v19, s13, v17
v_lshlrev_b32 v19, 5, v19
v_add3_u32 v18, v18, v19, v16
v_lshlrev_b32 v19, 5, v17
s_lshl_b32 s57, s13, 9
v_add3_u32 v19, v19, s57, v16
s_cmp_eq_u32 s50, 1
s_cselect_b64 vcc, -1, 0""")
for n in range(5):
    fo = (n >> 1) * 4096 + (n & 1) * 512
    qo = n * 4096
    if n < 2: A(f"v_add_u32 v{vWa[n]}, {fo}, v18")
    elif n == 4: A(f"v_add_u32 v{vWa[n]}, {qo}, v19")
    else:
        A(f"v_add_u32 v20, {fo}, v18\nv_add_u32 v21, {qo}, v19\nv_cndmask_b32 v{vWa[n]}, v20, v21, vcc")
for n in range(5): A(f"v_add_u32 v{vWb[n]}, {4*WSL}, v{vWa[n]}")
def reads(s, kk, dst):
    xs = (s >> 1) % 3; q4 = (s & 1) * 2 + kk; sl = s % 5
    def xr(tt): return f"ds_read_b128 {vr(dst+4*tt,4)}, v{vXa[q4]} offset:{XR + xs*XS + tt*4096}"
    def wr(n, sec):
        a, o = (vWa[n], sl * WSL) if sl < 4 else (vWb[n], 0)
        return f"ds_read_b64_tr_b16 {vr(dst+8+4*n+2*sec,2)}, v{a} offset:{o + kk*2048 + sec*256}"
    R = [xr(0), wr(0, 0), wr(0, 1), xr(1)]
    for n in range(1, 5): R += [wr(n, 0), wr(n, 1)]
    return R
need = {0: 2, 1: 3, 2: 5, 4: 7, 6: 9, 8: 11}
def substep(cur, R, first=False):
    issued = 0
    for j in range(10):
        n, tt = j >> 1, j & 1
        if j in need: A(f"s_waitcnt lgkmcnt({min(15, 11 - need[j] + issued)})")
        a = ACC + 16 * (2 * n + tt)
        c = "0" if first else vr(a, 16)
        A(f"v_mfma_f32_32x32x16_bf16 {vr(a,16)}, {vr(cur+8+4*n,4)}, {vr(cur+4*tt,4)}, {c}")
        k = 2 if j < 2 else 1
        for r in R[issued:issued + k]: A(r)
        issued += len(R[issued:issued + k])
A(f"""v_and_b32 v16, 31, v1
v_lshlrev_b32 v22, 5, v16
s_lshl_b32 s57, s12, 11
s_add_u32 s57, s57, {EX_TOK}
v_add_u32 v22, s57, v22
v_and_b32 v16, 15, v1
s_sub_u32 s57, 2, s50
s_lshl_b32 s57, s57, 6
v_mul_u32_u24 v18, s57, v17
v_xor_b32 v19, s13, v17
v_lshlrev_b32 v19, 4, v19
v_add3_u32 v18, v18, v19, v16
v_lshlrev_b32 v18, 2, v18
v_and_b32 v19, 31, v1
s_lshl_b32 s57, s13, 5
v_add_u32 v19, s57, v19
v_lshlrev_b32 v19, 2, v19""")
for n in range(5):
    fo = EX_COL + ((n >> 1) * 64 + (n & 1) * 32) * 4
    qo = EX_COL + n * 256
    if n < 2: A(f"v_add_u32 v{23+n}, {fo}, v18")
    elif n == 4: A(f"v_add_u32 v{23+n}, {qo}, v19")
    else:
        A(f"v_add_u32 v20, {fo}, v18\nv_add_u32 v21, {qo}, v19\nv_cndmask_b32 v{23+n}, v20, v21, vcc")
A(f"""s_lshl_b32 s57, s47, 2
s_lshl_b32 s58, s12, 1
s_add_u32 s57, s57, s58
s_mul_i32 s70, s57, {112*1024}
s_lshl_b32 s59, s53, 12
s_add_u32 s70, s70, s59
s_lshl_b32 s59, s13, 10
s_add_u32 s70, s70, s59
s_add_u32 s70, s70, {WS_H}
s_lshl_b32 s59, s54, 2
s_lshl_b32 s60, s13, 1
s_add_u32 s59, s59, s60
s_lshl_b32 s71, s59, 6
s_add_u32 s71, s71, s57
s_lshl_b32 s71, s71, 10
s_lshl_b32 s57, s57, 7
s_lshl_b32 s72, s59, 1
s_add_u32 s72, s72, s57
s_lshl_b32 s72, s72, 5
s_add_u32 s72, s72, {WS_FQ}
s_lshl_b32 s73, s48, 3
s_lshl_b32 s60, s13, 2
s_add_u32 s73, s73, s60
s_add_u32 s73, s73, s57
s_lshl_b32 s73, s73, 5
s_add_u32 s73, s73, {WS_FH}
s_add_u32 s74, s73, 4096
s_load_dwordx2 s[24:25], s[0:1], 48
s_load_dwordx2 s[28:29], s[0:1], 16
s_load_dwordx2 s[36:37], s[0:1], 56
s_waitcnt lgkmcnt(0)""")
if OPT["tlb"]:
    A("""v_lshlrev_b32 v16, 21, v1
    v_mov_b32 v17, 0
    s_mov_b64 exec, 0x1ff
    buffer_load_dword v30, v16, s[20:23], 0 offen sc1
    s_mov_b64 exec, 1
    global_load_dword v30, v17, s[36:37] sc1
    global_load_dword v30, v17, s[24:25]
    global_load_dword v30, v17, s[28:29]
    s_mov_b64 exec, -1""")
A("s_waitcnt vmcnt(0)")
A("s_barrier")
PR.stamp()
for r in reads(0, 0, P): A(r)
A.raw(".p2align 3")
for s in range(16):
    substep(P, reads(s, 1, QQ), first=(s == 0))
    A("s_barrier")
    if s < 15: substep(QQ, reads(s + 1, 0, P))
    else:
        R = [f"ds_read_b128 {vr(P,4)}, v22", f"ds_read_b128 {vr(P+4,4)}, v22 offset:1024",
             f"ds_read_b128 v[16:19], v22 offset:16", f"ds_read_b128 v[28:31], v22 offset:1040"]
        R += [f"ds_read_b32 v{P+8+4*n}, v{23+n}" for n in range(5)]
        substep(QQ, R)
    if s in (11,): PR.stamp()
A("s_waitcnt lgkmcnt(0)")
A("s_barrier")
PR.stamp()
A(f"""v_mov_b32 v248, v{P+2}
v_mov_b32 v249, v{P+3}
v_mov_b32 v250, v16
v_mov_b32 v251, v17
v_mov_b32 v252, v{P+6}
v_mov_b32 v253, v{P+7}
v_mov_b32 v254, v28
v_mov_b32 v255, v29
v_cmp_gt_u32 vcc, 32, v1
v_readfirstlane_b32 s80, v18
v_mov_b32 v{P+2}, 0
v_mov_b32 v{P+3}, 0
v_mov_b32 v{P+6}, 0
v_mov_b32 v{P+7}, 0
v_cndmask_b32 v{P}, 0, v{P}, vcc
v_cndmask_b32 v{P+1}, 0, v{P+1}, vcc
v_cndmask_b32 v{P+4}, 0, v{P+4}, vcc
v_cndmask_b32 v{P+5}, 0, v{P+5}, vcc""")
for n in (4, 3, 2, 1, 0):
    w = P + 8 + 4 * n
    A(f"v_mov_b32 v{w+1}, v{w}\nv_mov_b32 v{w+2}, 0\nv_mov_b32 v{w+3}, 0")
for n in (4, 3, 2, 1, 0):
    for tt in range(2):
        a = ACC + 16 * (2 * n + tt)
        A(f"v_mfma_f32_32x32x16_bf16 {vr(a,16)}, {vr(P+8+4*n,4)}, {vr(P+4*tt,4)}, {vr(a,16)}")
A(f"""v_lshlrev_b32 v2, 4, v1
v_and_b32 v3, 31, v1
v_lshlrev_b32 v3, 5, v3
v_lshrrev_b32 v4, 5, v1
v_lshlrev_b32 v4, 4, v4
v_add_u32 v3, v3, v4
v_lshlrev_b32 v8, 8, v1
v_mov_b32 v9, s80""")
T = QQ
for tt in range(2):
    for k in range(3):
        A(f"v_mov_b32 v{68+6*tt+2*k}, v{248+4*tt+1+k}\nv_mov_b32 v{69+6*tt+2*k}, v{248+4*tt+1+k}")
def ffn(n, tt):
    a = ACC + 16 * (2 * n + tt); c = 68 + 6 * tt
    for r in range(0, 8, 2): A(f"v_pk_mul_f32 {vr(T+r,2)}, {vr(a+r,2)}, {vr(a+r,2)}")
    for r in range(0, 8, 2): A(f"v_pk_fma_f32 {vr(T+r,2)}, {vr(T+r,2)}, {vr(c+2,2)}, {vr(c,2)}")
    for r in range(0, 8, 2): A(f"v_pk_mul_f32 {vr(T+r,2)}, {vr(T+r,2)}, {vr(a+r,2)}")
    for r in range(8): A(f"v_exp_f32 v{T+r}, v{T+r}")
    for r in range(0, 8, 2): A(f"v_pk_mul_f32 {vr(a+r,2)}, {vr(a+r,2)}, {vr(a+8+r,2)}")
    for r in range(0, 8, 2): A(f"v_pk_fma_f32 {vr(T+r,2)}, {vr(T+r,2)}, {vr(c+4,2)}, {vr(c+4,2)}")
    for r in range(8): A(f"v_rcp_f32 v{T+r}, v{T+r}")
    A("s_nop 0")
    for r in range(0, 8, 2): A(f"v_pk_mul_f32 {vr(a+r,2)}, {vr(a+r,2)}, {vr(T+r,2)}")
    for d in range(4): A(f"v_cvt_pk_bf16_f32 v{a+8+d}, v{a+2*d}, v{a+2*d+1}")
def ffn_st(n, tt):
    a = ACC + 16 * (2 * n + tt)
    A(f"s_add_u32 s63, s70, {2048*n + tt*112*1024}")
    A(f"buffer_store_dwordx4 {vr(a+8,4)}, v2, s[20:23], s63 offen sc1")
def qkv(n, zoff):
    A(f"""s_add_u32 s60, s54, {zoff}
    s_cmp_lt_u32 s60, 8
    s_mov_b32 s62, {f32(0.25*LOG2E)}
    s_cselect_b32 s62, s62, 1.0
    v_mul_f32 v4, s62, v248
    v_mul_f32 v6, s62, v252
    v_mul_f32 v5, s62, v248
    v_mul_f32 v7, s62, v252""")
    for tt in range(2):
        a = ACC + 16 * (2 * n + tt)
        for r in range(0, 16, 2): A(f"v_pk_mul_f32 {vr(a+r,2)}, {vr(a+r,2)}, {vr(4+2*tt,2)}")
        for d in range(8): A(f"v_cvt_pk_bf16_f32 v{a+d}, v{a+2*d}, v{a+2*d+1}")
        A(f"s_add_u32 s63, s71, {zoff*4*65536 + tt*1024}")
        A(f"buffer_store_dwordx4 {vr(a,4)}, v2, s[20:23], s63 offen sc1")
        A(f"s_add_u32 s63, s63, 65536")
        A(f"buffer_store_dwordx4 {vr(a+4,4)}, v2, s[20:23], s63 offen sc1")
def flag(vm, mask, soff, imm=0, voff=8):
    A(f"s_waitcnt vmcnt({vm})\ns_mov_b64 exec, {mask}\nbuffer_store_dword v9, v{voff}, s[20:23], s{soff} offen offset:{imm} sc1\ns_mov_b64 exec, -1")
A("s_cmp_eq_u32 s50, 1")
A("s_cbranch_scc1 M_TC")
def ffs(n, tt): ffn(n, tt); ffn_st(n, tt)
DF = OPT["defer"]
qkv(4, 0)
if DF:
    ffn(3, 0); ffn(3, 1)
    A("s_barrier")
    ffn(2, 0); ffn(2, 1)
    if DF == 5: flag(0, 1, 72)
    if DF >= 2: ffn(1, 0); ffn(1, 1)
    if DF != 5: flag(0, 1, 72)
    nq = PR.n; PR.stamp()
    if DF >= 3: ffn(0, 0); ffn(0, 1)
    if DF >= 4: A("s_barrier")
    for n in (3, 2):
        for tt in range(2): ffn_st(n, tt)
    if DF == 1: ffs(1, 0); ffs(1, 1); ffs(0, 0); ffs(0, 1)
    elif DF == 2: ffn_st(1, 0); ffn_st(1, 1); ffs(0, 0); ffs(0, 1)
    else: ffn_st(1, 0); ffn_st(1, 1); ffn_st(0, 0); ffn_st(0, 1)
    flag(4, 1, 73)
else:
    ffs(3, 0); ffs(3, 1)
    A("s_barrier")
    ffs(2, 0); ffs(2, 1)
    flag(4, 1, 72)
    ffs(1, 0); ffs(1, 1); ffs(0, 0); ffs(0, 1)
    flag(4, 1, 73)
A("s_branch M_TJ")
A.label("M_TC")
qkv(4, 2); qkv(3, 1); qkv(2, 0)
A("s_barrier")
if DF:
    order = [(1, 0), (1, 1), (0, 0), (0, 1)]
    for t in order[:OPT["cq"]]: ffn(*t)
    flag(0, 7, 72)
    PR.n = nq; PR.stamp()
    for t in order[OPT["cq"]:]: ffn(*t)
    if DF >= 4: A("s_barrier")
    ffn_st(1, 0); ffn_st(1, 1); ffn_st(0, 0); ffn_st(0, 1)
else:
    ffs(1, 0); ffs(1, 1); ffs(0, 0); ffs(0, 1)
    flag(4, 7, 72)
A.label("M_TJ")
PR.stamp()
A("s_mov_b32 s15, s14")
d_setup_w()
XRr, BF, WF, AD, AS = 8, 16, 80, 96, 160
BD, NS = 8, 36
flag(0, 1, 74)
PR.stamp()
DQ = VQ(A)
A(f"""s_and_b32 s57, s2, 7
s_lshl_b32 s50, s57, 2
s_lshr_b32 s57, s2, 3
s_and_b32 s57, s57, 3
s_add_u32 s50, s50, s57
s_lshr_b32 s51, s2, 5
v_lshlrev_b32 v3, 4, v1
s_lshl_b32 s55, s50, 13
s_lshl_b32 s57, s15, 10
s_add_u32 s55, s55, s57
s_add_u32 s55, s55, {WS_FH}
s_add_u32 s75, s55, 4096
v_min_u32 v226, 5, v1
v_lshlrev_b32 v226, 7, v226
v_min_u32 v227, 7, v1
v_lshlrev_b32 v227, 7, v227""")
ld0 = "buffer_load_dword v228, v226, s[20:23], s55 offen sc1"
ld1 = "buffer_load_dword v228, v227, s[20:23], s75 offen sc1"
RP = OPT["rpf"]
for k in range(RP):
    st = WD + k
    A(f"s_lshl_b32 s44, s{UFB[st>>2]}, 14\ns_add_u32 s44, s44, s40")
    if st & 3: A(f"s_add_u32 s44, s44, {(st&3)*16384}")
    A(f"s_add_u32 s45, s44, 8192")
    A(f"buffer_load_dwordx4 {vr(160+8*k,4)}, v2, s[24:27], s44 offen")
    A(f"buffer_load_dwordx4 {vr(164+8*k,4)}, v2, s[24:27], s45 offen")
if OPT["ms"]: A(f"s_sleep {OPT['ms']}")
A(ld0)
A(f"""s_lshl_b32 s57, s50, 1
s_and_b32 s58, s15, 1
s_add_u32 s59, s57, s58
s_xor_b32 s58, s58, 1
s_add_u32 s57, s57, s58
s_mul_i32 s64, s59, {112*1024}
s_add_u32 s64, s64, {WS_H}
s_mul_i32 s65, s57, {112*1024}
s_add_u32 s65, s65, {WS_H}
s_lshl_b32 s58, s15, 13
s_add_u32 s58, s58, {WS_O}
s_lshl_b32 s67, s59, 15
s_add_u32 s67, s67, s58
s_lshl_b32 s53, s57, 15
s_add_u32 s53, s53, s58
v_and_b32 v6, 31, v1
v_lshlrev_b32 v6, 10, v6
v_lshrrev_b32 v7, 5, v1
v_lshlrev_b32 v7, 4, v7
v_add_u32 v224, v6, v7
s_lshl_b32 s54, s59, 15
s_lshl_b32 s57, s51, 7
s_add_u32 s54, s54, s57
s_lshr_b32 s57, s15, 1
s_lshl_b32 s57, s57, 6
s_add_u32 s54, s54, s57
v_lshrrev_b32 v6, 5, v1
v_lshlrev_b32 v6, 8, v6
v_bfe_u32 v7, v1, 2, 2
v_lshlrev_b32 v7, 6, v7
v_add_u32 v6, v6, v7
v_and_b32 v7, 3, v1
v_lshlrev_b32 v7, 3, v7
v_add_u32 v6, v6, v7
v_bfe_u32 v7, v1, 4, 1
v_lshlrev_b32 v7, 5, v7
v_add_u32 v6, v6, v7
s_lshl_b32 s57, s57, 3
v_add_u32 v6, s57, v6
v_xor_b32 v7, 512, v6
v_add_u32 v4, s43, v6
v_add_u32 v5, s43, v7
v_add_u32 v232, 0x10000, v4
v_add_u32 v233, 0x10000, v5
v_add_u32 v234, 0x20000, v4
v_add_u32 v235, 0x20000, v5
s_mov_b32 s32, s4
s_mov_b32 s33, s5
s_mov_b32 s34, 0x200000
s_mov_b32 s35, 0x20000
s_mov_b32 s38, 0x200000
s_mov_b32 s39, 0x20000
s_setprio {OPT['dprio']}
s_waitcnt vmcnt(0)""")
PR.stamp()
spin(A, "MH0", ld0, 228)
PR.stamp()
def htouch(lvl):
    if not OPT["htouch"]: return
    A(f"""v_bfe_u32 v229, v1, 2, 2
    v_lshlrev_b32 v230, 13, v229
    s_mul_i32 s57, s15, {24*1024}
    s_add_u32 s57, s57, {4096 if lvl == 0 else 0}
    v_add_u32 v230, s57, v230
    s_lshl_b32 s58, s15, 12
    s_add_u32 s58, s58, {96*1024}
    v_mov_b32 v231, {'s58' if lvl else 's57'}
    v_cmp_eq_u32 vcc, 3, v229
    v_and_b32 v229, 3, v1
    v_lshlrev_b32 v229, 10, v229
    v_cndmask_b32 v230, v230, v231, vcc
    v_add_u32 v230, v230, v229
    v_bfe_u32 v229, v1, 4, 1
    v_mul_u32_u24 v229, {112*1024}, v229
    v_add_u32 v230, v230, v229
    s_min_u32 s57, s64, s65
    s_lshl_b32 s58, s51, 7
    s_add_u32 s57, s57, s58
    s_mov_b32 exec_hi, 0
    buffer_load_dword v248, v230, s[20:23], s57 offen sc1
    s_mov_b64 exec, -1""")
    DQ.add("HT", 1)
htouch(0)
def issb(s):
    r = BF + 8 * (s % BD)
    if s < 28:
        o = [f"s_lshl_b32 s48, s{UFB[s>>2]}, 10", "s_add_u32 s49, s48, s65", "s_add_u32 s48, s48, s64"] if (s & 3) == 0 else []
    else:
        o = [f"s_add_u32 s48, s67, {(s-28)*1024}", f"s_add_u32 s49, s53, {(s-28)*1024}"] if (s & 3) == 0 else []
    DQ.add(f"B{s}", 2)
    return [o + [f"buffer_load_dwordx4 {vr(r,4)}, v3, s[20:23], s48 offen offset:{(s&3)*1024} sc1"],
            [f"buffer_load_dwordx4 {vr(r+4,4)}, v3, s[20:23], s49 offen offset:{(s&3)*1024} sc1"]]
for s in range(BD - 1): emit(issb(s))
def wtouch2():
    A(f"""v_lshrrev_b32 v229, 4, v1
    v_mov_b32 v230, s{UFB[3]}
    v_mov_b32 v231, s{UFB[4]}
    v_cmp_eq_u32 vcc, 1, v229
    s_lshr_b32 s57, s2, 3
    s_and_b32 s57, s57, 3
    v_cndmask_b32 v230, v230, v231, vcc
    v_mov_b32 v231, s{UFB[5]}
    v_cmp_eq_u32 vcc, 2, v229
    s_lshl_b32 s57, s57, 10
    s_add_u32 s58, s57, s40
    v_cndmask_b32 v230, v230, v231, vcc
    v_mov_b32 v231, s{UFB[6]}
    v_cmp_eq_u32 vcc, 3, v229
    v_and_b32 v229, 15, v1
    v_lshlrev_b32 v229, 12, v229
    v_cndmask_b32 v230, v230, v231, vcc
    v_lshlrev_b32 v230, 14, v230
    v_add_u32 v230, v230, v229
    buffer_load_dword v246, v230, s[24:27], s58 offen
    v_lshlrev_b32 v229, 12, v1
    s_add_u32 s58, s57, s42
    s_mov_b32 exec_hi, 0
    buffer_load_dword v247, v229, s[28:31], s58 offen
    s_mov_b64 exec, -1""")
    DQ.add("WT", 2)
if OPT["wt2"] == 1: wtouch2()
A(f"buffer_load_dwordx4 {vr(XRr,4)}, v224, s[32:35], s54 offen")
A(f"buffer_load_dwordx4 {vr(XRr+4,4)}, v224, s[32:35], s54 offen offset:32")
DQ.add("X", 2)
def rdw(s):
    slot = s % WD; w = WF + 8 * (s & 1)
    hi, lo = DREG[slot] >> 16, DREG[slot] & 0xffff
    vb = [4, 232, 234][hi]
    return [f"ds_read_b64_tr_b16 {vr(w+4*u+2*sec,2)}, v{vb+u} offset:{lo+sec*1024}" for u in range(2) for sec in range(2)]
for i in rdw(0): A(i)
DQ.wait("B0")
L1S = OPT["l1s"]
def tB(sp): return max(sp - (BD - 1), L1S) if sp >= 12 else sp - (BD - 1)
def xaddr(base3, which, a, qd):
    k = (a - 1) * 4 + qd
    reg = DREG[(8 if which == 0 else 0) + (k >> 1)] + (k & 1) * 1024
    return base3[reg >> 16], reg & 0xffff
def dump(which, acc):
    for a in range(1, 4):
        for qd in range(4):
            vb, off = xaddr([236, 6, 7], which, a, qd)
            A(f"ds_write_b128 v{vb}, {vr(acc+16*a+4*qd,4)} offset:{off}")
def fetch(which, acc):
    for a in range(1, 4):
        b = 237 + 3 * (a - 1)
        for qd in range(4):
            vb, off = xaddr([b, b + 1, b + 2], which, a, qd)
            A(f"ds_read_b128 {vr(acc+16*a+4*qd,4)}, v{vb} offset:{off}")
def sum4(acc):
    for r in range(0, 16, 2):
        A(f"v_pk_add_f32 {vr(acc+r,2)}, {vr(acc+r,2)}, {vr(acc+16+r,2)}\nv_pk_add_f32 {vr(acc+32+r,2)}, {vr(acc+32+r,2)}, {vr(acc+48+r,2)}")
    for r in range(0, 16, 2): A(f"v_pk_add_f32 {vr(acc+r,2)}, {vr(acc+r,2)}, {vr(acc+32+r,2)}")
for s in range(NS):
    w = WF + 8 * (s & 1); b = BF + 8 * (s % BD)
    acc = AD if s < 28 else AS
    if s == 12: PR.stamp()
    if s == 28:
        PR.stamp()
        A("s_nop 7\ns_nop 1")
        dump(0, AD)
        DQ.wait("PO")
        A("""v_cmp_eq_u32 vcc, s80, v228
        s_mov_b32 s46, 0
        s_cmp_eq_u64 vcc, -1
        s_cbranch_scc1 M_OOK
        s_mov_b32 s46, 1""")
        A(ld2)
        A("s_call_b64 s[66:67], M_GATE" if False else "s_call_b64 s[70:71], M_GATE")
        A("s_waitcnt vmcnt(0)")
        spin(A, "MO", ld2, 228)
        A.label("M_OOK")
        PR.stamp()
        for sp in range(28, 36): emit(issb(sp))
        A("s_cmp_eq_u32 s46, 1\ns_cbranch_scc1 M_GDONE\ns_call_b64 s[70:71], M_GATE")
        A.label("M_GDONE")
        DQ.wait("B28")
    if s + 1 < NS:
        DQ.wait([f"W{s+1}", f"B{s+1}"])
        for i in rdw(s + 1): A(i)
        A("s_waitcnt lgkmcnt(4)")
    else:
        A("s_waitcnt lgkmcnt(0)")
    if s == L1S - 3:
        A(ld1); DQ.add("P1", 1)
    if s == L1S:
        DQ.wait("P1")
        spin(A, "MH1", ld1, 228)
        htouch(1)
    if s == 0:
        A("v_add_u32 v236, s43, v3\nv_add_u32 v6, 0x10000, v236\nv_add_u32 v7, 0x20000, v236")
    if s == 20:
        for a in range(1, 4):
            bb = 237 + 3 * (a - 1)
            A(f"s_xor_b32 s57, s15, {a}\ns_lshl_b32 s57, s57, 11\nv_add_u32 v{bb}, s57, v3\nv_add_u32 v{bb+1}, 0x10000, v{bb}\nv_add_u32 v{bb+2}, 0x20000, v{bb}")
    if s == 25:
        A(f"""s_lshl_b32 s55, s50, 12
        s_lshl_b32 s57, s15, 10
        s_add_u32 s55, s55, s57
        s_add_u32 s55, s55, {WS_FO}""")
        ld2 = "buffer_load_dword v228, v227, s[20:23], s55 offen sc1"
        A(ld2); DQ.add("PO", 1)
    grp = []
    for sp in range(BD - 1, 28):
        if tB(sp) == s: grp += issb(sp)
    if 1 <= s <= RP:
        reg = DREG[s - 1]; vb = [236, 6, 7][reg >> 16]
        grp += [[f"ds_write_b128 v{vb}, {vr(160+8*(s-1),4)} offset:{reg & 0xffff}"], [f"ds_write_b128 v{vb}, {vr(164+8*(s-1),4)} offset:{(reg & 0xffff)+1024}"]]
    elif s >= 1 and s + WD - 1 < NS: grp += issw(s + WD - 1, DQ)
    per = [grp[(len(grp) * a) // 4:(len(grp) * (a + 1)) // 4] for a in range(4)]
    for a in range(4):
        u, tt = a >> 1, a & 1
        r = acc + 16 * a
        c = "0" if s in (0, 28) else vr(r, 16)
        A(f"v_mfma_f32_32x32x16_bf16 {vr(r,16)}, {vr(w+4*u,4)}, {vr(b+4*tt,4)}, {c}")
        for g in per[a]:
            for i in g: A(i)
PR.stamp()
A("s_nop 7\ns_nop 1")
dump(1, AS)
A("s_waitcnt lgkmcnt(0)")
A("s_barrier")
fetch(1, AS)
A("s_waitcnt lgkmcnt(0)")
sum4(AS)
for r in range(0, 16, 2): A(f"v_pk_fma_f32 {vr(AD+r,2)}, {vr(AD+r,2)}, {vr(AS+r,2)}, {vr(AD+32+r,2)}")
for d in range(8): A(f"v_cvt_pk_bf16_f32 v{XRr+d}, v{AD+2*d}, v{AD+2*d+1}")
A("s_nop 1")
for j in range(2):
    A(f"v_permlane32_swap_b32 v{XRr+4*j}, v{XRr+4*j+2}\nv_permlane32_swap_b32 v{XRr+4*j+1}, v{XRr+4*j+3}")
osc = "sc1" if OPT["osc"] else ""
A(f"buffer_store_dwordx4 {vr(XRr,4)}, v224, s[36:39], s54 offen {osc}")
A(f"buffer_store_dwordx4 {vr(XRr+4,4)}, v224, s[36:39], s54 offen offset:32 {osc}")
PR.stamp()
PR.dump(2)
A("s_endpgm")
def gate():
    A("s_waitcnt lgkmcnt(0)")
    A("s_barrier")
    fetch(0, AD)
    for j in range(2):
        A(f"v_permlane32_swap_b32 v{XRr+4*j}, v{XRr+4*j+2}\nv_permlane32_swap_b32 v{XRr+4*j+1}, v{XRr+4*j+3}")
    A("s_waitcnt lgkmcnt(0)")
    sum4(AD)
    T = AD + 16
    for r in range(16): A(f"v_mul_f32 v{T+r}, {f32(-LOG2E)}, v{AD+r}")
    for r in range(16): A(f"v_exp_f32 v{T+r}, v{T+r}")
    for d in range(8): A(f"v_lshlrev_b32 v{T+16+2*d}, 16, v{XRr+d}\nv_and_b32 v{T+17+2*d}, 0xffff0000, v{XRr+d}")
    for r in range(16): A(f"v_add_f32 v{T+r}, 1.0, v{T+r}")
    for r in range(16): A(f"v_rcp_f32 v{T+r}, v{T+r}")
    A("s_nop 0")
    for r in range(0, 16, 2): A(f"v_pk_mul_f32 {vr(AD+r,2)}, {vr(AD+r,2)}, {vr(T+r,2)}")
A.label("M_GATE")
gate()
A("s_setpc_b64 s[70:71]")
A.label("L_CODE_END")
A.raw('.section .rodata,"a"')
A.raw(kernel_desc(NAME, 256))
txt = A.text()
if OPT.get("plainst"):
    import re
    txt = re.sub(r"(buffer_store_dwordx4 .*s63 offen) sc1", r"\1", txt)
if OPT.get("align", 1):
    import align
    txt = align.align(txt)
print(txt)
```

```python
import sys, math
from asmlib import *

NAME = "recurrent_scan__sliding_block__geglu_ffn__prompt_kernel"
WS_Q = 0; WS_K = 2 << 20; WS_V = 4 << 20; WS_O = 6 << 20; WS_H = 8 << 20
WS_TOK = 16 << 20
WS_CS = (16 << 20) + 65536
WS_FO = 17 << 20
WS_FH = (17 << 20) + (1 << 18)
WS_FQ = (17 << 20) + (2 << 18)
LOG2E = 1.4426950408889634
OPT = dict(prof=0, rot=2, codepf=1, wd=14, sleep=8, warm=7, thr=6, aprio=3, l2pf=0, rotd=1, hs=56, dprio=0, wtouch=0, htouch=1, wts=10, defer=1, gat=10, gc=13, hprio=0, l1s=10, osc=0, cq=2, ms=16, ntx=0, ntw=0, share=1, l2end=11, aprio2=3, rpf=0, pub=6, gd=1, vw=4, epf=16, tlb=0, wt2=0)
for a in sys.argv[1:]:
    k, v = a.split("="); OPT[k] = int(v)
XR = 0; XS = 16384; WR = 49152; WSL = 20480; EX = 151552
EX_TOK = EX; EX_COL = EX + 4096
DREG = [32768, 40960, 69632, 77824,   86016, 94208, 102400,   110592, 118784, 0, 8192,   126976, 135168, 143360]
DAVAIL = {13: 4, 14: 3, 15: 4, 16: 3}
LONE = 26624
SPIN = 20000

class Prof:
    def __init__(self, A, base=82): self.A = A; self.n = 0; self.base = base
    def stamp(self, real=False):
        if not OPT["prof"]: return
        i = self.n; self.n += 1
        assert i < 16
        self.A(f"{'s_memrealtime' if (real or OPT['prof'] == 2) else 's_memtime'} s[100:101]")
        self.A("s_waitcnt lgkmcnt(0)")
        self.A(f"s_mov_b32 s{self.base+i}, s100")
    def dump(self, vt):
        if not OPT["prof"]: return
        A = self.A
        while self.n < 15: self.stamp()
        self.stamp(True)
        A(f"s_lshl_b32 s68, s2, 3\ns_add_u32 s68, s68, s14\ns_lshl_b32 s68, s68, 6\ns_add_u32 s68, s68, {32<<20}")
        A(f"v_mov_b32 v{vt}, 0")
        for i in range(self.n):
            A(f"v_mov_b32 v{vt+1}, s{self.base+i}")
            A(f"buffer_store_dword v{vt+1}, v{vt}, s[20:23], s68 offen offset:{4*i}")

class VQ:
    def __init__(self, A): self.A = A; self.q = []
    def add(self, tag, n): self.q.append((tag, n))
    def wait(self, tags):
        if isinstance(tags, str): tags = [tags]
        idx = max([i for i, (t, _) in enumerate(self.q) if t in tags], default=-1)
        if idx < 0: return
        rest = sum(c for _, c in self.q[idx + 1:])
        assert rest < 64
        self.A(f"s_waitcnt vmcnt({rest})")
        del self.q[:idx + 1]
    def has(self, tag): return tag in [t for t, _ in self.q]
    def clear(self): self.q = []

def spin(A, name, load, vval, maskexpr=None, cnt=56):
    A(f"""v_cmp_eq_u32 vcc, s80, v{vval}
    s_mov_b32 s{cnt}, 0
    s_cmp_eq_u64 vcc, -1
    s_cbranch_scc1 {name}_OK""")
    A.label(f"{name}_P")
    A(f"""s_sleep {OPT['sleep']}
    {load}
    s_add_u32 s{cnt}, s{cnt}, 1
    s_waitcnt vmcnt(0)
    v_cmp_eq_u32 vcc, s80, v{vval}
    s_cmp_gt_u32 s{cnt}, {SPIN}
    s_cbranch_scc1 {name}_OK
    s_cmp_eq_u64 vcc, -1
    s_cbranch_scc0 {name}_P""")
    A.label(f"{name}_OK")

A = Asm()
A.raw(f"""; recurrent_scan__sliding_block__geglu_ffn__prompt -- hand-designed gfx950 kernel, emitted by my own python generator.
; @launch grid=(256,1,1) block=(512,1,1) lds=163840
.amdgcn_target "amdgcn-amd-amdhsa--gfx950"
.text""")
kernel_header(A, NAME)
PR = Prof(A)
A("""s_load_dwordx4 s[4:7], s[0:1], 0
s_load_dwordx4 s[8:11], s[0:1], 32
s_load_dwordx4 s[16:19], s[0:1], 64""")
if OPT["epf"]:
    A("s_getpc_b64 s[24:25]")
    A.label("L_PC0")
    nl = OPT["epf"]
    A(f"""v_and_b32 v16, {nl-1}, v0
    v_bfe_u32 v17, v0, 6, 2
    v_mul_u32_u24 v17, {nl}, v17
    v_add_lshl_u32 v16, v16, v17, 7
    v_add_u32 v17, L_M-L_PC0, v16
    v_cmp_gt_u32 vcc, 256, v0
    s_mov_b64 exec, {(1<<nl)-1}
    s_nop 0
    v_cndmask_b32 v16, v16, v17, vcc
    global_load_dword v29, v16, s[24:25]
    s_mov_b64 exec, -1""")
A("""s_cmp_ge_u32 s2, 256
s_cbranch_scc1 L_END""")
if OPT.get("scramble"):
    A("s_lshr_b32 s57, s2, 3\ns_lshl_b32 s58, s2, 5\ns_or_b32 s2, s57, s58\ns_and_b32 s2, s2, 255")
A("""v_and_b32 v1, 63, v0
v_lshrrev_b32 v16, 6, v0
s_and_b32 s57, s2, 7
v_readfirstlane_b32 s14, v16
s_lshr_b32 s58, s2, 3
s_and_b32 s44, s57, 1
s_and_b32 s45, s58, 7
s_lshl_b32 s47, s44, 3
s_add_u32 s47, s47, s45
s_lshr_b32 s46, s57, 1
s_lshr_b32 s49, s58, 3
s_lshl_b32 s48, s46, 2
s_add_u32 s48, s48, s49
s_mul_i32 s51, s46, 3
s_add_u32 s52, s51, s49
s_lshl_b32 s53, s52, 1
s_add_u32 s57, s46, 24
s_add_u32 s54, s51, 12
s_cmp_eq_u32 s49, 3
s_cselect_b32 s50, 1, 0
s_cselect_b32 s53, s57, s53
s_cselect_b32 s54, s54, s52
s_and_b32 s15, s14, 3
s_cmp_lt_u32 s14, 4
s_cbranch_scc1 L_M""")
def ws_srd():
    A("""s_mov_b32 s20, s18
    s_mov_b32 s21, s19
    s_mov_b32 s22, 0x10000000
    s_mov_b32 s23, 0x20000
    s_mov_b32 s18, 256
    s_mov_b32 s19, 0x20000""")
vDW = [2, 3, 4, 5, 6]; vDX = [7, 8]
ROT = OPT["rot"]
A("""s_lshl_b32 s58, s15, 15
v_lshrrev_b32 v16, 3, v1
v_lshlrev_b32 v16, 10, v16
v_add_u32 v16, s58, v16
v_lshrrev_b32 v17, 4, v1
v_xor_b32 v17, v17, v1
v_and_b32 v17, 7, v17
v_lshlrev_b32 v17, 4, v17
v_add_u32 v7, v16, v17
v_xor_b32 v8, 64, v7
s_lshl_b32 s12, s15, 12
s_lshl_b32 s13, s15, 10
s_lshl_b32 s57, s47, 17""")
if ROT == 1: A("s_lshl_b32 s81, s49, 2\ns_lshl_b32 s58, s45, 1\ns_add_u32 s81, s81, s58")
elif ROT == 2: A("s_add_u32 s81, s49, s45\ns_lshl_b32 s81, s81, 2")
elif ROT == 3: A("s_add_u32 s81, s49, s45\ns_lshl_b32 s81, s81, 3")
elif ROT == 0: A("s_mov_b32 s81, 0")
A("""s_waitcnt lgkmcnt(0)
s_add_u32 s72, s4, s57
s_addc_u32 s73, s5, 0
s_mov_b32 s74, 0x20000
s_mov_b32 s75, 0x20000""")
PR.stamp(True); PR.stamp()
def dma_x(u):
    o = []
    for jj in range(4):
        pre = [f"s_add_u32 s56, s81, {2*u}", "s_and_b32 s56, s56, 15", "s_lshl_b32 s56, s56, 6"] if jj == 0 else []
        o.append(pre + [f"s_add_u32 m0, s12, {XR + (u%3)*XS + jj*1024}", f"s_add_u32 s59, s56, {jj*8192}",
                        f"buffer_load_dwordx4 v{vDX[jj&1]}, s[72:75], s59 offen {'nt ' if 2*u < OPT['ntx'] else ''}lds"])
    return o
def emit(groups):
    for g in groups:
        for i in g: A(i)
    return len(groups)
A(f"s_setprio {OPT['hprio']}")
Q = VQ(A)
n0 = emit(dma_x(0))
A("s_lshl_b32 s55, s53, 7\ns_lshl_b32 s56, s54, 7")
tabA = [(8, 55, 0), (8, 55, 128), (10, 55, 0), (10, 55, 128), (6, 56, 0)]
tabC = [(8, 55, 0), (10, 55, 0), (6, 56, 0), (6, 56, 128), (6, 56, 256)]
A("""v_bfe_u32 v16, v1, 2, 3
s_lshl_b32 s57, s15, 3
v_add_u32 v16, s57, v16
v_lshrrev_b32 v17, 5, v1
v_lshlrev_b32 v17, 6, v17
v_and_b32 v18, 3, v1
v_lshlrev_b32 v18, 4, v18
v_add_u32 v17, v17, v18
s_lshl_b32 s66, s50, 5
s_xor_b32 s67, s66, 32""")
swap = {0: None, 1: 66, 2: 67, 3: 67, 4: None}
for D in range(5):
    S = 24 + 4 * D
    (pa, ca, oa), (pc, cc_, oc) = tabA[D], tabC[D]
    A("s_cmp_eq_u32 s50, 1")
    if pa != pc:
        A(f"s_cselect_b32 s{S}, s{pc}, s{pa}\ns_cselect_b32 s{S+1}, s{pc+1}, s{pa+1}")
        src = S
    else: src = pa
    if ca != cc_: A(f"s_cselect_b32 s57, s{cc_}, s{ca}"); cs = 57
    else: cs = ca
    if oa != oc: A(f"s_cselect_b32 s58, {oc}, {oa}")
    sa = 3072 if pa == 6 else 3584; sc = 3072 if pc == 6 else 3584
    A(f"s_movk_i32 s{60+D}, {sa}")
    if sa != sc: A(f"s_cselect_b32 s{60+D}, {sc}, s{60+D}")
    if oa != oc: A(f"s_add_u32 s57, s{cs}, s58"); cs = 57
    elif oa: A(f"s_add_u32 s57, s{cs}, {oa}"); cs = 57
    A(f"s_add_u32 s{S}, s{src}, s{cs}\ns_addc_u32 s{S+1}, s{src+1}, 0")
    A(f"v_mul_u32_u24 v18, s{60+D}, v16")
    if swap[D]:
        A(f"v_xor_b32 v19, s{swap[D]}, v17\nv_add_u32 v{vDW[D]}, v18, v19")
    else:
        A(f"v_add_u32 v{vDW[D]}, v18, v17")
    A(f"s_lshl_b32 s{S+2}, s{60+D}, 9\ns_mov_b32 s{S+3}, 0x20000")
def dma_w(k):
    o = []
    for D in range(5):
        S = 24 + 4 * D
        pre = [f"s_add_u32 s56, s81, {k}", "s_and_b32 s56, s56, 15", "s_lshl_b32 s56, s56, 5"] if D == 0 else []
        o.append(pre + [f"s_add_u32 m0, s13, {WR + (k%5)*WSL + D*4096}", f"s_mul_i32 s59, s{60+D}, s56",
                        f"buffer_load_dwordx4 v{vDW[D]}, s[{S}:{S+3}], s59 offen {'nt ' if k < OPT['ntw'] else ''}lds"])
    return o
def G(k):
    g = (dma_x(k // 2) if k % 2 == 0 else []) + dma_w(k)
    Q.add(f"S{k}", emit(g))
Q.add("S0", n0 + emit(dma_w(0)))
G(1)
ws_srd()
A("""s_or_b32 s57, s2, s15
s_cmp_lg_u32 s57, 0
s_cbranch_scc1 H_NONONCE
s_memrealtime s[56:57]
s_waitcnt lgkmcnt(0)
s_mul_i32 s56, s56, 0x9e3779b1
s_or_b32 s56, s56, 1
v_mov_b32 v16, 0
v_mov_b32 v17, s56
buffer_store_dword v17, v16, s[16:19], 0 offen sc1""")
A.label("H_NONONCE")
A("s_lshl_b32 s69, s47, 5")
if ROT == 2: A("s_lshr_b32 s55, s45, 2\ns_lshl_b32 s57, s44, 1\ns_add_u32 s55, s55, s57")
elif ROT == 1: A("s_mov_b32 s55, s44")
elif ROT == 3: A("s_lshr_b32 s55, s45, 1\ns_lshl_b32 s57, s44, 2\ns_add_u32 s55, s55, s57")
if ROT == 0: A("s_and_b32 s55, s45, 3")
NDELTA = {0: 4, 1: 2, 2: 4, 3: 8}[ROT]
def pf_setup():
    A("""v_lshrrev_b32 v20, 3, v1
    v_and_b32 v21, 3, v20
    v_lshrrev_b32 v20, 2, v20
    v_lshlrev_b32 v20, 5, v20
    v_add_u32 v20, v20, v21
    s_lshl_b32 s57, s45, 2
    v_add_u32 v20, s57, v20
    v_and_b32 v21, 7, v1
    v_lshlrev_b32 v21, 4, v21""")
    for D in range(5):
        A(f"v_mul_u32_u24 v{116+D}, s{60+D}, v20\nv_add_u32 v{116+D}, v{116+D}, v21")
    A("""v_lshrrev_b32 v20, 3, v1
    v_lshlrev_b32 v20, 10, v20
    s_lshl_b32 s57, s49, 15
    s_lshl_b32 s58, s15, 13
    s_add_u32 s57, s57, s58
    v_add3_u32 v121, v20, v21, s57""")
def pf_burst(u0, u1):
    n = 0
    for u in range(u0, u1):
        A(f"s_movk_i32 s59, {u*128}\nbuffer_load_dwordx4 {vr(128+4*u,4)}, v121, s[72:75], s59 offen"); n += 1
    for u in range(u0, u1):
        A(f"s_mul_i32 s59, s{PFS}, {64*u}\nbuffer_load_dwordx4 {vr(160+4*u,4)}, v122, s[{PFR}:{PFR+3}], s59 offen"); n += 1
        lb = f"H_PF{u}"
        A(f"s_cmp_eq_u32 s15, {u%4}\ns_cbranch_scc0 {lb}\ns_mul_i32 s59, s64, {64*u}\nbuffer_load_dwordx4 {vr(192+4*(u>>2),4)}, v120, s[40:43], s59 offen")
        A.label(lb)
    Q.add("PF", n)
PFR, PFS = 76, 71
BUR = {}
if OPT.get("burst"):
    pf_setup()
    A(f"s_mov_b32 s{PFR}, s24\ns_mov_b32 s{PFR+1}, s25\ns_mov_b32 s{PFR+2}, s26\ns_mov_b32 s{PFR+3}, 0x20000\ns_mov_b32 s{PFS}, s60\nv_mov_b32 v122, v116")
    for D in (1, 2, 3):
        A(f"""s_cmp_eq_u32 s15, {D}
        s_cselect_b32 s{PFR}, s{24+4*D}, s{PFR}
        s_cselect_b32 s{PFR+1}, s{25+4*D}, s{PFR+1}
        s_cselect_b32 s{PFR+2}, s{26+4*D}, s{PFR+2}
        s_cselect_b32 s{PFS}, s{60+D}, s{PFS}
        s_cselect_b64 vcc, -1, 0
        v_cndmask_b32 v122, v122, v{116+D}, vcc""")
    BUR = {1: {-1: (1, 3), 1: (3, 6), 5: (6, 8)}, 2: {-1: (1, 4), 2: (4, 8)}, 3: {-1: (1, 2), 0: (2, 3), 1: (3, 4), 3: (4, 5), 5: (5, 6), 7: (6, 7), 9: (7, 8)}, 4: {-1: (1, 8)}}[OPT["burst"]]
    pf_burst(*BUR[-1])
A(f"""v_lshrrev_b32 v16, 5, v1
v_lshlrev_b32 v16, 10, v16
v_bfe_u32 v17, v1, 2, 2
v_lshlrev_b32 v17, 6, v17
v_add_u32 v16, v16, v17
v_and_b32 v17, 3, v1
v_lshlrev_b32 v17, 3, v17
v_add_u32 v16, v16, v17
v_bfe_u32 v17, v1, 4, 1
v_lshlrev_b32 v17, 5, v17
s_lshr_b32 s58, s15, 1
s_lshl_b32 s58, s58, 12
s_and_b32 s59, s15, 1
s_lshl_b32 s59, s59, 9
s_add_u32 s58, s58, s59
v_add3_u32 v12, v16, v17, s58
v_lshlrev_b32 v9, 4, v1
v_mov_b32 v10, 0""")
sched = {0: [2], 1: [3], 2: [4, 5]}
for s in range(3, 13): sched[s] = [s + 3]
def col_valu(js, fin):
    for j in js:
        b = 48 + 8 * j; acc = 44 + j
        for d in range(8):
            A(f"v_lshlrev_b32 v18, 16, v{b+d}\nv_and_b32 v19, 0xffff0000, v{b+d}")
            if d == 0: A(f"v_add_f32 v{acc}, v18, v19")
            else: A(f"v_add_f32 v{acc}, v{acc}, v18\nv_add_f32 v{acc}, v{acc}, v19")
    if fin:
        for j in range(3): A(f"v_mov_b32 v{72+2*j}, v{44+j}")
        A("s_nop 1")
        for j in range(3): A(f"v_permlane32_swap_b32 v{72+2*j}, v{44+j}")
        A("s_nop 1")
        for j in range(3): A(f"v_add_f32 v{72+2*j}, v{72+2*j}, v{44+j}")
def row_valu(part):
    if part == 0:
        for rrow in range(2):
            b = 32 + 4 * rrow; sx = 40 + 2 * rrow; sq = sx + 1
            for d in range(4):
                A(f"v_lshlrev_b32 v18, 16, v{b+d}\nv_and_b32 v19, 0xffff0000, v{b+d}")
                if d == 0: A(f"v_add_f32 v{sx}, v18, v19\nv_mul_f32 v{sq}, v18, v18\nv_fmac_f32 v{sq}, v19, v19")
                else: A(f"v_add_f32 v{sx}, v{sx}, v18\nv_fmac_f32 v{sq}, v18, v18\nv_add_f32 v{sx}, v{sx}, v19\nv_fmac_f32 v{sq}, v19, v19")
    else:
        for dpp in ("quad_perm:[1,0,3,2] row_mask:0xf bank_mask:0xf", "quad_perm:[2,3,0,1] row_mask:0xf bank_mask:0xf",
                    "row_half_mirror row_mask:0xf bank_mask:0xf", "row_mirror row_mask:0xf bank_mask:0xf",
                    "row_bcast:15 row_mask:0xa bank_mask:0xf", "row_bcast:31 row_mask:0xc bank_mask:0xf"):
            for r in range(40, 44): A(f"v_add_f32_dpp v{r}, v{r}, v{r} {dpp}")
def get_nonce(tag, vz, vn):
    A(f"""v_readfirstlane_b32 s80, v{vn}
    s_mov_b32 s57, 0
    s_cmp_eq_u32 s80, 0
    s_cbranch_scc0 {tag}_GOTN""")
    A.label(f"{tag}_POLLN")
    A(f"""buffer_load_dword v{vn}, v{vz}, s[16:19], 0 offen sc1
    s_add_u32 s57, s57, 1
    s_waitcnt vmcnt(0)
    v_readfirstlane_b32 s80, v{vn}
    s_cmp_gt_u32 s57, {SPIN}
    s_cbranch_scc1 {tag}_GOTN
    s_cmp_eq_u32 s80, 0
    s_cbranch_scc1 {tag}_POLLN""")
    A.label(f"{tag}_GOTN")
def publish():
    get_nonce("H", 10, 11)
    A(f"""s_lshl_b32 s57, s48, 4
    s_add_u32 s57, s57, s47
    s_mul_i32 s57, s57, 2560
    s_lshl_b32 s58, s15, 8
    s_add_u32 s57, s57, s58
    s_add_u32 s57, s57, {WS_CS}
    v_lshlrev_b32 v16, 3, v1
    v_mov_b32 v73, s80
    v_mov_b32 v75, s80
    v_mov_b32 v77, s80
    s_mov_b32 exec_hi, 0
    buffer_store_dwordx2 v[72:73], v16, s[20:23], s57 offen sc1
    buffer_store_dwordx2 v[74:75], v16, s[20:23], s57 offen offset:1024 sc1
    s_cmp_ge_u32 s15, 2
    s_cbranch_scc1 H_NO3
    buffer_store_dwordx2 v[76:77], v16, s[20:23], s57 offen offset:2048 sc1""")
    A.label("H_NO3")
    A(f"""s_mov_b32 exec_lo, 0
    s_mov_b32 exec_hi, 0x80000000
    s_lshl_b32 s57, s69, 6
    s_lshl_b32 s58, s48, 7
    s_add_u32 s57, s57, s58
    s_lshl_b32 s58, s15, 5
    s_add_u32 s57, s57, s58
    s_add_u32 s57, s57, {WS_TOK}
    v_mov_b32 v48, v40
    v_mov_b32 v49, v41
    v_mov_b32 v50, s80
    v_mov_b32 v51, s80
    v_mov_b32 v52, v42
    v_mov_b32 v53, v43
    v_mov_b32 v54, s80
    v_mov_b32 v55, s80
    buffer_store_dwordx4 v[48:51], v10, s[20:23], s57 offen sc1
    buffer_store_dwordx4 v[52:55], v10, s[20:23], s57 offen offset:16 sc1
    s_mov_b64 exec, -1""")
def gather_loads(part=None):
    if part == 0:
        for m in range(6):
            A(f"s_add_u32 s59, s66, {m*5120}")
            A(f"buffer_load_dwordx4 {vr(64+4*m,4)}, v16, s[20:23], s59 offen sc1")
        return
    for m in range(6 if part == 1 else 0, 8):
        A(f"s_add_u32 s59, s66, {m*5120}")
        A(f"buffer_load_dwordx4 {vr(64+4*m,4)}, v16, s[20:23], s59 offen sc1")
    for m in range(2):
        A(f"s_add_u32 s59, s66, {m*8*2560}")
        A(f"buffer_load_dwordx4 {vr(96+4*m,4)}, v17, s[20:23], s59 offen sc1")
    A("buffer_load_dwordx4 v[104:107], v18, s[20:23], s67 offen sc1")
def gather_prep():
    A(f"""s_mul_i32 s66, s48, {16*2560}
    s_add_u32 s66, s66, {WS_CS}
    v_and_b32 v18, 31, v1
    v_lshlrev_b32 v18, 4, v18
    v_lshrrev_b32 v16, 5, v1
    v_mul_u32_u24 v16, 2560, v16
    s_lshl_b32 s58, s15, 9
    v_add3_u32 v16, v16, v18, s58
    v_and_b32 v17, 7, v1
    v_lshlrev_b32 v17, 4, v17
    v_lshrrev_b32 v19, 3, v1
    v_mul_u32_u24 v19, 2560, v19
    s_lshl_b32 s58, s15, 7
    s_add_u32 s58, s58, 2048
    v_add3_u32 v17, v17, v19, s58
    s_lshl_b32 s67, s69, 6
    s_lshl_b32 s59, s15, 9
    s_add_u32 s67, s67, s59
    s_add_u32 s67, s67, {WS_TOK}""")
def gather_tags():
    tags = list(range(65, 104, 2)) + [106]
    A(f"v_and_b32 v19, v{tags[0]}, v{tags[1]}\nv_or_b32 v20, v{tags[0]}, v{tags[1]}")
    rest = tags[2:]
    for k in range(0, len(rest) - 1, 2):
        A(f"v_bitop3_b32 v19, v19, v{rest[k]}, v{rest[k+1]} bitop3:0x80\nv_or3_b32 v20, v20, v{rest[k]}, v{rest[k+1]}")
    if len(rest) % 2: A(f"v_and_b32 v19, v19, v{rest[-1]}\nv_or_b32 v20, v20, v{rest[-1]}")
    A("""v_xor_b32 v19, s80, v19
    v_xor_b32 v20, s80, v20
    v_or_b32 v19, v19, v20
    v_cmp_eq_u32 vcc, 0, v19
    s_nop 0
    s_cmp_eq_u64 vcc, -1""")
def gather_check():
    Q.wait("GA")
    gather_tags()
    A("s_cselect_b32 s70, 1, 0")
def gather_slow():
    A.label("H_GSLOW")
    A("s_mov_b32 s70, 0")
    A.label("H_GS1")
    gather_loads()
    A("s_waitcnt vmcnt(0)")
    gather_tags()
    A(f"""s_cbranch_scc1 H_GS2
    s_add_u32 s70, s70, 1
    s_cmp_gt_u32 s70, {SPIN}
    s_cbranch_scc1 H_GS2
    s_sleep 4
    s_branch H_GS1""")
    A.label("H_GS2")
    gather_cols()
    A("s_branch H_GTOK")
def gather_cols():
    st = 4
    while st <= 16:
        for r in range(64, 96, 2 * st):
            A(f"v_add_f32 v{r}, v{r}, v{r+st}\nv_add_f32 v{r+2}, v{r+2}, v{r+st+2}")
        st *= 2
    A("""v_add_f32 v96, v96, v100
    v_add_f32 v98, v98, v102
    v_mov_b32 v65, v64
    v_mov_b32 v67, v66
    v_add_f32_dpp v96, v96, v96 row_ror:8 row_mask:0xf bank_mask:0xf
    v_add_f32_dpp v98, v98, v98 row_ror:8 row_mask:0xf bank_mask:0xf
    v_permlane32_swap_b32 v65, v64
    v_permlane32_swap_b32 v67, v66
    v_mov_b32 v97, v96
    v_mov_b32 v99, v98
    v_add_f32 v64, v64, v65
    v_add_f32 v66, v66, v67
    v_permlane32_swap_b32 v97, v96
    v_permlane32_swap_b32 v99, v98
    s_nop 0
    v_add_f32 v96, v96, v97
    v_add_f32 v98, v98, v99
    v_mov_b32 v97, v96
    v_mov_b32 v99, v98
    s_nop 1
    v_permlane16_swap_b32 v97, v96
    v_permlane16_swap_b32 v99, v98
    s_nop 0
    v_add_f32 v96, v96, v97
    v_add_f32 v98, v98, v99""")
    for r, d in ((64, 68), (66, 69), (96, 70), (98, 71)):
        A(f"""v_cvt_pk_bf16_f32 v{r+1}, v{r}, v{r}
        v_and_b32 v{r+1}, 0xffff0000, v{r+1}
        v_sub_f32 v{r}, v{r}, v{r+1}
        v_cvt_pk_bf16_f32 v{d}, v{r+1}, v{r}""")
    A(f"""v_lshrrev_b32 v16, 1, v18
    s_lshl_b32 s58, s15, 8
    s_add_u32 s58, s58, {EX_COL}
    v_add_u32 v16, s58, v16
    ds_write_b64 v16, v[68:69]
    v_and_b32 v17, 7, v1
    v_lshlrev_b32 v17, 3, v17
    s_lshl_b32 s58, s15, 6
    s_add_u32 s58, s58, {EX_COL + 1024}
    v_add_u32 v17, s58, v17
    ds_write_b64 v17, v[70:71]""")
def gather_toks():
    c1 = -2.0 * math.sqrt(2.0 / math.pi) * LOG2E
    c3 = c1 * 0.044715
    A(f"""    v_mul_f32 v104, {f32(-1/512)}, v104
    v_mul_f32 v105, {f32(1/512)}, v105
    v_fma_f32 v105, -v104, v104, v105
    v_max_f32 v105, 0, v105
    v_add_f32 v113, {f32(1e-5)}, v105
    v_rsq_f32 v110, v113
    v_cvt_pk_bf16_f32 v108, v104, v104
    v_and_b32 v106, 0xffff0000, v108
    v_sub_f32 v106, v104, v106
    v_cvt_pk_bf16_f32 v109, v106, v106
    v_mul_f32 v111, {f32(c1)}, v110
    v_mul_f32 v112, v110, v110
    v_mul_f32 v112, v112, v110
    v_mul_f32 v112, {f32(c3)}, v112
    v_mov_b32 v114, s80
    v_lshlrev_b32 v18, 1, v18
    s_lshl_b32 s58, s15, 10
    s_add_u32 s58, s58, {EX_TOK}
    v_add_u32 v18, s58, v18
    ds_write_b128 v18, v[108:111]
    ds_write_b128 v18, v[112:115] offset:16
    s_waitcnt lgkmcnt(0)""")
WD = OPT["wd"]
UFB = [60, 61, 62, 76, 77, 78, 79]
def d_setup_w():
    A(f"""v_bfe_u32 v6, v1, 2, 3
    v_lshlrev_b32 v6, 10, v6
    v_lshrrev_b32 v7, 5, v1
    v_lshlrev_b32 v7, 6, v7
    v_add_u32 v6, v6, v7
    v_and_b32 v7, 3, v1
    v_lshlrev_b32 v7, 4, v7
    v_add_u32 v2, v6, v7
    s_lshl_b32 s43, s15, 11
    s_lshr_b32 s58, s2, 5
    s_lshl_b32 s40, s58, 7
    s_lshl_b32 s42, s15, 17
    s_add_u32 s42, s42, s40
    s_mul_i32 s57, s15, 24""")
    if OPT["rotd"]:
        A("""s_mul_i32 s59, s58, 11
        s_lshr_b32 s59, s59, 5
        s_mul_i32 s59, s59, 3
        s_sub_u32 s59, s58, s59""")
    else:
        A("s_mov_b32 s59, 0\ns_mov_b32 s58, 0")
    for u in range(3):
        A(f"""s_lshl_b32 s{UFB[u]}, s59, 3
        s_add_u32 s{UFB[u]}, s{UFB[u]}, s57
        s_add_u32 s{UFB[u]}, s{UFB[u]}, 4
        s_add_u32 s59, s59, 1
        s_cmp_eq_u32 s59, 3
        s_cselect_b32 s59, 0, s59""")
    A("s_lshl_b32 s41, s15, 2\ns_add_u32 s41, s41, 96")
    for u in range(4):
        A(f"""s_add_u32 s59, s58, {u}
        s_and_b32 s59, s59, 3
        s_lshl_b32 s44, s59, 3
        s_add_u32 s44, s44, s57
        s_cmp_eq_u32 s59, 3
        s_cselect_b32 s{UFB[3+u]}, s41, s44""")
    A("""s_waitcnt lgkmcnt(0)
    s_mov_b32 s26, 0x1c0000
    s_mov_b32 s27, 0x20000
    s_mov_b32 s30, 0x80000
    s_mov_b32 s31, 0x20000""")
def issw(s, q):
    slot = s % WD
    if s < 28:
        srd = 24
        o = [f"s_lshl_b32 s44, s{UFB[s>>2]}, 14", "s_add_u32 s44, s44, s40"]
        if s & 3: o.append(f"s_add_u32 s44, s44, {(s&3)*16384}")
    else:
        srd = 28
        o = [f"s_add_u32 s44, s42, {(s-28)*16384}"]
    a = o + [f"s_add_u32 m0, s43, {DREG[slot]}", "s_add_u32 s45, s44, 8192",
             f"buffer_load_dwordx4 v2, s[{srd}:{srd+3}], s44 offen lds"]
    b = [f"s_add_u32 m0, s43, {DREG[slot]+1024}", "s_nop 0",
         f"buffer_load_dwordx4 v2, s[{srd}:{srd+3}], s45 offen lds"]
    q.add(f"W{s}", 2)
    return [a, b]
P0 = max(NDELTA, 4)
wnext = [0]
GAT, GC = OPT['gat'], OPT['gc']
HP = OPT.get('hprof')
for s in range(17):
    if s < 16: Q.wait(f"S{s}")
    if HP and s >= 4: A(f"s_memtime s[100:101]\ns_waitcnt lgkmcnt(0)\ns_sub_u32 s99, s100, s98\ns_add_u32 s{84+s-4}, s99, s83")
    A("s_barrier")
    if HP: A("s_memtime s[100:101]\ns_waitcnt lgkmcnt(0)\ns_mov_b32 s98, s100")
    if s == 0 and not HP: PR.stamp()
    for k in sched.get(s, []): G(k)
    if s in BUR: pf_burst(*BUR[s])
    if s == 0:
        A("""s_lshl_b32 s57, s48, 13
        s_lshl_b32 s58, s15, 11
        s_add_u32 s57, s57, s58
        buffer_load_dwordx4 v[32:35], v9, s[72:75], s57 offen
        buffer_load_dwordx4 v[36:39], v9, s[72:75], s57 offen offset:1024
        buffer_load_dword v11, v10, s[16:19], 0 offen sc1""")
        Q.add("ST", 3)
    if s < NDELTA:
        lb = f"H_NOCS{s}"
        A(f"s_cmp_eq_u32 s55, {s}\ns_cbranch_scc0 {lb}\nv_add_u32 v12, {WR + (s%5)*WSL}, v12")
        for j in range(3):
            for t in range(4):
                A(f"ds_read_b64_tr_b16 {vr(48+8*j+2*t,2)}, v12 offset:{j*8192 + (t>>1)*2048 + (t&1)*256}")
        A("s_waitcnt lgkmcnt(0)")
        A.label(lb)
    if s == 4: row_valu(0); col_valu([0], False)
    if s == 5: col_valu([1], False)
    if s == 6: col_valu([2], True); row_valu(1)
    if s == OPT["pub"]: publish()
    if s == 3:
        A("s_load_dwordx2 s[4:5], s[0:1], 48\ns_load_dwordx2 s[8:9], s[0:1], 16")
    if OPT["vw"] and s == OPT["vw"]:
        A("""s_cmp_lg_u32 s15, 0
        s_cbranch_scc1 H_NOWARM
        s_mul_i32 s57, s2, 7168
        s_lshl_b32 s58, s2, 11
        v_lshlrev_b32 v20, 7, v1
        s_waitcnt lgkmcnt(0)
        s_add_u32 s6, s57, 7168
        s_mov_b32 s7, 0x20000
        s_add_u32 s10, s58, 2048
        s_mov_b32 s11, 0x20000
        buffer_load_dword v21, v20, s[4:7], s57 offen
        buffer_load_dword v22, v20, s[8:11], s58 offen""")
        A.label("H_NOWARM")
    if s == 5 and not OPT["vw"]:
        A("""s_lshl_b32 s57, s2, 2
        s_add_u32 s57, s57, s15
        s_mul_i32 s58, s57, 1792
        s_lshl_b32 s57, s57, 9
        s_waitcnt lgkmcnt(0)
        s_add_u32 s4, s4, s58
        s_addc_u32 s5, s5, 0
        s_add_u32 s8, s8, s57
        s_addc_u32 s9, s9, 0""")
    if s in (5, 7, 8, 9) and not OPT['vw']:
        k0 = {5: 0, 7: 9, 8: 18, 9: 27}[s]
        for i in range(k0, k0 + 9):
            if i < 28: A(f"s_load_dword s65, s[4:5], {i*64}")
            else: A(f"s_load_dword s65, s[8:9], {(i-28)*64}")
    if OPT["l2pf"] and s == OPT["warm"] + 1:
        A("""s_lshr_b32 s57, s2, 3
        s_lshl_b32 s57, s57, 2
        s_add_u32 s57, s57, s15
        s_lshr_b32 s58, s57, 3
        s_min_u32 s58, s58, 11
        s_lshr_b32 s59, s58, 1
        s_mul_i32 s59, s59, 6
        s_and_b32 s65, s58, 1
        s_lshl_b32 s65, s65, 1
        s_add_u32 s59, s59, s65
        s_add_u32 s59, s59, 2
        s_add_u32 s65, s58, 16
        s_cmp_lt_u32 s58, 8
        s_cselect_b32 s59, s59, s65
        s_lshl_b32 s59, s59, 16
        s_and_b32 s58, s57, 7
        s_lshl_b32 s58, s58, 13
        s_add_u32 s58, s58, s59
        s_lshl_b32 s57, s57, 12
        s_waitcnt lgkmcnt(0)
        s_add_u32 s4, s4, s58
        s_addc_u32 s5, s5, 0
        s_add_u32 s8, s8, s57
        s_addc_u32 s9, s9, 0""")
    if OPT["l2pf"] and OPT["warm"] + 1 <= s <= OPT["l2end"]:
        nst = OPT["l2end"] - OPT["warm"]
        tot = OPT["l2pf"]
        i0 = (s - OPT["warm"] - 1) * tot // nst; i1 = (s - OPT["warm"]) * tot // nst
        for i in range(i0, i1):
            if i < 64: A(f"s_load_dword s65, s[4:5], {i*128}")
            else: A(f"s_load_dword s65, s[8:9], {(i-64)*128}")
    if s == 8: gather_prep()
    if s == GAT: gather_loads(0); Q.add("GA0", 6)
    if s == GAT + OPT["gd"]: gather_loads(1); Q.add("GA", 5)
    if s == 12:
        A("s_load_dwordx2 s[24:25], s[0:1], 48\ns_load_dwordx2 s[28:29], s[0:1], 16")
        d_setup_w()
    if s == GC: gather_check()
    if s in DAVAIL:
        for _ in range(DAVAIL[s]):
            emit(issw(wnext[0], Q)); wnext[0] += 1
    if s == GC + 1:
        A("s_cmp_eq_u32 s70, 0\ns_cbranch_scc1 H_NOCOLS")
        gather_cols()
        A.label("H_NOCOLS")
    if s == 15:
        A("s_cmp_eq_u32 s70, 0\ns_cbranch_scc1 H_GSLOW")
        A.label("H_GTOK")
        gather_toks()
    if s in (4, 8, 12) and not HP: PR.stamp()
if HP:
    PR.n = 15; PR.dump(20); PR.n = 0
    OPT["prof"] = 0
PR.stamp()
PR.stamp()
import gen_cd
gen_cd.OPT = OPT
A("""s_and_b32 s57, s2, 7
s_lshr_b32 s58, s2, 3
s_and_b32 s58, s58, 3
s_lshl_b32 s50, s58, 3
s_add_u32 s50, s50, s57
s_lshr_b32 s51, s2, 5
s_lshl_b32 s51, s51, 2
s_add_u32 s51, s51, s15""")
gen_cd.attn_setup(A)
SH = OPT["share"]
LK, LVS, LFL = 16384, 49152, 49152 + 16384 + 1024
if SH:
    LONE = 49152 + 16384
    A(f"""s_lshr_b32 s49, s2, 5
    s_lshl_b32 s49, s49, 2
    s_lshl_b32 s57, s15, 1
    s_add_u32 s49, s49, s57
    s_sub_u32 s49, s49, 4
    v_and_b32 v9, 1, v1
    v_add_u32 v9, s49, v9
    v_max_i32 v9, 0, v9
    v_lshlrev_b32 v9, 8, v9
    v_bfe_u32 v10, v1, 1, 1
    v_lshlrev_b32 v10, 6, v10
    v_add3_u32 v9, v9, v10, 64
    s_lshl_b32 s57, s51, 8
    v_mov_b32 v10, s57
    v_cmp_gt_u32 vcc, 4, v1
    s_lshr_b32 s57, s50, 1
    s_lshl_b32 s57, s57, 7
    s_add_u32 s57, s57, {WS_FQ}
    v_cndmask_b32 v9, v10, v9, vcc
    v_lshlrev_b32 v9, 5, v9
    v_add_u32 v252, s57, v9""")
else:
    A(f"""v_min_u32 v9, 10, v1
    v_cmp_gt_u32 vcc, 5, v9
    v_subrev_u32 v10, 5, v9
    s_nop 0
    v_cndmask_b32 v10, v10, v9, vcc
    v_min_u32 v10, 4, v10
    s_sub_u32 s57, s51, 4
    v_add_u32 v10, s57, v10
    v_max_i32 v10, 0, v10
    v_lshlrev_b32 v10, 8, v10
    v_mov_b32 v11, 128
    v_cndmask_b32 v11, v11, 64, vcc
    v_cmp_eq_u32 vcc, 10, v9
    s_lshr_b32 s57, s50, 1
    s_lshl_b32 s57, s57, 7
    s_add_u32 s57, s57, {WS_FQ}
    v_cndmask_b32 v11, v11, 0, vcc
    v_add_u32 v10, v10, v11
    v_lshlrev_b32 v10, 5, v10
    v_add_u32 v252, s57, v10""")
A("s_barrier")
PR.stamp()
gen_cd.LONE = LONE
if SH:
    A(f"s_lshl_b32 s57, s15, 11\ns_add_u32 s57, s57, {LVS}")
else:
    A("""s_movk_i32 s57, 0x4000
    s_cmp_eq_u32 s15, 1
    s_cselect_b32 s57, 49152, s57
    s_cmp_eq_u32 s15, 2
    s_cselect_b32 s57, 59392, s57
    s_cmp_eq_u32 s15, 3
    s_cselect_b32 s57, 151552, s57""")
gen_cd.attn_setup2(A, None)
ld = "buffer_load_dword v253, v252, s[20:23], 0 offen sc1"
A("s_waitcnt vmcnt(0)")
PR.stamp()
A("s_barrier")
A(f"s_setprio {OPT['aprio']}")
A(f"s_sleep {OPT['hs']}")
A(ld)
A("s_waitcnt vmcnt(0)")
spin(A, "HQ", ld, 253)
PR.stamp()
if SH:
    A(f"""s_lshl_b32 s52, s50, 16
    s_lshl_b32 s53, s49, 11""")
    for which, base, r0 in ((0, WS_K, 188), (1, WS_V, 204)):
        for b in range(4):
            if b % 2 == 0:
                A(f"s_add_i32 s55, s53, {b*1024}\ns_max_i32 s55, s55, 0\ns_add_u32 s55, s55, s52\ns_add_u32 s55, s55, {base}")
            A(f"buffer_load_dwordx4 {vr(r0+4*b,4)}, v3, s[20:23], s55 offen offset:{(b%2)*1024} sc1")
    A(f"""s_lshl_b32 s53, s51, 11
    s_add_u32 s54, s52, s53
    buffer_load_dwordx4 v[12:15], v3, s[20:23], s54 offen sc1
    buffer_load_dwordx4 v[16:19], v3, s[20:23], s54 offen offset:1024 sc1
    s_lshl_b32 s57, s15, 12
    v_add_u32 v9, s57, v3
    v_add_u32 v10, s57, v2
    s_lshl_b32 s57, s15, 11
    v_add_u32 v11, s57, v3
    s_lshl_b32 s57, s15, 2
    s_add_u32 s57, s57, {LFL}
    v_mov_b32 v252, s57
    v_mov_b32 v253, s80
    v_mov_b32 v254, {LFL}""")
    for b in range(4):
        A(f"s_waitcnt vmcnt({9-b})\nds_write_b128 v9, {vr(188+4*b,4)} offset:{LK + b*1024}")
    for b in range(4):
        A(f"s_waitcnt vmcnt({5-b})\nds_write_b128 v10, {vr(204+4*b,4)} offset:{LVS + b*1024}")
    A("""s_waitcnt lgkmcnt(0)
    ds_write_b32 v252, v253
    s_mov_b32 s56, 0""")
    A.label("H_LW")
    A(f"""ds_read_b128 v[188:191], v254
    s_add_u32 s56, s56, 1
    s_waitcnt lgkmcnt(0)
    v_xor_b32 v188, s80, v188
    v_xor_b32 v189, s80, v189
    v_xor_b32 v190, s80, v190
    v_xor_b32 v191, s80, v191
    v_or3_b32 v188, v188, v189, v190
    v_or_b32 v188, v188, v191
    v_cmp_eq_u32 vcc, 0, v188
    s_cmp_gt_u32 s56, {SPIN*50}
    s_cbranch_scc1 H_LOK
    s_cmp_eq_u64 vcc, -1
    s_cbranch_scc1 H_LOK
    s_sleep 1
    s_branch H_LW""")
    A.label("H_LOK")
    for b in range(10):
        A(f"ds_read_b128 {vr(20+4*b,4)}, v11 offset:{LK + b*1024}")
    A("s_waitcnt vmcnt(0)")
A(f"s_setprio {OPT['aprio2']}")
if OPT.get("noattn"): A("s_branch H_AFIN")
A("s_cmp_lt_u32 s51, 4")
A("s_cbranch_scc1 H_SLOW")
n0 = PR.n
gen_cd.gen_attn(A, False, "AF", PR, "sc1", setup=False, bar=OPT["defer"] >= 4, loads=not SH, shared=SH)
A.label("H_AFIN")
PR.stamp()
A(f"""s_lshl_b32 s57, s51, 12
s_lshl_b32 s58, s50, 7
s_add_u32 s57, s57, s58
s_add_u32 s57, s57, {WS_FO}
v_mov_b32 v9, 0
v_mov_b32 v10, s80
s_waitcnt vmcnt(0)
s_mov_b64 exec, 1
buffer_store_dword v10, v9, s[20:23], s57 offen sc1
s_mov_b64 exec, -1""")
PR.stamp()
PR.dump(2)
A.label("L_END")
A("s_endpgm")
gather_slow()
A.label("H_SLOW")
PR.n = n0
gen_cd.gen_attn(A, True, "AS", PR, "sc1", setup=False, bar=OPT["defer"] >= 4, loads=not SH, shared=SH)
A("s_branch H_AFIN")
A.label("L_M")
PR.n = 0
A("s_waitcnt lgkmcnt(0)")
PR.stamp(True); PR.stamp()
ws_srd()
if OPT["codepf"]:
    A("s_getpc_b64 s[24:25]")
    A.label("L_PC")
    A(f"""s_sub_u32 s24, s24, L_PC-{NAME}
    s_subb_u32 s25, s25, 0
    s_mov_b32 s26, L_CODE_END-{NAME}
    s_mov_b32 s27, 0x20000
    s_lshr_b32 s57, s2, 3
    s_lshl_b32 s57, s57, 2
    s_add_u32 s57, s57, s14
    s_lshl_b32 s57, s57, 9
    v_lshlrev_b32 v16, 7, v1
    s_mov_b64 exec, 15
    buffer_load_dword v31, v16, s[24:27], s57 offen
    s_mov_b64 exec, -1""")
vXa = [2, 3, 4, 5]; vWa = [6, 7, 8, 9, 10]; vWb = [11, 12, 13, 14, 15]
P = 32; QQ = 60; ACC = 88
A("s_setprio 2")
A("""s_and_b32 s12, s14, 1
s_lshr_b32 s13, s14, 1
v_and_b32 v16, 31, v1
v_lshrrev_b32 v17, 5, v1
v_bfe_u32 v18, v1, 1, 3
v_xor_b32 v17, v17, v18
v_lshlrev_b32 v17, 4, v17
v_lshlrev_b32 v16, 7, v16
v_add_u32 v16, v16, v17
s_lshl_b32 s57, s12, 13
v_add_u32 v2, s57, v16
v_xor_b32 v3, 32, v2
v_xor_b32 v4, 64, v2
v_xor_b32 v5, 96, v2""")
A(f"""v_lshrrev_b32 v16, 5, v1
v_lshlrev_b32 v16, 10, v16
v_bfe_u32 v17, v1, 2, 2
v_lshlrev_b32 v17, 6, v17
v_add_u32 v16, v16, v17
v_and_b32 v17, 3, v1
v_lshlrev_b32 v17, 3, v17
v_add_u32 v16, v16, v17
v_add_u32 v16, {WR}, v16
v_bfe_u32 v17, v1, 4, 1
s_sub_u32 s57, 2, s50
s_lshl_b32 s57, s57, 12
v_mul_u32_u24 v18, s57, v17
v_xor_b32 v19, s13, v17
v_lshlrev_b32 v19, 5, v19
v_add3_u32 v18, v18, v19, v16
v_lshlrev_b32 v19, 5, v17
s_lshl_b32 s57, s13, 9
v_add3_u32 v19, v19, s57, v16
s_cmp_eq_u32 s50, 1
s_cselect_b64 vcc, -1, 0""")
for n in range(5):
    fo = (n >> 1) * 4096 + (n & 1) * 512
    qo = n * 4096
    if n < 2: A(f"v_add_u32 v{vWa[n]}, {fo}, v18")
    elif n == 4: A(f"v_add_u32 v{vWa[n]}, {qo}, v19")
    else:
        A(f"v_add_u32 v20, {fo}, v18\nv_add_u32 v21, {qo}, v19\nv_cndmask_b32 v{vWa[n]}, v20, v21, vcc")
for n in range(5): A(f"v_add_u32 v{vWb[n]}, {4*WSL}, v{vWa[n]}")
def reads(s, kk, dst):
    xs = (s >> 1) % 3; q4 = (s & 1) * 2 + kk; sl = s % 5
    def xr(tt): return f"ds_read_b128 {vr(dst+4*tt,4)}, v{vXa[q4]} offset:{XR + xs*XS + tt*4096}"
    def wr(n, sec):
        a, o = (vWa[n], sl * WSL) if sl < 4 else (vWb[n], 0)
        return f"ds_read_b64_tr_b16 {vr(dst+8+4*n+2*sec,2)}, v{a} offset:{o + kk*2048 + sec*256}"
    R = [xr(0), wr(0, 0), wr(0, 1), xr(1)]
    for n in range(1, 5): R += [wr(n, 0), wr(n, 1)]
    return R
need = {0: 2, 1: 3, 2: 5, 4: 7, 6: 9, 8: 11}
def substep(cur, R, first=False):
    issued = 0
    for j in range(10):
        n, tt = j >> 1, j & 1
        if j in need: A(f"s_waitcnt lgkmcnt({min(15, 11 - need[j] + issued)})")
        a = ACC + 16 * (2 * n + tt)
        c = "0" if first else vr(a, 16)
        A(f"v_mfma_f32_32x32x16_bf16 {vr(a,16)}, {vr(cur+8+4*n,4)}, {vr(cur+4*tt,4)}, {c}")
        k = 2 if j < 2 else 1
        for r in R[issued:issued + k]: A(r)
        issued += len(R[issued:issued + k])
A(f"""v_and_b32 v16, 31, v1
v_lshlrev_b32 v22, 5, v16
s_lshl_b32 s57, s12, 11
s_add_u32 s57, s57, {EX_TOK}
v_add_u32 v22, s57, v22
v_and_b32 v16, 15, v1
s_sub_u32 s57, 2, s50
s_lshl_b32 s57, s57, 6
v_mul_u32_u24 v18, s57, v17
v_xor_b32 v19, s13, v17
v_lshlrev_b32 v19, 4, v19
v_add3_u32 v18, v18, v19, v16
v_lshlrev_b32 v18, 2, v18
v_and_b32 v19, 31, v1
s_lshl_b32 s57, s13, 5
v_add_u32 v19, s57, v19
v_lshlrev_b32 v19, 2, v19""")
for n in range(5):
    fo = EX_COL + ((n >> 1) * 64 + (n & 1) * 32) * 4
    qo = EX_COL + n * 256
    if n < 2: A(f"v_add_u32 v{23+n}, {fo}, v18")
    elif n == 4: A(f"v_add_u32 v{23+n}, {qo}, v19")
    else:
        A(f"v_add_u32 v20, {fo}, v18\nv_add_u32 v21, {qo}, v19\nv_cndmask_b32 v{23+n}, v20, v21, vcc")
A(f"""s_lshl_b32 s57, s47, 2
s_lshl_b32 s58, s12, 1
s_add_u32 s57, s57, s58
s_mul_i32 s70, s57, {112*1024}
s_lshl_b32 s59, s53, 12
s_add_u32 s70, s70, s59
s_lshl_b32 s59, s13, 10
s_add_u32 s70, s70, s59
s_add_u32 s70, s70, {WS_H}
s_lshl_b32 s59, s54, 2
s_lshl_b32 s60, s13, 1
s_add_u32 s59, s59, s60
s_lshl_b32 s71, s59, 6
s_add_u32 s71, s71, s57
s_lshl_b32 s71, s71, 10
s_lshl_b32 s57, s57, 7
s_lshl_b32 s72, s59, 1
s_add_u32 s72, s72, s57
s_lshl_b32 s72, s72, 5
s_add_u32 s72, s72, {WS_FQ}
s_lshl_b32 s73, s48, 3
s_lshl_b32 s60, s13, 2
s_add_u32 s73, s73, s60
s_add_u32 s73, s73, s57
s_lshl_b32 s73, s73, 5
s_add_u32 s73, s73, {WS_FH}
s_add_u32 s74, s73, 4096
s_load_dwordx2 s[24:25], s[0:1], 48
s_load_dwordx2 s[28:29], s[0:1], 16
s_load_dwordx2 s[36:37], s[0:1], 56
s_waitcnt lgkmcnt(0)""")
if OPT["tlb"]:
    A("""v_lshlrev_b32 v16, 21, v1
    v_mov_b32 v17, 0
    s_mov_b64 exec, 0x1ff
    buffer_load_dword v30, v16, s[20:23], 0 offen sc1
    s_mov_b64 exec, 1
    global_load_dword v30, v17, s[36:37] sc1
    global_load_dword v30, v17, s[24:25]
    global_load_dword v30, v17, s[28:29]
    s_mov_b64 exec, -1""")
A("s_waitcnt vmcnt(0)")
A("s_barrier")
PR.stamp()
for r in reads(0, 0, P): A(r)
A.raw(".p2align 3")
for s in range(16):
    substep(P, reads(s, 1, QQ), first=(s == 0))
    A("s_barrier")
    if s < 15: substep(QQ, reads(s + 1, 0, P))
    else:
        R = [f"ds_read_b128 {vr(P,4)}, v22", f"ds_read_b128 {vr(P+4,4)}, v22 offset:1024",
             f"ds_read_b128 v[16:19], v22 offset:16", f"ds_read_b128 v[28:31], v22 offset:1040"]
        R += [f"ds_read_b32 v{P+8+4*n}, v{23+n}" for n in range(5)]
        substep(QQ, R)
    if s in (11,): PR.stamp()
A("s_waitcnt lgkmcnt(0)")
A("s_barrier")
PR.stamp()
A(f"""v_mov_b32 v248, v{P+2}
v_mov_b32 v249, v{P+3}
v_mov_b32 v250, v16
v_mov_b32 v251, v17
v_mov_b32 v252, v{P+6}
v_mov_b32 v253, v{P+7}
v_mov_b32 v254, v28
v_mov_b32 v255, v29
v_cmp_gt_u32 vcc, 32, v1
v_readfirstlane_b32 s80, v18
v_mov_b32 v{P+2}, 0
v_mov_b32 v{P+3}, 0
v_mov_b32 v{P+6}, 0
v_mov_b32 v{P+7}, 0
v_cndmask_b32 v{P}, 0, v{P}, vcc
v_cndmask_b32 v{P+1}, 0, v{P+1}, vcc
v_cndmask_b32 v{P+4}, 0, v{P+4}, vcc
v_cndmask_b32 v{P+5}, 0, v{P+5}, vcc""")
for n in (4, 3, 2, 1, 0):
    w = P + 8 + 4 * n
    A(f"v_mov_b32 v{w+1}, v{w}\nv_mov_b32 v{w+2}, 0\nv_mov_b32 v{w+3}, 0")
for n in (4, 3, 2, 1, 0):
    for tt in range(2):
        a = ACC + 16 * (2 * n + tt)
        A(f"v_mfma_f32_32x32x16_bf16 {vr(a,16)}, {vr(P+8+4*n,4)}, {vr(P+4*tt,4)}, {vr(a,16)}")
A(f"""v_lshlrev_b32 v2, 4, v1
v_and_b32 v3, 31, v1
v_lshlrev_b32 v3, 5, v3
v_lshrrev_b32 v4, 5, v1
v_lshlrev_b32 v4, 4, v4
v_add_u32 v3, v3, v4
v_lshlrev_b32 v8, 8, v1
v_mov_b32 v9, s80""")
T = QQ
for tt in range(2):
    for k in range(3):
        A(f"v_mov_b32 v{68+6*tt+2*k}, v{248+4*tt+1+k}\nv_mov_b32 v{69+6*tt+2*k}, v{248+4*tt+1+k}")
def ffn(n, tt):
    a = ACC + 16 * (2 * n + tt); c = 68 + 6 * tt
    for r in range(0, 8, 2): A(f"v_pk_mul_f32 {vr(T+r,2)}, {vr(a+r,2)}, {vr(a+r,2)}")
    for r in range(0, 8, 2): A(f"v_pk_fma_f32 {vr(T+r,2)}, {vr(T+r,2)}, {vr(c+2,2)}, {vr(c,2)}")
    for r in range(0, 8, 2): A(f"v_pk_mul_f32 {vr(T+r,2)}, {vr(T+r,2)}, {vr(a+r,2)}")
    for r in range(8): A(f"v_exp_f32 v{T+r}, v{T+r}")
    for r in range(0, 8, 2): A(f"v_pk_mul_f32 {vr(a+r,2)}, {vr(a+r,2)}, {vr(a+8+r,2)}")
    for r in range(0, 8, 2): A(f"v_pk_fma_f32 {vr(T+r,2)}, {vr(T+r,2)}, {vr(c+4,2)}, {vr(c+4,2)}")
    for r in range(8): A(f"v_rcp_f32 v{T+r}, v{T+r}")
    A("s_nop 0")
    for r in range(0, 8, 2): A(f"v_pk_mul_f32 {vr(a+r,2)}, {vr(a+r,2)}, {vr(T+r,2)}")
    for d in range(4): A(f"v_cvt_pk_bf16_f32 v{a+8+d}, v{a+2*d}, v{a+2*d+1}")
def ffn_st(n, tt):
    a = ACC + 16 * (2 * n + tt)
    A(f"s_add_u32 s63, s70, {2048*n + tt*112*1024}")
    A(f"buffer_store_dwordx4 {vr(a+8,4)}, v2, s[20:23], s63 offen sc1")
def qkv(n, zoff):
    A(f"""s_add_u32 s60, s54, {zoff}
    s_cmp_lt_u32 s60, 8
    s_mov_b32 s62, {f32(0.25*LOG2E)}
    s_cselect_b32 s62, s62, 1.0
    v_mul_f32 v4, s62, v248
    v_mul_f32 v6, s62, v252
    v_mul_f32 v5, s62, v248
    v_mul_f32 v7, s62, v252""")
    for tt in range(2):
        a = ACC + 16 * (2 * n + tt)
        for r in range(0, 16, 2): A(f"v_pk_mul_f32 {vr(a+r,2)}, {vr(a+r,2)}, {vr(4+2*tt,2)}")
        for d in range(8): A(f"v_cvt_pk_bf16_f32 v{a+d}, v{a+2*d}, v{a+2*d+1}")
        A(f"s_add_u32 s63, s71, {zoff*4*65536 + tt*1024}")
        A(f"buffer_store_dwordx4 {vr(a,4)}, v2, s[20:23], s63 offen sc1")
        A(f"s_add_u32 s63, s63, 65536")
        A(f"buffer_store_dwordx4 {vr(a+4,4)}, v2, s[20:23], s63 offen sc1")
def flag(vm, mask, soff, imm=0, voff=8):
    A(f"s_waitcnt vmcnt({vm})\ns_mov_b64 exec, {mask}\nbuffer_store_dword v9, v{voff}, s[20:23], s{soff} offen offset:{imm} sc1\ns_mov_b64 exec, -1")
A("s_cmp_eq_u32 s50, 1")
A("s_cbranch_scc1 M_TC")
def ffs(n, tt): ffn(n, tt); ffn_st(n, tt)
DF = OPT["defer"]
qkv(4, 0)
if DF:
    ffn(3, 0); ffn(3, 1)
    A("s_barrier")
    ffn(2, 0); ffn(2, 1)
    if DF == 5: flag(0, 1, 72)
    if DF >= 2: ffn(1, 0); ffn(1, 1)
    if DF != 5: flag(0, 1, 72)
    nq = PR.n; PR.stamp()
    if DF >= 3: ffn(0, 0); ffn(0, 1)
    if DF >= 4: A("s_barrier")
    for n in (3, 2):
        for tt in range(2): ffn_st(n, tt)
    if DF == 1: ffs(1, 0); ffs(1, 1); ffs(0, 0); ffs(0, 1)
    elif DF == 2: ffn_st(1, 0); ffn_st(1, 1); ffs(0, 0); ffs(0, 1)
    else: ffn_st(1, 0); ffn_st(1, 1); ffn_st(0, 0); ffn_st(0, 1)
    flag(4, 1, 73)
else:
    ffs(3, 0); ffs(3, 1)
    A("s_barrier")
    ffs(2, 0); ffs(2, 1)
    flag(4, 1, 72)
    ffs(1, 0); ffs(1, 1); ffs(0, 0); ffs(0, 1)
    flag(4, 1, 73)
A("s_branch M_TJ")
A.label("M_TC")
qkv(4, 2); qkv(3, 1); qkv(2, 0)
A("s_barrier")
if DF:
    order = [(1, 0), (1, 1), (0, 0), (0, 1)]
    for t in order[:OPT["cq"]]: ffn(*t)
    flag(0, 7, 72)
    PR.n = nq; PR.stamp()
    for t in order[OPT["cq"]:]: ffn(*t)
    if DF >= 4: A("s_barrier")
    ffn_st(1, 0); ffn_st(1, 1); ffn_st(0, 0); ffn_st(0, 1)
else:
    ffs(1, 0); ffs(1, 1); ffs(0, 0); ffs(0, 1)
    flag(4, 7, 72)
A.label("M_TJ")
PR.stamp()
A("s_mov_b32 s15, s14")
d_setup_w()
XRr, BF, WF, AD, AS = 8, 16, 80, 96, 160
BD, NS = 8, 36
flag(0, 1, 74)
PR.stamp()
DQ = VQ(A)
A(f"""s_and_b32 s57, s2, 6
s_lshl_b32 s50, s57, 1
s_and_b32 s57, s2, 1
s_lshl_b32 s57, s57, 4
s_add_u32 s50, s50, s57
s_lshr_b32 s57, s2, 3
s_and_b32 s57, s57, 3
s_add_u32 s50, s50, s57
s_lshr_b32 s51, s2, 5
v_lshlrev_b32 v3, 4, v1
s_lshl_b32 s55, s50, 13
s_lshl_b32 s57, s15, 10
s_add_u32 s55, s55, s57
s_add_u32 s55, s55, {WS_FH}
s_add_u32 s75, s55, 4096
v_min_u32 v226, 5, v1
v_lshlrev_b32 v226, 7, v226
v_min_u32 v227, 7, v1
v_lshlrev_b32 v227, 7, v227""")
ld0 = "buffer_load_dword v228, v226, s[20:23], s55 offen sc1"
ld1 = "buffer_load_dword v228, v227, s[20:23], s75 offen sc1"
RP = OPT["rpf"]
for k in range(RP):
    st = WD + k
    A(f"s_lshl_b32 s44, s{UFB[st>>2]}, 14\ns_add_u32 s44, s44, s40")
    if st & 3: A(f"s_add_u32 s44, s44, {(st&3)*16384}")
    A(f"s_add_u32 s45, s44, 8192")
    A(f"buffer_load_dwordx4 {vr(160+8*k,4)}, v2, s[24:27], s44 offen")
    A(f"buffer_load_dwordx4 {vr(164+8*k,4)}, v2, s[24:27], s45 offen")
if OPT["ms"]: A(f"s_sleep {OPT['ms']}")
A(ld0)
A(f"""s_lshl_b32 s57, s50, 1
s_and_b32 s58, s15, 1
s_add_u32 s59, s57, s58
s_xor_b32 s58, s58, 1
s_add_u32 s57, s57, s58
s_mul_i32 s64, s59, {112*1024}
s_add_u32 s64, s64, {WS_H}
s_mul_i32 s65, s57, {112*1024}
s_add_u32 s65, s65, {WS_H}
s_lshl_b32 s58, s15, 13
s_add_u32 s58, s58, {WS_O}
s_lshl_b32 s67, s59, 15
s_add_u32 s67, s67, s58
s_lshl_b32 s53, s57, 15
s_add_u32 s53, s53, s58
v_and_b32 v6, 31, v1
v_lshlrev_b32 v6, 10, v6
v_lshrrev_b32 v7, 5, v1
v_lshlrev_b32 v7, 4, v7
v_add_u32 v224, v6, v7
s_lshl_b32 s54, s59, 15
s_lshl_b32 s57, s51, 7
s_add_u32 s54, s54, s57
s_lshr_b32 s57, s15, 1
s_lshl_b32 s57, s57, 6
s_add_u32 s54, s54, s57
v_lshrrev_b32 v6, 5, v1
v_lshlrev_b32 v6, 8, v6
v_bfe_u32 v7, v1, 2, 2
v_lshlrev_b32 v7, 6, v7
v_add_u32 v6, v6, v7
v_and_b32 v7, 3, v1
v_lshlrev_b32 v7, 3, v7
v_add_u32 v6, v6, v7
v_bfe_u32 v7, v1, 4, 1
v_lshlrev_b32 v7, 5, v7
v_add_u32 v6, v6, v7
s_lshl_b32 s57, s57, 3
v_add_u32 v6, s57, v6
v_xor_b32 v7, 512, v6
v_add_u32 v4, s43, v6
v_add_u32 v5, s43, v7
v_add_u32 v232, 0x10000, v4
v_add_u32 v233, 0x10000, v5
v_add_u32 v234, 0x20000, v4
v_add_u32 v235, 0x20000, v5
s_mov_b32 s32, s4
s_mov_b32 s33, s5
s_mov_b32 s34, 0x200000
s_mov_b32 s35, 0x20000
s_mov_b32 s38, 0x200000
s_mov_b32 s39, 0x20000
s_setprio {OPT['dprio']}
s_waitcnt vmcnt(0)""")
PR.stamp()
spin(A, "MH0", ld0, 228)
PR.stamp()
def htouch(lvl):
    if not OPT["htouch"]: return
    A(f"""v_bfe_u32 v229, v1, 2, 2
    v_lshlrev_b32 v230, 13, v229
    s_mul_i32 s57, s15, {24*1024}
    s_add_u32 s57, s57, {4096 if lvl == 0 else 0}
    v_add_u32 v230, s57, v230
    s_lshl_b32 s58, s15, 12
    s_add_u32 s58, s58, {96*1024}
    v_mov_b32 v231, {'s58' if lvl else 's57'}
    v_cmp_eq_u32 vcc, 3, v229
    v_and_b32 v229, 3, v1
    v_lshlrev_b32 v229, 10, v229
    v_cndmask_b32 v230, v230, v231, vcc
    v_add_u32 v230, v230, v229
    v_bfe_u32 v229, v1, 4, 1
    v_mul_u32_u24 v229, {112*1024}, v229
    v_add_u32 v230, v230, v229
    s_min_u32 s57, s64, s65
    s_lshl_b32 s58, s51, 7
    s_add_u32 s57, s57, s58
    s_mov_b32 exec_hi, 0
    buffer_load_dword v248, v230, s[20:23], s57 offen sc1
    s_mov_b64 exec, -1""")
    DQ.add("HT", 1)
htouch(0)
def issb(s):
    r = BF + 8 * (s % BD)
    if s < 28:
        o = [f"s_lshl_b32 s48, s{UFB[s>>2]}, 10", "s_add_u32 s49, s48, s65", "s_add_u32 s48, s48, s64"] if (s & 3) == 0 else []
    else:
        o = [f"s_add_u32 s48, s67, {(s-28)*1024}", f"s_add_u32 s49, s53, {(s-28)*1024}"] if (s & 3) == 0 else []
    DQ.add(f"B{s}", 2)
    return [o + [f"buffer_load_dwordx4 {vr(r,4)}, v3, s[20:23], s48 offen offset:{(s&3)*1024} sc1"],
            [f"buffer_load_dwordx4 {vr(r+4,4)}, v3, s[20:23], s49 offen offset:{(s&3)*1024} sc1"]]
for s in range(BD - 1): emit(issb(s))
def wtouch2():
    A(f"""v_lshrrev_b32 v229, 4, v1
    v_mov_b32 v230, s{UFB[3]}
    v_mov_b32 v231, s{UFB[4]}
    v_cmp_eq_u32 vcc, 1, v229
    s_lshr_b32 s57, s2, 3
    s_and_b32 s57, s57, 3
    v_cndmask_b32 v230, v230, v231, vcc
    v_mov_b32 v231, s{UFB[5]}
    v_cmp_eq_u32 vcc, 2, v229
    s_lshl_b32 s57, s57, 10
    s_add_u32 s58, s57, s40
    v_cndmask_b32 v230, v230, v231, vcc
    v_mov_b32 v231, s{UFB[6]}
    v_cmp_eq_u32 vcc, 3, v229
    v_and_b32 v229, 15, v1
    v_lshlrev_b32 v229, 12, v229
    v_cndmask_b32 v230, v230, v231, vcc
    v_lshlrev_b32 v230, 14, v230
    v_add_u32 v230, v230, v229
    buffer_load_dword v246, v230, s[24:27], s58 offen
    v_lshlrev_b32 v229, 12, v1
    s_add_u32 s58, s57, s42
    s_mov_b32 exec_hi, 0
    buffer_load_dword v247, v229, s[28:31], s58 offen
    s_mov_b64 exec, -1""")
    DQ.add("WT", 2)
if OPT["wt2"] == 1: wtouch2()
A(f"buffer_load_dwordx4 {vr(XRr,4)}, v224, s[32:35], s54 offen")
A(f"buffer_load_dwordx4 {vr(XRr+4,4)}, v224, s[32:35], s54 offen offset:32")
DQ.add("X", 2)
def rdw(s):
    slot = s % WD; w = WF + 8 * (s & 1)
    hi, lo = DREG[slot] >> 16, DREG[slot] & 0xffff
    vb = [4, 232, 234][hi]
    return [f"ds_read_b64_tr_b16 {vr(w+4*u+2*sec,2)}, v{vb+u} offset:{lo+sec*1024}" for u in range(2) for sec in range(2)]
for i in rdw(0): A(i)
DQ.wait("B0")
L1S = OPT["l1s"]
def tB(sp): return max(sp - (BD - 1), L1S) if sp >= 12 else sp - (BD - 1)
def xaddr(base3, which, a, qd):
    k = (a - 1) * 4 + qd
    reg = DREG[(8 if which == 0 else 0) + (k >> 1)] + (k & 1) * 1024
    return base3[reg >> 16], reg & 0xffff
def dump(which, acc):
    for a in range(1, 4):
        for qd in range(4):
            vb, off = xaddr([236, 6, 7], which, a, qd)
            A(f"ds_write_b128 v{vb}, {vr(acc+16*a+4*qd,4)} offset:{off}")
def fetch(which, acc):
    for a in range(1, 4):
        b = 237 + 3 * (a - 1)
        for qd in range(4):
            vb, off = xaddr([b, b + 1, b + 2], which, a, qd)
            A(f"ds_read_b128 {vr(acc+16*a+4*qd,4)}, v{vb} offset:{off}")
def sum4(acc):
    for r in range(0, 16, 2):
        A(f"v_pk_add_f32 {vr(acc+r,2)}, {vr(acc+r,2)}, {vr(acc+16+r,2)}\nv_pk_add_f32 {vr(acc+32+r,2)}, {vr(acc+32+r,2)}, {vr(acc+48+r,2)}")
    for r in range(0, 16, 2): A(f"v_pk_add_f32 {vr(acc+r,2)}, {vr(acc+r,2)}, {vr(acc+32+r,2)}")
for s in range(NS):
    w = WF + 8 * (s & 1); b = BF + 8 * (s % BD)
    acc = AD if s < 28 else AS
    if s == 12: PR.stamp()
    if s == 28:
        PR.stamp()
        A("s_nop 7\ns_nop 1")
        dump(0, AD)
        DQ.wait("PO")
        A("""v_cmp_eq_u32 vcc, s80, v228
        s_mov_b32 s46, 0
        s_cmp_eq_u64 vcc, -1
        s_cbranch_scc1 M_OOK
        s_mov_b32 s46, 1""")
        A(ld2)
        A("s_call_b64 s[66:67], M_GATE" if False else "s_call_b64 s[70:71], M_GATE")
        A("s_waitcnt vmcnt(0)")
        spin(A, "MO", ld2, 228)
        A.label("M_OOK")
        PR.stamp()
        for sp in range(28, 36): emit(issb(sp))
        A("s_cmp_eq_u32 s46, 1\ns_cbranch_scc1 M_GDONE\ns_call_b64 s[70:71], M_GATE")
        A.label("M_GDONE")
        DQ.wait("B28")
    if s + 1 < NS:
        DQ.wait([f"W{s+1}", f"B{s+1}"])
        for i in rdw(s + 1): A(i)
        A("s_waitcnt lgkmcnt(4)")
    else:
        A("s_waitcnt lgkmcnt(0)")
    if s == L1S - 3:
        A(ld1); DQ.add("P1", 1)
    if s == L1S:
        DQ.wait("P1")
        spin(A, "MH1", ld1, 228)
        htouch(1)
    if s == 0:
        A("v_add_u32 v236, s43, v3\nv_add_u32 v6, 0x10000, v236\nv_add_u32 v7, 0x20000, v236")
    if s == 20:
        for a in range(1, 4):
            bb = 237 + 3 * (a - 1)
            A(f"s_xor_b32 s57, s15, {a}\ns_lshl_b32 s57, s57, 11\nv_add_u32 v{bb}, s57, v3\nv_add_u32 v{bb+1}, 0x10000, v{bb}\nv_add_u32 v{bb+2}, 0x20000, v{bb}")
    if s == 25:
        A(f"""s_lshl_b32 s55, s50, 12
        s_lshl_b32 s57, s15, 10
        s_add_u32 s55, s55, s57
        s_add_u32 s55, s55, {WS_FO}""")
        ld2 = "buffer_load_dword v228, v227, s[20:23], s55 offen sc1"
        A(ld2); DQ.add("PO", 1)
    grp = []
    for sp in range(BD - 1, 28):
        if tB(sp) == s: grp += issb(sp)
    if 1 <= s <= RP:
        reg = DREG[s - 1]; vb = [236, 6, 7][reg >> 16]
        grp += [[f"ds_write_b128 v{vb}, {vr(160+8*(s-1),4)} offset:{reg & 0xffff}"], [f"ds_write_b128 v{vb}, {vr(164+8*(s-1),4)} offset:{(reg & 0xffff)+1024}"]]
    elif s >= 1 and s + WD - 1 < NS: grp += issw(s + WD - 1, DQ)
    per = [grp[(len(grp) * a) // 4:(len(grp) * (a + 1)) // 4] for a in range(4)]
    for a in range(4):
        u, tt = a >> 1, a & 1
        r = acc + 16 * a
        c = "0" if s in (0, 28) else vr(r, 16)
        A(f"v_mfma_f32_32x32x16_bf16 {vr(r,16)}, {vr(w+4*u,4)}, {vr(b+4*tt,4)}, {c}")
        for g in per[a]:
            for i in g: A(i)
PR.stamp()
A("s_nop 7\ns_nop 1")
dump(1, AS)
A("s_waitcnt lgkmcnt(0)")
A("s_barrier")
fetch(1, AS)
A("s_waitcnt lgkmcnt(0)")
sum4(AS)
for r in range(0, 16, 2): A(f"v_pk_fma_f32 {vr(AD+r,2)}, {vr(AD+r,2)}, {vr(AS+r,2)}, {vr(AD+32+r,2)}")
for d in range(8): A(f"v_cvt_pk_bf16_f32 v{XRr+d}, v{AD+2*d}, v{AD+2*d+1}")
A("s_nop 1")
for j in range(2):
    A(f"v_permlane32_swap_b32 v{XRr+4*j}, v{XRr+4*j+2}\nv_permlane32_swap_b32 v{XRr+4*j+1}, v{XRr+4*j+3}")
osc = "sc1" if OPT["osc"] else ""
A(f"buffer_store_dwordx4 {vr(XRr,4)}, v224, s[36:39], s54 offen {osc}")
A(f"buffer_store_dwordx4 {vr(XRr+4,4)}, v224, s[36:39], s54 offen offset:32 {osc}")
PR.stamp()
PR.dump(2)
A("s_endpgm")
def gate():
    A("s_waitcnt lgkmcnt(0)")
    A("s_barrier")
    fetch(0, AD)
    for j in range(2):
        A(f"v_permlane32_swap_b32 v{XRr+4*j}, v{XRr+4*j+2}\nv_permlane32_swap_b32 v{XRr+4*j+1}, v{XRr+4*j+3}")
    A("s_waitcnt lgkmcnt(0)")
    sum4(AD)
    T = AD + 16
    for r in range(16): A(f"v_mul_f32 v{T+r}, {f32(-LOG2E)}, v{AD+r}")
    for r in range(16): A(f"v_exp_f32 v{T+r}, v{T+r}")
    for d in range(8): A(f"v_lshlrev_b32 v{T+16+2*d}, 16, v{XRr+d}\nv_and_b32 v{T+17+2*d}, 0xffff0000, v{XRr+d}")
    for r in range(16): A(f"v_add_f32 v{T+r}, 1.0, v{T+r}")
    for r in range(16): A(f"v_rcp_f32 v{T+r}, v{T+r}")
    A("s_nop 0")
    for r in range(0, 16, 2): A(f"v_pk_mul_f32 {vr(AD+r,2)}, {vr(AD+r,2)}, {vr(T+r,2)}")
A.label("M_GATE")
gate()
A("s_setpc_b64 s[70:71]")
A.label("L_CODE_END")
A.raw('.section .rodata,"a"')
A.raw(kernel_desc(NAME, 256))
txt = A.text()
if OPT.get("plainst"):
    import re
    txt = re.sub(r"(buffer_store_dwordx4 .*s63 offen) sc1", r"\1", txt)
if OPT.get("align", 1):
    import align
    txt = align.align(txt)
print(txt)
```

```python
import sys, math
from asmlib import *

NAME = "recurrent_scan__sliding_block__geglu_ffn__prompt_kernel"
WS_Q = 0; WS_K = 2 << 20; WS_V = 4 << 20; WS_O = 6 << 20; WS_H = 8 << 20
WS_TOK = 16 << 20
WS_CS = (16 << 20) + 65536
WS_FO = 17 << 20
WS_FH = (17 << 20) + (1 << 18)
WS_FQ = (17 << 20) + (2 << 18)
LOG2E = 1.4426950408889634
OPT = dict(prof=0, rot=2, codepf=1, wd=14, sleep=8, warm=7, thr=6, aprio=3, l2pf=0, rotd=1, hs=56, dprio=0, wtouch=0, htouch=1, wts=10, defer=1, gat=10, gc=13, hprio=0, l1s=10, osc=0, cq=2, ms=16, ntx=0, ntw=0, share=1, l2end=11, aprio2=3, rpf=0, pub=6, gd=1, vw=4, epf=16, tlb=0, wt2=0, amap=0)
for a in sys.argv[1:]:
    k, v = a.split("="); OPT[k] = int(v)
XR = 0; XS = 16384; WR = 49152; WSL = 20480; EX = 151552
EX_TOK = EX; EX_COL = EX + 4096
DREG = [32768, 40960, 69632, 77824,   86016, 94208, 102400,   110592, 118784, 0, 8192,   126976, 135168, 143360]
DAVAIL = {13: 4, 14: 3, 15: 4, 16: 3}
LONE = 26624
SPIN = 20000

class Prof:
    def __init__(self, A, base=82): self.A = A; self.n = 0; self.base = base
    def stamp(self, real=False):
        if not OPT["prof"]: return
        i = self.n; self.n += 1
        assert i < 16
        self.A(f"{'s_memrealtime' if (real or OPT['prof'] == 2) else 's_memtime'} s[100:101]")
        self.A("s_waitcnt lgkmcnt(0)")
        self.A(f"s_mov_b32 s{self.base+i}, s100")
    def dump(self, vt):
        if not OPT["prof"]: return
        A = self.A
        while self.n < 15: self.stamp()
        self.stamp(True)
        A(f"s_lshl_b32 s68, s2, 3\ns_add_u32 s68, s68, s14\ns_lshl_b32 s68, s68, 6\ns_add_u32 s68, s68, {32<<20}")
        A(f"v_mov_b32 v{vt}, 0")
        for i in range(self.n):
            A(f"v_mov_b32 v{vt+1}, s{self.base+i}")
            A(f"buffer_store_dword v{vt+1}, v{vt}, s[20:23], s68 offen offset:{4*i}")

class VQ:
    def __init__(self, A): self.A = A; self.q = []
    def add(self, tag, n): self.q.append((tag, n))
    def wait(self, tags):
        if isinstance(tags, str): tags = [tags]
        idx = max([i for i, (t, _) in enumerate(self.q) if t in tags], default=-1)
        if idx < 0: return
        rest = sum(c for _, c in self.q[idx + 1:])
        assert rest < 64
        self.A(f"s_waitcnt vmcnt({rest})")
        del self.q[:idx + 1]
    def has(self, tag): return tag in [t for t, _ in self.q]
    def clear(self): self.q = []

def spin(A, name, load, vval, maskexpr=None, cnt=56):
    A(f"""v_cmp_eq_u32 vcc, s80, v{vval}
    s_mov_b32 s{cnt}, 0
    s_cmp_eq_u64 vcc, -1
    s_cbranch_scc1 {name}_OK""")
    A.label(f"{name}_P")
    A(f"""s_sleep {OPT['sleep']}
    {load}
    s_add_u32 s{cnt}, s{cnt}, 1
    s_waitcnt vmcnt(0)
    v_cmp_eq_u32 vcc, s80, v{vval}
    s_cmp_gt_u32 s{cnt}, {SPIN}
    s_cbranch_scc1 {name}_OK
    s_cmp_eq_u64 vcc, -1
    s_cbranch_scc0 {name}_P""")
    A.label(f"{name}_OK")

A = Asm()
A.raw(f"""; recurrent_scan__sliding_block__geglu_ffn__prompt -- hand-designed gfx950 kernel, emitted by my own python generator.
; @launch grid=(256,1,1) block=(512,1,1) lds=163840
.amdgcn_target "amdgcn-amd-amdhsa--gfx950"
.text""")
kernel_header(A, NAME)
PR = Prof(A)
A("""s_load_dwordx4 s[4:7], s[0:1], 0
s_load_dwordx4 s[8:11], s[0:1], 32
s_load_dwordx4 s[16:19], s[0:1], 64""")
if OPT["epf"]:
    A("s_getpc_b64 s[24:25]")
    A.label("L_PC0")
    nl = OPT["epf"]
    A(f"""v_and_b32 v16, {nl-1}, v0
    v_bfe_u32 v17, v0, 6, 2
    v_mul_u32_u24 v17, {nl}, v17
    v_add_lshl_u32 v16, v16, v17, 7
    v_add_u32 v17, L_M-L_PC0, v16
    v_cmp_gt_u32 vcc, 256, v0
    s_mov_b64 exec, {(1<<nl)-1}
    s_nop 0
    v_cndmask_b32 v16, v16, v17, vcc
    global_load_dword v29, v16, s[24:25]
    s_mov_b64 exec, -1""")
A("""s_cmp_ge_u32 s2, 256
s_cbranch_scc1 L_END""")
if OPT.get("scramble"):
    A("s_lshr_b32 s57, s2, 3\ns_lshl_b32 s58, s2, 5\ns_or_b32 s2, s57, s58\ns_and_b32 s2, s2, 255")
A("""v_and_b32 v1, 63, v0
v_lshrrev_b32 v16, 6, v0
s_and_b32 s57, s2, 7
v_readfirstlane_b32 s14, v16
s_lshr_b32 s58, s2, 3
s_and_b32 s44, s57, 1
s_and_b32 s45, s58, 7
s_lshl_b32 s47, s44, 3
s_add_u32 s47, s47, s45
s_lshr_b32 s46, s57, 1
s_lshr_b32 s49, s58, 3
s_lshl_b32 s48, s46, 2
s_add_u32 s48, s48, s49
s_mul_i32 s51, s46, 3
s_add_u32 s52, s51, s49
s_lshl_b32 s53, s52, 1
s_add_u32 s57, s46, 24
s_add_u32 s54, s51, 12
s_cmp_eq_u32 s49, 3
s_cselect_b32 s50, 1, 0
s_cselect_b32 s53, s57, s53
s_cselect_b32 s54, s54, s52
s_and_b32 s15, s14, 3
s_cmp_lt_u32 s14, 4
s_cbranch_scc1 L_M""")
def ws_srd():
    A("""s_mov_b32 s20, s18
    s_mov_b32 s21, s19
    s_mov_b32 s22, 0x10000000
    s_mov_b32 s23, 0x20000
    s_mov_b32 s18, 256
    s_mov_b32 s19, 0x20000""")
vDW = [2, 3, 4, 5, 6]; vDX = [7, 8]
ROT = OPT["rot"]
A("""s_lshl_b32 s58, s15, 15
v_lshrrev_b32 v16, 3, v1
v_lshlrev_b32 v16, 10, v16
v_add_u32 v16, s58, v16
v_lshrrev_b32 v17, 4, v1
v_xor_b32 v17, v17, v1
v_and_b32 v17, 7, v17
v_lshlrev_b32 v17, 4, v17
v_add_u32 v7, v16, v17
v_xor_b32 v8, 64, v7
s_lshl_b32 s12, s15, 12
s_lshl_b32 s13, s15, 10
s_lshl_b32 s57, s47, 17""")
if ROT == 1: A("s_lshl_b32 s81, s49, 2\ns_lshl_b32 s58, s45, 1\ns_add_u32 s81, s81, s58")
elif ROT == 2: A("s_add_u32 s81, s49, s45\ns_lshl_b32 s81, s81, 2")
elif ROT == 3: A("s_add_u32 s81, s49, s45\ns_lshl_b32 s81, s81, 3")
elif ROT == 0: A("s_mov_b32 s81, 0")
A("""s_waitcnt lgkmcnt(0)
s_add_u32 s72, s4, s57
s_addc_u32 s73, s5, 0
s_mov_b32 s74, 0x20000
s_mov_b32 s75, 0x20000""")
PR.stamp(True); PR.stamp()
def dma_x(u):
    o = []
    for jj in range(4):
        pre = [f"s_add_u32 s56, s81, {2*u}", "s_and_b32 s56, s56, 15", "s_lshl_b32 s56, s56, 6"] if jj == 0 else []
        o.append(pre + [f"s_add_u32 m0, s12, {XR + (u%3)*XS + jj*1024}", f"s_add_u32 s59, s56, {jj*8192}",
                        f"buffer_load_dwordx4 v{vDX[jj&1]}, s[72:75], s59 offen {'nt ' if 2*u < OPT['ntx'] else ''}lds"])
    return o
def emit(groups):
    for g in groups:
        for i in g: A(i)
    return len(groups)
A(f"s_setprio {OPT['hprio']}")
Q = VQ(A)
n0 = emit(dma_x(0))
A("s_lshl_b32 s55, s53, 7\ns_lshl_b32 s56, s54, 7")
tabA = [(8, 55, 0), (8, 55, 128), (10, 55, 0), (10, 55, 128), (6, 56, 0)]
tabC = [(8, 55, 0), (10, 55, 0), (6, 56, 0), (6, 56, 128), (6, 56, 256)]
A("""v_bfe_u32 v16, v1, 2, 3
s_lshl_b32 s57, s15, 3
v_add_u32 v16, s57, v16
v_lshrrev_b32 v17, 5, v1
v_lshlrev_b32 v17, 6, v17
v_and_b32 v18, 3, v1
v_lshlrev_b32 v18, 4, v18
v_add_u32 v17, v17, v18
s_lshl_b32 s66, s50, 5
s_xor_b32 s67, s66, 32""")
swap = {0: None, 1: 66, 2: 67, 3: 67, 4: None}
for D in range(5):
    S = 24 + 4 * D
    (pa, ca, oa), (pc, cc_, oc) = tabA[D], tabC[D]
    A("s_cmp_eq_u32 s50, 1")
    if pa != pc:
        A(f"s_cselect_b32 s{S}, s{pc}, s{pa}\ns_cselect_b32 s{S+1}, s{pc+1}, s{pa+1}")
        src = S
    else: src = pa
    if ca != cc_: A(f"s_cselect_b32 s57, s{cc_}, s{ca}"); cs = 57
    else: cs = ca
    if oa != oc: A(f"s_cselect_b32 s58, {oc}, {oa}")
    sa = 3072 if pa == 6 else 3584; sc = 3072 if pc == 6 else 3584
    A(f"s_movk_i32 s{60+D}, {sa}")
    if sa != sc: A(f"s_cselect_b32 s{60+D}, {sc}, s{60+D}")
    if oa != oc: A(f"s_add_u32 s57, s{cs}, s58"); cs = 57
    elif oa: A(f"s_add_u32 s57, s{cs}, {oa}"); cs = 57
    A(f"s_add_u32 s{S}, s{src}, s{cs}\ns_addc_u32 s{S+1}, s{src+1}, 0")
    A(f"v_mul_u32_u24 v18, s{60+D}, v16")
    if swap[D]:
        A(f"v_xor_b32 v19, s{swap[D]}, v17\nv_add_u32 v{vDW[D]}, v18, v19")
    else:
        A(f"v_add_u32 v{vDW[D]}, v18, v17")
    A(f"s_lshl_b32 s{S+2}, s{60+D}, 9\ns_mov_b32 s{S+3}, 0x20000")
def dma_w(k):
    o = []
    for D in range(5):
        S = 24 + 4 * D
        pre = [f"s_add_u32 s56, s81, {k}", "s_and_b32 s56, s56, 15", "s_lshl_b32 s56, s56, 5"] if D == 0 else []
        o.append(pre + [f"s_add_u32 m0, s13, {WR + (k%5)*WSL + D*4096}", f"s_mul_i32 s59, s{60+D}, s56",
                        f"buffer_load_dwordx4 v{vDW[D]}, s[{S}:{S+3}], s59 offen {'nt ' if k < OPT['ntw'] else ''}lds"])
    return o
def G(k):
    g = (dma_x(k // 2) if k % 2 == 0 else []) + dma_w(k)
    Q.add(f"S{k}", emit(g))
Q.add("S0", n0 + emit(dma_w(0)))
G(1)
ws_srd()
A("""s_or_b32 s57, s2, s15
s_cmp_lg_u32 s57, 0
s_cbranch_scc1 H_NONONCE
s_memrealtime s[56:57]
s_waitcnt lgkmcnt(0)
s_mul_i32 s56, s56, 0x9e3779b1
s_or_b32 s56, s56, 1
v_mov_b32 v16, 0
v_mov_b32 v17, s56
buffer_store_dword v17, v16, s[16:19], 0 offen sc1""")
A.label("H_NONONCE")
A("s_lshl_b32 s69, s47, 5")
if ROT == 2: A("s_lshr_b32 s55, s45, 2\ns_lshl_b32 s57, s44, 1\ns_add_u32 s55, s55, s57")
elif ROT == 1: A("s_mov_b32 s55, s44")
elif ROT == 3: A("s_lshr_b32 s55, s45, 1\ns_lshl_b32 s57, s44, 2\ns_add_u32 s55, s55, s57")
if ROT == 0: A("s_and_b32 s55, s45, 3")
NDELTA = {0: 4, 1: 2, 2: 4, 3: 8}[ROT]
def pf_setup():
    A("""v_lshrrev_b32 v20, 3, v1
    v_and_b32 v21, 3, v20
    v_lshrrev_b32 v20, 2, v20
    v_lshlrev_b32 v20, 5, v20
    v_add_u32 v20, v20, v21
    s_lshl_b32 s57, s45, 2
    v_add_u32 v20, s57, v20
    v_and_b32 v21, 7, v1
    v_lshlrev_b32 v21, 4, v21""")
    for D in range(5):
        A(f"v_mul_u32_u24 v{116+D}, s{60+D}, v20\nv_add_u32 v{116+D}, v{116+D}, v21")
    A("""v_lshrrev_b32 v20, 3, v1
    v_lshlrev_b32 v20, 10, v20
    s_lshl_b32 s57, s49, 15
    s_lshl_b32 s58, s15, 13
    s_add_u32 s57, s57, s58
    v_add3_u32 v121, v20, v21, s57""")
def pf_burst(u0, u1):
    n = 0
    for u in range(u0, u1):
        A(f"s_movk_i32 s59, {u*128}\nbuffer_load_dwordx4 {vr(128+4*u,4)}, v121, s[72:75], s59 offen"); n += 1
    for u in range(u0, u1):
        A(f"s_mul_i32 s59, s{PFS}, {64*u}\nbuffer_load_dwordx4 {vr(160+4*u,4)}, v122, s[{PFR}:{PFR+3}], s59 offen"); n += 1
        lb = f"H_PF{u}"
        A(f"s_cmp_eq_u32 s15, {u%4}\ns_cbranch_scc0 {lb}\ns_mul_i32 s59, s64, {64*u}\nbuffer_load_dwordx4 {vr(192+4*(u>>2),4)}, v120, s[40:43], s59 offen")
        A.label(lb)
    Q.add("PF", n)
PFR, PFS = 76, 71
BUR = {}
if OPT.get("burst"):
    pf_setup()
    A(f"s_mov_b32 s{PFR}, s24\ns_mov_b32 s{PFR+1}, s25\ns_mov_b32 s{PFR+2}, s26\ns_mov_b32 s{PFR+3}, 0x20000\ns_mov_b32 s{PFS}, s60\nv_mov_b32 v122, v116")
    for D in (1, 2, 3):
        A(f"""s_cmp_eq_u32 s15, {D}
        s_cselect_b32 s{PFR}, s{24+4*D}, s{PFR}
        s_cselect_b32 s{PFR+1}, s{25+4*D}, s{PFR+1}
        s_cselect_b32 s{PFR+2}, s{26+4*D}, s{PFR+2}
        s_cselect_b32 s{PFS}, s{60+D}, s{PFS}
        s_cselect_b64 vcc, -1, 0
        v_cndmask_b32 v122, v122, v{116+D}, vcc""")
    BUR = {1: {-1: (1, 3), 1: (3, 6), 5: (6, 8)}, 2: {-1: (1, 4), 2: (4, 8)}, 3: {-1: (1, 2), 0: (2, 3), 1: (3, 4), 3: (4, 5), 5: (5, 6), 7: (6, 7), 9: (7, 8)}, 4: {-1: (1, 8)}}[OPT["burst"]]
    pf_burst(*BUR[-1])
A(f"""v_lshrrev_b32 v16, 5, v1
v_lshlrev_b32 v16, 10, v16
v_bfe_u32 v17, v1, 2, 2
v_lshlrev_b32 v17, 6, v17
v_add_u32 v16, v16, v17
v_and_b32 v17, 3, v1
v_lshlrev_b32 v17, 3, v17
v_add_u32 v16, v16, v17
v_bfe_u32 v17, v1, 4, 1
v_lshlrev_b32 v17, 5, v17
s_lshr_b32 s58, s15, 1
s_lshl_b32 s58, s58, 12
s_and_b32 s59, s15, 1
s_lshl_b32 s59, s59, 9
s_add_u32 s58, s58, s59
v_add3_u32 v12, v16, v17, s58
v_lshlrev_b32 v9, 4, v1
v_mov_b32 v10, 0""")
sched = {0: [2], 1: [3], 2: [4, 5]}
for s in range(3, 13): sched[s] = [s + 3]
def col_valu(js, fin):
    for j in js:
        b = 48 + 8 * j; acc = 44 + j
        for d in range(8):
            A(f"v_lshlrev_b32 v18, 16, v{b+d}\nv_and_b32 v19, 0xffff0000, v{b+d}")
            if d == 0: A(f"v_add_f32 v{acc}, v18, v19")
            else: A(f"v_add_f32 v{acc}, v{acc}, v18\nv_add_f32 v{acc}, v{acc}, v19")
    if fin:
        for j in range(3): A(f"v_mov_b32 v{72+2*j}, v{44+j}")
        A("s_nop 1")
        for j in range(3): A(f"v_permlane32_swap_b32 v{72+2*j}, v{44+j}")
        A("s_nop 1")
        for j in range(3): A(f"v_add_f32 v{72+2*j}, v{72+2*j}, v{44+j}")
def row_valu(part):
    if part == 0:
        for rrow in range(2):
            b = 32 + 4 * rrow; sx = 40 + 2 * rrow; sq = sx + 1
            for d in range(4):
                A(f"v_lshlrev_b32 v18, 16, v{b+d}\nv_and_b32 v19, 0xffff0000, v{b+d}")
                if d == 0: A(f"v_add_f32 v{sx}, v18, v19\nv_mul_f32 v{sq}, v18, v18\nv_fmac_f32 v{sq}, v19, v19")
                else: A(f"v_add_f32 v{sx}, v{sx}, v18\nv_fmac_f32 v{sq}, v18, v18\nv_add_f32 v{sx}, v{sx}, v19\nv_fmac_f32 v{sq}, v19, v19")
    else:
        for dpp in ("quad_perm:[1,0,3,2] row_mask:0xf bank_mask:0xf", "quad_perm:[2,3,0,1] row_mask:0xf bank_mask:0xf",
                    "row_half_mirror row_mask:0xf bank_mask:0xf", "row_mirror row_mask:0xf bank_mask:0xf",
                    "row_bcast:15 row_mask:0xa bank_mask:0xf", "row_bcast:31 row_mask:0xc bank_mask:0xf"):
            for r in range(40, 44): A(f"v_add_f32_dpp v{r}, v{r}, v{r} {dpp}")
def get_nonce(tag, vz, vn):
    A(f"""v_readfirstlane_b32 s80, v{vn}
    s_mov_b32 s57, 0
    s_cmp_eq_u32 s80, 0
    s_cbranch_scc0 {tag}_GOTN""")
    A.label(f"{tag}_POLLN")
    A(f"""buffer_load_dword v{vn}, v{vz}, s[16:19], 0 offen sc1
    s_add_u32 s57, s57, 1
    s_waitcnt vmcnt(0)
    v_readfirstlane_b32 s80, v{vn}
    s_cmp_gt_u32 s57, {SPIN}
    s_cbranch_scc1 {tag}_GOTN
    s_cmp_eq_u32 s80, 0
    s_cbranch_scc1 {tag}_POLLN""")
    A.label(f"{tag}_GOTN")
def publish():
    get_nonce("H", 10, 11)
    A(f"""s_lshl_b32 s57, s48, 4
    s_add_u32 s57, s57, s47
    s_mul_i32 s57, s57, 2560
    s_lshl_b32 s58, s15, 8
    s_add_u32 s57, s57, s58
    s_add_u32 s57, s57, {WS_CS}
    v_lshlrev_b32 v16, 3, v1
    v_mov_b32 v73, s80
    v_mov_b32 v75, s80
    v_mov_b32 v77, s80
    s_mov_b32 exec_hi, 0
    buffer_store_dwordx2 v[72:73], v16, s[20:23], s57 offen sc1
    buffer_store_dwordx2 v[74:75], v16, s[20:23], s57 offen offset:1024 sc1
    s_cmp_ge_u32 s15, 2
    s_cbranch_scc1 H_NO3
    buffer_store_dwordx2 v[76:77], v16, s[20:23], s57 offen offset:2048 sc1""")
    A.label("H_NO3")
    A(f"""s_mov_b32 exec_lo, 0
    s_mov_b32 exec_hi, 0x80000000
    s_lshl_b32 s57, s69, 6
    s_lshl_b32 s58, s48, 7
    s_add_u32 s57, s57, s58
    s_lshl_b32 s58, s15, 5
    s_add_u32 s57, s57, s58
    s_add_u32 s57, s57, {WS_TOK}
    v_mov_b32 v48, v40
    v_mov_b32 v49, v41
    v_mov_b32 v50, s80
    v_mov_b32 v51, s80
    v_mov_b32 v52, v42
    v_mov_b32 v53, v43
    v_mov_b32 v54, s80
    v_mov_b32 v55, s80
    buffer_store_dwordx4 v[48:51], v10, s[20:23], s57 offen sc1
    buffer_store_dwordx4 v[52:55], v10, s[20:23], s57 offen offset:16 sc1
    s_mov_b64 exec, -1""")
def gather_loads(part=None):
    if part == 0:
        for m in range(6):
            A(f"s_add_u32 s59, s66, {m*5120}")
            A(f"buffer_load_dwordx4 {vr(64+4*m,4)}, v16, s[20:23], s59 offen sc1")
        return
    for m in range(6 if part == 1 else 0, 8):
        A(f"s_add_u32 s59, s66, {m*5120}")
        A(f"buffer_load_dwordx4 {vr(64+4*m,4)}, v16, s[20:23], s59 offen sc1")
    for m in range(2):
        A(f"s_add_u32 s59, s66, {m*8*2560}")
        A(f"buffer_load_dwordx4 {vr(96+4*m,4)}, v17, s[20:23], s59 offen sc1")
    A("buffer_load_dwordx4 v[104:107], v18, s[20:23], s67 offen sc1")
def gather_prep():
    A(f"""s_mul_i32 s66, s48, {16*2560}
    s_add_u32 s66, s66, {WS_CS}
    v_and_b32 v18, 31, v1
    v_lshlrev_b32 v18, 4, v18
    v_lshrrev_b32 v16, 5, v1
    v_mul_u32_u24 v16, 2560, v16
    s_lshl_b32 s58, s15, 9
    v_add3_u32 v16, v16, v18, s58
    v_and_b32 v17, 7, v1
    v_lshlrev_b32 v17, 4, v17
    v_lshrrev_b32 v19, 3, v1
    v_mul_u32_u24 v19, 2560, v19
    s_lshl_b32 s58, s15, 7
    s_add_u32 s58, s58, 2048
    v_add3_u32 v17, v17, v19, s58
    s_lshl_b32 s67, s69, 6
    s_lshl_b32 s59, s15, 9
    s_add_u32 s67, s67, s59
    s_add_u32 s67, s67, {WS_TOK}""")
def gather_tags():
    tags = list(range(65, 104, 2)) + [106]
    A(f"v_and_b32 v19, v{tags[0]}, v{tags[1]}\nv_or_b32 v20, v{tags[0]}, v{tags[1]}")
    rest = tags[2:]
    for k in range(0, len(rest) - 1, 2):
        A(f"v_bitop3_b32 v19, v19, v{rest[k]}, v{rest[k+1]} bitop3:0x80\nv_or3_b32 v20, v20, v{rest[k]}, v{rest[k+1]}")
    if len(rest) % 2: A(f"v_and_b32 v19, v19, v{rest[-1]}\nv_or_b32 v20, v20, v{rest[-1]}")
    A("""v_xor_b32 v19, s80, v19
    v_xor_b32 v20, s80, v20
    v_or_b32 v19, v19, v20
    v_cmp_eq_u32 vcc, 0, v19
    s_nop 0
    s_cmp_eq_u64 vcc, -1""")
def gather_check():
    Q.wait("GA")
    gather_tags()
    A("s_cselect_b32 s70, 1, 0")
def gather_slow():
    A.label("H_GSLOW")
    A("s_mov_b32 s70, 0")
    A.label("H_GS1")
    gather_loads()
    A("s_waitcnt vmcnt(0)")
    gather_tags()
    A(f"""s_cbranch_scc1 H_GS2
    s_add_u32 s70, s70, 1
    s_cmp_gt_u32 s70, {SPIN}
    s_cbranch_scc1 H_GS2
    s_sleep 4
    s_branch H_GS1""")
    A.label("H_GS2")
    gather_cols()
    A("s_branch H_GTOK")
def gather_cols():
    st = 4
    while st <= 16:
        for r in range(64, 96, 2 * st):
            A(f"v_add_f32 v{r}, v{r}, v{r+st}\nv_add_f32 v{r+2}, v{r+2}, v{r+st+2}")
        st *= 2
    A("""v_add_f32 v96, v96, v100
    v_add_f32 v98, v98, v102
    v_mov_b32 v65, v64
    v_mov_b32 v67, v66
    v_add_f32_dpp v96, v96, v96 row_ror:8 row_mask:0xf bank_mask:0xf
    v_add_f32_dpp v98, v98, v98 row_ror:8 row_mask:0xf bank_mask:0xf
    v_permlane32_swap_b32 v65, v64
    v_permlane32_swap_b32 v67, v66
    v_mov_b32 v97, v96
    v_mov_b32 v99, v98
    v_add_f32 v64, v64, v65
    v_add_f32 v66, v66, v67
    v_permlane32_swap_b32 v97, v96
    v_permlane32_swap_b32 v99, v98
    s_nop 0
    v_add_f32 v96, v96, v97
    v_add_f32 v98, v98, v99
    v_mov_b32 v97, v96
    v_mov_b32 v99, v98
    s_nop 1
    v_permlane16_swap_b32 v97, v96
    v_permlane16_swap_b32 v99, v98
    s_nop 0
    v_add_f32 v96, v96, v97
    v_add_f32 v98, v98, v99""")
    for r, d in ((64, 68), (66, 69), (96, 70), (98, 71)):
        A(f"""v_cvt_pk_bf16_f32 v{r+1}, v{r}, v{r}
        v_and_b32 v{r+1}, 0xffff0000, v{r+1}
        v_sub_f32 v{r}, v{r}, v{r+1}
        v_cvt_pk_bf16_f32 v{d}, v{r+1}, v{r}""")
    A(f"""v_lshrrev_b32 v16, 1, v18
    s_lshl_b32 s58, s15, 8
    s_add_u32 s58, s58, {EX_COL}
    v_add_u32 v16, s58, v16
    ds_write_b64 v16, v[68:69]
    v_and_b32 v17, 7, v1
    v_lshlrev_b32 v17, 3, v17
    s_lshl_b32 s58, s15, 6
    s_add_u32 s58, s58, {EX_COL + 1024}
    v_add_u32 v17, s58, v17
    ds_write_b64 v17, v[70:71]""")
def gather_toks():
    c1 = -2.0 * math.sqrt(2.0 / math.pi) * LOG2E
    c3 = c1 * 0.044715
    A(f"""    v_mul_f32 v104, {f32(-1/512)}, v104
    v_mul_f32 v105, {f32(1/512)}, v105
    v_fma_f32 v105, -v104, v104, v105
    v_max_f32 v105, 0, v105
    v_add_f32 v113, {f32(1e-5)}, v105
    v_rsq_f32 v110, v113
    v_cvt_pk_bf16_f32 v108, v104, v104
    v_and_b32 v106, 0xffff0000, v108
    v_sub_f32 v106, v104, v106
    v_cvt_pk_bf16_f32 v109, v106, v106
    v_mul_f32 v111, {f32(c1)}, v110
    v_mul_f32 v112, v110, v110
    v_mul_f32 v112, v112, v110
    v_mul_f32 v112, {f32(c3)}, v112
    v_mov_b32 v114, s80
    v_lshlrev_b32 v18, 1, v18
    s_lshl_b32 s58, s15, 10
    s_add_u32 s58, s58, {EX_TOK}
    v_add_u32 v18, s58, v18
    ds_write_b128 v18, v[108:111]
    ds_write_b128 v18, v[112:115] offset:16
    s_waitcnt lgkmcnt(0)""")
WD = OPT["wd"]
UFB = [60, 61, 62, 76, 77, 78, 79]
def d_setup_w():
    A(f"""v_bfe_u32 v6, v1, 2, 3
    v_lshlrev_b32 v6, 10, v6
    v_lshrrev_b32 v7, 5, v1
    v_lshlrev_b32 v7, 6, v7
    v_add_u32 v6, v6, v7
    v_and_b32 v7, 3, v1
    v_lshlrev_b32 v7, 4, v7
    v_add_u32 v2, v6, v7
    s_lshl_b32 s43, s15, 11
    s_lshr_b32 s58, s2, 5
    s_lshl_b32 s40, s58, 7
    s_lshl_b32 s42, s15, 17
    s_add_u32 s42, s42, s40
    s_mul_i32 s57, s15, 24""")
    if OPT["rotd"]:
        A("""s_mul_i32 s59, s58, 11
        s_lshr_b32 s59, s59, 5
        s_mul_i32 s59, s59, 3
        s_sub_u32 s59, s58, s59""")
    else:
        A("s_mov_b32 s59, 0\ns_mov_b32 s58, 0")
    for u in range(3):
        A(f"""s_lshl_b32 s{UFB[u]}, s59, 3
        s_add_u32 s{UFB[u]}, s{UFB[u]}, s57
        s_add_u32 s{UFB[u]}, s{UFB[u]}, 4
        s_add_u32 s59, s59, 1
        s_cmp_eq_u32 s59, 3
        s_cselect_b32 s59, 0, s59""")
    A("s_lshl_b32 s41, s15, 2\ns_add_u32 s41, s41, 96")
    for u in range(4):
        A(f"""s_add_u32 s59, s58, {u}
        s_and_b32 s59, s59, 3
        s_lshl_b32 s44, s59, 3
        s_add_u32 s44, s44, s57
        s_cmp_eq_u32 s59, 3
        s_cselect_b32 s{UFB[3+u]}, s41, s44""")
    A("""s_waitcnt lgkmcnt(0)
    s_mov_b32 s26, 0x1c0000
    s_mov_b32 s27, 0x20000
    s_mov_b32 s30, 0x80000
    s_mov_b32 s31, 0x20000""")
def issw(s, q):
    slot = s % WD
    if s < 28:
        srd = 24
        o = [f"s_lshl_b32 s44, s{UFB[s>>2]}, 14", "s_add_u32 s44, s44, s40"]
        if s & 3: o.append(f"s_add_u32 s44, s44, {(s&3)*16384}")
    else:
        srd = 28
        o = [f"s_add_u32 s44, s42, {(s-28)*16384}"]
    a = o + [f"s_add_u32 m0, s43, {DREG[slot]}", "s_add_u32 s45, s44, 8192",
             f"buffer_load_dwordx4 v2, s[{srd}:{srd+3}], s44 offen lds"]
    b = [f"s_add_u32 m0, s43, {DREG[slot]+1024}", "s_nop 0",
         f"buffer_load_dwordx4 v2, s[{srd}:{srd+3}], s45 offen lds"]
    q.add(f"W{s}", 2)
    return [a, b]
P0 = max(NDELTA, 4)
wnext = [0]
GAT, GC = OPT['gat'], OPT['gc']
HP = OPT.get('hprof')
for s in range(17):
    if s < 16: Q.wait(f"S{s}")
    if HP and s >= 4: A(f"s_memtime s[100:101]\ns_waitcnt lgkmcnt(0)\ns_sub_u32 s99, s100, s98\ns_add_u32 s{84+s-4}, s99, s83")
    A("s_barrier")
    if HP: A("s_memtime s[100:101]\ns_waitcnt lgkmcnt(0)\ns_mov_b32 s98, s100")
    if s == 0 and not HP: PR.stamp()
    for k in sched.get(s, []): G(k)
    if s in BUR: pf_burst(*BUR[s])
    if s == 0:
        A("""s_lshl_b32 s57, s48, 13
        s_lshl_b32 s58, s15, 11
        s_add_u32 s57, s57, s58
        buffer_load_dwordx4 v[32:35], v9, s[72:75], s57 offen
        buffer_load_dwordx4 v[36:39], v9, s[72:75], s57 offen offset:1024
        buffer_load_dword v11, v10, s[16:19], 0 offen sc1""")
        Q.add("ST", 3)
    if s < NDELTA:
        lb = f"H_NOCS{s}"
        A(f"s_cmp_eq_u32 s55, {s}\ns_cbranch_scc0 {lb}\nv_add_u32 v12, {WR + (s%5)*WSL}, v12")
        for j in range(3):
            for t in range(4):
                A(f"ds_read_b64_tr_b16 {vr(48+8*j+2*t,2)}, v12 offset:{j*8192 + (t>>1)*2048 + (t&1)*256}")
        A("s_waitcnt lgkmcnt(0)")
        A.label(lb)
    if s == 4: row_valu(0); col_valu([0], False)
    if s == 5: col_valu([1], False)
    if s == 6: col_valu([2], True); row_valu(1)
    if s == OPT["pub"]: publish()
    if s == 3:
        A("s_load_dwordx2 s[4:5], s[0:1], 48\ns_load_dwordx2 s[8:9], s[0:1], 16")
    if OPT["vw"] and s == OPT["vw"]:
        A("""s_cmp_lg_u32 s15, 0
        s_cbranch_scc1 H_NOWARM
        s_mul_i32 s57, s2, 7168
        s_lshl_b32 s58, s2, 11
        v_lshlrev_b32 v20, 7, v1
        s_waitcnt lgkmcnt(0)
        s_add_u32 s6, s57, 7168
        s_mov_b32 s7, 0x20000
        s_add_u32 s10, s58, 2048
        s_mov_b32 s11, 0x20000
        buffer_load_dword v21, v20, s[4:7], s57 offen
        buffer_load_dword v22, v20, s[8:11], s58 offen""")
        A.label("H_NOWARM")
    if s == 5 and not OPT["vw"]:
        A("""s_lshl_b32 s57, s2, 2
        s_add_u32 s57, s57, s15
        s_mul_i32 s58, s57, 1792
        s_lshl_b32 s57, s57, 9
        s_waitcnt lgkmcnt(0)
        s_add_u32 s4, s4, s58
        s_addc_u32 s5, s5, 0
        s_add_u32 s8, s8, s57
        s_addc_u32 s9, s9, 0""")
    if s in (5, 7, 8, 9) and not OPT['vw']:
        k0 = {5: 0, 7: 9, 8: 18, 9: 27}[s]
        for i in range(k0, k0 + 9):
            if i < 28: A(f"s_load_dword s65, s[4:5], {i*64}")
            else: A(f"s_load_dword s65, s[8:9], {(i-28)*64}")
    if OPT["l2pf"] and s == OPT["warm"] + 1:
        A("""s_lshr_b32 s57, s2, 3
        s_lshl_b32 s57, s57, 2
        s_add_u32 s57, s57, s15
        s_lshr_b32 s58, s57, 3
        s_min_u32 s58, s58, 11
        s_lshr_b32 s59, s58, 1
        s_mul_i32 s59, s59, 6
        s_and_b32 s65, s58, 1
        s_lshl_b32 s65, s65, 1
        s_add_u32 s59, s59, s65
        s_add_u32 s59, s59, 2
        s_add_u32 s65, s58, 16
        s_cmp_lt_u32 s58, 8
        s_cselect_b32 s59, s59, s65
        s_lshl_b32 s59, s59, 16
        s_and_b32 s58, s57, 7
        s_lshl_b32 s58, s58, 13
        s_add_u32 s58, s58, s59
        s_lshl_b32 s57, s57, 12
        s_waitcnt lgkmcnt(0)
        s_add_u32 s4, s4, s58
        s_addc_u32 s5, s5, 0
        s_add_u32 s8, s8, s57
        s_addc_u32 s9, s9, 0""")
    if OPT["l2pf"] and OPT["warm"] + 1 <= s <= OPT["l2end"]:
        nst = OPT["l2end"] - OPT["warm"]
        tot = OPT["l2pf"]
        i0 = (s - OPT["warm"] - 1) * tot // nst; i1 = (s - OPT["warm"]) * tot // nst
        for i in range(i0, i1):
            if i < 64: A(f"s_load_dword s65, s[4:5], {i*128}")
            else: A(f"s_load_dword s65, s[8:9], {(i-64)*128}")
    if s == 8: gather_prep()
    if s == GAT: gather_loads(0); Q.add("GA0", 6)
    if s == GAT + OPT["gd"]: gather_loads(1); Q.add("GA", 5)
    if s == 12:
        A("s_load_dwordx2 s[24:25], s[0:1], 48\ns_load_dwordx2 s[28:29], s[0:1], 16")
        d_setup_w()
    if s == GC: gather_check()
    if s in DAVAIL:
        for _ in range(DAVAIL[s]):
            emit(issw(wnext[0], Q)); wnext[0] += 1
    if s == GC + 1:
        A("s_cmp_eq_u32 s70, 0\ns_cbranch_scc1 H_NOCOLS")
        gather_cols()
        A.label("H_NOCOLS")
    if s == 15:
        A("s_cmp_eq_u32 s70, 0\ns_cbranch_scc1 H_GSLOW")
        A.label("H_GTOK")
        gather_toks()
    if s in (4, 8, 12) and not HP: PR.stamp()
if HP:
    PR.n = 15; PR.dump(20); PR.n = 0
    OPT["prof"] = 0
PR.stamp()
PR.stamp()
import gen_cd
gen_cd.OPT = OPT
if OPT["amap"]:
    A("""s_and_b32 s57, s2, 6
    s_lshl_b32 s50, s57, 2
    s_lshr_b32 s58, s2, 3
    s_and_b32 s58, s58, 7
    s_add_u32 s50, s50, s58
    s_and_b32 s47, s2, 1
    s_lshl_b32 s47, s47, 2
    s_lshr_b32 s58, s2, 6
    s_add_u32 s47, s47, s58""")
else:
    A("""s_and_b32 s57, s2, 7
    s_lshr_b32 s58, s2, 3
    s_and_b32 s58, s58, 3
    s_lshl_b32 s50, s58, 3
    s_add_u32 s50, s50, s57
    s_lshr_b32 s47, s2, 5""")
A("s_lshl_b32 s51, s47, 2\ns_add_u32 s51, s51, s15")
gen_cd.attn_setup(A)
SH = OPT["share"]
LK, LVS, LFL = 16384, 49152, 49152 + 16384 + 1024
if SH:
    LONE = 49152 + 16384
    A(f"""s_lshl_b32 s49, s47, 2
    s_lshl_b32 s57, s15, 1
    s_add_u32 s49, s49, s57
    s_sub_u32 s49, s49, 4
    v_and_b32 v9, 1, v1
    v_add_u32 v9, s49, v9
    v_max_i32 v9, 0, v9
    v_lshlrev_b32 v9, 8, v9
    v_bfe_u32 v10, v1, 1, 1
    v_lshlrev_b32 v10, 6, v10
    v_add3_u32 v9, v9, v10, 64
    s_lshl_b32 s57, s51, 8
    v_mov_b32 v10, s57
    v_cmp_gt_u32 vcc, 4, v1
    s_lshr_b32 s57, s50, 1
    s_lshl_b32 s57, s57, 7
    s_add_u32 s57, s57, {WS_FQ}
    v_cndmask_b32 v9, v10, v9, vcc
    v_lshlrev_b32 v9, 5, v9
    v_add_u32 v252, s57, v9""")
else:
    A(f"""v_min_u32 v9, 10, v1
    v_cmp_gt_u32 vcc, 5, v9
    v_subrev_u32 v10, 5, v9
    s_nop 0
    v_cndmask_b32 v10, v10, v9, vcc
    v_min_u32 v10, 4, v10
    s_sub_u32 s57, s51, 4
    v_add_u32 v10, s57, v10
    v_max_i32 v10, 0, v10
    v_lshlrev_b32 v10, 8, v10
    v_mov_b32 v11, 128
    v_cndmask_b32 v11, v11, 64, vcc
    v_cmp_eq_u32 vcc, 10, v9
    s_lshr_b32 s57, s50, 1
    s_lshl_b32 s57, s57, 7
    s_add_u32 s57, s57, {WS_FQ}
    v_cndmask_b32 v11, v11, 0, vcc
    v_add_u32 v10, v10, v11
    v_lshlrev_b32 v10, 5, v10
    v_add_u32 v252, s57, v10""")
A("s_barrier")
PR.stamp()
gen_cd.LONE = LONE
if SH:
    A(f"s_lshl_b32 s57, s15, 11\ns_add_u32 s57, s57, {LVS}")
else:
    A("""s_movk_i32 s57, 0x4000
    s_cmp_eq_u32 s15, 1
    s_cselect_b32 s57, 49152, s57
    s_cmp_eq_u32 s15, 2
    s_cselect_b32 s57, 59392, s57
    s_cmp_eq_u32 s15, 3
    s_cselect_b32 s57, 151552, s57""")
gen_cd.attn_setup2(A, None)
ld = "buffer_load_dword v253, v252, s[20:23], 0 offen sc1"
A("s_waitcnt vmcnt(0)")
PR.stamp()
A("s_barrier")
A(f"s_setprio {OPT['aprio']}")
A(f"s_sleep {OPT['hs']}")
A(ld)
A("s_waitcnt vmcnt(0)")
spin(A, "HQ", ld, 253)
PR.stamp()
if SH:
    A(f"""s_lshl_b32 s52, s50, 16
    s_lshl_b32 s53, s49, 11""")
    for which, base, r0 in ((0, WS_K, 188), (1, WS_V, 204)):
        for b in range(4):
            if b % 2 == 0:
                A(f"s_add_i32 s55, s53, {b*1024}\ns_max_i32 s55, s55, 0\ns_add_u32 s55, s55, s52\ns_add_u32 s55, s55, {base}")
            A(f"buffer_load_dwordx4 {vr(r0+4*b,4)}, v3, s[20:23], s55 offen offset:{(b%2)*1024} sc1")
    A(f"""s_lshl_b32 s53, s51, 11
    s_add_u32 s54, s52, s53
    buffer_load_dwordx4 v[12:15], v3, s[20:23], s54 offen sc1
    buffer_load_dwordx4 v[16:19], v3, s[20:23], s54 offen offset:1024 sc1
    s_lshl_b32 s57, s15, 12
    v_add_u32 v9, s57, v3
    v_add_u32 v10, s57, v2
    s_lshl_b32 s57, s15, 11
    v_add_u32 v11, s57, v3
    s_lshl_b32 s57, s15, 2
    s_add_u32 s57, s57, {LFL}
    v_mov_b32 v252, s57
    v_mov_b32 v253, s80
    v_mov_b32 v254, {LFL}""")
    for b in range(4):
        A(f"s_waitcnt vmcnt({9-b})\nds_write_b128 v9, {vr(188+4*b,4)} offset:{LK + b*1024}")
    for b in range(4):
        A(f"s_waitcnt vmcnt({5-b})\nds_write_b128 v10, {vr(204+4*b,4)} offset:{LVS + b*1024}")
    A("""s_waitcnt lgkmcnt(0)
    ds_write_b32 v252, v253
    s_mov_b32 s56, 0""")
    A.label("H_LW")
    A(f"""ds_read_b128 v[188:191], v254
    s_add_u32 s56, s56, 1
    s_waitcnt lgkmcnt(0)
    v_xor_b32 v188, s80, v188
    v_xor_b32 v189, s80, v189
    v_xor_b32 v190, s80, v190
    v_xor_b32 v191, s80, v191
    v_or3_b32 v188, v188, v189, v190
    v_or_b32 v188, v188, v191
    v_cmp_eq_u32 vcc, 0, v188
    s_cmp_gt_u32 s56, {SPIN*50}
    s_cbranch_scc1 H_LOK
    s_cmp_eq_u64 vcc, -1
    s_cbranch_scc1 H_LOK
    s_sleep 1
    s_branch H_LW""")
    A.label("H_LOK")
    for b in range(10):
        A(f"ds_read_b128 {vr(20+4*b,4)}, v11 offset:{LK + b*1024}")
    A("s_waitcnt vmcnt(0)")
A(f"s_setprio {OPT['aprio2']}")
if OPT.get("noattn"): A("s_branch H_AFIN")
A("s_cmp_lt_u32 s51, 4")
A("s_cbranch_scc1 H_SLOW")
n0 = PR.n
gen_cd.gen_attn(A, False, "AF", PR, "sc1", setup=False, bar=OPT["defer"] >= 4, loads=not SH, shared=SH)
A.label("H_AFIN")
PR.stamp()
A(f"""s_lshl_b32 s57, s51, 12
s_lshl_b32 s58, s50, 7
s_add_u32 s57, s57, s58
s_add_u32 s57, s57, {WS_FO}
v_mov_b32 v9, 0
v_mov_b32 v10, s80
s_waitcnt vmcnt(0)
s_mov_b64 exec, 1
buffer_store_dword v10, v9, s[20:23], s57 offen sc1
s_mov_b64 exec, -1""")
PR.stamp()
PR.dump(2)
A.label("L_END")
A("s_endpgm")
gather_slow()
A.label("H_SLOW")
PR.n = n0
gen_cd.gen_attn(A, True, "AS", PR, "sc1", setup=False, bar=OPT["defer"] >= 4, loads=not SH, shared=SH)
A("s_branch H_AFIN")
A.label("L_M")
PR.n = 0
A("s_waitcnt lgkmcnt(0)")
PR.stamp(True); PR.stamp()
ws_srd()
if OPT["codepf"]:
    A("s_getpc_b64 s[24:25]")
    A.label("L_PC")
    A(f"""s_sub_u32 s24, s24, L_PC-{NAME}
    s_subb_u32 s25, s25, 0
    s_mov_b32 s26, L_CODE_END-{NAME}
    s_mov_b32 s27, 0x20000
    s_lshr_b32 s57, s2, 3
    s_lshl_b32 s57, s57, 2
    s_add_u32 s57, s57, s14
    s_lshl_b32 s57, s57, 9
    v_lshlrev_b32 v16, 7, v1
    s_mov_b64 exec, 15
    buffer_load_dword v31, v16, s[24:27], s57 offen
    s_mov_b64 exec, -1""")
vXa = [2, 3, 4, 5]; vWa = [6, 7, 8, 9, 10]; vWb = [11, 12, 13, 14, 15]
P = 32; QQ = 60; ACC = 88
A("s_setprio 2")
A("""s_and_b32 s12, s14, 1
s_lshr_b32 s13, s14, 1
v_and_b32 v16, 31, v1
v_lshrrev_b32 v17, 5, v1
v_bfe_u32 v18, v1, 1, 3
v_xor_b32 v17, v17, v18
v_lshlrev_b32 v17, 4, v17
v_lshlrev_b32 v16, 7, v16
v_add_u32 v16, v16, v17
s_lshl_b32 s57, s12, 13
v_add_u32 v2, s57, v16
v_xor_b32 v3, 32, v2
v_xor_b32 v4, 64, v2
v_xor_b32 v5, 96, v2""")
A(f"""v_lshrrev_b32 v16, 5, v1
v_lshlrev_b32 v16, 10, v16
v_bfe_u32 v17, v1, 2, 2
v_lshlrev_b32 v17, 6, v17
v_add_u32 v16, v16, v17
v_and_b32 v17, 3, v1
v_lshlrev_b32 v17, 3, v17
v_add_u32 v16, v16, v17
v_add_u32 v16, {WR}, v16
v_bfe_u32 v17, v1, 4, 1
s_sub_u32 s57, 2, s50
s_lshl_b32 s57, s57, 12
v_mul_u32_u24 v18, s57, v17
v_xor_b32 v19, s13, v17
v_lshlrev_b32 v19, 5, v19
v_add3_u32 v18, v18, v19, v16
v_lshlrev_b32 v19, 5, v17
s_lshl_b32 s57, s13, 9
v_add3_u32 v19, v19, s57, v16
s_cmp_eq_u32 s50, 1
s_cselect_b64 vcc, -1, 0""")
for n in range(5):
    fo = (n >> 1) * 4096 + (n & 1) * 512
    qo = n * 4096
    if n < 2: A(f"v_add_u32 v{vWa[n]}, {fo}, v18")
    elif n == 4: A(f"v_add_u32 v{vWa[n]}, {qo}, v19")
    else:
        A(f"v_add_u32 v20, {fo}, v18\nv_add_u32 v21, {qo}, v19\nv_cndmask_b32 v{vWa[n]}, v20, v21, vcc")
for n in range(5): A(f"v_add_u32 v{vWb[n]}, {4*WSL}, v{vWa[n]}")
def reads(s, kk, dst):
    xs = (s >> 1) % 3; q4 = (s & 1) * 2 + kk; sl = s % 5
    def xr(tt): return f"ds_read_b128 {vr(dst+4*tt,4)}, v{vXa[q4]} offset:{XR + xs*XS + tt*4096}"
    def wr(n, sec):
        a, o = (vWa[n], sl * WSL) if sl < 4 else (vWb[n], 0)
        return f"ds_read_b64_tr_b16 {vr(dst+8+4*n+2*sec,2)}, v{a} offset:{o + kk*2048 + sec*256}"
    R = [xr(0), wr(0, 0), wr(0, 1), xr(1)]
    for n in range(1, 5): R += [wr(n, 0), wr(n, 1)]
    return R
need = {0: 2, 1: 3, 2: 5, 4: 7, 6: 9, 8: 11}
def substep(cur, R, first=False):
    issued = 0
    for j in range(10):
        n, tt = j >> 1, j & 1
        if j in need: A(f"s_waitcnt lgkmcnt({min(15, 11 - need[j] + issued)})")
        a = ACC + 16 * (2 * n + tt)
        c = "0" if first else vr(a, 16)
        A(f"v_mfma_f32_32x32x16_bf16 {vr(a,16)}, {vr(cur+8+4*n,4)}, {vr(cur+4*tt,4)}, {c}")
        k = 2 if j < 2 else 1
        for r in R[issued:issued + k]: A(r)
        issued += len(R[issued:issued + k])
A(f"""v_and_b32 v16, 31, v1
v_lshlrev_b32 v22, 5, v16
s_lshl_b32 s57, s12, 11
s_add_u32 s57, s57, {EX_TOK}
v_add_u32 v22, s57, v22
v_and_b32 v16, 15, v1
s_sub_u32 s57, 2, s50
s_lshl_b32 s57, s57, 6
v_mul_u32_u24 v18, s57, v17
v_xor_b32 v19, s13, v17
v_lshlrev_b32 v19, 4, v19
v_add3_u32 v18, v18, v19, v16
v_lshlrev_b32 v18, 2, v18
v_and_b32 v19, 31, v1
s_lshl_b32 s57, s13, 5
v_add_u32 v19, s57, v19
v_lshlrev_b32 v19, 2, v19""")
for n in range(5):
    fo = EX_COL + ((n >> 1) * 64 + (n & 1) * 32) * 4
    qo = EX_COL + n * 256
    if n < 2: A(f"v_add_u32 v{23+n}, {fo}, v18")
    elif n == 4: A(f"v_add_u32 v{23+n}, {qo}, v19")
    else:
        A(f"v_add_u32 v20, {fo}, v18\nv_add_u32 v21, {qo}, v19\nv_cndmask_b32 v{23+n}, v20, v21, vcc")
A(f"""s_lshl_b32 s57, s47, 2
s_lshl_b32 s58, s12, 1
s_add_u32 s57, s57, s58
s_mul_i32 s70, s57, {112*1024}
s_lshl_b32 s59, s53, 12
s_add_u32 s70, s70, s59
s_lshl_b32 s59, s13, 10
s_add_u32 s70, s70, s59
s_add_u32 s70, s70, {WS_H}
s_lshl_b32 s59, s54, 2
s_lshl_b32 s60, s13, 1
s_add_u32 s59, s59, s60
s_lshl_b32 s71, s59, 6
s_add_u32 s71, s71, s57
s_lshl_b32 s71, s71, 10
s_lshl_b32 s57, s57, 7
s_lshl_b32 s72, s59, 1
s_add_u32 s72, s72, s57
s_lshl_b32 s72, s72, 5
s_add_u32 s72, s72, {WS_FQ}
s_lshl_b32 s73, s48, 3
s_lshl_b32 s60, s13, 2
s_add_u32 s73, s73, s60
s_add_u32 s73, s73, s57
s_lshl_b32 s73, s73, 5
s_add_u32 s73, s73, {WS_FH}
s_add_u32 s74, s73, 4096
s_load_dwordx2 s[24:25], s[0:1], 48
s_load_dwordx2 s[28:29], s[0:1], 16
s_load_dwordx2 s[36:37], s[0:1], 56
s_waitcnt lgkmcnt(0)""")
if OPT["tlb"]:
    A("""v_lshlrev_b32 v16, 21, v1
    v_mov_b32 v17, 0
    s_mov_b64 exec, 0x1ff
    buffer_load_dword v30, v16, s[20:23], 0 offen sc1
    s_mov_b64 exec, 1
    global_load_dword v30, v17, s[36:37] sc1
    global_load_dword v30, v17, s[24:25]
    global_load_dword v30, v17, s[28:29]
    s_mov_b64 exec, -1""")
A("s_waitcnt vmcnt(0)")
A("s_barrier")
PR.stamp()
for r in reads(0, 0, P): A(r)
A.raw(".p2align 3")
for s in range(16):
    substep(P, reads(s, 1, QQ), first=(s == 0))
    A("s_barrier")
    if s < 15: substep(QQ, reads(s + 1, 0, P))
    else:
        R = [f"ds_read_b128 {vr(P,4)}, v22", f"ds_read_b128 {vr(P+4,4)}, v22 offset:1024",
             f"ds_read_b128 v[16:19], v22 offset:16", f"ds_read_b128 v[28:31], v22 offset:1040"]
        R += [f"ds_read_b32 v{P+8+4*n}, v{23+n}" for n in range(5)]
        substep(QQ, R)
    if s in (11,): PR.stamp()
A("s_waitcnt lgkmcnt(0)")
A("s_barrier")
PR.stamp()
A(f"""v_mov_b32 v248, v{P+2}
v_mov_b32 v249, v{P+3}
v_mov_b32 v250, v16
v_mov_b32 v251, v17
v_mov_b32 v252, v{P+6}
v_mov_b32 v253, v{P+7}
v_mov_b32 v254, v28
v_mov_b32 v255, v29
v_cmp_gt_u32 vcc, 32, v1
v_readfirstlane_b32 s80, v18
v_mov_b32 v{P+2}, 0
v_mov_b32 v{P+3}, 0
v_mov_b32 v{P+6}, 0
v_mov_b32 v{P+7}, 0
v_cndmask_b32 v{P}, 0, v{P}, vcc
v_cndmask_b32 v{P+1}, 0, v{P+1}, vcc
v_cndmask_b32 v{P+4}, 0, v{P+4}, vcc
v_cndmask_b32 v{P+5}, 0, v{P+5}, vcc""")
for n in (4, 3, 2, 1, 0):
    w = P + 8 + 4 * n
    A(f"v_mov_b32 v{w+1}, v{w}\nv_mov_b32 v{w+2}, 0\nv_mov_b32 v{w+3}, 0")
for n in (4, 3, 2, 1, 0):
    for tt in range(2):
        a = ACC + 16 * (2 * n + tt)
        A(f"v_mfma_f32_32x32x16_bf16 {vr(a,16)}, {vr(P+8+4*n,4)}, {vr(P+4*tt,4)}, {vr(a,16)}")
A(f"""v_lshlrev_b32 v2, 4, v1
v_and_b32 v3, 31, v1
v_lshlrev_b32 v3, 5, v3
v_lshrrev_b32 v4, 5, v1
v_lshlrev_b32 v4, 4, v4
v_add_u32 v3, v3, v4
v_lshlrev_b32 v8, 8, v1
v_mov_b32 v9, s80""")
T = QQ
for tt in range(2):
    for k in range(3):
        A(f"v_mov_b32 v{68+6*tt+2*k}, v{248+4*tt+1+k}\nv_mov_b32 v{69+6*tt+2*k}, v{248+4*tt+1+k}")
def ffn(n, tt):
    a = ACC + 16 * (2 * n + tt); c = 68 + 6 * tt
    for r in range(0, 8, 2): A(f"v_pk_mul_f32 {vr(T+r,2)}, {vr(a+r,2)}, {vr(a+r,2)}")
    for r in range(0, 8, 2): A(f"v_pk_fma_f32 {vr(T+r,2)}, {vr(T+r,2)}, {vr(c+2,2)}, {vr(c,2)}")
    for r in range(0, 8, 2): A(f"v_pk_mul_f32 {vr(T+r,2)}, {vr(T+r,2)}, {vr(a+r,2)}")
    for r in range(8): A(f"v_exp_f32 v{T+r}, v{T+r}")
    for r in range(0, 8, 2): A(f"v_pk_mul_f32 {vr(a+r,2)}, {vr(a+r,2)}, {vr(a+8+r,2)}")
    for r in range(0, 8, 2): A(f"v_pk_fma_f32 {vr(T+r,2)}, {vr(T+r,2)}, {vr(c+4,2)}, {vr(c+4,2)}")
    for r in range(8): A(f"v_rcp_f32 v{T+r}, v{T+r}")
    A("s_nop 0")
    for r in range(0, 8, 2): A(f"v_pk_mul_f32 {vr(a+r,2)}, {vr(a+r,2)}, {vr(T+r,2)}")
    for d in range(4): A(f"v_cvt_pk_bf16_f32 v{a+8+d}, v{a+2*d}, v{a+2*d+1}")
def ffn_st(n, tt):
    a = ACC + 16 * (2 * n + tt)
    A(f"s_add_u32 s63, s70, {2048*n + tt*112*1024}")
    A(f"buffer_store_dwordx4 {vr(a+8,4)}, v2, s[20:23], s63 offen sc1")
def qkv(n, zoff):
    A(f"""s_add_u32 s60, s54, {zoff}
    s_cmp_lt_u32 s60, 8
    s_mov_b32 s62, {f32(0.25*LOG2E)}
    s_cselect_b32 s62, s62, 1.0
    v_mul_f32 v4, s62, v248
    v_mul_f32 v6, s62, v252
    v_mul_f32 v5, s62, v248
    v_mul_f32 v7, s62, v252""")
    for tt in range(2):
        a = ACC + 16 * (2 * n + tt)
        for r in range(0, 16, 2): A(f"v_pk_mul_f32 {vr(a+r,2)}, {vr(a+r,2)}, {vr(4+2*tt,2)}")
        for d in range(8): A(f"v_cvt_pk_bf16_f32 v{a+d}, v{a+2*d}, v{a+2*d+1}")
        A(f"s_add_u32 s63, s71, {zoff*4*65536 + tt*1024}")
        A(f"buffer_store_dwordx4 {vr(a,4)}, v2, s[20:23], s63 offen sc1")
        A(f"s_add_u32 s63, s63, 65536")
        A(f"buffer_store_dwordx4 {vr(a+4,4)}, v2, s[20:23], s63 offen sc1")
def flag(vm, mask, soff, imm=0, voff=8):
    A(f"s_waitcnt vmcnt({vm})\ns_mov_b64 exec, {mask}\nbuffer_store_dword v9, v{voff}, s[20:23], s{soff} offen offset:{imm} sc1\ns_mov_b64 exec, -1")
A("s_cmp_eq_u32 s50, 1")
A("s_cbranch_scc1 M_TC")
def ffs(n, tt): ffn(n, tt); ffn_st(n, tt)
DF = OPT["defer"]
qkv(4, 0)
if DF:
    ffn(3, 0); ffn(3, 1)
    A("s_barrier")
    ffn(2, 0); ffn(2, 1)
    if DF == 5: flag(0, 1, 72)
    if DF >= 2: ffn(1, 0); ffn(1, 1)
    if DF != 5: flag(0, 1, 72)
    nq = PR.n; PR.stamp()
    if DF >= 3: ffn(0, 0); ffn(0, 1)
    if DF >= 4: A("s_barrier")
    for n in (3, 2):
        for tt in range(2): ffn_st(n, tt)
    if DF == 1: ffs(1, 0); ffs(1, 1); ffs(0, 0); ffs(0, 1)
    elif DF == 2: ffn_st(1, 0); ffn_st(1, 1); ffs(0, 0); ffs(0, 1)
    else: ffn_st(1, 0); ffn_st(1, 1); ffn_st(0, 0); ffn_st(0, 1)
    flag(4, 1, 73)
else:
    ffs(3, 0); ffs(3, 1)
    A("s_barrier")
    ffs(2, 0); ffs(2, 1)
    flag(4, 1, 72)
    ffs(1, 0); ffs(1, 1); ffs(0, 0); ffs(0, 1)
    flag(4, 1, 73)
A("s_branch M_TJ")
A.label("M_TC")
qkv(4, 2); qkv(3, 1); qkv(2, 0)
A("s_barrier")
if DF:
    order = [(1, 0), (1, 1), (0, 0), (0, 1)]
    for t in order[:OPT["cq"]]: ffn(*t)
    flag(0, 7, 72)
    PR.n = nq; PR.stamp()
    for t in order[OPT["cq"]:]: ffn(*t)
    if DF >= 4: A("s_barrier")
    ffn_st(1, 0); ffn_st(1, 1); ffn_st(0, 0); ffn_st(0, 1)
else:
    ffs(1, 0); ffs(1, 1); ffs(0, 0); ffs(0, 1)
    flag(4, 7, 72)
A.label("M_TJ")
PR.stamp()
A("s_mov_b32 s15, s14")
d_setup_w()
XRr, BF, WF, AD, AS = 8, 16, 80, 96, 160
BD, NS = 8, 36
flag(0, 1, 74)
PR.stamp()
DQ = VQ(A)
A(f"""s_and_b32 s57, s2, 6
s_lshl_b32 s50, s57, 1
s_and_b32 s57, s2, 1
s_lshl_b32 s57, s57, 4
s_add_u32 s50, s50, s57
s_lshr_b32 s57, s2, 3
s_and_b32 s57, s57, 3
s_add_u32 s50, s50, s57
s_lshr_b32 s51, s2, 5
v_lshlrev_b32 v3, 4, v1
s_lshl_b32 s55, s50, 13
s_lshl_b32 s57, s15, 10
s_add_u32 s55, s55, s57
s_add_u32 s55, s55, {WS_FH}
s_add_u32 s75, s55, 4096
v_min_u32 v226, 5, v1
v_lshlrev_b32 v226, 7, v226
v_min_u32 v227, 7, v1
v_lshlrev_b32 v227, 7, v227""")
ld0 = "buffer_load_dword v228, v226, s[20:23], s55 offen sc1"
ld1 = "buffer_load_dword v228, v227, s[20:23], s75 offen sc1"
RP = OPT["rpf"]
for k in range(RP):
    st = WD + k
    A(f"s_lshl_b32 s44, s{UFB[st>>2]}, 14\ns_add_u32 s44, s44, s40")
    if st & 3: A(f"s_add_u32 s44, s44, {(st&3)*16384}")
    A(f"s_add_u32 s45, s44, 8192")
    A(f"buffer_load_dwordx4 {vr(160+8*k,4)}, v2, s[24:27], s44 offen")
    A(f"buffer_load_dwordx4 {vr(164+8*k,4)}, v2, s[24:27], s45 offen")
if OPT["ms"]: A(f"s_sleep {OPT['ms']}")
A(ld0)
A(f"""s_lshl_b32 s57, s50, 1
s_and_b32 s58, s15, 1
s_add_u32 s59, s57, s58
s_xor_b32 s58, s58, 1
s_add_u32 s57, s57, s58
s_mul_i32 s64, s59, {112*1024}
s_add_u32 s64, s64, {WS_H}
s_mul_i32 s65, s57, {112*1024}
s_add_u32 s65, s65, {WS_H}
s_lshl_b32 s58, s15, 13
s_add_u32 s58, s58, {WS_O}
s_lshl_b32 s67, s59, 15
s_add_u32 s67, s67, s58
s_lshl_b32 s53, s57, 15
s_add_u32 s53, s53, s58
v_and_b32 v6, 31, v1
v_lshlrev_b32 v6, 10, v6
v_lshrrev_b32 v7, 5, v1
v_lshlrev_b32 v7, 4, v7
v_add_u32 v224, v6, v7
s_lshl_b32 s54, s59, 15
s_lshl_b32 s57, s51, 7
s_add_u32 s54, s54, s57
s_lshr_b32 s57, s15, 1
s_lshl_b32 s57, s57, 6
s_add_u32 s54, s54, s57
v_lshrrev_b32 v6, 5, v1
v_lshlrev_b32 v6, 8, v6
v_bfe_u32 v7, v1, 2, 2
v_lshlrev_b32 v7, 6, v7
v_add_u32 v6, v6, v7
v_and_b32 v7, 3, v1
v_lshlrev_b32 v7, 3, v7
v_add_u32 v6, v6, v7
v_bfe_u32 v7, v1, 4, 1
v_lshlrev_b32 v7, 5, v7
v_add_u32 v6, v6, v7
s_lshl_b32 s57, s57, 3
v_add_u32 v6, s57, v6
v_xor_b32 v7, 512, v6
v_add_u32 v4, s43, v6
v_add_u32 v5, s43, v7
v_add_u32 v232, 0x10000, v4
v_add_u32 v233, 0x10000, v5
v_add_u32 v234, 0x20000, v4
v_add_u32 v235, 0x20000, v5
s_mov_b32 s32, s4
s_mov_b32 s33, s5
s_mov_b32 s34, 0x200000
s_mov_b32 s35, 0x20000
s_mov_b32 s38, 0x200000
s_mov_b32 s39, 0x20000
s_setprio {OPT['dprio']}
s_waitcnt vmcnt(0)""")
PR.stamp()
spin(A, "MH0", ld0, 228)
PR.stamp()
def htouch(lvl):
    if not OPT["htouch"]: return
    A(f"""v_bfe_u32 v229, v1, 2, 2
    v_lshlrev_b32 v230, 13, v229
    s_mul_i32 s57, s15, {24*1024}
    s_add_u32 s57, s57, {4096 if lvl == 0 else 0}
    v_add_u32 v230, s57, v230
    s_lshl_b32 s58, s15, 12
    s_add_u32 s58, s58, {96*1024}
    v_mov_b32 v231, {'s58' if lvl else 's57'}
    v_cmp_eq_u32 vcc, 3, v229
    v_and_b32 v229, 3, v1
    v_lshlrev_b32 v229, 10, v229
    v_cndmask_b32 v230, v230, v231, vcc
    v_add_u32 v230, v230, v229
    v_bfe_u32 v229, v1, 4, 1
    v_mul_u32_u24 v229, {112*1024}, v229
    v_add_u32 v230, v230, v229
    s_min_u32 s57, s64, s65
    s_lshl_b32 s58, s51, 7
    s_add_u32 s57, s57, s58
    s_mov_b32 exec_hi, 0
    buffer_load_dword v248, v230, s[20:23], s57 offen sc1
    s_mov_b64 exec, -1""")
    DQ.add("HT", 1)
htouch(0)
def issb(s):
    r = BF + 8 * (s % BD)
    if s < 28:
        o = [f"s_lshl_b32 s48, s{UFB[s>>2]}, 10", "s_add_u32 s49, s48, s65", "s_add_u32 s48, s48, s64"] if (s & 3) == 0 else []
    else:
        o = [f"s_add_u32 s48, s67, {(s-28)*1024}", f"s_add_u32 s49, s53, {(s-28)*1024}"] if (s & 3) == 0 else []
    DQ.add(f"B{s}", 2)
    return [o + [f"buffer_load_dwordx4 {vr(r,4)}, v3, s[20:23], s48 offen offset:{(s&3)*1024} sc1"],
            [f"buffer_load_dwordx4 {vr(r+4,4)}, v3, s[20:23], s49 offen offset:{(s&3)*1024} sc1"]]
for s in range(BD - 1): emit(issb(s))
def wtouch2():
    A(f"""v_lshrrev_b32 v229, 4, v1
    v_mov_b32 v230, s{UFB[3]}
    v_mov_b32 v231, s{UFB[4]}
    v_cmp_eq_u32 vcc, 1, v229
    s_lshr_b32 s57, s2, 3
    s_and_b32 s57, s57, 3
    v_cndmask_b32 v230, v230, v231, vcc
    v_mov_b32 v231, s{UFB[5]}
    v_cmp_eq_u32 vcc, 2, v229
    s_lshl_b32 s57, s57, 10
    s_add_u32 s58, s57, s40
    v_cndmask_b32 v230, v230, v231, vcc
    v_mov_b32 v231, s{UFB[6]}
    v_cmp_eq_u32 vcc, 3, v229
    v_and_b32 v229, 15, v1
    v_lshlrev_b32 v229, 12, v229
    v_cndmask_b32 v230, v230, v231, vcc
    v_lshlrev_b32 v230, 14, v230
    v_add_u32 v230, v230, v229
    buffer_load_dword v246, v230, s[24:27], s58 offen
    v_lshlrev_b32 v229, 12, v1
    s_add_u32 s58, s57, s42
    s_mov_b32 exec_hi, 0
    buffer_load_dword v247, v229, s[28:31], s58 offen
    s_mov_b64 exec, -1""")
    DQ.add("WT", 2)
if OPT["wt2"] == 1: wtouch2()
A(f"buffer_load_dwordx4 {vr(XRr,4)}, v224, s[32:35], s54 offen")
A(f"buffer_load_dwordx4 {vr(XRr+4,4)}, v224, s[32:35], s54 offen offset:32")
DQ.add("X", 2)
def rdw(s):
    slot = s % WD; w = WF + 8 * (s & 1)
    hi, lo = DREG[slot] >> 16, DREG[slot] & 0xffff
    vb = [4, 232, 234][hi]
    return [f"ds_read_b64_tr_b16 {vr(w+4*u+2*sec,2)}, v{vb+u} offset:{lo+sec*1024}" for u in range(2) for sec in range(2)]
for i in rdw(0): A(i)
DQ.wait("B0")
L1S = OPT["l1s"]
def tB(sp): return max(sp - (BD - 1), L1S) if sp >= 12 else sp - (BD - 1)
def xaddr(base3, which, a, qd):
    k = (a - 1) * 4 + qd
    reg = DREG[(8 if which == 0 else 0) + (k >> 1)] + (k & 1) * 1024
    return base3[reg >> 16], reg & 0xffff
def dump(which, acc):
    for a in range(1, 4):
        for qd in range(4):
            vb, off = xaddr([236, 6, 7], which, a, qd)
            A(f"ds_write_b128 v{vb}, {vr(acc+16*a+4*qd,4)} offset:{off}")
def fetch(which, acc):
    for a in range(1, 4):
        b = 237 + 3 * (a - 1)
        for qd in range(4):
            vb, off = xaddr([b, b + 1, b + 2], which, a, qd)
            A(f"ds_read_b128 {vr(acc+16*a+4*qd,4)}, v{vb} offset:{off}")
def sum4(acc):
    for r in range(0, 16, 2):
        A(f"v_pk_add_f32 {vr(acc+r,2)}, {vr(acc+r,2)}, {vr(acc+16+r,2)}\nv_pk_add_f32 {vr(acc+32+r,2)}, {vr(acc+32+r,2)}, {vr(acc+48+r,2)}")
    for r in range(0, 16, 2): A(f"v_pk_add_f32 {vr(acc+r,2)}, {vr(acc+r,2)}, {vr(acc+32+r,2)}")
for s in range(NS):
    w = WF + 8 * (s & 1); b = BF + 8 * (s % BD)
    acc = AD if s < 28 else AS
    if s == 12: PR.stamp()
    if s == 28:
        PR.stamp()
        A("s_nop 7\ns_nop 1")
        dump(0, AD)
        DQ.wait("PO")
        A("""v_cmp_eq_u32 vcc, s80, v228
        s_mov_b32 s46, 0
        s_cmp_eq_u64 vcc, -1
        s_cbranch_scc1 M_OOK
        s_mov_b32 s46, 1""")
        A(ld2)
        A("s_call_b64 s[66:67], M_GATE" if False else "s_call_b64 s[70:71], M_GATE")
        A("s_waitcnt vmcnt(0)")
        spin(A, "MO", ld2, 228)
        A.label("M_OOK")
        PR.stamp()
        for sp in range(28, 36): emit(issb(sp))
        A("s_cmp_eq_u32 s46, 1\ns_cbranch_scc1 M_GDONE\ns_call_b64 s[70:71], M_GATE")
        A.label("M_GDONE")
        DQ.wait("B28")
    if s + 1 < NS:
        DQ.wait([f"W{s+1}", f"B{s+1}"])
        for i in rdw(s + 1): A(i)
        A("s_waitcnt lgkmcnt(4)")
    else:
        A("s_waitcnt lgkmcnt(0)")
    if s == L1S - 3:
        A(ld1); DQ.add("P1", 1)
    if s == L1S:
        DQ.wait("P1")
        spin(A, "MH1", ld1, 228)
        htouch(1)
    if s == 0:
        A("v_add_u32 v236, s43, v3\nv_add_u32 v6, 0x10000, v236\nv_add_u32 v7, 0x20000, v236")
    if s == 20:
        for a in range(1, 4):
            bb = 237 + 3 * (a - 1)
            A(f"s_xor_b32 s57, s15, {a}\ns_lshl_b32 s57, s57, 11\nv_add_u32 v{bb}, s57, v3\nv_add_u32 v{bb+1}, 0x10000, v{bb}\nv_add_u32 v{bb+2}, 0x20000, v{bb}")
    if s == 25:
        A(f"""s_lshl_b32 s55, s50, 12
        s_lshl_b32 s57, s15, 10
        s_add_u32 s55, s55, s57
        s_add_u32 s55, s55, {WS_FO}""")
        ld2 = "buffer_load_dword v228, v227, s[20:23], s55 offen sc1"
        A(ld2); DQ.add("PO", 1)
    grp = []
    for sp in range(BD - 1, 28):
        if tB(sp) == s: grp += issb(sp)
    if 1 <= s <= RP:
        reg = DREG[s - 1]; vb = [236, 6, 7][reg >> 16]
        grp += [[f"ds_write_b128 v{vb}, {vr(160+8*(s-1),4)} offset:{reg & 0xffff}"], [f"ds_write_b128 v{vb}, {vr(164+8*(s-1),4)} offset:{(reg & 0xffff)+1024}"]]
    elif s >= 1 and s + WD - 1 < NS: grp += issw(s + WD - 1, DQ)
    per = [grp[(len(grp) * a) // 4:(len(grp) * (a + 1)) // 4] for a in range(4)]
    for a in range(4):
        u, tt = a >> 1, a & 1
        r = acc + 16 * a
        c = "0" if s in (0, 28) else vr(r, 16)
        A(f"v_mfma_f32_32x32x16_bf16 {vr(r,16)}, {vr(w+4*u,4)}, {vr(b+4*tt,4)}, {c}")
        for g in per[a]:
            for i in g: A(i)
PR.stamp()
A("s_nop 7\ns_nop 1")
dump(1, AS)
A("s_waitcnt lgkmcnt(0)")
A("s_barrier")
fetch(1, AS)
A("s_waitcnt lgkmcnt(0)")
sum4(AS)
for r in range(0, 16, 2): A(f"v_pk_fma_f32 {vr(AD+r,2)}, {vr(AD+r,2)}, {vr(AS+r,2)}, {vr(AD+32+r,2)}")
for d in range(8): A(f"v_cvt_pk_bf16_f32 v{XRr+d}, v{AD+2*d}, v{AD+2*d+1}")
A("s_nop 1")
for j in range(2):
    A(f"v_permlane32_swap_b32 v{XRr+4*j}, v{XRr+4*j+2}\nv_permlane32_swap_b32 v{XRr+4*j+1}, v{XRr+4*j+3}")
osc = "sc1" if OPT["osc"] else ""
A(f"buffer_store_dwordx4 {vr(XRr,4)}, v224, s[36:39], s54 offen {osc}")
A(f"buffer_store_dwordx4 {vr(XRr+4,4)}, v224, s[36:39], s54 offen offset:32 {osc}")
PR.stamp()
PR.dump(2)
A("s_endpgm")
def gate():
    A("s_waitcnt lgkmcnt(0)")
    A("s_barrier")
    fetch(0, AD)
    for j in range(2):
        A(f"v_permlane32_swap_b32 v{XRr+4*j}, v{XRr+4*j+2}\nv_permlane32_swap_b32 v{XRr+4*j+1}, v{XRr+4*j+3}")
    A("s_waitcnt lgkmcnt(0)")
    sum4(AD)
    T = AD + 16
    for r in range(16): A(f"v_mul_f32 v{T+r}, {f32(-LOG2E)}, v{AD+r}")
    for r in range(16): A(f"v_exp_f32 v{T+r}, v{T+r}")
    for d in range(8): A(f"v_lshlrev_b32 v{T+16+2*d}, 16, v{XRr+d}\nv_and_b32 v{T+17+2*d}, 0xffff0000, v{XRr+d}")
    for r in range(16): A(f"v_add_f32 v{T+r}, 1.0, v{T+r}")
    for r in range(16): A(f"v_rcp_f32 v{T+r}, v{T+r}")
    A("s_nop 0")
    for r in range(0, 16, 2): A(f"v_pk_mul_f32 {vr(AD+r,2)}, {vr(AD+r,2)}, {vr(T+r,2)}")
A.label("M_GATE")
gate()
A("s_setpc_b64 s[70:71]")
A.label("L_CODE_END")
A.raw('.section .rodata,"a"')
A.raw(kernel_desc(NAME, 256))
txt = A.text()
if OPT.get("plainst"):
    import re
    txt = re.sub(r"(buffer_store_dwordx4 .*s63 offen) sc1", r"\1", txt)
if OPT.get("align", 1):
    import align
    txt = align.align(txt)
print(txt)
```

```python
import sys, math
from asmlib import *

NAME = "recurrent_scan__sliding_block__geglu_ffn__prompt_kernel"
WS_Q = 0; WS_K = 2 << 20; WS_V = 4 << 20; WS_O = 6 << 20; WS_H = 8 << 20
WS_TOK = 16 << 20
WS_CS = (16 << 20) + 65536
WS_FO = 17 << 20
WS_FH = (17 << 20) + (1 << 18)
WS_FQ = (17 << 20) + (2 << 18)
LOG2E = 1.4426950408889634
OPT = dict(prof=0, rot=2, codepf=1, wd=14, sleep=8, warm=7, thr=6, aprio=3, l2pf=0, rotd=1, hs=56, dprio=0, wtouch=0, htouch=1, wts=10, defer=1, gat=10, gc=13, hprio=0, l1s=10, osc=0, cq=2, ms=16, ntx=0, ntw=0, share=1, l2end=11, aprio2=3, rpf=0, pub=6, gd=1, vw=4, epf=16, tlb=0, wt2=0, amap=0, xs=0)
for a in sys.argv[1:]:
    k, v = a.split("="); OPT[k] = int(v)
XR = 0; XS = 16384; WR = 49152; WSL = 20480; EX = 151552
EX_TOK = EX; EX_COL = EX + 4096
DREG = [32768, 40960, 69632, 77824,   86016, 94208, 102400,   110592, 118784, 0, 8192,   126976, 135168, 143360]
DAVAIL = {13: 4, 14: 3, 15: 4, 16: 3}
LONE = 26624
SPIN = 20000

class Prof:
    def __init__(self, A, base=82): self.A = A; self.n = 0; self.base = base
    def stamp(self, real=False):
        if not OPT["prof"]: return
        i = self.n; self.n += 1
        assert i < 16
        self.A(f"{'s_memrealtime' if (real or OPT['prof'] == 2) else 's_memtime'} s[100:101]")
        self.A("s_waitcnt lgkmcnt(0)")
        self.A(f"s_mov_b32 s{self.base+i}, s100")
    def dump(self, vt):
        if not OPT["prof"]: return
        A = self.A
        while self.n < 15: self.stamp()
        self.stamp(True)
        A(f"s_lshl_b32 s68, s2, 3\ns_add_u32 s68, s68, s14\ns_lshl_b32 s68, s68, 6\ns_add_u32 s68, s68, {32<<20}")
        A(f"v_mov_b32 v{vt}, 0")
        for i in range(self.n):
            A(f"v_mov_b32 v{vt+1}, s{self.base+i}")
            A(f"buffer_store_dword v{vt+1}, v{vt}, s[20:23], s68 offen offset:{4*i}")

class VQ:
    def __init__(self, A): self.A = A; self.q = []
    def add(self, tag, n): self.q.append((tag, n))
    def wait(self, tags):
        if isinstance(tags, str): tags = [tags]
        idx = max([i for i, (t, _) in enumerate(self.q) if t in tags], default=-1)
        if idx < 0: return
        rest = sum(c for _, c in self.q[idx + 1:])
        assert rest < 64
        self.A(f"s_waitcnt vmcnt({rest})")
        del self.q[:idx + 1]
    def has(self, tag): return tag in [t for t, _ in self.q]
    def clear(self): self.q = []

def spin(A, name, load, vval, maskexpr=None, cnt=56):
    A(f"""v_cmp_eq_u32 vcc, s80, v{vval}
    s_mov_b32 s{cnt}, 0
    s_cmp_eq_u64 vcc, -1
    s_cbranch_scc1 {name}_OK""")
    A.label(f"{name}_P")
    A(f"""s_sleep {OPT['sleep']}
    {load}
    s_add_u32 s{cnt}, s{cnt}, 1
    s_waitcnt vmcnt(0)
    v_cmp_eq_u32 vcc, s80, v{vval}
    s_cmp_gt_u32 s{cnt}, {SPIN}
    s_cbranch_scc1 {name}_OK
    s_cmp_eq_u64 vcc, -1
    s_cbranch_scc0 {name}_P""")
    A.label(f"{name}_OK")

A = Asm()
A.raw(f"""; recurrent_scan__sliding_block__geglu_ffn__prompt -- hand-designed gfx950 kernel, emitted by my own python generator.
; @launch grid=(256,1,1) block=(512,1,1) lds=163840
.amdgcn_target "amdgcn-amd-amdhsa--gfx950"
.text""")
kernel_header(A, NAME)
PR = Prof(A)
A("""s_load_dwordx4 s[4:7], s[0:1], 0
s_load_dwordx4 s[8:11], s[0:1], 32
s_load_dwordx4 s[16:19], s[0:1], 64""")
if OPT["epf"]:
    A("s_getpc_b64 s[24:25]")
    A.label("L_PC0")
    nl = OPT["epf"]
    A(f"""v_and_b32 v16, {nl-1}, v0
    v_bfe_u32 v17, v0, 6, 2
    v_mul_u32_u24 v17, {nl}, v17
    v_add_lshl_u32 v16, v16, v17, 7
    v_add_u32 v17, L_M-L_PC0, v16
    v_cmp_gt_u32 vcc, 256, v0
    s_mov_b64 exec, {(1<<nl)-1}
    s_nop 0
    v_cndmask_b32 v16, v16, v17, vcc
    global_load_dword v29, v16, s[24:25]
    s_mov_b64 exec, -1""")
A("""s_cmp_ge_u32 s2, 256
s_cbranch_scc1 L_END""")
if OPT.get("scramble"):
    A("s_lshr_b32 s57, s2, 3\ns_lshl_b32 s58, s2, 5\ns_or_b32 s2, s57, s58\ns_and_b32 s2, s2, 255")
A("""v_and_b32 v1, 63, v0
v_lshrrev_b32 v16, 6, v0
s_and_b32 s57, s2, 7
v_readfirstlane_b32 s14, v16
s_lshr_b32 s58, s2, 3
s_and_b32 s44, s57, 1
s_and_b32 s45, s58, 7
s_lshl_b32 s47, s44, 3
s_add_u32 s47, s47, s45
s_lshr_b32 s46, s57, 1
s_lshr_b32 s49, s58, 3
s_lshl_b32 s48, s46, 2
s_add_u32 s48, s48, s49
s_mul_i32 s51, s46, 3
s_add_u32 s52, s51, s49
s_lshl_b32 s53, s52, 1
s_add_u32 s57, s46, 24
s_add_u32 s54, s51, 12
s_cmp_eq_u32 s49, 3
s_cselect_b32 s50, 1, 0
s_cselect_b32 s53, s57, s53
s_cselect_b32 s54, s54, s52
s_and_b32 s15, s14, 3
s_cmp_lt_u32 s14, 4
s_cbranch_scc1 L_M""")
def ws_srd():
    A("""s_mov_b32 s20, s18
    s_mov_b32 s21, s19
    s_mov_b32 s22, 0x10000000
    s_mov_b32 s23, 0x20000
    s_mov_b32 s18, 256
    s_mov_b32 s19, 0x20000""")
vDW = [2, 3, 4, 5, 6]; vDX = [7, 8]
ROT = OPT["rot"]
A("""s_lshl_b32 s58, s15, 15
v_lshrrev_b32 v16, 3, v1
v_lshlrev_b32 v16, 10, v16
v_add_u32 v16, s58, v16
v_lshrrev_b32 v17, 4, v1
v_xor_b32 v17, v17, v1
v_and_b32 v17, 7, v17
v_lshlrev_b32 v17, 4, v17
v_add_u32 v7, v16, v17
v_xor_b32 v8, 64, v7
s_lshl_b32 s12, s15, 12
s_lshl_b32 s13, s15, 10
s_lshl_b32 s57, s47, 17""")
if ROT == 1: A("s_lshl_b32 s81, s49, 2\ns_lshl_b32 s58, s45, 1\ns_add_u32 s81, s81, s58")
elif ROT == 2: A("s_add_u32 s81, s49, s45\ns_lshl_b32 s81, s81, 2")
elif ROT == 3: A("s_add_u32 s81, s49, s45\ns_lshl_b32 s81, s81, 3")
elif ROT == 0: A("s_mov_b32 s81, 0")
A("""s_waitcnt lgkmcnt(0)
s_add_u32 s72, s4, s57
s_addc_u32 s73, s5, 0
s_mov_b32 s74, 0x20000
s_mov_b32 s75, 0x20000""")
PR.stamp(True); PR.stamp()
def dma_x(u):
    o = []
    for jj in range(4):
        pre = [f"s_add_u32 s56, s81, {2*u}", "s_and_b32 s56, s56, 15", "s_lshl_b32 s56, s56, 6"] if jj == 0 else []
        o.append(pre + [f"s_add_u32 m0, s12, {XR + (u%3)*XS + jj*1024}", f"s_add_u32 s59, s56, {jj*8192}",
                        f"buffer_load_dwordx4 v{vDX[jj&1]}, s[72:75], s59 offen {'nt ' if 2*u < OPT['ntx'] else ''}lds"])
    return o
def emit(groups):
    for g in groups:
        for i in g: A(i)
    return len(groups)
A(f"s_setprio {OPT['hprio']}")
Q = VQ(A)
n0 = emit(dma_x(0))
A("s_lshl_b32 s55, s53, 7\ns_lshl_b32 s56, s54, 7")
tabA = [(8, 55, 0), (8, 55, 128), (10, 55, 0), (10, 55, 128), (6, 56, 0)]
tabC = [(8, 55, 0), (10, 55, 0), (6, 56, 0), (6, 56, 128), (6, 56, 256)]
A("""v_bfe_u32 v16, v1, 2, 3
s_lshl_b32 s57, s15, 3
v_add_u32 v16, s57, v16
v_lshrrev_b32 v17, 5, v1
v_lshlrev_b32 v17, 6, v17
v_and_b32 v18, 3, v1
v_lshlrev_b32 v18, 4, v18
v_add_u32 v17, v17, v18
s_lshl_b32 s66, s50, 5
s_xor_b32 s67, s66, 32""")
swap = {0: None, 1: 66, 2: 67, 3: 67, 4: None}
for D in range(5):
    S = 24 + 4 * D
    (pa, ca, oa), (pc, cc_, oc) = tabA[D], tabC[D]
    A("s_cmp_eq_u32 s50, 1")
    if pa != pc:
        A(f"s_cselect_b32 s{S}, s{pc}, s{pa}\ns_cselect_b32 s{S+1}, s{pc+1}, s{pa+1}")
        src = S
    else: src = pa
    if ca != cc_: A(f"s_cselect_b32 s57, s{cc_}, s{ca}"); cs = 57
    else: cs = ca
    if oa != oc: A(f"s_cselect_b32 s58, {oc}, {oa}")
    sa = 3072 if pa == 6 else 3584; sc = 3072 if pc == 6 else 3584
    A(f"s_movk_i32 s{60+D}, {sa}")
    if sa != sc: A(f"s_cselect_b32 s{60+D}, {sc}, s{60+D}")
    if oa != oc: A(f"s_add_u32 s57, s{cs}, s58"); cs = 57
    elif oa: A(f"s_add_u32 s57, s{cs}, {oa}"); cs = 57
    A(f"s_add_u32 s{S}, s{src}, s{cs}\ns_addc_u32 s{S+1}, s{src+1}, 0")
    A(f"v_mul_u32_u24 v18, s{60+D}, v16")
    if swap[D]:
        A(f"v_xor_b32 v19, s{swap[D]}, v17\nv_add_u32 v{vDW[D]}, v18, v19")
    else:
        A(f"v_add_u32 v{vDW[D]}, v18, v17")
    A(f"s_lshl_b32 s{S+2}, s{60+D}, 9\ns_mov_b32 s{S+3}, 0x20000")
def dma_w(k):
    o = []
    for D in range(5):
        S = 24 + 4 * D
        pre = [f"s_add_u32 s56, s81, {k}", "s_and_b32 s56, s56, 15", "s_lshl_b32 s56, s56, 5"] if D == 0 else []
        o.append(pre + [f"s_add_u32 m0, s13, {WR + (k%5)*WSL + D*4096}", f"s_mul_i32 s59, s{60+D}, s56",
                        f"buffer_load_dwordx4 v{vDW[D]}, s[{S}:{S+3}], s59 offen {'nt ' if k < OPT['ntw'] else ''}lds"])
    return o
def G(k):
    g = (dma_x(k // 2) if k % 2 == 0 else []) + dma_w(k)
    Q.add(f"S{k}", emit(g))
Q.add("S0", n0 + emit(dma_w(0)))
G(1)
ws_srd()
A("""s_or_b32 s57, s2, s15
s_cmp_lg_u32 s57, 0
s_cbranch_scc1 H_NONONCE
s_memrealtime s[56:57]
s_waitcnt lgkmcnt(0)
s_mul_i32 s56, s56, 0x9e3779b1
s_or_b32 s56, s56, 1
v_mov_b32 v16, 0
v_mov_b32 v17, s56
buffer_store_dword v17, v16, s[16:19], 0 offen sc1""")
A.label("H_NONONCE")
A("s_lshl_b32 s69, s47, 5")
if ROT == 2: A("s_lshr_b32 s55, s45, 2\ns_lshl_b32 s57, s44, 1\ns_add_u32 s55, s55, s57")
elif ROT == 1: A("s_mov_b32 s55, s44")
elif ROT == 3: A("s_lshr_b32 s55, s45, 1\ns_lshl_b32 s57, s44, 2\ns_add_u32 s55, s55, s57")
if ROT == 0: A("s_and_b32 s55, s45, 3")
NDELTA = {0: 4, 1: 2, 2: 4, 3: 8}[ROT]
def pf_setup():
    A("""v_lshrrev_b32 v20, 3, v1
    v_and_b32 v21, 3, v20
    v_lshrrev_b32 v20, 2, v20
    v_lshlrev_b32 v20, 5, v20
    v_add_u32 v20, v20, v21
    s_lshl_b32 s57, s45, 2
    v_add_u32 v20, s57, v20
    v_and_b32 v21, 7, v1
    v_lshlrev_b32 v21, 4, v21""")
    for D in range(5):
        A(f"v_mul_u32_u24 v{116+D}, s{60+D}, v20\nv_add_u32 v{116+D}, v{116+D}, v21")
    A("""v_lshrrev_b32 v20, 3, v1
    v_lshlrev_b32 v20, 10, v20
    s_lshl_b32 s57, s49, 15
    s_lshl_b32 s58, s15, 13
    s_add_u32 s57, s57, s58
    v_add3_u32 v121, v20, v21, s57""")
def pf_burst(u0, u1):
    n = 0
    for u in range(u0, u1):
        A(f"s_movk_i32 s59, {u*128}\nbuffer_load_dwordx4 {vr(128+4*u,4)}, v121, s[72:75], s59 offen"); n += 1
    for u in range(u0, u1):
        A(f"s_mul_i32 s59, s{PFS}, {64*u}\nbuffer_load_dwordx4 {vr(160+4*u,4)}, v122, s[{PFR}:{PFR+3}], s59 offen"); n += 1
        lb = f"H_PF{u}"
        A(f"s_cmp_eq_u32 s15, {u%4}\ns_cbranch_scc0 {lb}\ns_mul_i32 s59, s64, {64*u}\nbuffer_load_dwordx4 {vr(192+4*(u>>2),4)}, v120, s[40:43], s59 offen")
        A.label(lb)
    Q.add("PF", n)
PFR, PFS = 76, 71
BUR = {}
if OPT.get("burst"):
    pf_setup()
    A(f"s_mov_b32 s{PFR}, s24\ns_mov_b32 s{PFR+1}, s25\ns_mov_b32 s{PFR+2}, s26\ns_mov_b32 s{PFR+3}, 0x20000\ns_mov_b32 s{PFS}, s60\nv_mov_b32 v122, v116")
    for D in (1, 2, 3):
        A(f"""s_cmp_eq_u32 s15, {D}
        s_cselect_b32 s{PFR}, s{24+4*D}, s{PFR}
        s_cselect_b32 s{PFR+1}, s{25+4*D}, s{PFR+1}
        s_cselect_b32 s{PFR+2}, s{26+4*D}, s{PFR+2}
        s_cselect_b32 s{PFS}, s{60+D}, s{PFS}
        s_cselect_b64 vcc, -1, 0
        v_cndmask_b32 v122, v122, v{116+D}, vcc""")
    BUR = {1: {-1: (1, 3), 1: (3, 6), 5: (6, 8)}, 2: {-1: (1, 4), 2: (4, 8)}, 3: {-1: (1, 2), 0: (2, 3), 1: (3, 4), 3: (4, 5), 5: (5, 6), 7: (6, 7), 9: (7, 8)}, 4: {-1: (1, 8)}}[OPT["burst"]]
    pf_burst(*BUR[-1])
A(f"""v_lshrrev_b32 v16, 5, v1
v_lshlrev_b32 v16, 10, v16
v_bfe_u32 v17, v1, 2, 2
v_lshlrev_b32 v17, 6, v17
v_add_u32 v16, v16, v17
v_and_b32 v17, 3, v1
v_lshlrev_b32 v17, 3, v17
v_add_u32 v16, v16, v17
v_bfe_u32 v17, v1, 4, 1
v_lshlrev_b32 v17, 5, v17
s_lshr_b32 s58, s15, 1
s_lshl_b32 s58, s58, 12
s_and_b32 s59, s15, 1
s_lshl_b32 s59, s59, 9
s_add_u32 s58, s58, s59
v_add3_u32 v12, v16, v17, s58
v_lshlrev_b32 v9, 4, v1
v_mov_b32 v10, 0""")
sched = {0: [2], 1: [3], 2: [4, 5]}
for s in range(3, 13): sched[s] = [s + 3]
def col_valu(js, fin):
    for j in js:
        b = 48 + 8 * j; acc = 44 + j
        for d in range(8):
            A(f"v_lshlrev_b32 v18, 16, v{b+d}\nv_and_b32 v19, 0xffff0000, v{b+d}")
            if d == 0: A(f"v_add_f32 v{acc}, v18, v19")
            else: A(f"v_add_f32 v{acc}, v{acc}, v18\nv_add_f32 v{acc}, v{acc}, v19")
    if fin:
        for j in range(3): A(f"v_mov_b32 v{72+2*j}, v{44+j}")
        A("s_nop 1")
        for j in range(3): A(f"v_permlane32_swap_b32 v{72+2*j}, v{44+j}")
        A("s_nop 1")
        for j in range(3): A(f"v_add_f32 v{72+2*j}, v{72+2*j}, v{44+j}")
def row_valu(part):
    if part == 0:
        for rrow in range(2):
            b = 32 + 4 * rrow; sx = 40 + 2 * rrow; sq = sx + 1
            for d in range(4):
                A(f"v_lshlrev_b32 v18, 16, v{b+d}\nv_and_b32 v19, 0xffff0000, v{b+d}")
                if d == 0: A(f"v_add_f32 v{sx}, v18, v19\nv_mul_f32 v{sq}, v18, v18\nv_fmac_f32 v{sq}, v19, v19")
                else: A(f"v_add_f32 v{sx}, v{sx}, v18\nv_fmac_f32 v{sq}, v18, v18\nv_add_f32 v{sx}, v{sx}, v19\nv_fmac_f32 v{sq}, v19, v19")
    else:
        for dpp in ("quad_perm:[1,0,3,2] row_mask:0xf bank_mask:0xf", "quad_perm:[2,3,0,1] row_mask:0xf bank_mask:0xf",
                    "row_half_mirror row_mask:0xf bank_mask:0xf", "row_mirror row_mask:0xf bank_mask:0xf",
                    "row_bcast:15 row_mask:0xa bank_mask:0xf", "row_bcast:31 row_mask:0xc bank_mask:0xf"):
            for r in range(40, 44): A(f"v_add_f32_dpp v{r}, v{r}, v{r} {dpp}")
def get_nonce(tag, vz, vn):
    A(f"""v_readfirstlane_b32 s80, v{vn}
    s_mov_b32 s57, 0
    s_cmp_eq_u32 s80, 0
    s_cbranch_scc0 {tag}_GOTN""")
    A.label(f"{tag}_POLLN")
    A(f"""buffer_load_dword v{vn}, v{vz}, s[16:19], 0 offen sc1
    s_add_u32 s57, s57, 1
    s_waitcnt vmcnt(0)
    v_readfirstlane_b32 s80, v{vn}
    s_cmp_gt_u32 s57, {SPIN}
    s_cbranch_scc1 {tag}_GOTN
    s_cmp_eq_u32 s80, 0
    s_cbranch_scc1 {tag}_POLLN""")
    A.label(f"{tag}_GOTN")
def publish():
    get_nonce("H", 10, 11)
    A(f"""s_lshl_b32 s57, s48, 4
    s_add_u32 s57, s57, s47
    s_mul_i32 s57, s57, 2560
    s_lshl_b32 s58, s15, 8
    s_add_u32 s57, s57, s58
    s_add_u32 s57, s57, {WS_CS}
    v_lshlrev_b32 v16, 3, v1
    v_mov_b32 v73, s80
    v_mov_b32 v75, s80
    v_mov_b32 v77, s80
    s_mov_b32 exec_hi, 0
    buffer_store_dwordx2 v[72:73], v16, s[20:23], s57 offen sc1
    buffer_store_dwordx2 v[74:75], v16, s[20:23], s57 offen offset:1024 sc1
    s_cmp_ge_u32 s15, 2
    s_cbranch_scc1 H_NO3
    buffer_store_dwordx2 v[76:77], v16, s[20:23], s57 offen offset:2048 sc1""")
    A.label("H_NO3")
    A(f"""s_mov_b32 exec_lo, 0
    s_mov_b32 exec_hi, 0x80000000
    s_lshl_b32 s57, s69, 6
    s_lshl_b32 s58, s48, 7
    s_add_u32 s57, s57, s58
    s_lshl_b32 s58, s15, 5
    s_add_u32 s57, s57, s58
    s_add_u32 s57, s57, {WS_TOK}
    v_mov_b32 v48, v40
    v_mov_b32 v49, v41
    v_mov_b32 v50, s80
    v_mov_b32 v51, s80
    v_mov_b32 v52, v42
    v_mov_b32 v53, v43
    v_mov_b32 v54, s80
    v_mov_b32 v55, s80
    buffer_store_dwordx4 v[48:51], v10, s[20:23], s57 offen sc1
    buffer_store_dwordx4 v[52:55], v10, s[20:23], s57 offen offset:16 sc1
    s_mov_b64 exec, -1""")
def gather_loads(part=None):
    if part == 0:
        for m in range(6):
            A(f"s_add_u32 s59, s66, {m*5120}")
            A(f"buffer_load_dwordx4 {vr(64+4*m,4)}, v16, s[20:23], s59 offen sc1")
        return
    for m in range(6 if part == 1 else 0, 8):
        A(f"s_add_u32 s59, s66, {m*5120}")
        A(f"buffer_load_dwordx4 {vr(64+4*m,4)}, v16, s[20:23], s59 offen sc1")
    for m in range(2):
        A(f"s_add_u32 s59, s66, {m*8*2560}")
        A(f"buffer_load_dwordx4 {vr(96+4*m,4)}, v17, s[20:23], s59 offen sc1")
    A("buffer_load_dwordx4 v[104:107], v18, s[20:23], s67 offen sc1")
def gather_prep():
    A(f"""s_mul_i32 s66, s48, {16*2560}
    s_add_u32 s66, s66, {WS_CS}
    v_and_b32 v18, 31, v1
    v_lshlrev_b32 v18, 4, v18
    v_lshrrev_b32 v16, 5, v1
    v_mul_u32_u24 v16, 2560, v16
    s_lshl_b32 s58, s15, 9
    v_add3_u32 v16, v16, v18, s58
    v_and_b32 v17, 7, v1
    v_lshlrev_b32 v17, 4, v17
    v_lshrrev_b32 v19, 3, v1
    v_mul_u32_u24 v19, 2560, v19
    s_lshl_b32 s58, s15, 7
    s_add_u32 s58, s58, 2048
    v_add3_u32 v17, v17, v19, s58
    s_lshl_b32 s67, s69, 6
    s_lshl_b32 s59, s15, 9
    s_add_u32 s67, s67, s59
    s_add_u32 s67, s67, {WS_TOK}""")
def gather_tags():
    tags = list(range(65, 104, 2)) + [106]
    A(f"v_and_b32 v19, v{tags[0]}, v{tags[1]}\nv_or_b32 v20, v{tags[0]}, v{tags[1]}")
    rest = tags[2:]
    for k in range(0, len(rest) - 1, 2):
        A(f"v_bitop3_b32 v19, v19, v{rest[k]}, v{rest[k+1]} bitop3:0x80\nv_or3_b32 v20, v20, v{rest[k]}, v{rest[k+1]}")
    if len(rest) % 2: A(f"v_and_b32 v19, v19, v{rest[-1]}\nv_or_b32 v20, v20, v{rest[-1]}")
    A("""v_xor_b32 v19, s80, v19
    v_xor_b32 v20, s80, v20
    v_or_b32 v19, v19, v20
    v_cmp_eq_u32 vcc, 0, v19
    s_nop 0
    s_cmp_eq_u64 vcc, -1""")
def gather_check():
    Q.wait("GA")
    gather_tags()
    A("s_cselect_b32 s70, 1, 0")
def gather_slow():
    A.label("H_GSLOW")
    A("s_mov_b32 s70, 0")
    A.label("H_GS1")
    gather_loads()
    A("s_waitcnt vmcnt(0)")
    gather_tags()
    A(f"""s_cbranch_scc1 H_GS2
    s_add_u32 s70, s70, 1
    s_cmp_gt_u32 s70, {SPIN}
    s_cbranch_scc1 H_GS2
    s_sleep 4
    s_branch H_GS1""")
    A.label("H_GS2")
    gather_cols()
    A("s_branch H_GTOK")
def gather_cols():
    st = 4
    while st <= 16:
        for r in range(64, 96, 2 * st):
            A(f"v_add_f32 v{r}, v{r}, v{r+st}\nv_add_f32 v{r+2}, v{r+2}, v{r+st+2}")
        st *= 2
    A("""v_add_f32 v96, v96, v100
    v_add_f32 v98, v98, v102
    v_mov_b32 v65, v64
    v_mov_b32 v67, v66
    v_add_f32_dpp v96, v96, v96 row_ror:8 row_mask:0xf bank_mask:0xf
    v_add_f32_dpp v98, v98, v98 row_ror:8 row_mask:0xf bank_mask:0xf
    v_permlane32_swap_b32 v65, v64
    v_permlane32_swap_b32 v67, v66
    v_mov_b32 v97, v96
    v_mov_b32 v99, v98
    v_add_f32 v64, v64, v65
    v_add_f32 v66, v66, v67
    v_permlane32_swap_b32 v97, v96
    v_permlane32_swap_b32 v99, v98
    s_nop 0
    v_add_f32 v96, v96, v97
    v_add_f32 v98, v98, v99
    v_mov_b32 v97, v96
    v_mov_b32 v99, v98
    s_nop 1
    v_permlane16_swap_b32 v97, v96
    v_permlane16_swap_b32 v99, v98
    s_nop 0
    v_add_f32 v96, v96, v97
    v_add_f32 v98, v98, v99""")
    for r, d in ((64, 68), (66, 69), (96, 70), (98, 71)):
        A(f"""v_cvt_pk_bf16_f32 v{r+1}, v{r}, v{r}
        v_and_b32 v{r+1}, 0xffff0000, v{r+1}
        v_sub_f32 v{r}, v{r}, v{r+1}
        v_cvt_pk_bf16_f32 v{d}, v{r+1}, v{r}""")
    A(f"""v_lshrrev_b32 v16, 1, v18
    s_lshl_b32 s58, s15, 8
    s_add_u32 s58, s58, {EX_COL}
    v_add_u32 v16, s58, v16
    ds_write_b64 v16, v[68:69]
    v_and_b32 v17, 7, v1
    v_lshlrev_b32 v17, 3, v17
    s_lshl_b32 s58, s15, 6
    s_add_u32 s58, s58, {EX_COL + 1024}
    v_add_u32 v17, s58, v17
    ds_write_b64 v17, v[70:71]""")
def gather_toks():
    c1 = -2.0 * math.sqrt(2.0 / math.pi) * LOG2E
    c3 = c1 * 0.044715
    A(f"""    v_mul_f32 v104, {f32(-1/512)}, v104
    v_mul_f32 v105, {f32(1/512)}, v105
    v_fma_f32 v105, -v104, v104, v105
    v_max_f32 v105, 0, v105
    v_add_f32 v113, {f32(1e-5)}, v105
    v_rsq_f32 v110, v113
    v_cvt_pk_bf16_f32 v108, v104, v104
    v_and_b32 v106, 0xffff0000, v108
    v_sub_f32 v106, v104, v106
    v_cvt_pk_bf16_f32 v109, v106, v106
    v_mul_f32 v111, {f32(c1)}, v110
    v_mul_f32 v112, v110, v110
    v_mul_f32 v112, v112, v110
    v_mul_f32 v112, {f32(c3)}, v112
    v_mov_b32 v114, s80
    v_lshlrev_b32 v18, 1, v18
    s_lshl_b32 s58, s15, 10
    s_add_u32 s58, s58, {EX_TOK}
    v_add_u32 v18, s58, v18
    ds_write_b128 v18, v[108:111]
    ds_write_b128 v18, v[112:115] offset:16
    s_waitcnt lgkmcnt(0)""")
WD = OPT["wd"]
UFB = [60, 61, 62, 76, 77, 78, 79]
def d_setup_w():
    A(f"""v_bfe_u32 v6, v1, 2, 3
    v_lshlrev_b32 v6, 10, v6
    v_lshrrev_b32 v7, 5, v1
    v_lshlrev_b32 v7, 6, v7
    v_add_u32 v6, v6, v7
    v_and_b32 v7, 3, v1
    v_lshlrev_b32 v7, 4, v7
    v_add_u32 v2, v6, v7
    s_lshl_b32 s43, s15, 11
    s_lshr_b32 s58, s2, 5
    s_lshl_b32 s40, s58, 7
    s_lshl_b32 s42, s15, 17
    s_add_u32 s42, s42, s40
    s_mul_i32 s57, s15, 24""")
    if OPT["rotd"]:
        A("""s_mul_i32 s59, s58, 11
        s_lshr_b32 s59, s59, 5
        s_mul_i32 s59, s59, 3
        s_sub_u32 s59, s58, s59""")
    else:
        A("s_mov_b32 s59, 0\ns_mov_b32 s58, 0")
    for u in range(3):
        A(f"""s_lshl_b32 s{UFB[u]}, s59, 3
        s_add_u32 s{UFB[u]}, s{UFB[u]}, s57
        s_add_u32 s{UFB[u]}, s{UFB[u]}, 4
        s_add_u32 s59, s59, 1
        s_cmp_eq_u32 s59, 3
        s_cselect_b32 s59, 0, s59""")
    A("s_lshl_b32 s41, s15, 2\ns_add_u32 s41, s41, 96")
    for u in range(4):
        A(f"""s_add_u32 s59, s58, {u}
        s_and_b32 s59, s59, 3
        s_lshl_b32 s44, s59, 3
        s_add_u32 s44, s44, s57
        s_cmp_eq_u32 s59, 3
        s_cselect_b32 s{UFB[3+u]}, s41, s44""")
    A("""s_waitcnt lgkmcnt(0)
    s_mov_b32 s26, 0x1c0000
    s_mov_b32 s27, 0x20000
    s_mov_b32 s30, 0x80000
    s_mov_b32 s31, 0x20000""")
def issw(s, q):
    slot = s % WD
    if s < 28:
        srd = 24
        o = [f"s_lshl_b32 s44, s{UFB[s>>2]}, 14", "s_add_u32 s44, s44, s40"]
        if s & 3: o.append(f"s_add_u32 s44, s44, {(s&3)*16384}")
    else:
        srd = 28
        o = [f"s_add_u32 s44, s42, {(s-28)*16384}"]
    a = o + [f"s_add_u32 m0, s43, {DREG[slot]}", "s_add_u32 s45, s44, 8192",
             f"buffer_load_dwordx4 v2, s[{srd}:{srd+3}], s44 offen lds"]
    b = [f"s_add_u32 m0, s43, {DREG[slot]+1024}", "s_nop 0",
         f"buffer_load_dwordx4 v2, s[{srd}:{srd+3}], s45 offen lds"]
    q.add(f"W{s}", 2)
    return [a, b]
P0 = max(NDELTA, 4)
wnext = [0]
GAT, GC = OPT['gat'], OPT['gc']
HP = OPT.get('hprof')
for s in range(17):
    if s < 16: Q.wait(f"S{s}")
    if HP and s >= 4: A(f"s_memtime s[100:101]\ns_waitcnt lgkmcnt(0)\ns_sub_u32 s99, s100, s98\ns_add_u32 s{84+s-4}, s99, s83")
    A("s_barrier")
    if HP: A("s_memtime s[100:101]\ns_waitcnt lgkmcnt(0)\ns_mov_b32 s98, s100")
    if s == 0 and not HP: PR.stamp()
    for k in sched.get(s, []): G(k)
    if s in BUR: pf_burst(*BUR[s])
    if s == 0:
        A("""s_lshl_b32 s57, s48, 13
        s_lshl_b32 s58, s15, 11
        s_add_u32 s57, s57, s58
        buffer_load_dwordx4 v[32:35], v9, s[72:75], s57 offen
        buffer_load_dwordx4 v[36:39], v9, s[72:75], s57 offen offset:1024
        buffer_load_dword v11, v10, s[16:19], 0 offen sc1""")
        Q.add("ST", 3)
    if s < NDELTA:
        lb = f"H_NOCS{s}"
        A(f"s_cmp_eq_u32 s55, {s}\ns_cbranch_scc0 {lb}\nv_add_u32 v12, {WR + (s%5)*WSL}, v12")
        for j in range(3):
            for t in range(4):
                A(f"ds_read_b64_tr_b16 {vr(48+8*j+2*t,2)}, v12 offset:{j*8192 + (t>>1)*2048 + (t&1)*256}")
        A("s_waitcnt lgkmcnt(0)")
        A.label(lb)
    if s == 4: row_valu(0); col_valu([0], False)
    if s == 5: col_valu([1], False)
    if s == 6: col_valu([2], True); row_valu(1)
    if s == OPT["pub"]: publish()
    if s == 3:
        A("s_load_dwordx2 s[4:5], s[0:1], 48\ns_load_dwordx2 s[8:9], s[0:1], 16")
    if OPT["vw"] and s == OPT["vw"]:
        A("""s_cmp_lg_u32 s15, 0
        s_cbranch_scc1 H_NOWARM
        s_mul_i32 s57, s2, 7168
        s_lshl_b32 s58, s2, 11
        v_lshlrev_b32 v20, 7, v1
        s_waitcnt lgkmcnt(0)
        s_add_u32 s6, s57, 7168
        s_mov_b32 s7, 0x20000
        s_add_u32 s10, s58, 2048
        s_mov_b32 s11, 0x20000
        buffer_load_dword v21, v20, s[4:7], s57 offen
        buffer_load_dword v22, v20, s[8:11], s58 offen""")
        A.label("H_NOWARM")
    if s == 5 and not OPT["vw"]:
        A("""s_lshl_b32 s57, s2, 2
        s_add_u32 s57, s57, s15
        s_mul_i32 s58, s57, 1792
        s_lshl_b32 s57, s57, 9
        s_waitcnt lgkmcnt(0)
        s_add_u32 s4, s4, s58
        s_addc_u32 s5, s5, 0
        s_add_u32 s8, s8, s57
        s_addc_u32 s9, s9, 0""")
    if s in (5, 7, 8, 9) and not OPT['vw']:
        k0 = {5: 0, 7: 9, 8: 18, 9: 27}[s]
        for i in range(k0, k0 + 9):
            if i < 28: A(f"s_load_dword s65, s[4:5], {i*64}")
            else: A(f"s_load_dword s65, s[8:9], {(i-28)*64}")
    if OPT["l2pf"] and s == OPT["warm"] + 1:
        A("""s_lshr_b32 s57, s2, 3
        s_lshl_b32 s57, s57, 2
        s_add_u32 s57, s57, s15
        s_lshr_b32 s58, s57, 3
        s_min_u32 s58, s58, 11
        s_lshr_b32 s59, s58, 1
        s_mul_i32 s59, s59, 6
        s_and_b32 s65, s58, 1
        s_lshl_b32 s65, s65, 1
        s_add_u32 s59, s59, s65
        s_add_u32 s59, s59, 2
        s_add_u32 s65, s58, 16
        s_cmp_lt_u32 s58, 8
        s_cselect_b32 s59, s59, s65
        s_lshl_b32 s59, s59, 16
        s_and_b32 s58, s57, 7
        s_lshl_b32 s58, s58, 13
        s_add_u32 s58, s58, s59
        s_lshl_b32 s57, s57, 12
        s_waitcnt lgkmcnt(0)
        s_add_u32 s4, s4, s58
        s_addc_u32 s5, s5, 0
        s_add_u32 s8, s8, s57
        s_addc_u32 s9, s9, 0""")
    if OPT["l2pf"] and OPT["warm"] + 1 <= s <= OPT["l2end"]:
        nst = OPT["l2end"] - OPT["warm"]
        tot = OPT["l2pf"]
        i0 = (s - OPT["warm"] - 1) * tot // nst; i1 = (s - OPT["warm"]) * tot // nst
        for i in range(i0, i1):
            if i < 64: A(f"s_load_dword s65, s[4:5], {i*128}")
            else: A(f"s_load_dword s65, s[8:9], {(i-64)*128}")
    if s == 8: gather_prep()
    if s == GAT: gather_loads(0); Q.add("GA0", 6)
    if s == GAT + OPT["gd"]: gather_loads(1); Q.add("GA", 5)
    if s == 12:
        A("s_load_dwordx2 s[24:25], s[0:1], 48\ns_load_dwordx2 s[28:29], s[0:1], 16")
        d_setup_w()
    if s == GC: gather_check()
    if s in DAVAIL:
        for _ in range(DAVAIL[s]):
            emit(issw(wnext[0], Q)); wnext[0] += 1
    if s == GC + 1:
        A("s_cmp_eq_u32 s70, 0\ns_cbranch_scc1 H_NOCOLS")
        gather_cols()
        A.label("H_NOCOLS")
    if s == 15:
        A("s_cmp_eq_u32 s70, 0\ns_cbranch_scc1 H_GSLOW")
        A.label("H_GTOK")
        gather_toks()
    if s in (4, 8, 12) and not HP: PR.stamp()
if HP:
    PR.n = 15; PR.dump(20); PR.n = 0
    OPT["prof"] = 0
PR.stamp()
PR.stamp()
import gen_cd
gen_cd.OPT = OPT
if OPT["amap"]:
    A("""s_and_b32 s57, s2, 6
    s_lshl_b32 s50, s57, 2
    s_lshr_b32 s58, s2, 3
    s_and_b32 s58, s58, 7
    s_add_u32 s50, s50, s58
    s_and_b32 s47, s2, 1
    s_lshl_b32 s47, s47, 2
    s_lshr_b32 s58, s2, 6
    s_add_u32 s47, s47, s58""")
else:
    A("""s_and_b32 s57, s2, 7
    s_lshr_b32 s58, s2, 3
    s_and_b32 s58, s58, 3
    s_lshl_b32 s50, s58, 3
    s_add_u32 s50, s50, s57
    s_lshr_b32 s47, s2, 5""")
A("s_lshl_b32 s51, s47, 2\ns_add_u32 s51, s51, s15")
gen_cd.attn_setup(A)
SH = OPT["share"]
LK, LVS, LFL = 16384, 49152, 49152 + 16384 + 1024
if SH:
    LONE = 49152 + 16384
    A(f"""s_lshl_b32 s49, s47, 2
    s_lshl_b32 s57, s15, 1
    s_add_u32 s49, s49, s57
    s_sub_u32 s49, s49, 4
    v_and_b32 v9, 1, v1
    v_add_u32 v9, s49, v9
    v_max_i32 v9, 0, v9
    v_lshlrev_b32 v9, 8, v9
    v_bfe_u32 v10, v1, 1, 1
    v_lshlrev_b32 v10, 6, v10
    v_add3_u32 v9, v9, v10, 64
    s_lshl_b32 s57, s51, 8
    v_mov_b32 v10, s57
    v_cmp_gt_u32 vcc, 4, v1
    s_lshr_b32 s57, s50, 1
    s_lshl_b32 s57, s57, 7
    s_add_u32 s57, s57, {WS_FQ}
    v_cndmask_b32 v9, v10, v9, vcc
    v_lshlrev_b32 v9, 5, v9
    v_add_u32 v252, s57, v9""")
else:
    A(f"""v_min_u32 v9, 10, v1
    v_cmp_gt_u32 vcc, 5, v9
    v_subrev_u32 v10, 5, v9
    s_nop 0
    v_cndmask_b32 v10, v10, v9, vcc
    v_min_u32 v10, 4, v10
    s_sub_u32 s57, s51, 4
    v_add_u32 v10, s57, v10
    v_max_i32 v10, 0, v10
    v_lshlrev_b32 v10, 8, v10
    v_mov_b32 v11, 128
    v_cndmask_b32 v11, v11, 64, vcc
    v_cmp_eq_u32 vcc, 10, v9
    s_lshr_b32 s57, s50, 1
    s_lshl_b32 s57, s57, 7
    s_add_u32 s57, s57, {WS_FQ}
    v_cndmask_b32 v11, v11, 0, vcc
    v_add_u32 v10, v10, v11
    v_lshlrev_b32 v10, 5, v10
    v_add_u32 v252, s57, v10""")
A("s_barrier")
PR.stamp()
gen_cd.LONE = LONE
if SH:
    A(f"s_lshl_b32 s57, s15, 11\ns_add_u32 s57, s57, {LVS}")
else:
    A("""s_movk_i32 s57, 0x4000
    s_cmp_eq_u32 s15, 1
    s_cselect_b32 s57, 49152, s57
    s_cmp_eq_u32 s15, 2
    s_cselect_b32 s57, 59392, s57
    s_cmp_eq_u32 s15, 3
    s_cselect_b32 s57, 151552, s57""")
gen_cd.attn_setup2(A, None)
ld = "buffer_load_dword v253, v252, s[20:23], 0 offen sc1"
A("s_waitcnt vmcnt(0)")
PR.stamp()
A("s_barrier")
A(f"s_setprio {OPT['aprio']}")
A(f"s_sleep {OPT['hs']}")
A(ld)
A("s_waitcnt vmcnt(0)")
spin(A, "HQ", ld, 253)
PR.stamp()
if SH:
    A(f"""s_lshl_b32 s52, s50, 16
    s_lshl_b32 s53, s49, 11""")
    for which, base, r0 in ((0, WS_K, 188), (1, WS_V, 204)):
        for b in range(4):
            if b % 2 == 0:
                A(f"s_add_i32 s55, s53, {b*1024}\ns_max_i32 s55, s55, 0\ns_add_u32 s55, s55, s52\ns_add_u32 s55, s55, {base}")
            A(f"buffer_load_dwordx4 {vr(r0+4*b,4)}, v3, s[20:23], s55 offen offset:{(b%2)*1024} sc1")
    A(f"""s_lshl_b32 s53, s51, 11
    s_add_u32 s54, s52, s53
    buffer_load_dwordx4 v[12:15], v3, s[20:23], s54 offen sc1
    buffer_load_dwordx4 v[16:19], v3, s[20:23], s54 offen offset:1024 sc1
    s_lshl_b32 s57, s15, 12
    v_add_u32 v9, s57, v3
    v_add_u32 v10, s57, v2
    s_lshl_b32 s57, s15, 11
    v_add_u32 v11, s57, v3
    s_lshl_b32 s57, s15, 2
    s_add_u32 s57, s57, {LFL}
    v_mov_b32 v252, s57
    v_mov_b32 v253, s80
    v_mov_b32 v254, {LFL}""")
    for b in range(4):
        A(f"s_waitcnt vmcnt({9-b})\nds_write_b128 v9, {vr(188+4*b,4)} offset:{LK + b*1024}")
    for b in range(4):
        A(f"s_waitcnt vmcnt({5-b})\nds_write_b128 v10, {vr(204+4*b,4)} offset:{LVS + b*1024}")
    A("""s_waitcnt lgkmcnt(0)
    ds_write_b32 v252, v253
    s_mov_b32 s56, 0""")
    A.label("H_LW")
    A(f"""ds_read_b128 v[188:191], v254
    s_add_u32 s56, s56, 1
    s_waitcnt lgkmcnt(0)
    v_xor_b32 v188, s80, v188
    v_xor_b32 v189, s80, v189
    v_xor_b32 v190, s80, v190
    v_xor_b32 v191, s80, v191
    v_or3_b32 v188, v188, v189, v190
    v_or_b32 v188, v188, v191
    v_cmp_eq_u32 vcc, 0, v188
    s_cmp_gt_u32 s56, {SPIN*50}
    s_cbranch_scc1 H_LOK
    s_cmp_eq_u64 vcc, -1
    s_cbranch_scc1 H_LOK
    s_sleep 1
    s_branch H_LW""")
    A.label("H_LOK")
    for b in range(10):
        A(f"ds_read_b128 {vr(20+4*b,4)}, v11 offset:{LK + b*1024}")
    A("s_waitcnt vmcnt(0)")
A(f"s_setprio {OPT['aprio2']}")
if OPT.get("noattn"): A("s_branch H_AFIN")
A("s_cmp_lt_u32 s51, 4")
A("s_cbranch_scc1 H_SLOW")
n0 = PR.n
gen_cd.gen_attn(A, False, "AF", PR, "sc1", setup=False, bar=OPT["defer"] >= 4, loads=not SH, shared=SH)
A.label("H_AFIN")
PR.stamp()
A(f"""s_lshl_b32 s57, s51, 12
s_lshl_b32 s58, s50, 7
s_add_u32 s57, s57, s58
s_add_u32 s57, s57, {WS_FO}
v_mov_b32 v9, 0
v_mov_b32 v10, s80
s_waitcnt vmcnt(0)
s_mov_b64 exec, 1
buffer_store_dword v10, v9, s[20:23], s57 offen sc1
s_mov_b64 exec, -1""")
PR.stamp()
PR.dump(2)
A.label("L_END")
A("s_endpgm")
gather_slow()
A.label("H_SLOW")
PR.n = n0
gen_cd.gen_attn(A, True, "AS", PR, "sc1", setup=False, bar=OPT["defer"] >= 4, loads=not SH, shared=SH)
A("s_branch H_AFIN")
A.label("L_M")
PR.n = 0
A("s_waitcnt lgkmcnt(0)")
PR.stamp(True); PR.stamp()
ws_srd()
if OPT["codepf"]:
    A("s_getpc_b64 s[24:25]")
    A.label("L_PC")
    A(f"""s_sub_u32 s24, s24, L_PC-{NAME}
    s_subb_u32 s25, s25, 0
    s_mov_b32 s26, L_CODE_END-{NAME}
    s_mov_b32 s27, 0x20000
    s_lshr_b32 s57, s2, 3
    s_lshl_b32 s57, s57, 2
    s_add_u32 s57, s57, s14
    s_lshl_b32 s57, s57, 9
    v_lshlrev_b32 v16, 7, v1
    s_mov_b64 exec, 15
    buffer_load_dword v31, v16, s[24:27], s57 offen
    s_mov_b64 exec, -1""")
vXa = [2, 3, 4, 5]; vWa = [6, 7, 8, 9, 10]; vWb = [11, 12, 13, 14, 15]
P = 32; QQ = 60; ACC = 88
A("s_setprio 2")
A("""s_and_b32 s12, s14, 1
s_lshr_b32 s13, s14, 1
v_and_b32 v16, 31, v1
v_lshrrev_b32 v17, 5, v1
v_bfe_u32 v18, v1, 1, 3
v_xor_b32 v17, v17, v18
v_lshlrev_b32 v17, 4, v17
v_lshlrev_b32 v16, 7, v16
v_add_u32 v16, v16, v17
s_lshl_b32 s57, s12, 13
v_add_u32 v2, s57, v16
v_xor_b32 v3, 32, v2
v_xor_b32 v4, 64, v2
v_xor_b32 v5, 96, v2""")
A(f"""v_lshrrev_b32 v16, 5, v1
v_lshlrev_b32 v16, 10, v16
v_bfe_u32 v17, v1, 2, 2
v_lshlrev_b32 v17, 6, v17
v_add_u32 v16, v16, v17
v_and_b32 v17, 3, v1
v_lshlrev_b32 v17, 3, v17
v_add_u32 v16, v16, v17
v_add_u32 v16, {WR}, v16
v_bfe_u32 v17, v1, 4, 1
s_sub_u32 s57, 2, s50
s_lshl_b32 s57, s57, 12
v_mul_u32_u24 v18, s57, v17
v_xor_b32 v19, s13, v17
v_lshlrev_b32 v19, 5, v19
v_add3_u32 v18, v18, v19, v16
v_lshlrev_b32 v19, 5, v17
s_lshl_b32 s57, s13, 9
v_add3_u32 v19, v19, s57, v16
s_cmp_eq_u32 s50, 1
s_cselect_b64 vcc, -1, 0""")
for n in range(5):
    fo = (n >> 1) * 4096 + (n & 1) * 512
    qo = n * 4096
    if n < 2: A(f"v_add_u32 v{vWa[n]}, {fo}, v18")
    elif n == 4: A(f"v_add_u32 v{vWa[n]}, {qo}, v19")
    else:
        A(f"v_add_u32 v20, {fo}, v18\nv_add_u32 v21, {qo}, v19\nv_cndmask_b32 v{vWa[n]}, v20, v21, vcc")
for n in range(5): A(f"v_add_u32 v{vWb[n]}, {4*WSL}, v{vWa[n]}")
def reads(s, kk, dst):
    xs = (s >> 1) % 3; q4 = (s & 1) * 2 + kk; sl = s % 5
    def xr(tt): return f"ds_read_b128 {vr(dst+4*tt,4)}, v{vXa[q4]} offset:{XR + xs*XS + tt*4096}"
    def wr(n, sec):
        a, o = (vWa[n], sl * WSL) if sl < 4 else (vWb[n], 0)
        return f"ds_read_b64_tr_b16 {vr(dst+8+4*n+2*sec,2)}, v{a} offset:{o + kk*2048 + sec*256}"
    R = [xr(0), wr(0, 0), wr(0, 1), xr(1)]
    for n in range(1, 5): R += [wr(n, 0), wr(n, 1)]
    return R
need = {0: 2, 1: 3, 2: 5, 4: 7, 6: 9, 8: 11}
def substep(cur, R, first=False):
    issued = 0
    for j in range(10):
        n, tt = j >> 1, j & 1
        if j in need: A(f"s_waitcnt lgkmcnt({min(15, 11 - need[j] + issued)})")
        a = ACC + 16 * (2 * n + tt)
        c = "0" if first else vr(a, 16)
        A(f"v_mfma_f32_32x32x16_bf16 {vr(a,16)}, {vr(cur+8+4*n,4)}, {vr(cur+4*tt,4)}, {c}")
        k = 2 if j < 2 else 1
        for r in R[issued:issued + k]: A(r)
        issued += len(R[issued:issued + k])
A(f"""v_and_b32 v16, 31, v1
v_lshlrev_b32 v22, 5, v16
s_lshl_b32 s57, s12, 11
s_add_u32 s57, s57, {EX_TOK}
v_add_u32 v22, s57, v22
v_and_b32 v16, 15, v1
s_sub_u32 s57, 2, s50
s_lshl_b32 s57, s57, 6
v_mul_u32_u24 v18, s57, v17
v_xor_b32 v19, s13, v17
v_lshlrev_b32 v19, 4, v19
v_add3_u32 v18, v18, v19, v16
v_lshlrev_b32 v18, 2, v18
v_and_b32 v19, 31, v1
s_lshl_b32 s57, s13, 5
v_add_u32 v19, s57, v19
v_lshlrev_b32 v19, 2, v19""")
for n in range(5):
    fo = EX_COL + ((n >> 1) * 64 + (n & 1) * 32) * 4
    qo = EX_COL + n * 256
    if n < 2: A(f"v_add_u32 v{23+n}, {fo}, v18")
    elif n == 4: A(f"v_add_u32 v{23+n}, {qo}, v19")
    else:
        A(f"v_add_u32 v20, {fo}, v18\nv_add_u32 v21, {qo}, v19\nv_cndmask_b32 v{23+n}, v20, v21, vcc")
A(f"""s_lshl_b32 s57, s47, 2
s_lshl_b32 s58, s12, 1
s_add_u32 s57, s57, s58
s_mul_i32 s70, s57, {112*1024}
s_lshl_b32 s59, s53, 12
s_add_u32 s70, s70, s59
s_lshl_b32 s59, s13, 10
s_add_u32 s70, s70, s59
s_add_u32 s70, s70, {WS_H}
s_lshl_b32 s59, s54, 2
s_lshl_b32 s60, s13, 1
s_add_u32 s59, s59, s60
s_lshl_b32 s71, s59, 6
s_add_u32 s71, s71, s57
s_lshl_b32 s71, s71, 10
s_lshl_b32 s57, s57, 7
s_lshl_b32 s72, s59, 1
s_add_u32 s72, s72, s57
s_lshl_b32 s72, s72, 5
s_add_u32 s72, s72, {WS_FQ}
s_lshl_b32 s73, s48, 3
s_lshl_b32 s60, s13, 2
s_add_u32 s73, s73, s60
s_add_u32 s73, s73, s57
s_lshl_b32 s73, s73, 5
s_add_u32 s73, s73, {WS_FH}
s_add_u32 s74, s73, 4096
s_load_dwordx2 s[24:25], s[0:1], 48
s_load_dwordx2 s[28:29], s[0:1], 16
s_load_dwordx2 s[36:37], s[0:1], 56
s_waitcnt lgkmcnt(0)""")
if OPT["tlb"]:
    A("""v_lshlrev_b32 v16, 21, v1
    v_mov_b32 v17, 0
    s_mov_b64 exec, 0x1ff
    buffer_load_dword v30, v16, s[20:23], 0 offen sc1
    s_mov_b64 exec, 1
    global_load_dword v30, v17, s[36:37] sc1
    global_load_dword v30, v17, s[24:25]
    global_load_dword v30, v17, s[28:29]
    s_mov_b64 exec, -1""")
A("s_waitcnt vmcnt(0)")
A("s_barrier")
PR.stamp()
for r in reads(0, 0, P): A(r)
A.raw(".p2align 3")
for s in range(16):
    substep(P, reads(s, 1, QQ), first=(s == 0))
    A("s_barrier")
    if s < 15: substep(QQ, reads(s + 1, 0, P))
    else:
        R = [f"ds_read_b128 {vr(P,4)}, v22", f"ds_read_b128 {vr(P+4,4)}, v22 offset:1024",
             f"ds_read_b128 v[16:19], v22 offset:16", f"ds_read_b128 v[28:31], v22 offset:1040"]
        R += [f"ds_read_b32 v{P+8+4*n}, v{23+n}" for n in range(5)]
        substep(QQ, R)
    if s in (11,): PR.stamp()
A("s_waitcnt lgkmcnt(0)")
A("s_barrier")
PR.stamp()
A(f"""v_mov_b32 v248, v{P+2}
v_mov_b32 v249, v{P+3}
v_mov_b32 v250, v16
v_mov_b32 v251, v17
v_mov_b32 v252, v{P+6}
v_mov_b32 v253, v{P+7}
v_mov_b32 v254, v28
v_mov_b32 v255, v29
v_cmp_gt_u32 vcc, 32, v1
v_readfirstlane_b32 s80, v18
v_mov_b32 v{P+2}, 0
v_mov_b32 v{P+3}, 0
v_mov_b32 v{P+6}, 0
v_mov_b32 v{P+7}, 0
v_cndmask_b32 v{P}, 0, v{P}, vcc
v_cndmask_b32 v{P+1}, 0, v{P+1}, vcc
v_cndmask_b32 v{P+4}, 0, v{P+4}, vcc
v_cndmask_b32 v{P+5}, 0, v{P+5}, vcc""")
for n in (4, 3, 2, 1, 0):
    w = P + 8 + 4 * n
    A(f"v_mov_b32 v{w+1}, v{w}\nv_mov_b32 v{w+2}, 0\nv_mov_b32 v{w+3}, 0")
for n in (4, 3, 2, 1, 0):
    for tt in range(2):
        a = ACC + 16 * (2 * n + tt)
        A(f"v_mfma_f32_32x32x16_bf16 {vr(a,16)}, {vr(P+8+4*n,4)}, {vr(P+4*tt,4)}, {vr(a,16)}")
A(f"""v_lshlrev_b32 v2, 4, v1
v_and_b32 v3, 31, v1
v_lshlrev_b32 v3, 5, v3
v_lshrrev_b32 v4, 5, v1
v_lshlrev_b32 v4, 4, v4
v_add_u32 v3, v3, v4
v_lshlrev_b32 v8, 8, v1
v_mov_b32 v9, s80""")
T = QQ
for tt in range(2):
    for k in range(3):
        A(f"v_mov_b32 v{68+6*tt+2*k}, v{248+4*tt+1+k}\nv_mov_b32 v{69+6*tt+2*k}, v{248+4*tt+1+k}")
def ffn(n, tt):
    a = ACC + 16 * (2 * n + tt); c = 68 + 6 * tt
    for r in range(0, 8, 2): A(f"v_pk_mul_f32 {vr(T+r,2)}, {vr(a+r,2)}, {vr(a+r,2)}")
    for r in range(0, 8, 2): A(f"v_pk_fma_f32 {vr(T+r,2)}, {vr(T+r,2)}, {vr(c+2,2)}, {vr(c,2)}")
    for r in range(0, 8, 2): A(f"v_pk_mul_f32 {vr(T+r,2)}, {vr(T+r,2)}, {vr(a+r,2)}")
    for r in range(8): A(f"v_exp_f32 v{T+r}, v{T+r}")
    for r in range(0, 8, 2): A(f"v_pk_mul_f32 {vr(a+r,2)}, {vr(a+r,2)}, {vr(a+8+r,2)}")
    for r in range(0, 8, 2): A(f"v_pk_fma_f32 {vr(T+r,2)}, {vr(T+r,2)}, {vr(c+4,2)}, {vr(c+4,2)}")
    for r in range(8): A(f"v_rcp_f32 v{T+r}, v{T+r}")
    A("s_nop 0")
    for r in range(0, 8, 2): A(f"v_pk_mul_f32 {vr(a+r,2)}, {vr(a+r,2)}, {vr(T+r,2)}")
    for d in range(4): A(f"v_cvt_pk_bf16_f32 v{a+8+d}, v{a+2*d}, v{a+2*d+1}")
def ffn_st(n, tt):
    a = ACC + 16 * (2 * n + tt)
    A(f"s_add_u32 s63, s70, {2048*n + tt*112*1024}")
    A(f"buffer_store_dwordx4 {vr(a+8,4)}, v2, s[20:23], s63 offen sc1")
def qkv(n, zoff):
    A(f"""s_add_u32 s60, s54, {zoff}
    s_cmp_lt_u32 s60, 8
    s_mov_b32 s62, {f32(0.25*LOG2E)}
    s_cselect_b32 s62, s62, 1.0
    v_mul_f32 v4, s62, v248
    v_mul_f32 v6, s62, v252
    v_mul_f32 v5, s62, v248
    v_mul_f32 v7, s62, v252""")
    for tt in range(2):
        a = ACC + 16 * (2 * n + tt)
        for r in range(0, 16, 2): A(f"v_pk_mul_f32 {vr(a+r,2)}, {vr(a+r,2)}, {vr(4+2*tt,2)}")
        for d in range(8): A(f"v_cvt_pk_bf16_f32 v{a+d}, v{a+2*d}, v{a+2*d+1}")
        A(f"s_add_u32 s63, s71, {zoff*4*65536 + tt*1024}")
        A(f"buffer_store_dwordx4 {vr(a,4)}, v2, s[20:23], s63 offen sc1")
        A(f"s_add_u32 s63, s63, 65536")
        A(f"buffer_store_dwordx4 {vr(a+4,4)}, v2, s[20:23], s63 offen sc1")
def flag(vm, mask, soff, imm=0, voff=8):
    A(f"s_waitcnt vmcnt({vm})\ns_mov_b64 exec, {mask}\nbuffer_store_dword v9, v{voff}, s[20:23], s{soff} offen offset:{imm} sc1\ns_mov_b64 exec, -1")
A("s_cmp_eq_u32 s50, 1")
A("s_cbranch_scc1 M_TC")
def ffs(n, tt): ffn(n, tt); ffn_st(n, tt)
DF = OPT["defer"]
qkv(4, 0)
if DF:
    ffn(3, 0); ffn(3, 1)
    A("s_barrier")
    ffn(2, 0); ffn(2, 1)
    if DF == 5: flag(0, 1, 72)
    if DF >= 2: ffn(1, 0); ffn(1, 1)
    if DF != 5: flag(0, 1, 72)
    nq = PR.n; PR.stamp()
    if DF >= 3: ffn(0, 0); ffn(0, 1)
    if DF >= 4: A("s_barrier")
    for n in (3, 2):
        for tt in range(2): ffn_st(n, tt)
    if DF == 1: ffs(1, 0); ffs(1, 1); ffs(0, 0); ffs(0, 1)
    elif DF == 2: ffn_st(1, 0); ffn_st(1, 1); ffs(0, 0); ffs(0, 1)
    else: ffn_st(1, 0); ffn_st(1, 1); ffn_st(0, 0); ffn_st(0, 1)
    flag(4, 1, 73)
else:
    ffs(3, 0); ffs(3, 1)
    A("s_barrier")
    ffs(2, 0); ffs(2, 1)
    flag(4, 1, 72)
    ffs(1, 0); ffs(1, 1); ffs(0, 0); ffs(0, 1)
    flag(4, 1, 73)
A("s_branch M_TJ")
A.label("M_TC")
qkv(4, 2); qkv(3, 1); qkv(2, 0)
A("s_barrier")
if DF:
    order = [(1, 0), (1, 1), (0, 0), (0, 1)]
    for t in order[:OPT["cq"]]: ffn(*t)
    flag(0, 7, 72)
    PR.n = nq; PR.stamp()
    for t in order[OPT["cq"]:]: ffn(*t)
    if DF >= 4: A("s_barrier")
    ffn_st(1, 0); ffn_st(1, 1); ffn_st(0, 0); ffn_st(0, 1)
else:
    ffs(1, 0); ffs(1, 1); ffs(0, 0); ffs(0, 1)
    flag(4, 7, 72)
A.label("M_TJ")
PR.stamp()
A("s_mov_b32 s15, s14")
d_setup_w()
XRr, BF, WF, AD, AS = 8, 16, 80, 96, 160
BD, NS = 8, 36
flag(0, 1, 74)
PR.stamp()
DQ = VQ(A)
A(f"""s_and_b32 s57, s2, 6
s_lshl_b32 s50, s57, 1
s_and_b32 s57, s2, 1
s_lshl_b32 s57, s57, 4
s_add_u32 s50, s50, s57
s_lshr_b32 s57, s2, 3
s_and_b32 s57, s57, 3
s_add_u32 s50, s50, s57
s_lshr_b32 s51, s2, 5
v_lshlrev_b32 v3, 4, v1
s_lshl_b32 s55, s50, 13
s_lshl_b32 s57, s15, 10
s_add_u32 s55, s55, s57
s_add_u32 s55, s55, {WS_FH}
s_add_u32 s75, s55, 4096
v_min_u32 v226, 5, v1
v_lshlrev_b32 v226, 7, v226
v_min_u32 v227, 7, v1
v_lshlrev_b32 v227, 7, v227""")
ld0 = "buffer_load_dword v228, v226, s[20:23], s55 offen sc1"
ld1 = "buffer_load_dword v228, v227, s[20:23], s75 offen sc1"
RP = OPT["rpf"]
for k in range(RP):
    st = WD + k
    A(f"s_lshl_b32 s44, s{UFB[st>>2]}, 14\ns_add_u32 s44, s44, s40")
    if st & 3: A(f"s_add_u32 s44, s44, {(st&3)*16384}")
    A(f"s_add_u32 s45, s44, 8192")
    A(f"buffer_load_dwordx4 {vr(160+8*k,4)}, v2, s[24:27], s44 offen")
    A(f"buffer_load_dwordx4 {vr(164+8*k,4)}, v2, s[24:27], s45 offen")
if OPT["ms"]: A(f"s_sleep {OPT['ms']}")
A(ld0)
A(f"""s_lshl_b32 s57, s50, 1
s_and_b32 s58, s15, 1
s_add_u32 s59, s57, s58
s_xor_b32 s58, s58, 1
s_add_u32 s57, s57, s58
s_mul_i32 s64, s59, {112*1024}
s_add_u32 s64, s64, {WS_H}
s_mul_i32 s65, s57, {112*1024}
s_add_u32 s65, s65, {WS_H}
s_lshl_b32 s58, s15, 13
s_add_u32 s58, s58, {WS_O}
s_lshl_b32 s67, s59, 15
s_add_u32 s67, s67, s58
s_lshl_b32 s53, s57, 15
s_add_u32 s53, s53, s58
v_and_b32 v6, 31, v1
v_lshlrev_b32 v6, 10, v6
v_lshrrev_b32 v7, 5, v1
v_lshlrev_b32 v7, 4, v7
v_add_u32 v224, v6, v7
s_lshl_b32 s54, s59, 15
s_lshl_b32 s57, s51, 7
s_add_u32 s54, s54, s57
s_lshr_b32 s57, s15, 1
s_lshl_b32 s57, s57, 6
s_add_u32 s54, s54, s57
v_lshrrev_b32 v6, 5, v1
v_lshlrev_b32 v6, 8, v6
v_bfe_u32 v7, v1, 2, 2
v_lshlrev_b32 v7, 6, v7
v_add_u32 v6, v6, v7
v_and_b32 v7, 3, v1
v_lshlrev_b32 v7, 3, v7
v_add_u32 v6, v6, v7
v_bfe_u32 v7, v1, 4, 1
v_lshlrev_b32 v7, 5, v7
v_add_u32 v6, v6, v7
s_lshl_b32 s57, s57, 3
v_add_u32 v6, s57, v6
v_xor_b32 v7, 512, v6
v_add_u32 v4, s43, v6
v_add_u32 v5, s43, v7
v_add_u32 v232, 0x10000, v4
v_add_u32 v233, 0x10000, v5
v_add_u32 v234, 0x20000, v4
v_add_u32 v235, 0x20000, v5
s_mov_b32 s32, s4
s_mov_b32 s33, s5
s_mov_b32 s34, 0x200000
s_mov_b32 s35, 0x20000
s_mov_b32 s38, 0x200000
s_mov_b32 s39, 0x20000
s_setprio {OPT['dprio']}
s_waitcnt vmcnt(0)""")
PR.stamp()
spin(A, "MH0", ld0, 228)
PR.stamp()
def htouch(lvl):
    if not OPT["htouch"]: return
    A(f"""v_bfe_u32 v229, v1, 2, 2
    v_lshlrev_b32 v230, 13, v229
    s_mul_i32 s57, s15, {24*1024}
    s_add_u32 s57, s57, {4096 if lvl == 0 else 0}
    v_add_u32 v230, s57, v230
    s_lshl_b32 s58, s15, 12
    s_add_u32 s58, s58, {96*1024}
    v_mov_b32 v231, {'s58' if lvl else 's57'}
    v_cmp_eq_u32 vcc, 3, v229
    v_and_b32 v229, 3, v1
    v_lshlrev_b32 v229, 10, v229
    v_cndmask_b32 v230, v230, v231, vcc
    v_add_u32 v230, v230, v229
    v_bfe_u32 v229, v1, 4, 1
    v_mul_u32_u24 v229, {112*1024}, v229
    v_add_u32 v230, v230, v229
    s_min_u32 s57, s64, s65
    s_lshl_b32 s58, s51, 7
    s_add_u32 s57, s57, s58
    s_mov_b32 exec_hi, 0
    buffer_load_dword v248, v230, s[20:23], s57 offen sc1
    s_mov_b64 exec, -1""")
    DQ.add("HT", 1)
htouch(0)
def issb(s):
    r = BF + 8 * (s % BD)
    if s < 28:
        o = [f"s_lshl_b32 s48, s{UFB[s>>2]}, 10", "s_add_u32 s49, s48, s65", "s_add_u32 s48, s48, s64"] if (s & 3) == 0 else []
    else:
        o = [f"s_add_u32 s48, s67, {(s-28)*1024}", f"s_add_u32 s49, s53, {(s-28)*1024}"] if (s & 3) == 0 else []
    DQ.add(f"B{s}", 2)
    return [o + [f"buffer_load_dwordx4 {vr(r,4)}, v3, s[20:23], s48 offen offset:{(s&3)*1024} sc1"],
            [f"buffer_load_dwordx4 {vr(r+4,4)}, v3, s[20:23], s49 offen offset:{(s&3)*1024} sc1"]]
for s in range(BD - 1): emit(issb(s))
def wtouch2():
    A(f"""v_lshrrev_b32 v229, 4, v1
    v_mov_b32 v230, s{UFB[3]}
    v_mov_b32 v231, s{UFB[4]}
    v_cmp_eq_u32 vcc, 1, v229
    s_lshr_b32 s57, s2, 3
    s_and_b32 s57, s57, 3
    v_cndmask_b32 v230, v230, v231, vcc
    v_mov_b32 v231, s{UFB[5]}
    v_cmp_eq_u32 vcc, 2, v229
    s_lshl_b32 s57, s57, 10
    s_add_u32 s58, s57, s40
    v_cndmask_b32 v230, v230, v231, vcc
    v_mov_b32 v231, s{UFB[6]}
    v_cmp_eq_u32 vcc, 3, v229
    v_and_b32 v229, 15, v1
    v_lshlrev_b32 v229, 12, v229
    v_cndmask_b32 v230, v230, v231, vcc
    v_lshlrev_b32 v230, 14, v230
    v_add_u32 v230, v230, v229
    buffer_load_dword v246, v230, s[24:27], s58 offen
    v_lshlrev_b32 v229, 12, v1
    s_add_u32 s58, s57, s42
    s_mov_b32 exec_hi, 0
    buffer_load_dword v247, v229, s[28:31], s58 offen
    s_mov_b64 exec, -1""")
    DQ.add("WT", 2)
if OPT["wt2"] == 1: wtouch2()
def xload():
    A(f"buffer_load_dwordx4 {vr(XRr,4)}, v224, s[32:35], s54 offen")
    A(f"buffer_load_dwordx4 {vr(XRr+4,4)}, v224, s[32:35], s54 offen offset:32")
    DQ.add("X", 2)
if not OPT["xs"]: xload()
def rdw(s):
    slot = s % WD; w = WF + 8 * (s & 1)
    hi, lo = DREG[slot] >> 16, DREG[slot] & 0xffff
    vb = [4, 232, 234][hi]
    return [f"ds_read_b64_tr_b16 {vr(w+4*u+2*sec,2)}, v{vb+u} offset:{lo+sec*1024}" for u in range(2) for sec in range(2)]
for i in rdw(0): A(i)
DQ.wait("B0")
L1S = OPT["l1s"]
def tB(sp): return max(sp - (BD - 1), L1S) if sp >= 12 else sp - (BD - 1)
def xaddr(base3, which, a, qd):
    k = (a - 1) * 4 + qd
    reg = DREG[(8 if which == 0 else 0) + (k >> 1)] + (k & 1) * 1024
    return base3[reg >> 16], reg & 0xffff
def dump(which, acc):
    for a in range(1, 4):
        for qd in range(4):
            vb, off = xaddr([236, 6, 7], which, a, qd)
            A(f"ds_write_b128 v{vb}, {vr(acc+16*a+4*qd,4)} offset:{off}")
def fetch(which, acc):
    for a in range(1, 4):
        b = 237 + 3 * (a - 1)
        for qd in range(4):
            vb, off = xaddr([b, b + 1, b + 2], which, a, qd)
            A(f"ds_read_b128 {vr(acc+16*a+4*qd,4)}, v{vb} offset:{off}")
def sum4(acc):
    for r in range(0, 16, 2):
        A(f"v_pk_add_f32 {vr(acc+r,2)}, {vr(acc+r,2)}, {vr(acc+16+r,2)}\nv_pk_add_f32 {vr(acc+32+r,2)}, {vr(acc+32+r,2)}, {vr(acc+48+r,2)}")
    for r in range(0, 16, 2): A(f"v_pk_add_f32 {vr(acc+r,2)}, {vr(acc+r,2)}, {vr(acc+32+r,2)}")
for s in range(NS):
    w = WF + 8 * (s & 1); b = BF + 8 * (s % BD)
    acc = AD if s < 28 else AS
    if s == 12: PR.stamp()
    if s == 28:
        PR.stamp()
        A("s_nop 7\ns_nop 1")
        dump(0, AD)
        DQ.wait("PO")
        A("""v_cmp_eq_u32 vcc, s80, v228
        s_mov_b32 s46, 0
        s_cmp_eq_u64 vcc, -1
        s_cbranch_scc1 M_OOK
        s_mov_b32 s46, 1""")
        A(ld2)
        A("s_call_b64 s[66:67], M_GATE" if False else "s_call_b64 s[70:71], M_GATE")
        A("s_waitcnt vmcnt(0)")
        spin(A, "MO", ld2, 228)
        A.label("M_OOK")
        PR.stamp()
        for sp in range(28, 36): emit(issb(sp))
        A("s_cmp_eq_u32 s46, 1\ns_cbranch_scc1 M_GDONE\ns_call_b64 s[70:71], M_GATE")
        A.label("M_GDONE")
        DQ.wait("B28")
    if s + 1 < NS:
        DQ.wait([f"W{s+1}", f"B{s+1}"])
        for i in rdw(s + 1): A(i)
        A("s_waitcnt lgkmcnt(4)")
    else:
        A("s_waitcnt lgkmcnt(0)")
    if s == L1S - 3:
        A(ld1); DQ.add("P1", 1)
    if s == L1S:
        DQ.wait("P1")
        spin(A, "MH1", ld1, 228)
        htouch(1)
    if s == 0:
        A("v_add_u32 v236, s43, v3\nv_add_u32 v6, 0x10000, v236\nv_add_u32 v7, 0x20000, v236")
    if s == 20:
        for a in range(1, 4):
            bb = 237 + 3 * (a - 1)
            A(f"s_xor_b32 s57, s15, {a}\ns_lshl_b32 s57, s57, 11\nv_add_u32 v{bb}, s57, v3\nv_add_u32 v{bb+1}, 0x10000, v{bb}\nv_add_u32 v{bb+2}, 0x20000, v{bb}")
    if OPT["xs"] and s == OPT["xs"]: xload()
    if s == 25:
        A(f"""s_lshl_b32 s55, s50, 12
        s_lshl_b32 s57, s15, 10
        s_add_u32 s55, s55, s57
        s_add_u32 s55, s55, {WS_FO}""")
        ld2 = "buffer_load_dword v228, v227, s[20:23], s55 offen sc1"
        A(ld2); DQ.add("PO", 1)
    grp = []
    for sp in range(BD - 1, 28):
        if tB(sp) == s: grp += issb(sp)
    if 1 <= s <= RP:
        reg = DREG[s - 1]; vb = [236, 6, 7][reg >> 16]
        grp += [[f"ds_write_b128 v{vb}, {vr(160+8*(s-1),4)} offset:{reg & 0xffff}"], [f"ds_write_b128 v{vb}, {vr(164+8*(s-1),4)} offset:{(reg & 0xffff)+1024}"]]
    elif s >= 1 and s + WD - 1 < NS: grp += issw(s + WD - 1, DQ)
    per = [grp[(len(grp) * a) // 4:(len(grp) * (a + 1)) // 4] for a in range(4)]
    for a in range(4):
        u, tt = a >> 1, a & 1
        r = acc + 16 * a
        c = "0" if s in (0, 28) else vr(r, 16)
        A(f"v_mfma_f32_32x32x16_bf16 {vr(r,16)}, {vr(w+4*u,4)}, {vr(b+4*tt,4)}, {c}")
        for g in per[a]:
            for i in g: A(i)
PR.stamp()
A("s_nop 7\ns_nop 1")
dump(1, AS)
A("s_waitcnt lgkmcnt(0)")
A("s_barrier")
fetch(1, AS)
A("s_waitcnt lgkmcnt(0)")
sum4(AS)
for r in range(0, 16, 2): A(f"v_pk_fma_f32 {vr(AD+r,2)}, {vr(AD+r,2)}, {vr(AS+r,2)}, {vr(AD+32+r,2)}")
for d in range(8): A(f"v_cvt_pk_bf16_f32 v{XRr+d}, v{AD+2*d}, v{AD+2*d+1}")
A("s_nop 1")
for j in range(2):
    A(f"v_permlane32_swap_b32 v{XRr+4*j}, v{XRr+4*j+2}\nv_permlane32_swap_b32 v{XRr+4*j+1}, v{XRr+4*j+3}")
osc = "sc1" if OPT["osc"] else ""
A(f"buffer_store_dwordx4 {vr(XRr,4)}, v224, s[36:39], s54 offen {osc}")
A(f"buffer_store_dwordx4 {vr(XRr+4,4)}, v224, s[36:39], s54 offen offset:32 {osc}")
PR.stamp()
PR.dump(2)
A("s_endpgm")
def gate():
    A("s_waitcnt lgkmcnt(0)")
    A("s_barrier")
    fetch(0, AD)
    for j in range(2):
        A(f"v_permlane32_swap_b32 v{XRr+4*j}, v{XRr+4*j+2}\nv_permlane32_swap_b32 v{XRr+4*j+1}, v{XRr+4*j+3}")
    A("s_waitcnt lgkmcnt(0)")
    sum4(AD)
    T = AD + 16
    for r in range(16): A(f"v_mul_f32 v{T+r}, {f32(-LOG2E)}, v{AD+r}")
    for r in range(16): A(f"v_exp_f32 v{T+r}, v{T+r}")
    for d in range(8): A(f"v_lshlrev_b32 v{T+16+2*d}, 16, v{XRr+d}\nv_and_b32 v{T+17+2*d}, 0xffff0000, v{XRr+d}")
    for r in range(16): A(f"v_add_f32 v{T+r}, 1.0, v{T+r}")
    for r in range(16): A(f"v_rcp_f32 v{T+r}, v{T+r}")
    A("s_nop 0")
    for r in range(0, 16, 2): A(f"v_pk_mul_f32 {vr(AD+r,2)}, {vr(AD+r,2)}, {vr(T+r,2)}")
A.label("M_GATE")
gate()
A("s_setpc_b64 s[70:71]")
A.label("L_CODE_END")
A.raw('.section .rodata,"a"')
A.raw(kernel_desc(NAME, 256))
txt = A.text()
if OPT.get("plainst"):
    import re
    txt = re.sub(r"(buffer_store_dwordx4 .*s63 offen) sc1", r"\1", txt)
if OPT.get("align", 1):
    import align
    txt = align.align(txt)
print(txt)
```

```python
import sys, math
from asmlib import *

NAME = "recurrent_scan__sliding_block__geglu_ffn__prompt_kernel"
WS_Q = 0; WS_K = 2 << 20; WS_V = 4 << 20; WS_O = 6 << 20; WS_H = 8 << 20
WS_TOK = 16 << 20
WS_CS = (16 << 20) + 65536
WS_FO = 17 << 20
WS_FH = (17 << 20) + (1 << 18)
WS_FQ = (17 << 20) + (2 << 18)
LOG2E = 1.4426950408889634
OPT = dict(prof=0, rot=2, codepf=1, wd=14, sleep=8, warm=7, thr=6, aprio=3, l2pf=0, rotd=1, hs=48, dprio=0, wtouch=0, htouch=1, wts=10, defer=1, gat=10, gc=13, hprio=0, l1s=10, osc=0, cq=2, ms=16, ntx=0, ntw=0, share=1, l2end=11, aprio2=3, rpf=0, pub=6, gd=1, vw=4, epf=16, tlb=0, wt2=0, amap=0, xs=23, safe=0)
for a in sys.argv[1:]:
    k, v = a.split("="); OPT[k] = int(v)
XR = 0; XS = 16384; WR = 49152; WSL = 20480; EX = 151552
EX_TOK = EX; EX_COL = EX + 4096
DREG = [32768, 40960, 69632, 77824,   86016, 94208, 102400,   110592, 118784, 0, 8192,   126976, 135168, 143360]
DAVAIL = {13: 4, 14: 3, 15: 4, 16: 3}
LONE = 26624
SPIN = 20000

class Prof:
    def __init__(self, A, base=82): self.A = A; self.n = 0; self.base = base
    def stamp(self, real=False):
        if not OPT["prof"]: return
        i = self.n; self.n += 1
        assert i < 16
        self.A(f"{'s_memrealtime' if (real or OPT['prof'] == 2) else 's_memtime'} s[100:101]")
        self.A("s_waitcnt lgkmcnt(0)")
        self.A(f"s_mov_b32 s{self.base+i}, s100")
    def dump(self, vt):
        if not OPT["prof"]: return
        A = self.A
        while self.n < 15: self.stamp()
        self.stamp(True)
        A(f"s_lshl_b32 s68, s2, 3\ns_add_u32 s68, s68, s14\ns_lshl_b32 s68, s68, 6\ns_add_u32 s68, s68, {32<<20}")
        A(f"v_mov_b32 v{vt}, 0")
        for i in range(self.n):
            A(f"v_mov_b32 v{vt+1}, s{self.base+i}")
            A(f"buffer_store_dword v{vt+1}, v{vt}, s[20:23], s68 offen offset:{4*i}")

class VQ:
    def __init__(self, A): self.A = A; self.q = []
    def add(self, tag, n): self.q.append((tag, n))
    def wait(self, tags):
        if isinstance(tags, str): tags = [tags]
        idx = max([i for i, (t, _) in enumerate(self.q) if t in tags], default=-1)
        if idx < 0: return
        rest = sum(c for _, c in self.q[idx + 1:])
        assert rest < 64
        self.A(f"s_waitcnt vmcnt({rest})")
        del self.q[:idx + 1]
    def has(self, tag): return tag in [t for t, _ in self.q]
    def clear(self): self.q = []

def spin(A, name, load, vval, maskexpr=None, cnt=56):
    A(f"""v_cmp_eq_u32 vcc, s80, v{vval}
    s_mov_b32 s{cnt}, 0
    s_cmp_eq_u64 vcc, -1
    s_cbranch_scc1 {name}_OK""")
    A.label(f"{name}_P")
    A(f"""s_sleep {OPT['sleep']}
    {load}
    s_add_u32 s{cnt}, s{cnt}, 1
    s_waitcnt vmcnt(0)
    v_cmp_eq_u32 vcc, s80, v{vval}
    s_cmp_gt_u32 s{cnt}, {SPIN}
    s_cbranch_scc1 {name}_OK
    s_cmp_eq_u64 vcc, -1
    s_cbranch_scc0 {name}_P""")
    A.label(f"{name}_OK")

A = Asm()
A.raw(f"""; recurrent_scan__sliding_block__geglu_ffn__prompt -- hand-designed gfx950 kernel, emitted by my own python generator.
; @launch grid=(256,1,1) block=(512,1,1) lds=163840
.amdgcn_target "amdgcn-amd-amdhsa--gfx950"
.text""")
kernel_header(A, NAME)
PR = Prof(A)
A("""s_load_dwordx4 s[4:7], s[0:1], 0
s_load_dwordx4 s[8:11], s[0:1], 32
s_load_dwordx4 s[16:19], s[0:1], 64""")
if OPT["epf"]:
    A("s_getpc_b64 s[24:25]")
    A.label("L_PC0")
    nl = OPT["epf"]
    A(f"""v_and_b32 v16, {nl-1}, v0
    v_bfe_u32 v17, v0, 6, 2
    v_mul_u32_u24 v17, {nl}, v17
    v_add_lshl_u32 v16, v16, v17, 7
    v_add_u32 v17, L_M-L_PC0, v16
    v_cmp_gt_u32 vcc, 256, v0
    s_mov_b64 exec, {(1<<nl)-1}
    s_nop 0
    v_cndmask_b32 v16, v16, v17, vcc
    global_load_dword v29, v16, s[24:25]
    s_mov_b64 exec, -1""")
A("""s_cmp_ge_u32 s2, 256
s_cbranch_scc1 L_END""")
if OPT.get("scramble"):
    A("s_lshr_b32 s57, s2, 3\ns_lshl_b32 s58, s2, 5\ns_or_b32 s2, s57, s58\ns_and_b32 s2, s2, 255")
A("""v_and_b32 v1, 63, v0
v_lshrrev_b32 v16, 6, v0
s_and_b32 s57, s2, 7
v_readfirstlane_b32 s14, v16
s_lshr_b32 s58, s2, 3
s_and_b32 s44, s57, 1
s_and_b32 s45, s58, 7
s_lshl_b32 s47, s44, 3
s_add_u32 s47, s47, s45
s_lshr_b32 s46, s57, 1
s_lshr_b32 s49, s58, 3
s_lshl_b32 s48, s46, 2
s_add_u32 s48, s48, s49
s_mul_i32 s51, s46, 3
s_add_u32 s52, s51, s49
s_lshl_b32 s53, s52, 1
s_add_u32 s57, s46, 24
s_add_u32 s54, s51, 12
s_cmp_eq_u32 s49, 3
s_cselect_b32 s50, 1, 0
s_cselect_b32 s53, s57, s53
s_cselect_b32 s54, s54, s52
s_and_b32 s15, s14, 3
s_cmp_lt_u32 s14, 4
s_cbranch_scc1 L_M""")
def ws_srd():
    A("""s_mov_b32 s20, s18
    s_mov_b32 s21, s19
    s_mov_b32 s22, 0x10000000
    s_mov_b32 s23, 0x20000
    s_mov_b32 s18, 256
    s_mov_b32 s19, 0x20000""")
vDW = [2, 3, 4, 5, 6]; vDX = [7, 8]
ROT = OPT["rot"]
A("""s_lshl_b32 s58, s15, 15
v_lshrrev_b32 v16, 3, v1
v_lshlrev_b32 v16, 10, v16
v_add_u32 v16, s58, v16
v_lshrrev_b32 v17, 4, v1
v_xor_b32 v17, v17, v1
v_and_b32 v17, 7, v17
v_lshlrev_b32 v17, 4, v17
v_add_u32 v7, v16, v17
v_xor_b32 v8, 64, v7
s_lshl_b32 s12, s15, 12
s_lshl_b32 s13, s15, 10
s_lshl_b32 s57, s47, 17""")
if ROT == 1: A("s_lshl_b32 s81, s49, 2\ns_lshl_b32 s58, s45, 1\ns_add_u32 s81, s81, s58")
elif ROT == 2: A("s_add_u32 s81, s49, s45\ns_lshl_b32 s81, s81, 2")
elif ROT == 3: A("s_add_u32 s81, s49, s45\ns_lshl_b32 s81, s81, 3")
elif ROT == 0: A("s_mov_b32 s81, 0")
A("""s_waitcnt lgkmcnt(0)
s_add_u32 s72, s4, s57
s_addc_u32 s73, s5, 0
s_mov_b32 s74, 0x20000
s_mov_b32 s75, 0x20000""")
PR.stamp(True); PR.stamp()
def dma_x(u):
    o = []
    for jj in range(4):
        pre = [f"s_add_u32 s56, s81, {2*u}", "s_and_b32 s56, s56, 15", "s_lshl_b32 s56, s56, 6"] if jj == 0 else []
        o.append(pre + [f"s_add_u32 m0, s12, {XR + (u%3)*XS + jj*1024}", f"s_add_u32 s59, s56, {jj*8192}",
                        f"buffer_load_dwordx4 v{vDX[jj&1]}, s[72:75], s59 offen {'nt ' if 2*u < OPT['ntx'] else ''}lds"])
    return o
def emit(groups):
    for g in groups:
        for i in g: A(i)
    return len(groups)
A(f"s_setprio {OPT['hprio']}")
Q = VQ(A)
n0 = emit(dma_x(0))
A("s_lshl_b32 s55, s53, 7\ns_lshl_b32 s56, s54, 7")
tabA = [(8, 55, 0), (8, 55, 128), (10, 55, 0), (10, 55, 128), (6, 56, 0)]
tabC = [(8, 55, 0), (10, 55, 0), (6, 56, 0), (6, 56, 128), (6, 56, 256)]
A("""v_bfe_u32 v16, v1, 2, 3
s_lshl_b32 s57, s15, 3
v_add_u32 v16, s57, v16
v_lshrrev_b32 v17, 5, v1
v_lshlrev_b32 v17, 6, v17
v_and_b32 v18, 3, v1
v_lshlrev_b32 v18, 4, v18
v_add_u32 v17, v17, v18
s_lshl_b32 s66, s50, 5
s_xor_b32 s67, s66, 32""")
swap = {0: None, 1: 66, 2: 67, 3: 67, 4: None}
for D in range(5):
    S = 24 + 4 * D
    (pa, ca, oa), (pc, cc_, oc) = tabA[D], tabC[D]
    A("s_cmp_eq_u32 s50, 1")
    if pa != pc:
        A(f"s_cselect_b32 s{S}, s{pc}, s{pa}\ns_cselect_b32 s{S+1}, s{pc+1}, s{pa+1}")
        src = S
    else: src = pa
    if ca != cc_: A(f"s_cselect_b32 s57, s{cc_}, s{ca}"); cs = 57
    else: cs = ca
    if oa != oc: A(f"s_cselect_b32 s58, {oc}, {oa}")
    sa = 3072 if pa == 6 else 3584; sc = 3072 if pc == 6 else 3584
    A(f"s_movk_i32 s{60+D}, {sa}")
    if sa != sc: A(f"s_cselect_b32 s{60+D}, {sc}, s{60+D}")
    if oa != oc: A(f"s_add_u32 s57, s{cs}, s58"); cs = 57
    elif oa: A(f"s_add_u32 s57, s{cs}, {oa}"); cs = 57
    A(f"s_add_u32 s{S}, s{src}, s{cs}\ns_addc_u32 s{S+1}, s{src+1}, 0")
    A(f"v_mul_u32_u24 v18, s{60+D}, v16")
    if swap[D]:
        A(f"v_xor_b32 v19, s{swap[D]}, v17\nv_add_u32 v{vDW[D]}, v18, v19")
    else:
        A(f"v_add_u32 v{vDW[D]}, v18, v17")
    A(f"s_lshl_b32 s{S+2}, s{60+D}, 9\ns_mov_b32 s{S+3}, 0x20000")
def dma_w(k):
    o = []
    for D in range(5):
        S = 24 + 4 * D
        pre = [f"s_add_u32 s56, s81, {k}", "s_and_b32 s56, s56, 15", "s_lshl_b32 s56, s56, 5"] if D == 0 else []
        o.append(pre + [f"s_add_u32 m0, s13, {WR + (k%5)*WSL + D*4096}", f"s_mul_i32 s59, s{60+D}, s56",
                        f"buffer_load_dwordx4 v{vDW[D]}, s[{S}:{S+3}], s59 offen {'nt ' if k < OPT['ntw'] else ''}lds"])
    return o
def G(k):
    g = (dma_x(k // 2) if k % 2 == 0 else []) + dma_w(k)
    Q.add(f"S{k}", emit(g))
Q.add("S0", n0 + emit(dma_w(0)))
G(1)
ws_srd()
A("""s_or_b32 s57, s2, s15
s_cmp_lg_u32 s57, 0
s_cbranch_scc1 H_NONONCE
s_memrealtime s[56:57]
s_waitcnt lgkmcnt(0)
s_mul_i32 s56, s56, 0x9e3779b1
s_or_b32 s56, s56, 1
v_mov_b32 v16, 0
v_mov_b32 v17, s56
buffer_store_dword v17, v16, s[16:19], 0 offen sc1""")
A.label("H_NONONCE")
A("s_lshl_b32 s69, s47, 5")
if ROT == 2: A("s_lshr_b32 s55, s45, 2\ns_lshl_b32 s57, s44, 1\ns_add_u32 s55, s55, s57")
elif ROT == 1: A("s_mov_b32 s55, s44")
elif ROT == 3: A("s_lshr_b32 s55, s45, 1\ns_lshl_b32 s57, s44, 2\ns_add_u32 s55, s55, s57")
if ROT == 0: A("s_and_b32 s55, s45, 3")
NDELTA = {0: 4, 1: 2, 2: 4, 3: 8}[ROT]
def pf_setup():
    A("""v_lshrrev_b32 v20, 3, v1
    v_and_b32 v21, 3, v20
    v_lshrrev_b32 v20, 2, v20
    v_lshlrev_b32 v20, 5, v20
    v_add_u32 v20, v20, v21
    s_lshl_b32 s57, s45, 2
    v_add_u32 v20, s57, v20
    v_and_b32 v21, 7, v1
    v_lshlrev_b32 v21, 4, v21""")
    for D in range(5):
        A(f"v_mul_u32_u24 v{116+D}, s{60+D}, v20\nv_add_u32 v{116+D}, v{116+D}, v21")
    A("""v_lshrrev_b32 v20, 3, v1
    v_lshlrev_b32 v20, 10, v20
    s_lshl_b32 s57, s49, 15
    s_lshl_b32 s58, s15, 13
    s_add_u32 s57, s57, s58
    v_add3_u32 v121, v20, v21, s57""")
def pf_burst(u0, u1):
    n = 0
    for u in range(u0, u1):
        A(f"s_movk_i32 s59, {u*128}\nbuffer_load_dwordx4 {vr(128+4*u,4)}, v121, s[72:75], s59 offen"); n += 1
    for u in range(u0, u1):
        A(f"s_mul_i32 s59, s{PFS}, {64*u}\nbuffer_load_dwordx4 {vr(160+4*u,4)}, v122, s[{PFR}:{PFR+3}], s59 offen"); n += 1
        lb = f"H_PF{u}"
        A(f"s_cmp_eq_u32 s15, {u%4}\ns_cbranch_scc0 {lb}\ns_mul_i32 s59, s64, {64*u}\nbuffer_load_dwordx4 {vr(192+4*(u>>2),4)}, v120, s[40:43], s59 offen")
        A.label(lb)
    Q.add("PF", n)
PFR, PFS = 76, 71
BUR = {}
if OPT.get("burst"):
    pf_setup()
    A(f"s_mov_b32 s{PFR}, s24\ns_mov_b32 s{PFR+1}, s25\ns_mov_b32 s{PFR+2}, s26\ns_mov_b32 s{PFR+3}, 0x20000\ns_mov_b32 s{PFS}, s60\nv_mov_b32 v122, v116")
    for D in (1, 2, 3):
        A(f"""s_cmp_eq_u32 s15, {D}
        s_cselect_b32 s{PFR}, s{24+4*D}, s{PFR}
        s_cselect_b32 s{PFR+1}, s{25+4*D}, s{PFR+1}
        s_cselect_b32 s{PFR+2}, s{26+4*D}, s{PFR+2}
        s_cselect_b32 s{PFS}, s{60+D}, s{PFS}
        s_cselect_b64 vcc, -1, 0
        v_cndmask_b32 v122, v122, v{116+D}, vcc""")
    BUR = {1: {-1: (1, 3), 1: (3, 6), 5: (6, 8)}, 2: {-1: (1, 4), 2: (4, 8)}, 3: {-1: (1, 2), 0: (2, 3), 1: (3, 4), 3: (4, 5), 5: (5, 6), 7: (6, 7), 9: (7, 8)}, 4: {-1: (1, 8)}}[OPT["burst"]]
    pf_burst(*BUR[-1])
A(f"""v_lshrrev_b32 v16, 5, v1
v_lshlrev_b32 v16, 10, v16
v_bfe_u32 v17, v1, 2, 2
v_lshlrev_b32 v17, 6, v17
v_add_u32 v16, v16, v17
v_and_b32 v17, 3, v1
v_lshlrev_b32 v17, 3, v17
v_add_u32 v16, v16, v17
v_bfe_u32 v17, v1, 4, 1
v_lshlrev_b32 v17, 5, v17
s_lshr_b32 s58, s15, 1
s_lshl_b32 s58, s58, 12
s_and_b32 s59, s15, 1
s_lshl_b32 s59, s59, 9
s_add_u32 s58, s58, s59
v_add3_u32 v12, v16, v17, s58
v_lshlrev_b32 v9, 4, v1
v_mov_b32 v10, 0""")
sched = {0: [2], 1: [3], 2: [4, 5]}
for s in range(3, 13): sched[s] = [s + 3]
def col_valu(js, fin):
    for j in js:
        b = 48 + 8 * j; acc = 44 + j
        for d in range(8):
            A(f"v_lshlrev_b32 v18, 16, v{b+d}\nv_and_b32 v19, 0xffff0000, v{b+d}")
            if d == 0: A(f"v_add_f32 v{acc}, v18, v19")
            else: A(f"v_add_f32 v{acc}, v{acc}, v18\nv_add_f32 v{acc}, v{acc}, v19")
    if fin:
        for j in range(3): A(f"v_mov_b32 v{72+2*j}, v{44+j}")
        A("s_nop 1")
        for j in range(3): A(f"v_permlane32_swap_b32 v{72+2*j}, v{44+j}")
        A("s_nop 1")
        for j in range(3): A(f"v_add_f32 v{72+2*j}, v{72+2*j}, v{44+j}")
def row_valu(part):
    if part == 0:
        for rrow in range(2):
            b = 32 + 4 * rrow; sx = 40 + 2 * rrow; sq = sx + 1
            for d in range(4):
                A(f"v_lshlrev_b32 v18, 16, v{b+d}\nv_and_b32 v19, 0xffff0000, v{b+d}")
                if d == 0: A(f"v_add_f32 v{sx}, v18, v19\nv_mul_f32 v{sq}, v18, v18\nv_fmac_f32 v{sq}, v19, v19")
                else: A(f"v_add_f32 v{sx}, v{sx}, v18\nv_fmac_f32 v{sq}, v18, v18\nv_add_f32 v{sx}, v{sx}, v19\nv_fmac_f32 v{sq}, v19, v19")
    else:
        for dpp in ("quad_perm:[1,0,3,2] row_mask:0xf bank_mask:0xf", "quad_perm:[2,3,0,1] row_mask:0xf bank_mask:0xf",
                    "row_half_mirror row_mask:0xf bank_mask:0xf", "row_mirror row_mask:0xf bank_mask:0xf",
                    "row_bcast:15 row_mask:0xa bank_mask:0xf", "row_bcast:31 row_mask:0xc bank_mask:0xf"):
            for r in range(40, 44): A(f"v_add_f32_dpp v{r}, v{r}, v{r} {dpp}")
def get_nonce(tag, vz, vn):
    A(f"""v_readfirstlane_b32 s80, v{vn}
    s_mov_b32 s57, 0
    s_cmp_eq_u32 s80, 0
    s_cbranch_scc0 {tag}_GOTN""")
    A.label(f"{tag}_POLLN")
    A(f"""buffer_load_dword v{vn}, v{vz}, s[16:19], 0 offen sc1
    s_add_u32 s57, s57, 1
    s_waitcnt vmcnt(0)
    v_readfirstlane_b32 s80, v{vn}
    s_cmp_gt_u32 s57, {SPIN}
    s_cbranch_scc1 {tag}_GOTN
    s_cmp_eq_u32 s80, 0
    s_cbranch_scc1 {tag}_POLLN""")
    A.label(f"{tag}_GOTN")
def publish():
    get_nonce("H", 10, 11)
    A(f"""s_lshl_b32 s57, s48, 4
    s_add_u32 s57, s57, s47
    s_mul_i32 s57, s57, 2560
    s_lshl_b32 s58, s15, 8
    s_add_u32 s57, s57, s58
    s_add_u32 s57, s57, {WS_CS}
    v_lshlrev_b32 v16, 3, v1
    v_mov_b32 v73, s80
    v_mov_b32 v75, s80
    v_mov_b32 v77, s80
    s_mov_b32 exec_hi, 0
    buffer_store_dwordx2 v[72:73], v16, s[20:23], s57 offen sc1
    buffer_store_dwordx2 v[74:75], v16, s[20:23], s57 offen offset:1024 sc1
    s_cmp_ge_u32 s15, 2
    s_cbranch_scc1 H_NO3
    buffer_store_dwordx2 v[76:77], v16, s[20:23], s57 offen offset:2048 sc1""")
    A.label("H_NO3")
    A(f"""s_mov_b32 exec_lo, 0
    s_mov_b32 exec_hi, 0x80000000
    s_lshl_b32 s57, s69, 6
    s_lshl_b32 s58, s48, 7
    s_add_u32 s57, s57, s58
    s_lshl_b32 s58, s15, 5
    s_add_u32 s57, s57, s58
    s_add_u32 s57, s57, {WS_TOK}
    v_mov_b32 v48, v40
    v_mov_b32 v49, v41
    v_mov_b32 v50, s80
    v_mov_b32 v51, s80
    v_mov_b32 v52, v42
    v_mov_b32 v53, v43
    v_mov_b32 v54, s80
    v_mov_b32 v55, s80
    buffer_store_dwordx4 v[48:51], v10, s[20:23], s57 offen sc1
    buffer_store_dwordx4 v[52:55], v10, s[20:23], s57 offen offset:16 sc1
    s_mov_b64 exec, -1""")
def gather_loads(part=None):
    if part == 0:
        for m in range(6):
            A(f"s_add_u32 s59, s66, {m*5120}")
            A(f"buffer_load_dwordx4 {vr(64+4*m,4)}, v16, s[20:23], s59 offen sc1")
        return
    for m in range(6 if part == 1 else 0, 8):
        A(f"s_add_u32 s59, s66, {m*5120}")
        A(f"buffer_load_dwordx4 {vr(64+4*m,4)}, v16, s[20:23], s59 offen sc1")
    for m in range(2):
        A(f"s_add_u32 s59, s66, {m*8*2560}")
        A(f"buffer_load_dwordx4 {vr(96+4*m,4)}, v17, s[20:23], s59 offen sc1")
    A("buffer_load_dwordx4 v[104:107], v18, s[20:23], s67 offen sc1")
def gather_prep():
    A(f"""s_mul_i32 s66, s48, {16*2560}
    s_add_u32 s66, s66, {WS_CS}
    v_and_b32 v18, 31, v1
    v_lshlrev_b32 v18, 4, v18
    v_lshrrev_b32 v16, 5, v1
    v_mul_u32_u24 v16, 2560, v16
    s_lshl_b32 s58, s15, 9
    v_add3_u32 v16, v16, v18, s58
    v_and_b32 v17, 7, v1
    v_lshlrev_b32 v17, 4, v17
    v_lshrrev_b32 v19, 3, v1
    v_mul_u32_u24 v19, 2560, v19
    s_lshl_b32 s58, s15, 7
    s_add_u32 s58, s58, 2048
    v_add3_u32 v17, v17, v19, s58
    s_lshl_b32 s67, s69, 6
    s_lshl_b32 s59, s15, 9
    s_add_u32 s67, s67, s59
    s_add_u32 s67, s67, {WS_TOK}""")
def gather_tags():
    tags = list(range(65, 104, 2)) + [106]
    A(f"v_and_b32 v19, v{tags[0]}, v{tags[1]}\nv_or_b32 v20, v{tags[0]}, v{tags[1]}")
    rest = tags[2:]
    for k in range(0, len(rest) - 1, 2):
        A(f"v_bitop3_b32 v19, v19, v{rest[k]}, v{rest[k+1]} bitop3:0x80\nv_or3_b32 v20, v20, v{rest[k]}, v{rest[k+1]}")
    if len(rest) % 2: A(f"v_and_b32 v19, v19, v{rest[-1]}\nv_or_b32 v20, v20, v{rest[-1]}")
    A("""v_xor_b32 v19, s80, v19
    v_xor_b32 v20, s80, v20
    v_or_b32 v19, v19, v20
    v_cmp_eq_u32 vcc, 0, v19
    s_nop 0
    s_cmp_eq_u64 vcc, -1""")
def gather_check():
    Q.wait("GA")
    gather_tags()
    A("s_cselect_b32 s70, 1, 0")
def gather_slow():
    A.label("H_GSLOW")
    A("s_mov_b32 s70, 0")
    A.label("H_GS1")
    gather_loads()
    A("s_waitcnt vmcnt(0)")
    gather_tags()
    A(f"""s_cbranch_scc1 H_GS2
    s_add_u32 s70, s70, 1
    s_cmp_gt_u32 s70, {SPIN}
    s_cbranch_scc1 H_GS2
    s_sleep 4
    s_branch H_GS1""")
    A.label("H_GS2")
    gather_cols()
    A("s_branch H_GTOK")
def gather_cols():
    st = 4
    while st <= 16:
        for r in range(64, 96, 2 * st):
            A(f"v_add_f32 v{r}, v{r}, v{r+st}\nv_add_f32 v{r+2}, v{r+2}, v{r+st+2}")
        st *= 2
    A("""v_add_f32 v96, v96, v100
    v_add_f32 v98, v98, v102
    v_mov_b32 v65, v64
    v_mov_b32 v67, v66
    v_add_f32_dpp v96, v96, v96 row_ror:8 row_mask:0xf bank_mask:0xf
    v_add_f32_dpp v98, v98, v98 row_ror:8 row_mask:0xf bank_mask:0xf
    v_permlane32_swap_b32 v65, v64
    v_permlane32_swap_b32 v67, v66
    v_mov_b32 v97, v96
    v_mov_b32 v99, v98
    v_add_f32 v64, v64, v65
    v_add_f32 v66, v66, v67
    v_permlane32_swap_b32 v97, v96
    v_permlane32_swap_b32 v99, v98
    s_nop 0
    v_add_f32 v96, v96, v97
    v_add_f32 v98, v98, v99
    v_mov_b32 v97, v96
    v_mov_b32 v99, v98
    s_nop 1
    v_permlane16_swap_b32 v97, v96
    v_permlane16_swap_b32 v99, v98
    s_nop 0
    v_add_f32 v96, v96, v97
    v_add_f32 v98, v98, v99""")
    for r, d in ((64, 68), (66, 69), (96, 70), (98, 71)):
        A(f"""v_cvt_pk_bf16_f32 v{r+1}, v{r}, v{r}
        v_and_b32 v{r+1}, 0xffff0000, v{r+1}
        v_sub_f32 v{r}, v{r}, v{r+1}
        v_cvt_pk_bf16_f32 v{d}, v{r+1}, v{r}""")
    A(f"""v_lshrrev_b32 v16, 1, v18
    s_lshl_b32 s58, s15, 8
    s_add_u32 s58, s58, {EX_COL}
    v_add_u32 v16, s58, v16
    ds_write_b64 v16, v[68:69]
    v_and_b32 v17, 7, v1
    v_lshlrev_b32 v17, 3, v17
    s_lshl_b32 s58, s15, 6
    s_add_u32 s58, s58, {EX_COL + 1024}
    v_add_u32 v17, s58, v17
    ds_write_b64 v17, v[70:71]""")
def gather_toks():
    c1 = -2.0 * math.sqrt(2.0 / math.pi) * LOG2E
    c3 = c1 * 0.044715
    A(f"""    v_mul_f32 v104, {f32(-1/512)}, v104
    v_mul_f32 v105, {f32(1/512)}, v105
    v_fma_f32 v105, -v104, v104, v105
    v_max_f32 v105, 0, v105
    v_add_f32 v113, {f32(1e-5)}, v105
    v_rsq_f32 v110, v113
    v_cvt_pk_bf16_f32 v108, v104, v104
    v_and_b32 v106, 0xffff0000, v108
    v_sub_f32 v106, v104, v106
    v_cvt_pk_bf16_f32 v109, v106, v106
    v_mul_f32 v111, {f32(c1)}, v110
    v_mul_f32 v112, v110, v110
    v_mul_f32 v112, v112, v110
    v_mul_f32 v112, {f32(c3)}, v112
    v_mov_b32 v114, s80
    v_lshlrev_b32 v18, 1, v18
    s_lshl_b32 s58, s15, 10
    s_add_u32 s58, s58, {EX_TOK}
    v_add_u32 v18, s58, v18
    ds_write_b128 v18, v[108:111]
    ds_write_b128 v18, v[112:115] offset:16
    s_waitcnt lgkmcnt(0)""")
WD = OPT["wd"]
UFB = [60, 61, 62, 76, 77, 78, 79]
def d_setup_w():
    A(f"""v_bfe_u32 v6, v1, 2, 3
    v_lshlrev_b32 v6, 10, v6
    v_lshrrev_b32 v7, 5, v1
    v_lshlrev_b32 v7, 6, v7
    v_add_u32 v6, v6, v7
    v_and_b32 v7, 3, v1
    v_lshlrev_b32 v7, 4, v7
    v_add_u32 v2, v6, v7
    s_lshl_b32 s43, s15, 11
    s_lshr_b32 s58, s2, 5
    s_lshl_b32 s40, s58, 7
    s_lshl_b32 s42, s15, 17
    s_add_u32 s42, s42, s40
    s_mul_i32 s57, s15, 24""")
    if OPT["rotd"]:
        A("""s_mul_i32 s59, s58, 11
        s_lshr_b32 s59, s59, 5
        s_mul_i32 s59, s59, 3
        s_sub_u32 s59, s58, s59""")
    else:
        A("s_mov_b32 s59, 0\ns_mov_b32 s58, 0")
    for u in range(3):
        A(f"""s_lshl_b32 s{UFB[u]}, s59, 3
        s_add_u32 s{UFB[u]}, s{UFB[u]}, s57
        s_add_u32 s{UFB[u]}, s{UFB[u]}, 4
        s_add_u32 s59, s59, 1
        s_cmp_eq_u32 s59, 3
        s_cselect_b32 s59, 0, s59""")
    A("s_lshl_b32 s41, s15, 2\ns_add_u32 s41, s41, 96")
    for u in range(4):
        A(f"""s_add_u32 s59, s58, {u}
        s_and_b32 s59, s59, 3
        s_lshl_b32 s44, s59, 3
        s_add_u32 s44, s44, s57
        s_cmp_eq_u32 s59, 3
        s_cselect_b32 s{UFB[3+u]}, s41, s44""")
    A("""s_waitcnt lgkmcnt(0)
    s_mov_b32 s26, 0x1c0000
    s_mov_b32 s27, 0x20000
    s_mov_b32 s30, 0x80000
    s_mov_b32 s31, 0x20000""")
def issw(s, q):
    slot = s % WD
    if s < 28:
        srd = 24
        o = [f"s_lshl_b32 s44, s{UFB[s>>2]}, 14", "s_add_u32 s44, s44, s40"]
        if s & 3: o.append(f"s_add_u32 s44, s44, {(s&3)*16384}")
    else:
        srd = 28
        o = [f"s_add_u32 s44, s42, {(s-28)*16384}"]
    a = o + [f"s_add_u32 m0, s43, {DREG[slot]}", "s_add_u32 s45, s44, 8192",
             f"buffer_load_dwordx4 v2, s[{srd}:{srd+3}], s44 offen lds"]
    b = [f"s_add_u32 m0, s43, {DREG[slot]+1024}", "s_nop 0",
         f"buffer_load_dwordx4 v2, s[{srd}:{srd+3}], s45 offen lds"]
    q.add(f"W{s}", 2)
    return [a, b]
P0 = max(NDELTA, 4)
wnext = [0]
GAT, GC = OPT['gat'], OPT['gc']
HP = OPT.get('hprof')
for s in range(17):
    if s < 16: Q.wait(f"S{s}")
    if HP and s >= 4: A(f"s_memtime s[100:101]\ns_waitcnt lgkmcnt(0)\ns_sub_u32 s99, s100, s98\ns_add_u32 s{84+s-4}, s99, s83")
    A("s_barrier")
    if HP: A("s_memtime s[100:101]\ns_waitcnt lgkmcnt(0)\ns_mov_b32 s98, s100")
    if s == 0 and not HP: PR.stamp()
    for k in sched.get(s, []): G(k)
    if s in BUR: pf_burst(*BUR[s])
    if s == 0:
        A("""s_lshl_b32 s57, s48, 13
        s_lshl_b32 s58, s15, 11
        s_add_u32 s57, s57, s58
        buffer_load_dwordx4 v[32:35], v9, s[72:75], s57 offen
        buffer_load_dwordx4 v[36:39], v9, s[72:75], s57 offen offset:1024
        buffer_load_dword v11, v10, s[16:19], 0 offen sc1""")
        Q.add("ST", 3)
    if s < NDELTA:
        lb = f"H_NOCS{s}"
        A(f"s_cmp_eq_u32 s55, {s}\ns_cbranch_scc0 {lb}\nv_add_u32 v12, {WR + (s%5)*WSL}, v12")
        for j in range(3):
            for t in range(4):
                A(f"ds_read_b64_tr_b16 {vr(48+8*j+2*t,2)}, v12 offset:{j*8192 + (t>>1)*2048 + (t&1)*256}")
        A("s_waitcnt lgkmcnt(0)")
        A.label(lb)
    if s == 4: row_valu(0); col_valu([0], False)
    if s == 5: col_valu([1], False)
    if s == 6: col_valu([2], True); row_valu(1)
    if s == OPT["pub"]: publish()
    if s == 3:
        A("s_load_dwordx2 s[4:5], s[0:1], 48\ns_load_dwordx2 s[8:9], s[0:1], 16")
    if OPT["vw"] and s == OPT["vw"]:
        A("""s_cmp_lg_u32 s15, 0
        s_cbranch_scc1 H_NOWARM
        s_mul_i32 s57, s2, 7168
        s_lshl_b32 s58, s2, 11
        v_lshlrev_b32 v20, 7, v1
        s_waitcnt lgkmcnt(0)
        s_add_u32 s6, s57, 7168
        s_mov_b32 s7, 0x20000
        s_add_u32 s10, s58, 2048
        s_mov_b32 s11, 0x20000
        buffer_load_dword v21, v20, s[4:7], s57 offen
        buffer_load_dword v22, v20, s[8:11], s58 offen""")
        A.label("H_NOWARM")
    if s == 5 and not OPT["vw"]:
        A("""s_lshl_b32 s57, s2, 2
        s_add_u32 s57, s57, s15
        s_mul_i32 s58, s57, 1792
        s_lshl_b32 s57, s57, 9
        s_waitcnt lgkmcnt(0)
        s_add_u32 s4, s4, s58
        s_addc_u32 s5, s5, 0
        s_add_u32 s8, s8, s57
        s_addc_u32 s9, s9, 0""")
    if s in (5, 7, 8, 9) and not OPT['vw']:
        k0 = {5: 0, 7: 9, 8: 18, 9: 27}[s]
        for i in range(k0, k0 + 9):
            if i < 28: A(f"s_load_dword s65, s[4:5], {i*64}")
            else: A(f"s_load_dword s65, s[8:9], {(i-28)*64}")
    if OPT["l2pf"] and s == OPT["warm"] + 1:
        A("""s_lshr_b32 s57, s2, 3
        s_lshl_b32 s57, s57, 2
        s_add_u32 s57, s57, s15
        s_lshr_b32 s58, s57, 3
        s_min_u32 s58, s58, 11
        s_lshr_b32 s59, s58, 1
        s_mul_i32 s59, s59, 6
        s_and_b32 s65, s58, 1
        s_lshl_b32 s65, s65, 1
        s_add_u32 s59, s59, s65
        s_add_u32 s59, s59, 2
        s_add_u32 s65, s58, 16
        s_cmp_lt_u32 s58, 8
        s_cselect_b32 s59, s59, s65
        s_lshl_b32 s59, s59, 16
        s_and_b32 s58, s57, 7
        s_lshl_b32 s58, s58, 13
        s_add_u32 s58, s58, s59
        s_lshl_b32 s57, s57, 12
        s_waitcnt lgkmcnt(0)
        s_add_u32 s4, s4, s58
        s_addc_u32 s5, s5, 0
        s_add_u32 s8, s8, s57
        s_addc_u32 s9, s9, 0""")
    if OPT["l2pf"] and OPT["warm"] + 1 <= s <= OPT["l2end"]:
        nst = OPT["l2end"] - OPT["warm"]
        tot = OPT["l2pf"]
        i0 = (s - OPT["warm"] - 1) * tot // nst; i1 = (s - OPT["warm"]) * tot // nst
        for i in range(i0, i1):
            if i < 64: A(f"s_load_dword s65, s[4:5], {i*128}")
            else: A(f"s_load_dword s65, s[8:9], {(i-64)*128}")
    if s == 8: gather_prep()
    if s == GAT: gather_loads(0); Q.add("GA0", 6)
    if s == GAT + OPT["gd"]: gather_loads(1); Q.add("GA", 5)
    if s == 12:
        A("s_load_dwordx2 s[24:25], s[0:1], 48\ns_load_dwordx2 s[28:29], s[0:1], 16")
        d_setup_w()
    if s == GC: gather_check()
    if s in DAVAIL:
        for _ in range(DAVAIL[s]):
            emit(issw(wnext[0], Q)); wnext[0] += 1
    if s == GC + 1:
        A("s_cmp_eq_u32 s70, 0\ns_cbranch_scc1 H_NOCOLS")
        gather_cols()
        A.label("H_NOCOLS")
    if s == 15:
        A("s_cmp_eq_u32 s70, 0\ns_cbranch_scc1 H_GSLOW")
        A.label("H_GTOK")
        gather_toks()
    if s in (4, 8, 12) and not HP: PR.stamp()
if HP:
    PR.n = 15; PR.dump(20); PR.n = 0
    OPT["prof"] = 0
PR.stamp()
PR.stamp()
import gen_cd
gen_cd.OPT = OPT
if OPT["amap"]:
    A("""s_and_b32 s57, s2, 6
    s_lshl_b32 s50, s57, 2
    s_lshr_b32 s58, s2, 3
    s_and_b32 s58, s58, 7
    s_add_u32 s50, s50, s58
    s_and_b32 s47, s2, 1
    s_lshl_b32 s47, s47, 2
    s_lshr_b32 s58, s2, 6
    s_add_u32 s47, s47, s58""")
else:
    A("""s_and_b32 s57, s2, 7
    s_lshr_b32 s58, s2, 3
    s_and_b32 s58, s58, 3
    s_lshl_b32 s50, s58, 3
    s_add_u32 s50, s50, s57
    s_lshr_b32 s47, s2, 5""")
A("s_lshl_b32 s51, s47, 2\ns_add_u32 s51, s51, s15")
gen_cd.attn_setup(A)
SH = OPT["share"]
LK, LVS, LFL = 16384, 49152, 49152 + 16384 + 1024
if SH:
    LONE = 49152 + 16384
    A(f"""s_lshl_b32 s49, s47, 2
    s_lshl_b32 s57, s15, 1
    s_add_u32 s49, s49, s57
    s_sub_u32 s49, s49, 4
    v_and_b32 v9, 1, v1
    v_add_u32 v9, s49, v9
    v_max_i32 v9, 0, v9
    v_lshlrev_b32 v9, 8, v9
    v_bfe_u32 v10, v1, 1, 1
    v_lshlrev_b32 v10, 6, v10
    v_add3_u32 v9, v9, v10, 64
    s_lshl_b32 s57, s51, 8
    v_mov_b32 v10, s57
    v_cmp_gt_u32 vcc, 4, v1
    s_lshr_b32 s57, s50, 1
    s_lshl_b32 s57, s57, 7
    s_add_u32 s57, s57, {WS_FQ}
    v_cndmask_b32 v9, v10, v9, vcc
    v_lshlrev_b32 v9, 5, v9
    v_add_u32 v252, s57, v9""")
else:
    A(f"""v_min_u32 v9, 10, v1
    v_cmp_gt_u32 vcc, 5, v9
    v_subrev_u32 v10, 5, v9
    s_nop 0
    v_cndmask_b32 v10, v10, v9, vcc
    v_min_u32 v10, 4, v10
    s_sub_u32 s57, s51, 4
    v_add_u32 v10, s57, v10
    v_max_i32 v10, 0, v10
    v_lshlrev_b32 v10, 8, v10
    v_mov_b32 v11, 128
    v_cndmask_b32 v11, v11, 64, vcc
    v_cmp_eq_u32 vcc, 10, v9
    s_lshr_b32 s57, s50, 1
    s_lshl_b32 s57, s57, 7
    s_add_u32 s57, s57, {WS_FQ}
    v_cndmask_b32 v11, v11, 0, vcc
    v_add_u32 v10, v10, v11
    v_lshlrev_b32 v10, 5, v10
    v_add_u32 v252, s57, v10""")
A("s_barrier")
PR.stamp()
gen_cd.LONE = LONE
if SH:
    A(f"s_lshl_b32 s57, s15, 11\ns_add_u32 s57, s57, {LVS}")
else:
    A("""s_movk_i32 s57, 0x4000
    s_cmp_eq_u32 s15, 1
    s_cselect_b32 s57, 49152, s57
    s_cmp_eq_u32 s15, 2
    s_cselect_b32 s57, 59392, s57
    s_cmp_eq_u32 s15, 3
    s_cselect_b32 s57, 151552, s57""")
gen_cd.attn_setup2(A, None)
ld = "buffer_load_dword v253, v252, s[20:23], 0 offen sc1"
A("s_waitcnt vmcnt(0)")
PR.stamp()
A("s_barrier")
A(f"s_setprio {OPT['aprio']}")
A(f"s_sleep {OPT['hs']}")
A(ld)
A("s_waitcnt vmcnt(0)")
spin(A, "HQ", ld, 253)
PR.stamp()
if SH:
    A(f"""s_lshl_b32 s52, s50, 16
    s_lshl_b32 s53, s49, 11""")
    for which, base, r0 in ((0, WS_K, 188), (1, WS_V, 204)):
        for b in range(4):
            if b % 2 == 0:
                A(f"s_add_i32 s55, s53, {b*1024}\ns_max_i32 s55, s55, 0\ns_add_u32 s55, s55, s52\ns_add_u32 s55, s55, {base}")
            A(f"buffer_load_dwordx4 {vr(r0+4*b,4)}, v3, s[20:23], s55 offen offset:{(b%2)*1024} sc1")
    A(f"""s_lshl_b32 s53, s51, 11
    s_add_u32 s54, s52, s53
    buffer_load_dwordx4 v[12:15], v3, s[20:23], s54 offen sc1
    buffer_load_dwordx4 v[16:19], v3, s[20:23], s54 offen offset:1024 sc1
    s_lshl_b32 s57, s15, 12
    v_add_u32 v9, s57, v3
    v_add_u32 v10, s57, v2
    s_lshl_b32 s57, s15, 11
    v_add_u32 v11, s57, v3
    s_lshl_b32 s57, s15, 2
    s_add_u32 s57, s57, {LFL}
    v_mov_b32 v252, s57
    v_mov_b32 v253, s80
    v_mov_b32 v254, {LFL}""")
    for b in range(4):
        A(f"s_waitcnt vmcnt({9-b})\nds_write_b128 v9, {vr(188+4*b,4)} offset:{LK + b*1024}")
    for b in range(4):
        A(f"s_waitcnt vmcnt({5-b})\nds_write_b128 v10, {vr(204+4*b,4)} offset:{LVS + b*1024}")
    A("""s_waitcnt lgkmcnt(0)
    ds_write_b32 v252, v253
    s_mov_b32 s56, 0""")
    A.label("H_LW")
    A(f"""ds_read_b128 v[188:191], v254
    s_add_u32 s56, s56, 1
    s_waitcnt lgkmcnt(0)
    v_xor_b32 v188, s80, v188
    v_xor_b32 v189, s80, v189
    v_xor_b32 v190, s80, v190
    v_xor_b32 v191, s80, v191
    v_or3_b32 v188, v188, v189, v190
    v_or_b32 v188, v188, v191
    v_cmp_eq_u32 vcc, 0, v188
    s_cmp_gt_u32 s56, {SPIN*50}
    s_cbranch_scc1 H_LOK
    s_cmp_eq_u64 vcc, -1
    s_cbranch_scc1 H_LOK
    s_sleep 1
    s_branch H_LW""")
    A.label("H_LOK")
    for b in range(10):
        A(f"ds_read_b128 {vr(20+4*b,4)}, v11 offset:{LK + b*1024}")
    A("s_waitcnt vmcnt(0)")
A(f"s_setprio {OPT['aprio2']}")
if OPT.get("noattn"): A("s_branch H_AFIN")
A("s_cmp_lt_u32 s51, 4")
A("s_cbranch_scc1 H_SLOW")
n0 = PR.n
gen_cd.gen_attn(A, False, "AF", PR, "sc1", setup=False, bar=OPT["defer"] >= 4, loads=not SH, shared=SH)
A.label("H_AFIN")
PR.stamp()
A(f"""s_lshl_b32 s57, s51, 12
s_lshl_b32 s58, s50, 7
s_add_u32 s57, s57, s58
s_add_u32 s57, s57, {WS_FO}
v_mov_b32 v9, 0
v_mov_b32 v10, s80
s_waitcnt vmcnt(0)
s_mov_b64 exec, 1
buffer_store_dword v10, v9, s[20:23], s57 offen sc1
s_mov_b64 exec, -1""")
PR.stamp()
PR.dump(2)
A.label("L_END")
A("s_endpgm")
gather_slow()
A.label("H_SLOW")
PR.n = n0
gen_cd.gen_attn(A, True, "AS", PR, "sc1", setup=False, bar=OPT["defer"] >= 4, loads=not SH, shared=SH)
A("s_branch H_AFIN")
A.label("L_M")
PR.n = 0
A("s_waitcnt lgkmcnt(0)")
PR.stamp(True); PR.stamp()
ws_srd()
if OPT["codepf"]:
    A("s_getpc_b64 s[24:25]")
    A.label("L_PC")
    A(f"""s_sub_u32 s24, s24, L_PC-{NAME}
    s_subb_u32 s25, s25, 0
    s_mov_b32 s26, L_CODE_END-{NAME}
    s_mov_b32 s27, 0x20000
    s_lshr_b32 s57, s2, 3
    s_lshl_b32 s57, s57, 2
    s_add_u32 s57, s57, s14
    s_lshl_b32 s57, s57, 9
    v_lshlrev_b32 v16, 7, v1
    s_mov_b64 exec, 15
    buffer_load_dword v31, v16, s[24:27], s57 offen
    s_mov_b64 exec, -1""")
vXa = [2, 3, 4, 5]; vWa = [6, 7, 8, 9, 10]; vWb = [11, 12, 13, 14, 15]
P = 32; QQ = 60; ACC = 88
A("s_setprio 2")
A("""s_and_b32 s12, s14, 1
s_lshr_b32 s13, s14, 1
v_and_b32 v16, 31, v1
v_lshrrev_b32 v17, 5, v1
v_bfe_u32 v18, v1, 1, 3
v_xor_b32 v17, v17, v18
v_lshlrev_b32 v17, 4, v17
v_lshlrev_b32 v16, 7, v16
v_add_u32 v16, v16, v17
s_lshl_b32 s57, s12, 13
v_add_u32 v2, s57, v16
v_xor_b32 v3, 32, v2
v_xor_b32 v4, 64, v2
v_xor_b32 v5, 96, v2""")
A(f"""v_lshrrev_b32 v16, 5, v1
v_lshlrev_b32 v16, 10, v16
v_bfe_u32 v17, v1, 2, 2
v_lshlrev_b32 v17, 6, v17
v_add_u32 v16, v16, v17
v_and_b32 v17, 3, v1
v_lshlrev_b32 v17, 3, v17
v_add_u32 v16, v16, v17
v_add_u32 v16, {WR}, v16
v_bfe_u32 v17, v1, 4, 1
s_sub_u32 s57, 2, s50
s_lshl_b32 s57, s57, 12
v_mul_u32_u24 v18, s57, v17
v_xor_b32 v19, s13, v17
v_lshlrev_b32 v19, 5, v19
v_add3_u32 v18, v18, v19, v16
v_lshlrev_b32 v19, 5, v17
s_lshl_b32 s57, s13, 9
v_add3_u32 v19, v19, s57, v16
s_cmp_eq_u32 s50, 1
s_cselect_b64 vcc, -1, 0""")
for n in range(5):
    fo = (n >> 1) * 4096 + (n & 1) * 512
    qo = n * 4096
    if n < 2: A(f"v_add_u32 v{vWa[n]}, {fo}, v18")
    elif n == 4: A(f"v_add_u32 v{vWa[n]}, {qo}, v19")
    else:
        A(f"v_add_u32 v20, {fo}, v18\nv_add_u32 v21, {qo}, v19\nv_cndmask_b32 v{vWa[n]}, v20, v21, vcc")
for n in range(5): A(f"v_add_u32 v{vWb[n]}, {4*WSL}, v{vWa[n]}")
def reads(s, kk, dst):
    xs = (s >> 1) % 3; q4 = (s & 1) * 2 + kk; sl = s % 5
    def xr(tt): return f"ds_read_b128 {vr(dst+4*tt,4)}, v{vXa[q4]} offset:{XR + xs*XS + tt*4096}"
    def wr(n, sec):
        a, o = (vWa[n], sl * WSL) if sl < 4 else (vWb[n], 0)
        return f"ds_read_b64_tr_b16 {vr(dst+8+4*n+2*sec,2)}, v{a} offset:{o + kk*2048 + sec*256}"
    R = [xr(0), wr(0, 0), wr(0, 1), xr(1)]
    for n in range(1, 5): R += [wr(n, 0), wr(n, 1)]
    return R
need = {0: 2, 1: 3, 2: 5, 4: 7, 6: 9, 8: 11}
def substep(cur, R, first=False):
    issued = 0
    for j in range(10):
        n, tt = j >> 1, j & 1
        if j in need: A(f"s_waitcnt lgkmcnt({min(15, 11 - need[j] + issued)})")
        a = ACC + 16 * (2 * n + tt)
        c = "0" if first else vr(a, 16)
        A(f"v_mfma_f32_32x32x16_bf16 {vr(a,16)}, {vr(cur+8+4*n,4)}, {vr(cur+4*tt,4)}, {c}")
        k = 2 if j < 2 else 1
        for r in R[issued:issued + k]: A(r)
        issued += len(R[issued:issued + k])
A(f"""v_and_b32 v16, 31, v1
v_lshlrev_b32 v22, 5, v16
s_lshl_b32 s57, s12, 11
s_add_u32 s57, s57, {EX_TOK}
v_add_u32 v22, s57, v22
v_and_b32 v16, 15, v1
s_sub_u32 s57, 2, s50
s_lshl_b32 s57, s57, 6
v_mul_u32_u24 v18, s57, v17
v_xor_b32 v19, s13, v17
v_lshlrev_b32 v19, 4, v19
v_add3_u32 v18, v18, v19, v16
v_lshlrev_b32 v18, 2, v18
v_and_b32 v19, 31, v1
s_lshl_b32 s57, s13, 5
v_add_u32 v19, s57, v19
v_lshlrev_b32 v19, 2, v19""")
for n in range(5):
    fo = EX_COL + ((n >> 1) * 64 + (n & 1) * 32) * 4
    qo = EX_COL + n * 256
    if n < 2: A(f"v_add_u32 v{23+n}, {fo}, v18")
    elif n == 4: A(f"v_add_u32 v{23+n}, {qo}, v19")
    else:
        A(f"v_add_u32 v20, {fo}, v18\nv_add_u32 v21, {qo}, v19\nv_cndmask_b32 v{23+n}, v20, v21, vcc")
A(f"""s_lshl_b32 s57, s47, 2
s_lshl_b32 s58, s12, 1
s_add_u32 s57, s57, s58
s_mul_i32 s70, s57, {112*1024}
s_lshl_b32 s59, s53, 12
s_add_u32 s70, s70, s59
s_lshl_b32 s59, s13, 10
s_add_u32 s70, s70, s59
s_add_u32 s70, s70, {WS_H}
s_lshl_b32 s59, s54, 2
s_lshl_b32 s60, s13, 1
s_add_u32 s59, s59, s60
s_lshl_b32 s71, s59, 6
s_add_u32 s71, s71, s57
s_lshl_b32 s71, s71, 10
s_lshl_b32 s57, s57, 7
s_lshl_b32 s72, s59, 1
s_add_u32 s72, s72, s57
s_lshl_b32 s72, s72, 5
s_add_u32 s72, s72, {WS_FQ}
s_lshl_b32 s73, s48, 3
s_lshl_b32 s60, s13, 2
s_add_u32 s73, s73, s60
s_add_u32 s73, s73, s57
s_lshl_b32 s73, s73, 5
s_add_u32 s73, s73, {WS_FH}
s_add_u32 s74, s73, 4096
s_load_dwordx2 s[24:25], s[0:1], 48
s_load_dwordx2 s[28:29], s[0:1], 16
s_load_dwordx2 s[36:37], s[0:1], 56
s_waitcnt lgkmcnt(0)""")
if OPT["tlb"]:
    A("""v_lshlrev_b32 v16, 21, v1
    v_mov_b32 v17, 0
    s_mov_b64 exec, 0x1ff
    buffer_load_dword v30, v16, s[20:23], 0 offen sc1
    s_mov_b64 exec, 1
    global_load_dword v30, v17, s[36:37] sc1
    global_load_dword v30, v17, s[24:25]
    global_load_dword v30, v17, s[28:29]
    s_mov_b64 exec, -1""")
A("s_waitcnt vmcnt(0)")
A("s_barrier")
PR.stamp()
for r in reads(0, 0, P): A(r)
A.raw(".p2align 3")
for s in range(16):
    substep(P, reads(s, 1, QQ), first=(s == 0))
    A("s_barrier")
    if s < 15: substep(QQ, reads(s + 1, 0, P))
    else:
        R = [f"ds_read_b128 {vr(P,4)}, v22", f"ds_read_b128 {vr(P+4,4)}, v22 offset:1024",
             f"ds_read_b128 v[16:19], v22 offset:16", f"ds_read_b128 v[28:31], v22 offset:1040"]
        R += [f"ds_read_b32 v{P+8+4*n}, v{23+n}" for n in range(5)]
        substep(QQ, R)
    if s in (11,): PR.stamp()
A("s_waitcnt lgkmcnt(0)")
A("s_barrier")
PR.stamp()
A(f"""v_mov_b32 v248, v{P+2}
v_mov_b32 v249, v{P+3}
v_mov_b32 v250, v16
v_mov_b32 v251, v17
v_mov_b32 v252, v{P+6}
v_mov_b32 v253, v{P+7}
v_mov_b32 v254, v28
v_mov_b32 v255, v29
v_cmp_gt_u32 vcc, 32, v1
v_readfirstlane_b32 s80, v18
v_mov_b32 v{P+2}, 0
v_mov_b32 v{P+3}, 0
v_mov_b32 v{P+6}, 0
v_mov_b32 v{P+7}, 0
v_cndmask_b32 v{P}, 0, v{P}, vcc
v_cndmask_b32 v{P+1}, 0, v{P+1}, vcc
v_cndmask_b32 v{P+4}, 0, v{P+4}, vcc
v_cndmask_b32 v{P+5}, 0, v{P+5}, vcc""")
for n in (4, 3, 2, 1, 0):
    w = P + 8 + 4 * n
    A(f"v_mov_b32 v{w+1}, v{w}\nv_mov_b32 v{w+2}, 0\nv_mov_b32 v{w+3}, 0")
for n in (4, 3, 2, 1, 0):
    for tt in range(2):
        a = ACC + 16 * (2 * n + tt)
        A(f"v_mfma_f32_32x32x16_bf16 {vr(a,16)}, {vr(P+8+4*n,4)}, {vr(P+4*tt,4)}, {vr(a,16)}")
A(f"""v_lshlrev_b32 v2, 4, v1
v_and_b32 v3, 31, v1
v_lshlrev_b32 v3, 5, v3
v_lshrrev_b32 v4, 5, v1
v_lshlrev_b32 v4, 4, v4
v_add_u32 v3, v3, v4
v_lshlrev_b32 v8, 8, v1
v_mov_b32 v9, s80""")
T = QQ
for tt in range(2):
    for k in range(3):
        A(f"v_mov_b32 v{68+6*tt+2*k}, v{248+4*tt+1+k}\nv_mov_b32 v{69+6*tt+2*k}, v{248+4*tt+1+k}")
def ffn(n, tt):
    a = ACC + 16 * (2 * n + tt); c = 68 + 6 * tt
    for r in range(0, 8, 2): A(f"v_pk_mul_f32 {vr(T+r,2)}, {vr(a+r,2)}, {vr(a+r,2)}")
    for r in range(0, 8, 2): A(f"v_pk_fma_f32 {vr(T+r,2)}, {vr(T+r,2)}, {vr(c+2,2)}, {vr(c,2)}")
    for r in range(0, 8, 2): A(f"v_pk_mul_f32 {vr(T+r,2)}, {vr(T+r,2)}, {vr(a+r,2)}")
    for r in range(8): A(f"v_exp_f32 v{T+r}, v{T+r}")
    for r in range(0, 8, 2): A(f"v_pk_mul_f32 {vr(a+r,2)}, {vr(a+r,2)}, {vr(a+8+r,2)}")
    for r in range(0, 8, 2): A(f"v_pk_fma_f32 {vr(T+r,2)}, {vr(T+r,2)}, {vr(c+4,2)}, {vr(c+4,2)}")
    for r in range(8): A(f"v_rcp_f32 v{T+r}, v{T+r}")
    A("s_nop 0")
    for r in range(0, 8, 2): A(f"v_pk_mul_f32 {vr(a+r,2)}, {vr(a+r,2)}, {vr(T+r,2)}")
    for d in range(4): A(f"v_cvt_pk_bf16_f32 v{a+8+d}, v{a+2*d}, v{a+2*d+1}")
def ffn_st(n, tt):
    a = ACC + 16 * (2 * n + tt)
    A(f"s_add_u32 s63, s70, {2048*n + tt*112*1024}")
    A(f"buffer_store_dwordx4 {vr(a+8,4)}, v2, s[20:23], s63 offen sc1")
def qkv(n, zoff):
    A(f"""s_add_u32 s60, s54, {zoff}
    s_cmp_lt_u32 s60, 8
    s_mov_b32 s62, {f32(0.25*LOG2E)}
    s_cselect_b32 s62, s62, 1.0
    v_mul_f32 v4, s62, v248
    v_mul_f32 v6, s62, v252
    v_mul_f32 v5, s62, v248
    v_mul_f32 v7, s62, v252""")
    for tt in range(2):
        a = ACC + 16 * (2 * n + tt)
        for r in range(0, 16, 2): A(f"v_pk_mul_f32 {vr(a+r,2)}, {vr(a+r,2)}, {vr(4+2*tt,2)}")
        for d in range(8): A(f"v_cvt_pk_bf16_f32 v{a+d}, v{a+2*d}, v{a+2*d+1}")
        A(f"s_add_u32 s63, s71, {zoff*4*65536 + tt*1024}")
        A(f"buffer_store_dwordx4 {vr(a,4)}, v2, s[20:23], s63 offen sc1")
        A(f"s_add_u32 s63, s63, 65536")
        A(f"buffer_store_dwordx4 {vr(a+4,4)}, v2, s[20:23], s63 offen sc1")
def flag(vm, mask, soff, imm=0, voff=8):
    A(f"s_waitcnt vmcnt({vm})\ns_mov_b64 exec, {mask}\nbuffer_store_dword v9, v{voff}, s[20:23], s{soff} offen offset:{imm} sc1\ns_mov_b64 exec, -1")
A("s_cmp_eq_u32 s50, 1")
A("s_cbranch_scc1 M_TC")
def ffs(n, tt): ffn(n, tt); ffn_st(n, tt)
DF = OPT["defer"]
qkv(4, 0)
if DF:
    ffn(3, 0); ffn(3, 1)
    A("s_barrier")
    ffn(2, 0); ffn(2, 1)
    if DF == 5: flag(0, 1, 72)
    if DF >= 2: ffn(1, 0); ffn(1, 1)
    if DF != 5: flag(0, 1, 72)
    nq = PR.n; PR.stamp()
    if DF >= 3: ffn(0, 0); ffn(0, 1)
    if DF >= 4: A("s_barrier")
    for n in (3, 2):
        for tt in range(2): ffn_st(n, tt)
    if DF == 1: ffs(1, 0); ffs(1, 1); ffs(0, 0); ffs(0, 1)
    elif DF == 2: ffn_st(1, 0); ffn_st(1, 1); ffs(0, 0); ffs(0, 1)
    else: ffn_st(1, 0); ffn_st(1, 1); ffn_st(0, 0); ffn_st(0, 1)
    if not OPT["safe"]: flag(4, 1, 73)
else:
    ffs(3, 0); ffs(3, 1)
    A("s_barrier")
    ffs(2, 0); ffs(2, 1)
    flag(4, 1, 72)
    ffs(1, 0); ffs(1, 1); ffs(0, 0); ffs(0, 1)
    flag(4, 1, 73)
A("s_branch M_TJ")
A.label("M_TC")
qkv(4, 2); qkv(3, 1); qkv(2, 0)
A("s_barrier")
if DF:
    order = [(1, 0), (1, 1), (0, 0), (0, 1)]
    for t in order[:OPT["cq"]]: ffn(*t)
    flag(0, 7, 72)
    PR.n = nq; PR.stamp()
    for t in order[OPT["cq"]:]: ffn(*t)
    if DF >= 4: A("s_barrier")
    ffn_st(1, 0); ffn_st(1, 1); ffn_st(0, 0); ffn_st(0, 1)
else:
    ffs(1, 0); ffs(1, 1); ffs(0, 0); ffs(0, 1)
    flag(4, 7, 72)
A.label("M_TJ")
PR.stamp()
A("s_mov_b32 s15, s14")
d_setup_w()
XRr, BF, WF, AD, AS = 8, 16, 80, 96, 160
BD, NS = 8, 36
flag(0, 0x10001, 73) if OPT["safe"] else flag(0, 1, 74)
PR.stamp()
DQ = VQ(A)
A(f"""s_and_b32 s57, s2, 6
s_lshl_b32 s50, s57, 1
s_and_b32 s57, s2, 1
s_lshl_b32 s57, s57, 4
s_add_u32 s50, s50, s57
s_lshr_b32 s57, s2, 3
s_and_b32 s57, s57, 3
s_add_u32 s50, s50, s57
s_lshr_b32 s51, s2, 5
v_lshlrev_b32 v3, 4, v1
s_lshl_b32 s55, s50, 13
s_lshl_b32 s57, s15, 10
s_add_u32 s55, s55, s57
s_add_u32 s55, s55, {WS_FH}
s_add_u32 s75, s55, 4096
v_min_u32 v226, 5, v1
v_lshlrev_b32 v226, 7, v226
v_min_u32 v227, 7, v1
v_lshlrev_b32 v227, 7, v227""")
ld0 = "buffer_load_dword v228, v226, s[20:23], s55 offen sc1"
ld1 = "buffer_load_dword v228, v227, s[20:23], s75 offen sc1"
RP = OPT["rpf"]
for k in range(RP):
    st = WD + k
    A(f"s_lshl_b32 s44, s{UFB[st>>2]}, 14\ns_add_u32 s44, s44, s40")
    if st & 3: A(f"s_add_u32 s44, s44, {(st&3)*16384}")
    A(f"s_add_u32 s45, s44, 8192")
    A(f"buffer_load_dwordx4 {vr(160+8*k,4)}, v2, s[24:27], s44 offen")
    A(f"buffer_load_dwordx4 {vr(164+8*k,4)}, v2, s[24:27], s45 offen")
if OPT["ms"]: A(f"s_sleep {OPT['ms']}")
A(ld0)
A(f"""s_lshl_b32 s57, s50, 1
s_and_b32 s58, s15, 1
s_add_u32 s59, s57, s58
s_xor_b32 s58, s58, 1
s_add_u32 s57, s57, s58
s_mul_i32 s64, s59, {112*1024}
s_add_u32 s64, s64, {WS_H}
s_mul_i32 s65, s57, {112*1024}
s_add_u32 s65, s65, {WS_H}
s_lshl_b32 s58, s15, 13
s_add_u32 s58, s58, {WS_O}
s_lshl_b32 s67, s59, 15
s_add_u32 s67, s67, s58
s_lshl_b32 s53, s57, 15
s_add_u32 s53, s53, s58
v_and_b32 v6, 31, v1
v_lshlrev_b32 v6, 10, v6
v_lshrrev_b32 v7, 5, v1
v_lshlrev_b32 v7, 4, v7
v_add_u32 v224, v6, v7
s_lshl_b32 s54, s59, 15
s_lshl_b32 s57, s51, 7
s_add_u32 s54, s54, s57
s_lshr_b32 s57, s15, 1
s_lshl_b32 s57, s57, 6
s_add_u32 s54, s54, s57
v_lshrrev_b32 v6, 5, v1
v_lshlrev_b32 v6, 8, v6
v_bfe_u32 v7, v1, 2, 2
v_lshlrev_b32 v7, 6, v7
v_add_u32 v6, v6, v7
v_and_b32 v7, 3, v1
v_lshlrev_b32 v7, 3, v7
v_add_u32 v6, v6, v7
v_bfe_u32 v7, v1, 4, 1
v_lshlrev_b32 v7, 5, v7
v_add_u32 v6, v6, v7
s_lshl_b32 s57, s57, 3
v_add_u32 v6, s57, v6
v_xor_b32 v7, 512, v6
v_add_u32 v4, s43, v6
v_add_u32 v5, s43, v7
v_add_u32 v232, 0x10000, v4
v_add_u32 v233, 0x10000, v5
v_add_u32 v234, 0x20000, v4
v_add_u32 v235, 0x20000, v5
s_mov_b32 s32, s4
s_mov_b32 s33, s5
s_mov_b32 s34, 0x200000
s_mov_b32 s35, 0x20000
s_mov_b32 s38, 0x200000
s_mov_b32 s39, 0x20000
s_setprio {OPT['dprio']}""")
if OPT["xs"] == 99:
    A("buffer_load_dwordx4 v[8:11], v224, s[32:35], s54 offen\nbuffer_load_dwordx4 v[12:15], v224, s[32:35], s54 offen offset:32\ns_waitcnt vmcnt(2)")
else:
    A("s_waitcnt vmcnt(0)")
PR.stamp()
spin(A, "MH0", ld0, 228)
PR.stamp()
def htouch(lvl):
    if not OPT["htouch"]: return
    A(f"""v_bfe_u32 v229, v1, 2, 2
    v_lshlrev_b32 v230, 13, v229
    s_mul_i32 s57, s15, {24*1024}
    s_add_u32 s57, s57, {4096 if lvl == 0 else 0}
    v_add_u32 v230, s57, v230
    s_lshl_b32 s58, s15, 12
    s_add_u32 s58, s58, {96*1024}
    v_mov_b32 v231, {'s58' if lvl else 's57'}
    v_cmp_eq_u32 vcc, 3, v229
    v_and_b32 v229, 3, v1
    v_lshlrev_b32 v229, 10, v229
    v_cndmask_b32 v230, v230, v231, vcc
    v_add_u32 v230, v230, v229
    v_bfe_u32 v229, v1, 4, 1
    v_mul_u32_u24 v229, {112*1024}, v229
    v_add_u32 v230, v230, v229
    s_min_u32 s57, s64, s65
    s_lshl_b32 s58, s51, 7
    s_add_u32 s57, s57, s58
    s_mov_b32 exec_hi, 0
    buffer_load_dword v248, v230, s[20:23], s57 offen sc1
    s_mov_b64 exec, -1""")
    DQ.add("HT", 1)
htouch(0)
def issb(s):
    r = BF + 8 * (s % BD)
    if s < 28:
        o = [f"s_lshl_b32 s48, s{UFB[s>>2]}, 10", "s_add_u32 s49, s48, s65", "s_add_u32 s48, s48, s64"] if (s & 3) == 0 else []
    else:
        o = [f"s_add_u32 s48, s67, {(s-28)*1024}", f"s_add_u32 s49, s53, {(s-28)*1024}"] if (s & 3) == 0 else []
    DQ.add(f"B{s}", 2)
    return [o + [f"buffer_load_dwordx4 {vr(r,4)}, v3, s[20:23], s48 offen offset:{(s&3)*1024} sc1"],
            [f"buffer_load_dwordx4 {vr(r+4,4)}, v3, s[20:23], s49 offen offset:{(s&3)*1024} sc1"]]
for s in range(BD - 1): emit(issb(s))
def wtouch2():
    A(f"""v_lshrrev_b32 v229, 4, v1
    v_mov_b32 v230, s{UFB[3]}
    v_mov_b32 v231, s{UFB[4]}
    v_cmp_eq_u32 vcc, 1, v229
    s_lshr_b32 s57, s2, 3
    s_and_b32 s57, s57, 3
    v_cndmask_b32 v230, v230, v231, vcc
    v_mov_b32 v231, s{UFB[5]}
    v_cmp_eq_u32 vcc, 2, v229
    s_lshl_b32 s57, s57, 10
    s_add_u32 s58, s57, s40
    v_cndmask_b32 v230, v230, v231, vcc
    v_mov_b32 v231, s{UFB[6]}
    v_cmp_eq_u32 vcc, 3, v229
    v_and_b32 v229, 15, v1
    v_lshlrev_b32 v229, 12, v229
    v_cndmask_b32 v230, v230, v231, vcc
    v_lshlrev_b32 v230, 14, v230
    v_add_u32 v230, v230, v229
    buffer_load_dword v246, v230, s[24:27], s58 offen
    v_lshlrev_b32 v229, 12, v1
    s_add_u32 s58, s57, s42
    s_mov_b32 exec_hi, 0
    buffer_load_dword v247, v229, s[28:31], s58 offen
    s_mov_b64 exec, -1""")
    DQ.add("WT", 2)
if OPT["wt2"] == 1: wtouch2()
def xload():
    A(f"buffer_load_dwordx4 {vr(XRr,4)}, v224, s[32:35], s54 offen")
    A(f"buffer_load_dwordx4 {vr(XRr+4,4)}, v224, s[32:35], s54 offen offset:32")
    DQ.add("X", 2)
if not OPT["xs"]: xload()
def rdw(s):
    slot = s % WD; w = WF + 8 * (s & 1)
    hi, lo = DREG[slot] >> 16, DREG[slot] & 0xffff
    vb = [4, 232, 234][hi]
    return [f"ds_read_b64_tr_b16 {vr(w+4*u+2*sec,2)}, v{vb+u} offset:{lo+sec*1024}" for u in range(2) for sec in range(2)]
for i in rdw(0): A(i)
DQ.wait("B0")
L1S = OPT["l1s"]
def tB(sp): return max(sp - (BD - 1), L1S) if sp >= 12 else sp - (BD - 1)
def xaddr(base3, which, a, qd):
    k = (a - 1) * 4 + qd
    reg = DREG[(8 if which == 0 else 0) + (k >> 1)] + (k & 1) * 1024
    return base3[reg >> 16], reg & 0xffff
def dump(which, acc):
    for a in range(1, 4):
        for qd in range(4):
            vb, off = xaddr([236, 6, 7], which, a, qd)
            A(f"ds_write_b128 v{vb}, {vr(acc+16*a+4*qd,4)} offset:{off}")
def fetch(which, acc):
    for a in range(1, 4):
        b = 237 + 3 * (a - 1)
        for qd in range(4):
            vb, off = xaddr([b, b + 1, b + 2], which, a, qd)
            A(f"ds_read_b128 {vr(acc+16*a+4*qd,4)}, v{vb} offset:{off}")
def sum4(acc):
    for r in range(0, 16, 2):
        A(f"v_pk_add_f32 {vr(acc+r,2)}, {vr(acc+r,2)}, {vr(acc+16+r,2)}\nv_pk_add_f32 {vr(acc+32+r,2)}, {vr(acc+32+r,2)}, {vr(acc+48+r,2)}")
    for r in range(0, 16, 2): A(f"v_pk_add_f32 {vr(acc+r,2)}, {vr(acc+r,2)}, {vr(acc+32+r,2)}")
for s in range(NS):
    w = WF + 8 * (s & 1); b = BF + 8 * (s % BD)
    acc = AD if s < 28 else AS
    if s == 12: PR.stamp()
    if s == 28:
        PR.stamp()
        A("s_nop 7\ns_nop 1")
        dump(0, AD)
        DQ.wait("PO")
        A("""v_cmp_eq_u32 vcc, s80, v228
        s_mov_b32 s46, 0
        s_cmp_eq_u64 vcc, -1
        s_cbranch_scc1 M_OOK
        s_mov_b32 s46, 1""")
        A(ld2)
        A("s_call_b64 s[66:67], M_GATE" if False else "s_call_b64 s[70:71], M_GATE")
        A("s_waitcnt vmcnt(0)")
        spin(A, "MO", ld2, 228)
        A.label("M_OOK")
        PR.stamp()
        for sp in range(28, 36): emit(issb(sp))
        A("s_cmp_eq_u32 s46, 1\ns_cbranch_scc1 M_GDONE\ns_call_b64 s[70:71], M_GATE")
        A.label("M_GDONE")
        DQ.wait("B28")
    if s + 1 < NS:
        DQ.wait([f"W{s+1}", f"B{s+1}"])
        for i in rdw(s + 1): A(i)
        A("s_waitcnt lgkmcnt(4)")
    else:
        A("s_waitcnt lgkmcnt(0)")
    if s == L1S - 3:
        A(ld1); DQ.add("P1", 1)
    if s == L1S:
        DQ.wait("P1")
        spin(A, "MH1", ld1, 228)
        htouch(1)
    if s == 0:
        A("v_add_u32 v236, s43, v3\nv_add_u32 v6, 0x10000, v236\nv_add_u32 v7, 0x20000, v236")
    if s == 20:
        for a in range(1, 4):
            bb = 237 + 3 * (a - 1)
            A(f"s_xor_b32 s57, s15, {a}\ns_lshl_b32 s57, s57, 11\nv_add_u32 v{bb}, s57, v3\nv_add_u32 v{bb+1}, 0x10000, v{bb}\nv_add_u32 v{bb+2}, 0x20000, v{bb}")
    if OPT["xs"] and s == OPT["xs"]: xload()
    if s == 25:
        A(f"""s_lshl_b32 s55, s50, 12
        s_lshl_b32 s57, s15, 10
        s_add_u32 s55, s55, s57
        s_add_u32 s55, s55, {WS_FO}""")
        ld2 = "buffer_load_dword v228, v227, s[20:23], s55 offen sc1"
        A(ld2); DQ.add("PO", 1)
    grp = []
    for sp in range(BD - 1, 28):
        if tB(sp) == s: grp += issb(sp)
    if 1 <= s <= RP:
        reg = DREG[s - 1]; vb = [236, 6, 7][reg >> 16]
        grp += [[f"ds_write_b128 v{vb}, {vr(160+8*(s-1),4)} offset:{reg & 0xffff}"], [f"ds_write_b128 v{vb}, {vr(164+8*(s-1),4)} offset:{(reg & 0xffff)+1024}"]]
    elif s >= 1 and s + WD - 1 < NS: grp += issw(s + WD - 1, DQ)
    per = [grp[(len(grp) * a) // 4:(len(grp) * (a + 1)) // 4] for a in range(4)]
    for a in range(4):
        u, tt = a >> 1, a & 1
        r = acc + 16 * a
        c = "0" if s in (0, 28) else vr(r, 16)
        A(f"v_mfma_f32_32x32x16_bf16 {vr(r,16)}, {vr(w+4*u,4)}, {vr(b+4*tt,4)}, {c}")
        for g in per[a]:
            for i in g: A(i)
PR.stamp()
A("s_nop 7\ns_nop 1")
dump(1, AS)
A("s_waitcnt lgkmcnt(0)")
A("s_barrier")
fetch(1, AS)
A("s_waitcnt lgkmcnt(0)")
sum4(AS)
for r in range(0, 16, 2): A(f"v_pk_fma_f32 {vr(AD+r,2)}, {vr(AD+r,2)}, {vr(AS+r,2)}, {vr(AD+32+r,2)}")
for d in range(8): A(f"v_cvt_pk_bf16_f32 v{XRr+d}, v{AD+2*d}, v{AD+2*d+1}")
A("s_nop 1")
for j in range(2):
    A(f"v_permlane32_swap_b32 v{XRr+4*j}, v{XRr+4*j+2}\nv_permlane32_swap_b32 v{XRr+4*j+1}, v{XRr+4*j+3}")
osc = "sc1" if OPT["osc"] else ""
A(f"buffer_store_dwordx4 {vr(XRr,4)}, v224, s[36:39], s54 offen {osc}")
A(f"buffer_store_dwordx4 {vr(XRr+4,4)}, v224, s[36:39], s54 offen offset:32 {osc}")
PR.stamp()
PR.dump(2)
A("s_endpgm")
def gate():
    A("s_waitcnt lgkmcnt(0)")
    A("s_barrier")
    fetch(0, AD)
    for j in range(2):
        A(f"v_permlane32_swap_b32 v{XRr+4*j}, v{XRr+4*j+2}\nv_permlane32_swap_b32 v{XRr+4*j+1}, v{XRr+4*j+3}")
    A("s_waitcnt lgkmcnt(0)")
    sum4(AD)
    T = AD + 16
    for r in range(16): A(f"v_mul_f32 v{T+r}, {f32(-LOG2E)}, v{AD+r}")
    for r in range(16): A(f"v_exp_f32 v{T+r}, v{T+r}")
    for d in range(8): A(f"v_lshlrev_b32 v{T+16+2*d}, 16, v{XRr+d}\nv_and_b32 v{T+17+2*d}, 0xffff0000, v{XRr+d}")
    for r in range(16): A(f"v_add_f32 v{T+r}, 1.0, v{T+r}")
    for r in range(16): A(f"v_rcp_f32 v{T+r}, v{T+r}")
    A("s_nop 0")
    for r in range(0, 16, 2): A(f"v_pk_mul_f32 {vr(AD+r,2)}, {vr(AD+r,2)}, {vr(T+r,2)}")
A.label("M_GATE")
gate()
A("s_setpc_b64 s[70:71]")
A.label("L_CODE_END")
A.raw('.section .rodata,"a"')
A.raw(kernel_desc(NAME, 256))
txt = A.text()
if OPT.get("plainst"):
    import re
    txt = re.sub(r"(buffer_store_dwordx4 .*s63 offen) sc1", r"\1", txt)
if OPT.get("align", 1):
    import align
    txt = align.align(txt)
print(txt)
```

```python
import sys, math
from asmlib import *

NAME = "recurrent_scan__sliding_block__geglu_ffn__prompt_kernel"
WS_Q = 0; WS_K = 2 << 20; WS_V = 4 << 20; WS_O = 6 << 20; WS_H = 8 << 20
WS_TOK = 16 << 20
WS_CS = (16 << 20) + 65536
WS_FO = 17 << 20
WS_FH = (17 << 20) + (1 << 18)
WS_FQ = (17 << 20) + (2 << 18)
LOG2E = 1.4426950408889634
OPT = dict(prof=0, rot=2, codepf=1, wd=14, sleep=8, warm=7, thr=6, aprio=3, l2pf=0, rotd=1, hs=48, dprio=0, wtouch=0, htouch=1, wts=10, defer=1, gat=10, gc=13, hprio=0, l1s=10, osc=0, cq=2, ms=16, ntx=0, ntw=0, share=1, l2end=11, aprio2=3, rpf=0, pub=6, gd=1, vw=4, epf=16, tlb=0, wt2=0, amap=0, xs=23, safe=2, h2=3)
for a in sys.argv[1:]:
    k, v = a.split("="); OPT[k] = int(v)
XR = 0; XS = 16384; WR = 49152; WSL = 20480; EX = 151552
EX_TOK = EX; EX_COL = EX + 4096
DREG = [32768, 40960, 69632, 77824,   86016, 94208, 102400,   110592, 118784, 0, 8192,   126976, 135168, 143360]
DAVAIL = {13: 4, 14: 3, 15: 4, 16: 3}
LONE = 26624
SPIN = 20000

class Prof:
    def __init__(self, A, base=82): self.A = A; self.n = 0; self.base = base
    def stamp(self, real=False):
        if not OPT["prof"]: return
        i = self.n; self.n += 1
        assert i < 16
        self.A(f"{'s_memrealtime' if (real or OPT['prof'] == 2) else 's_memtime'} s[100:101]")
        self.A("s_waitcnt lgkmcnt(0)")
        self.A(f"s_mov_b32 s{self.base+i}, s100")
    def dump(self, vt):
        if not OPT["prof"]: return
        A = self.A
        while self.n < 15: self.stamp()
        self.stamp(True)
        A(f"s_lshl_b32 s68, s2, 3\ns_add_u32 s68, s68, s14\ns_lshl_b32 s68, s68, 6\ns_add_u32 s68, s68, {32<<20}")
        A(f"v_mov_b32 v{vt}, 0")
        for i in range(self.n):
            A(f"v_mov_b32 v{vt+1}, s{self.base+i}")
            A(f"buffer_store_dword v{vt+1}, v{vt}, s[20:23], s68 offen offset:{4*i}")

class VQ:
    def __init__(self, A): self.A = A; self.q = []
    def add(self, tag, n): self.q.append((tag, n))
    def wait(self, tags):
        if isinstance(tags, str): tags = [tags]
        idx = max([i for i, (t, _) in enumerate(self.q) if t in tags], default=-1)
        if idx < 0: return
        rest = sum(c for _, c in self.q[idx + 1:])
        assert rest < 64
        self.A(f"s_waitcnt vmcnt({rest})")
        del self.q[:idx + 1]
    def has(self, tag): return tag in [t for t, _ in self.q]
    def clear(self): self.q = []

def spin(A, name, load, vval, maskexpr=None, cnt=56):
    A(f"""v_cmp_eq_u32 vcc, s80, v{vval}
    s_mov_b32 s{cnt}, 0
    s_cmp_eq_u64 vcc, -1
    s_cbranch_scc1 {name}_OK""")
    A.label(f"{name}_P")
    A(f"""s_sleep {OPT['sleep']}
    {load}
    s_add_u32 s{cnt}, s{cnt}, 1
    s_waitcnt vmcnt(0)
    v_cmp_eq_u32 vcc, s80, v{vval}
    s_cmp_gt_u32 s{cnt}, {SPIN}
    s_cbranch_scc1 {name}_OK
    s_cmp_eq_u64 vcc, -1
    s_cbranch_scc0 {name}_P""")
    A.label(f"{name}_OK")

A = Asm()
A.raw(f"""; recurrent_scan__sliding_block__geglu_ffn__prompt -- hand-designed gfx950 kernel, emitted by my own python generator.
; @launch grid=(256,1,1) block=(512,1,1) lds=163840
.amdgcn_target "amdgcn-amd-amdhsa--gfx950"
.text""")
kernel_header(A, NAME)
PR = Prof(A)
A("""s_load_dwordx4 s[4:7], s[0:1], 0
s_load_dwordx4 s[8:11], s[0:1], 32
s_load_dwordx4 s[16:19], s[0:1], 64""")
if OPT["epf"]:
    A("s_getpc_b64 s[24:25]")
    A.label("L_PC0")
    nl = OPT["epf"]
    A(f"""v_and_b32 v16, {nl-1}, v0
    v_bfe_u32 v17, v0, 6, 2
    v_mul_u32_u24 v17, {nl}, v17
    v_add_lshl_u32 v16, v16, v17, 7
    v_add_u32 v17, L_M-L_PC0, v16
    v_cmp_gt_u32 vcc, 256, v0
    s_mov_b64 exec, {(1<<nl)-1}
    s_nop 0
    v_cndmask_b32 v16, v16, v17, vcc
    global_load_dword v29, v16, s[24:25]
    s_mov_b64 exec, -1""")
A("""s_cmp_ge_u32 s2, 256
s_cbranch_scc1 L_END""")
if OPT.get("scramble"):
    A("s_lshr_b32 s57, s2, 3\ns_lshl_b32 s58, s2, 5\ns_or_b32 s2, s57, s58\ns_and_b32 s2, s2, 255")
A("""v_and_b32 v1, 63, v0
v_lshrrev_b32 v16, 6, v0
s_and_b32 s57, s2, 7
v_readfirstlane_b32 s14, v16
s_lshr_b32 s58, s2, 3
s_and_b32 s44, s57, 1
s_and_b32 s45, s58, 7
s_lshl_b32 s47, s44, 3
s_add_u32 s47, s47, s45
s_lshr_b32 s46, s57, 1
s_lshr_b32 s49, s58, 3
s_lshl_b32 s48, s46, 2
s_add_u32 s48, s48, s49
s_mul_i32 s51, s46, 3
s_add_u32 s52, s51, s49
s_lshl_b32 s53, s52, 1
s_add_u32 s57, s46, 24
s_add_u32 s54, s51, 12
s_cmp_eq_u32 s49, 3
s_cselect_b32 s50, 1, 0
s_cselect_b32 s53, s57, s53
s_cselect_b32 s54, s54, s52
s_and_b32 s15, s14, 3
s_cmp_lt_u32 s14, 4
s_cbranch_scc1 L_M""")
def ws_srd():
    A("""s_mov_b32 s20, s18
    s_mov_b32 s21, s19
    s_mov_b32 s22, 0x10000000
    s_mov_b32 s23, 0x20000
    s_mov_b32 s18, 256
    s_mov_b32 s19, 0x20000""")
vDW = [2, 3, 4, 5, 6]; vDX = [7, 8]
ROT = OPT["rot"]
A("""s_lshl_b32 s58, s15, 15
v_lshrrev_b32 v16, 3, v1
v_lshlrev_b32 v16, 10, v16
v_add_u32 v16, s58, v16
v_lshrrev_b32 v17, 4, v1
v_xor_b32 v17, v17, v1
v_and_b32 v17, 7, v17
v_lshlrev_b32 v17, 4, v17
v_add_u32 v7, v16, v17
v_xor_b32 v8, 64, v7
s_lshl_b32 s12, s15, 12
s_lshl_b32 s13, s15, 10
s_lshl_b32 s57, s47, 17""")
if ROT == 1: A("s_lshl_b32 s81, s49, 2\ns_lshl_b32 s58, s45, 1\ns_add_u32 s81, s81, s58")
elif ROT == 2: A("s_add_u32 s81, s49, s45\ns_lshl_b32 s81, s81, 2")
elif ROT == 3: A("s_add_u32 s81, s49, s45\ns_lshl_b32 s81, s81, 3")
elif ROT == 0: A("s_mov_b32 s81, 0")
A("""s_waitcnt lgkmcnt(0)
s_add_u32 s72, s4, s57
s_addc_u32 s73, s5, 0
s_mov_b32 s74, 0x20000
s_mov_b32 s75, 0x20000""")
PR.stamp(True); PR.stamp()
def dma_x(u):
    o = []
    for jj in range(4):
        pre = [f"s_add_u32 s56, s81, {2*u}", "s_and_b32 s56, s56, 15", "s_lshl_b32 s56, s56, 6"] if jj == 0 else []
        o.append(pre + [f"s_add_u32 m0, s12, {XR + (u%3)*XS + jj*1024}", f"s_add_u32 s59, s56, {jj*8192}",
                        f"buffer_load_dwordx4 v{vDX[jj&1]}, s[72:75], s59 offen {'nt ' if 2*u < OPT['ntx'] else ''}lds"])
    return o
def emit(groups):
    for g in groups:
        for i in g: A(i)
    return len(groups)
A(f"s_setprio {OPT['hprio']}")
Q = VQ(A)
n0 = emit(dma_x(0))
A("s_lshl_b32 s55, s53, 7\ns_lshl_b32 s56, s54, 7")
tabA = [(8, 55, 0), (8, 55, 128), (10, 55, 0), (10, 55, 128), (6, 56, 0)]
tabC = [(8, 55, 0), (10, 55, 0), (6, 56, 0), (6, 56, 128), (6, 56, 256)]
A("""v_bfe_u32 v16, v1, 2, 3
s_lshl_b32 s57, s15, 3
v_add_u32 v16, s57, v16
v_lshrrev_b32 v17, 5, v1
v_lshlrev_b32 v17, 6, v17
v_and_b32 v18, 3, v1
v_lshlrev_b32 v18, 4, v18
v_add_u32 v17, v17, v18
s_lshl_b32 s66, s50, 5
s_xor_b32 s67, s66, 32""")
swap = {0: None, 1: 66, 2: 67, 3: 67, 4: None}
for D in range(5):
    S = 24 + 4 * D
    (pa, ca, oa), (pc, cc_, oc) = tabA[D], tabC[D]
    A("s_cmp_eq_u32 s50, 1")
    if pa != pc:
        A(f"s_cselect_b32 s{S}, s{pc}, s{pa}\ns_cselect_b32 s{S+1}, s{pc+1}, s{pa+1}")
        src = S
    else: src = pa
    if ca != cc_: A(f"s_cselect_b32 s57, s{cc_}, s{ca}"); cs = 57
    else: cs = ca
    if oa != oc: A(f"s_cselect_b32 s58, {oc}, {oa}")
    sa = 3072 if pa == 6 else 3584; sc = 3072 if pc == 6 else 3584
    A(f"s_movk_i32 s{60+D}, {sa}")
    if sa != sc: A(f"s_cselect_b32 s{60+D}, {sc}, s{60+D}")
    if oa != oc: A(f"s_add_u32 s57, s{cs}, s58"); cs = 57
    elif oa: A(f"s_add_u32 s57, s{cs}, {oa}"); cs = 57
    A(f"s_add_u32 s{S}, s{src}, s{cs}\ns_addc_u32 s{S+1}, s{src+1}, 0")
    A(f"v_mul_u32_u24 v18, s{60+D}, v16")
    if swap[D]:
        A(f"v_xor_b32 v19, s{swap[D]}, v17\nv_add_u32 v{vDW[D]}, v18, v19")
    else:
        A(f"v_add_u32 v{vDW[D]}, v18, v17")
    A(f"s_lshl_b32 s{S+2}, s{60+D}, 9\ns_mov_b32 s{S+3}, 0x20000")
def dma_w(k):
    o = []
    for D in range(5):
        S = 24 + 4 * D
        pre = [f"s_add_u32 s56, s81, {k}", "s_and_b32 s56, s56, 15", "s_lshl_b32 s56, s56, 5"] if D == 0 else []
        o.append(pre + [f"s_add_u32 m0, s13, {WR + (k%5)*WSL + D*4096}", f"s_mul_i32 s59, s{60+D}, s56",
                        f"buffer_load_dwordx4 v{vDW[D]}, s[{S}:{S+3}], s59 offen {'nt ' if k < OPT['ntw'] else ''}lds"])
    return o
def G(k):
    g = (dma_x(k // 2) if k % 2 == 0 else []) + dma_w(k)
    Q.add(f"S{k}", emit(g))
Q.add("S0", n0 + emit(dma_w(0)))
G(1)
ws_srd()
A("""s_or_b32 s57, s2, s15
s_cmp_lg_u32 s57, 0
s_cbranch_scc1 H_NONONCE
s_memrealtime s[56:57]
s_waitcnt lgkmcnt(0)
s_mul_i32 s56, s56, 0x9e3779b1
s_or_b32 s56, s56, 1
v_mov_b32 v16, 0
v_mov_b32 v17, s56
buffer_store_dword v17, v16, s[16:19], 0 offen sc1""")
A.label("H_NONONCE")
A("s_lshl_b32 s69, s47, 5")
if ROT == 2: A("s_lshr_b32 s55, s45, 2\ns_lshl_b32 s57, s44, 1\ns_add_u32 s55, s55, s57")
elif ROT == 1: A("s_mov_b32 s55, s44")
elif ROT == 3: A("s_lshr_b32 s55, s45, 1\ns_lshl_b32 s57, s44, 2\ns_add_u32 s55, s55, s57")
if ROT == 0: A("s_and_b32 s55, s45, 3")
NDELTA = {0: 4, 1: 2, 2: 4, 3: 8}[ROT]
def pf_setup():
    A("""v_lshrrev_b32 v20, 3, v1
    v_and_b32 v21, 3, v20
    v_lshrrev_b32 v20, 2, v20
    v_lshlrev_b32 v20, 5, v20
    v_add_u32 v20, v20, v21
    s_lshl_b32 s57, s45, 2
    v_add_u32 v20, s57, v20
    v_and_b32 v21, 7, v1
    v_lshlrev_b32 v21, 4, v21""")
    for D in range(5):
        A(f"v_mul_u32_u24 v{116+D}, s{60+D}, v20\nv_add_u32 v{116+D}, v{116+D}, v21")
    A("""v_lshrrev_b32 v20, 3, v1
    v_lshlrev_b32 v20, 10, v20
    s_lshl_b32 s57, s49, 15
    s_lshl_b32 s58, s15, 13
    s_add_u32 s57, s57, s58
    v_add3_u32 v121, v20, v21, s57""")
def pf_burst(u0, u1):
    n = 0
    for u in range(u0, u1):
        A(f"s_movk_i32 s59, {u*128}\nbuffer_load_dwordx4 {vr(128+4*u,4)}, v121, s[72:75], s59 offen"); n += 1
    for u in range(u0, u1):
        A(f"s_mul_i32 s59, s{PFS}, {64*u}\nbuffer_load_dwordx4 {vr(160+4*u,4)}, v122, s[{PFR}:{PFR+3}], s59 offen"); n += 1
        lb = f"H_PF{u}"
        A(f"s_cmp_eq_u32 s15, {u%4}\ns_cbranch_scc0 {lb}\ns_mul_i32 s59, s64, {64*u}\nbuffer_load_dwordx4 {vr(192+4*(u>>2),4)}, v120, s[40:43], s59 offen")
        A.label(lb)
    Q.add("PF", n)
PFR, PFS = 76, 71
BUR = {}
if OPT.get("burst"):
    pf_setup()
    A(f"s_mov_b32 s{PFR}, s24\ns_mov_b32 s{PFR+1}, s25\ns_mov_b32 s{PFR+2}, s26\ns_mov_b32 s{PFR+3}, 0x20000\ns_mov_b32 s{PFS}, s60\nv_mov_b32 v122, v116")
    for D in (1, 2, 3):
        A(f"""s_cmp_eq_u32 s15, {D}
        s_cselect_b32 s{PFR}, s{24+4*D}, s{PFR}
        s_cselect_b32 s{PFR+1}, s{25+4*D}, s{PFR+1}
        s_cselect_b32 s{PFR+2}, s{26+4*D}, s{PFR+2}
        s_cselect_b32 s{PFS}, s{60+D}, s{PFS}
        s_cselect_b64 vcc, -1, 0
        v_cndmask_b32 v122, v122, v{116+D}, vcc""")
    BUR = {1: {-1: (1, 3), 1: (3, 6), 5: (6, 8)}, 2: {-1: (1, 4), 2: (4, 8)}, 3: {-1: (1, 2), 0: (2, 3), 1: (3, 4), 3: (4, 5), 5: (5, 6), 7: (6, 7), 9: (7, 8)}, 4: {-1: (1, 8)}}[OPT["burst"]]
    pf_burst(*BUR[-1])
A(f"""v_lshrrev_b32 v16, 5, v1
v_lshlrev_b32 v16, 10, v16
v_bfe_u32 v17, v1, 2, 2
v_lshlrev_b32 v17, 6, v17
v_add_u32 v16, v16, v17
v_and_b32 v17, 3, v1
v_lshlrev_b32 v17, 3, v17
v_add_u32 v16, v16, v17
v_bfe_u32 v17, v1, 4, 1
v_lshlrev_b32 v17, 5, v17
s_lshr_b32 s58, s15, 1
s_lshl_b32 s58, s58, 12
s_and_b32 s59, s15, 1
s_lshl_b32 s59, s59, 9
s_add_u32 s58, s58, s59
v_add3_u32 v12, v16, v17, s58
v_lshlrev_b32 v9, 4, v1
v_mov_b32 v10, 0""")
sched = {0: [2], 1: [3], 2: [4, 5]}
for s in range(3, 13): sched[s] = [s + 3]
def col_valu(js, fin):
    for j in js:
        b = 48 + 8 * j; acc = 44 + j
        for d in range(8):
            A(f"v_lshlrev_b32 v18, 16, v{b+d}\nv_and_b32 v19, 0xffff0000, v{b+d}")
            if d == 0: A(f"v_add_f32 v{acc}, v18, v19")
            else: A(f"v_add_f32 v{acc}, v{acc}, v18\nv_add_f32 v{acc}, v{acc}, v19")
    if fin:
        for j in range(3): A(f"v_mov_b32 v{72+2*j}, v{44+j}")
        A("s_nop 1")
        for j in range(3): A(f"v_permlane32_swap_b32 v{72+2*j}, v{44+j}")
        A("s_nop 1")
        for j in range(3): A(f"v_add_f32 v{72+2*j}, v{72+2*j}, v{44+j}")
def row_valu(part):
    if part == 0:
        for rrow in range(2):
            b = 32 + 4 * rrow; sx = 40 + 2 * rrow; sq = sx + 1
            for d in range(4):
                A(f"v_lshlrev_b32 v18, 16, v{b+d}\nv_and_b32 v19, 0xffff0000, v{b+d}")
                if d == 0: A(f"v_add_f32 v{sx}, v18, v19\nv_mul_f32 v{sq}, v18, v18\nv_fmac_f32 v{sq}, v19, v19")
                else: A(f"v_add_f32 v{sx}, v{sx}, v18\nv_fmac_f32 v{sq}, v18, v18\nv_add_f32 v{sx}, v{sx}, v19\nv_fmac_f32 v{sq}, v19, v19")
    else:
        for dpp in ("quad_perm:[1,0,3,2] row_mask:0xf bank_mask:0xf", "quad_perm:[2,3,0,1] row_mask:0xf bank_mask:0xf",
                    "row_half_mirror row_mask:0xf bank_mask:0xf", "row_mirror row_mask:0xf bank_mask:0xf",
                    "row_bcast:15 row_mask:0xa bank_mask:0xf", "row_bcast:31 row_mask:0xc bank_mask:0xf"):
            for r in range(40, 44): A(f"v_add_f32_dpp v{r}, v{r}, v{r} {dpp}")
def get_nonce(tag, vz, vn):
    A(f"""v_readfirstlane_b32 s80, v{vn}
    s_mov_b32 s57, 0
    s_cmp_eq_u32 s80, 0
    s_cbranch_scc0 {tag}_GOTN""")
    A.label(f"{tag}_POLLN")
    A(f"""buffer_load_dword v{vn}, v{vz}, s[16:19], 0 offen sc1
    s_add_u32 s57, s57, 1
    s_waitcnt vmcnt(0)
    v_readfirstlane_b32 s80, v{vn}
    s_cmp_gt_u32 s57, {SPIN}
    s_cbranch_scc1 {tag}_GOTN
    s_cmp_eq_u32 s80, 0
    s_cbranch_scc1 {tag}_POLLN""")
    A.label(f"{tag}_GOTN")
def publish():
    get_nonce("H", 10, 11)
    A(f"""s_lshl_b32 s57, s48, 4
    s_add_u32 s57, s57, s47
    s_mul_i32 s57, s57, 2560
    s_lshl_b32 s58, s15, 8
    s_add_u32 s57, s57, s58
    s_add_u32 s57, s57, {WS_CS}
    v_lshlrev_b32 v16, 3, v1
    v_mov_b32 v73, s80
    v_mov_b32 v75, s80
    v_mov_b32 v77, s80
    s_mov_b32 exec_hi, 0
    buffer_store_dwordx2 v[72:73], v16, s[20:23], s57 offen sc1
    buffer_store_dwordx2 v[74:75], v16, s[20:23], s57 offen offset:1024 sc1
    s_cmp_ge_u32 s15, 2
    s_cbranch_scc1 H_NO3
    buffer_store_dwordx2 v[76:77], v16, s[20:23], s57 offen offset:2048 sc1""")
    A.label("H_NO3")
    A(f"""s_mov_b32 exec_lo, 0
    s_mov_b32 exec_hi, 0x80000000
    s_lshl_b32 s57, s69, 6
    s_lshl_b32 s58, s48, 7
    s_add_u32 s57, s57, s58
    s_lshl_b32 s58, s15, 5
    s_add_u32 s57, s57, s58
    s_add_u32 s57, s57, {WS_TOK}
    v_mov_b32 v48, v40
    v_mov_b32 v49, v41
    v_mov_b32 v50, s80
    v_mov_b32 v51, s80
    v_mov_b32 v52, v42
    v_mov_b32 v53, v43
    v_mov_b32 v54, s80
    v_mov_b32 v55, s80
    buffer_store_dwordx4 v[48:51], v10, s[20:23], s57 offen sc1
    buffer_store_dwordx4 v[52:55], v10, s[20:23], s57 offen offset:16 sc1
    s_mov_b64 exec, -1""")
def gather_loads(part=None):
    if part == 0:
        for m in range(6):
            A(f"s_add_u32 s59, s66, {m*5120}")
            A(f"buffer_load_dwordx4 {vr(64+4*m,4)}, v16, s[20:23], s59 offen sc1")
        return
    for m in range(6 if part == 1 else 0, 8):
        A(f"s_add_u32 s59, s66, {m*5120}")
        A(f"buffer_load_dwordx4 {vr(64+4*m,4)}, v16, s[20:23], s59 offen sc1")
    for m in range(2):
        A(f"s_add_u32 s59, s66, {m*8*2560}")
        A(f"buffer_load_dwordx4 {vr(96+4*m,4)}, v17, s[20:23], s59 offen sc1")
    A("buffer_load_dwordx4 v[104:107], v18, s[20:23], s67 offen sc1")
def gather_prep():
    A(f"""s_mul_i32 s66, s48, {16*2560}
    s_add_u32 s66, s66, {WS_CS}
    v_and_b32 v18, 31, v1
    v_lshlrev_b32 v18, 4, v18
    v_lshrrev_b32 v16, 5, v1
    v_mul_u32_u24 v16, 2560, v16
    s_lshl_b32 s58, s15, 9
    v_add3_u32 v16, v16, v18, s58
    v_and_b32 v17, 7, v1
    v_lshlrev_b32 v17, 4, v17
    v_lshrrev_b32 v19, 3, v1
    v_mul_u32_u24 v19, 2560, v19
    s_lshl_b32 s58, s15, 7
    s_add_u32 s58, s58, 2048
    v_add3_u32 v17, v17, v19, s58
    s_lshl_b32 s67, s69, 6
    s_lshl_b32 s59, s15, 9
    s_add_u32 s67, s67, s59
    s_add_u32 s67, s67, {WS_TOK}""")
def gather_tags():
    tags = list(range(65, 104, 2)) + [106]
    A(f"v_and_b32 v19, v{tags[0]}, v{tags[1]}\nv_or_b32 v20, v{tags[0]}, v{tags[1]}")
    rest = tags[2:]
    for k in range(0, len(rest) - 1, 2):
        A(f"v_bitop3_b32 v19, v19, v{rest[k]}, v{rest[k+1]} bitop3:0x80\nv_or3_b32 v20, v20, v{rest[k]}, v{rest[k+1]}")
    if len(rest) % 2: A(f"v_and_b32 v19, v19, v{rest[-1]}\nv_or_b32 v20, v20, v{rest[-1]}")
    A("""v_xor_b32 v19, s80, v19
    v_xor_b32 v20, s80, v20
    v_or_b32 v19, v19, v20
    v_cmp_eq_u32 vcc, 0, v19
    s_nop 0
    s_cmp_eq_u64 vcc, -1""")
def gather_check():
    Q.wait("GA")
    gather_tags()
    A("s_cselect_b32 s70, 1, 0")
def gather_slow():
    A.label("H_GSLOW")
    A("s_mov_b32 s70, 0")
    A.label("H_GS1")
    gather_loads()
    A("s_waitcnt vmcnt(0)")
    gather_tags()
    A(f"""s_cbranch_scc1 H_GS2
    s_add_u32 s70, s70, 1
    s_cmp_gt_u32 s70, {SPIN}
    s_cbranch_scc1 H_GS2
    s_sleep 4
    s_branch H_GS1""")
    A.label("H_GS2")
    gather_cols()
    A("s_branch H_GTOK")
def gather_cols():
    st = 4
    while st <= 16:
        for r in range(64, 96, 2 * st):
            A(f"v_add_f32 v{r}, v{r}, v{r+st}\nv_add_f32 v{r+2}, v{r+2}, v{r+st+2}")
        st *= 2
    A("""v_add_f32 v96, v96, v100
    v_add_f32 v98, v98, v102
    v_mov_b32 v65, v64
    v_mov_b32 v67, v66
    v_add_f32_dpp v96, v96, v96 row_ror:8 row_mask:0xf bank_mask:0xf
    v_add_f32_dpp v98, v98, v98 row_ror:8 row_mask:0xf bank_mask:0xf
    v_permlane32_swap_b32 v65, v64
    v_permlane32_swap_b32 v67, v66
    v_mov_b32 v97, v96
    v_mov_b32 v99, v98
    v_add_f32 v64, v64, v65
    v_add_f32 v66, v66, v67
    v_permlane32_swap_b32 v97, v96
    v_permlane32_swap_b32 v99, v98
    s_nop 0
    v_add_f32 v96, v96, v97
    v_add_f32 v98, v98, v99
    v_mov_b32 v97, v96
    v_mov_b32 v99, v98
    s_nop 1
    v_permlane16_swap_b32 v97, v96
    v_permlane16_swap_b32 v99, v98
    s_nop 0
    v_add_f32 v96, v96, v97
    v_add_f32 v98, v98, v99""")
    for r, d in ((64, 68), (66, 69), (96, 70), (98, 71)):
        A(f"""v_cvt_pk_bf16_f32 v{r+1}, v{r}, v{r}
        v_and_b32 v{r+1}, 0xffff0000, v{r+1}
        v_sub_f32 v{r}, v{r}, v{r+1}
        v_cvt_pk_bf16_f32 v{d}, v{r+1}, v{r}""")
    A(f"""v_lshrrev_b32 v16, 1, v18
    s_lshl_b32 s58, s15, 8
    s_add_u32 s58, s58, {EX_COL}
    v_add_u32 v16, s58, v16
    ds_write_b64 v16, v[68:69]
    v_and_b32 v17, 7, v1
    v_lshlrev_b32 v17, 3, v17
    s_lshl_b32 s58, s15, 6
    s_add_u32 s58, s58, {EX_COL + 1024}
    v_add_u32 v17, s58, v17
    ds_write_b64 v17, v[70:71]""")
def gather_toks():
    c1 = -2.0 * math.sqrt(2.0 / math.pi) * LOG2E
    c3 = c1 * 0.044715
    A(f"""    v_mul_f32 v104, {f32(-1/512)}, v104
    v_mul_f32 v105, {f32(1/512)}, v105
    v_fma_f32 v105, -v104, v104, v105
    v_max_f32 v105, 0, v105
    v_add_f32 v113, {f32(1e-5)}, v105
    v_rsq_f32 v110, v113
    v_cvt_pk_bf16_f32 v108, v104, v104
    v_and_b32 v106, 0xffff0000, v108
    v_sub_f32 v106, v104, v106
    v_cvt_pk_bf16_f32 v109, v106, v106
    v_mul_f32 v111, {f32(c1)}, v110
    v_mul_f32 v112, v110, v110
    v_mul_f32 v112, v112, v110
    v_mul_f32 v112, {f32(c3)}, v112
    v_mov_b32 v114, s80
    v_lshlrev_b32 v18, 1, v18
    s_lshl_b32 s58, s15, 10
    s_add_u32 s58, s58, {EX_TOK}
    v_add_u32 v18, s58, v18
    ds_write_b128 v18, v[108:111]
    ds_write_b128 v18, v[112:115] offset:16
    s_waitcnt lgkmcnt(0)""")
WD = OPT["wd"]
UFB = [60, 61, 62, 76, 77, 78, 79]
def d_setup_w():
    A(f"""v_bfe_u32 v6, v1, 2, 3
    v_lshlrev_b32 v6, 10, v6
    v_lshrrev_b32 v7, 5, v1
    v_lshlrev_b32 v7, 6, v7
    v_add_u32 v6, v6, v7
    v_and_b32 v7, 3, v1
    v_lshlrev_b32 v7, 4, v7
    v_add_u32 v2, v6, v7
    s_lshl_b32 s43, s15, 11
    s_lshr_b32 s58, s2, 5
    s_lshl_b32 s40, s58, 7
    s_lshl_b32 s42, s15, 17
    s_add_u32 s42, s42, s40
    s_mul_i32 s57, s15, 24""")
    if OPT["rotd"]:
        A("""s_mul_i32 s59, s58, 11
        s_lshr_b32 s59, s59, 5
        s_mul_i32 s59, s59, 3
        s_sub_u32 s59, s58, s59""")
    else:
        A("s_mov_b32 s59, 0\ns_mov_b32 s58, 0")
    for u in range(3):
        A(f"""s_lshl_b32 s{UFB[u]}, s59, 3
        s_add_u32 s{UFB[u]}, s{UFB[u]}, s57
        s_add_u32 s{UFB[u]}, s{UFB[u]}, 4
        s_add_u32 s59, s59, 1
        s_cmp_eq_u32 s59, 3
        s_cselect_b32 s59, 0, s59""")
    A("s_lshl_b32 s41, s15, 2\ns_add_u32 s41, s41, 96")
    for u in range(4):
        A(f"""s_add_u32 s59, s58, {u}
        s_and_b32 s59, s59, 3
        s_lshl_b32 s44, s59, 3
        s_add_u32 s44, s44, s57
        s_cmp_eq_u32 s59, 3
        s_cselect_b32 s{UFB[3+u]}, s41, s44""")
    A("""s_waitcnt lgkmcnt(0)
    s_mov_b32 s26, 0x1c0000
    s_mov_b32 s27, 0x20000
    s_mov_b32 s30, 0x80000
    s_mov_b32 s31, 0x20000""")
def issw(s, q):
    slot = s % WD
    if s < 28:
        srd = 24
        o = [f"s_lshl_b32 s44, s{UFB[s>>2]}, 14", "s_add_u32 s44, s44, s40"]
        if s & 3: o.append(f"s_add_u32 s44, s44, {(s&3)*16384}")
    else:
        srd = 28
        o = [f"s_add_u32 s44, s42, {(s-28)*16384}"]
    a = o + [f"s_add_u32 m0, s43, {DREG[slot]}", "s_add_u32 s45, s44, 8192",
             f"buffer_load_dwordx4 v2, s[{srd}:{srd+3}], s44 offen lds"]
    b = [f"s_add_u32 m0, s43, {DREG[slot]+1024}", "s_nop 0",
         f"buffer_load_dwordx4 v2, s[{srd}:{srd+3}], s45 offen lds"]
    q.add(f"W{s}", 2)
    return [a, b]
P0 = max(NDELTA, 4)
wnext = [0]
GAT, GC = OPT['gat'], OPT['gc']
HP = OPT.get('hprof')
for s in range(17):
    if s < 16: Q.wait(f"S{s}")
    if HP and s >= 4: A(f"s_memtime s[100:101]\ns_waitcnt lgkmcnt(0)\ns_sub_u32 s99, s100, s98\ns_add_u32 s{84+s-4}, s99, s83")
    A("s_barrier")
    if HP: A("s_memtime s[100:101]\ns_waitcnt lgkmcnt(0)\ns_mov_b32 s98, s100")
    if s == 0 and not HP: PR.stamp()
    for k in sched.get(s, []): G(k)
    if s in BUR: pf_burst(*BUR[s])
    if s == 0:
        A("""s_lshl_b32 s57, s48, 13
        s_lshl_b32 s58, s15, 11
        s_add_u32 s57, s57, s58
        buffer_load_dwordx4 v[32:35], v9, s[72:75], s57 offen
        buffer_load_dwordx4 v[36:39], v9, s[72:75], s57 offen offset:1024
        buffer_load_dword v11, v10, s[16:19], 0 offen sc1""")
        Q.add("ST", 3)
    if s < NDELTA:
        lb = f"H_NOCS{s}"
        A(f"s_cmp_eq_u32 s55, {s}\ns_cbranch_scc0 {lb}\nv_add_u32 v12, {WR + (s%5)*WSL}, v12")
        for j in range(3):
            for t in range(4):
                A(f"ds_read_b64_tr_b16 {vr(48+8*j+2*t,2)}, v12 offset:{j*8192 + (t>>1)*2048 + (t&1)*256}")
        A("s_waitcnt lgkmcnt(0)")
        A.label(lb)
    if s == 4: row_valu(0); col_valu([0], False)
    if s == 5: col_valu([1], False)
    if s == 6: col_valu([2], True); row_valu(1)
    if s == OPT["pub"]: publish()
    if s == 3:
        A("s_load_dwordx2 s[4:5], s[0:1], 48\ns_load_dwordx2 s[8:9], s[0:1], 16")
    if OPT["vw"] and s == OPT["vw"]:
        A("""s_cmp_lg_u32 s15, 0
        s_cbranch_scc1 H_NOWARM
        s_mul_i32 s57, s2, 7168
        s_lshl_b32 s58, s2, 11
        v_lshlrev_b32 v20, 7, v1
        s_waitcnt lgkmcnt(0)
        s_add_u32 s6, s57, 7168
        s_mov_b32 s7, 0x20000
        s_add_u32 s10, s58, 2048
        s_mov_b32 s11, 0x20000
        buffer_load_dword v21, v20, s[4:7], s57 offen
        buffer_load_dword v22, v20, s[8:11], s58 offen""")
        A.label("H_NOWARM")
    if s == 5 and not OPT["vw"]:
        A("""s_lshl_b32 s57, s2, 2
        s_add_u32 s57, s57, s15
        s_mul_i32 s58, s57, 1792
        s_lshl_b32 s57, s57, 9
        s_waitcnt lgkmcnt(0)
        s_add_u32 s4, s4, s58
        s_addc_u32 s5, s5, 0
        s_add_u32 s8, s8, s57
        s_addc_u32 s9, s9, 0""")
    if s in (5, 7, 8, 9) and not OPT['vw']:
        k0 = {5: 0, 7: 9, 8: 18, 9: 27}[s]
        for i in range(k0, k0 + 9):
            if i < 28: A(f"s_load_dword s65, s[4:5], {i*64}")
            else: A(f"s_load_dword s65, s[8:9], {(i-28)*64}")
    if OPT["l2pf"] and s == OPT["warm"] + 1:
        A("""s_lshr_b32 s57, s2, 3
        s_lshl_b32 s57, s57, 2
        s_add_u32 s57, s57, s15
        s_lshr_b32 s58, s57, 3
        s_min_u32 s58, s58, 11
        s_lshr_b32 s59, s58, 1
        s_mul_i32 s59, s59, 6
        s_and_b32 s65, s58, 1
        s_lshl_b32 s65, s65, 1
        s_add_u32 s59, s59, s65
        s_add_u32 s59, s59, 2
        s_add_u32 s65, s58, 16
        s_cmp_lt_u32 s58, 8
        s_cselect_b32 s59, s59, s65
        s_lshl_b32 s59, s59, 16
        s_and_b32 s58, s57, 7
        s_lshl_b32 s58, s58, 13
        s_add_u32 s58, s58, s59
        s_lshl_b32 s57, s57, 12
        s_waitcnt lgkmcnt(0)
        s_add_u32 s4, s4, s58
        s_addc_u32 s5, s5, 0
        s_add_u32 s8, s8, s57
        s_addc_u32 s9, s9, 0""")
    if OPT["l2pf"] and OPT["warm"] + 1 <= s <= OPT["l2end"]:
        nst = OPT["l2end"] - OPT["warm"]
        tot = OPT["l2pf"]
        i0 = (s - OPT["warm"] - 1) * tot // nst; i1 = (s - OPT["warm"]) * tot // nst
        for i in range(i0, i1):
            if i < 64: A(f"s_load_dword s65, s[4:5], {i*128}")
            else: A(f"s_load_dword s65, s[8:9], {(i-64)*128}")
    if s == 8: gather_prep()
    if s == GAT: gather_loads(0); Q.add("GA0", 6)
    if s == GAT + OPT["gd"]: gather_loads(1); Q.add("GA", 5)
    if s == 12:
        A("s_load_dwordx2 s[24:25], s[0:1], 48\ns_load_dwordx2 s[28:29], s[0:1], 16")
        d_setup_w()
    if s == GC: gather_check()
    if s in DAVAIL:
        for _ in range(DAVAIL[s]):
            emit(issw(wnext[0], Q)); wnext[0] += 1
    if s == GC + 1:
        A("s_cmp_eq_u32 s70, 0\ns_cbranch_scc1 H_NOCOLS")
        gather_cols()
        A.label("H_NOCOLS")
    if s == 15:
        A("s_cmp_eq_u32 s70, 0\ns_cbranch_scc1 H_GSLOW")
        A.label("H_GTOK")
        gather_toks()
    if s in (4, 8, 12) and not HP: PR.stamp()
if HP:
    PR.n = 15; PR.dump(20); PR.n = 0
    OPT["prof"] = 0
PR.stamp()
PR.stamp()
import gen_cd
gen_cd.OPT = OPT
if OPT["amap"]:
    A("""s_and_b32 s57, s2, 6
    s_lshl_b32 s50, s57, 2
    s_lshr_b32 s58, s2, 3
    s_and_b32 s58, s58, 7
    s_add_u32 s50, s50, s58
    s_and_b32 s47, s2, 1
    s_lshl_b32 s47, s47, 2
    s_lshr_b32 s58, s2, 6
    s_add_u32 s47, s47, s58""")
else:
    A("""s_and_b32 s57, s2, 7
    s_lshr_b32 s58, s2, 3
    s_and_b32 s58, s58, 3
    s_lshl_b32 s50, s58, 3
    s_add_u32 s50, s50, s57
    s_lshr_b32 s47, s2, 5""")
A("s_lshl_b32 s51, s47, 2\ns_add_u32 s51, s51, s15")
gen_cd.attn_setup(A)
SH = OPT["share"]
LK, LVS, LFL = 16384, 49152, 49152 + 16384 + 1024
if SH:
    LONE = 49152 + 16384
    A(f"""s_lshl_b32 s49, s47, 2
    s_lshl_b32 s57, s15, 1
    s_add_u32 s49, s49, s57
    s_sub_u32 s49, s49, 4
    v_and_b32 v9, 1, v1
    v_add_u32 v9, s49, v9
    v_max_i32 v9, 0, v9
    v_lshlrev_b32 v9, 8, v9
    v_bfe_u32 v10, v1, 1, 1
    v_lshlrev_b32 v10, 6, v10
    v_add3_u32 v9, v9, v10, 64
    s_lshl_b32 s57, s51, 8
    v_mov_b32 v10, s57
    v_cmp_gt_u32 vcc, 4, v1
    s_lshr_b32 s57, s50, 1
    s_lshl_b32 s57, s57, 7
    s_add_u32 s57, s57, {WS_FQ}
    v_cndmask_b32 v9, v10, v9, vcc
    v_lshlrev_b32 v9, 5, v9
    v_add_u32 v252, s57, v9""")
else:
    A(f"""v_min_u32 v9, 10, v1
    v_cmp_gt_u32 vcc, 5, v9
    v_subrev_u32 v10, 5, v9
    s_nop 0
    v_cndmask_b32 v10, v10, v9, vcc
    v_min_u32 v10, 4, v10
    s_sub_u32 s57, s51, 4
    v_add_u32 v10, s57, v10
    v_max_i32 v10, 0, v10
    v_lshlrev_b32 v10, 8, v10
    v_mov_b32 v11, 128
    v_cndmask_b32 v11, v11, 64, vcc
    v_cmp_eq_u32 vcc, 10, v9
    s_lshr_b32 s57, s50, 1
    s_lshl_b32 s57, s57, 7
    s_add_u32 s57, s57, {WS_FQ}
    v_cndmask_b32 v11, v11, 0, vcc
    v_add_u32 v10, v10, v11
    v_lshlrev_b32 v10, 5, v10
    v_add_u32 v252, s57, v10""")
A("s_barrier")
PR.stamp()
gen_cd.LONE = LONE
if SH:
    A(f"s_lshl_b32 s57, s15, 11\ns_add_u32 s57, s57, {LVS}")
else:
    A("""s_movk_i32 s57, 0x4000
    s_cmp_eq_u32 s15, 1
    s_cselect_b32 s57, 49152, s57
    s_cmp_eq_u32 s15, 2
    s_cselect_b32 s57, 59392, s57
    s_cmp_eq_u32 s15, 3
    s_cselect_b32 s57, 151552, s57""")
gen_cd.attn_setup2(A, None)
ld = "buffer_load_dword v253, v252, s[20:23], 0 offen sc1"
A("s_waitcnt vmcnt(0)")
PR.stamp()
A("s_barrier")
A(f"s_setprio {OPT['aprio']}")
A(f"s_sleep {OPT['hs']}")
A(ld)
A("s_waitcnt vmcnt(0)")
spin(A, "HQ", ld, 253)
PR.stamp()
if SH:
    A(f"""s_lshl_b32 s52, s50, 16
    s_lshl_b32 s53, s49, 11""")
    for which, base, r0 in ((0, WS_K, 188), (1, WS_V, 204)):
        for b in range(4):
            if b % 2 == 0:
                A(f"s_add_i32 s55, s53, {b*1024}\ns_max_i32 s55, s55, 0\ns_add_u32 s55, s55, s52\ns_add_u32 s55, s55, {base}")
            A(f"buffer_load_dwordx4 {vr(r0+4*b,4)}, v3, s[20:23], s55 offen offset:{(b%2)*1024} sc1")
    A(f"""s_lshl_b32 s53, s51, 11
    s_add_u32 s54, s52, s53
    buffer_load_dwordx4 v[12:15], v3, s[20:23], s54 offen sc1
    buffer_load_dwordx4 v[16:19], v3, s[20:23], s54 offen offset:1024 sc1
    s_lshl_b32 s57, s15, 12
    v_add_u32 v9, s57, v3
    v_add_u32 v10, s57, v2
    s_lshl_b32 s57, s15, 11
    v_add_u32 v11, s57, v3
    s_lshl_b32 s57, s15, 2
    s_add_u32 s57, s57, {LFL}
    v_mov_b32 v252, s57
    v_mov_b32 v253, s80
    v_mov_b32 v254, {LFL}""")
    for b in range(4):
        A(f"s_waitcnt vmcnt({9-b})\nds_write_b128 v9, {vr(188+4*b,4)} offset:{LK + b*1024}")
    for b in range(4):
        A(f"s_waitcnt vmcnt({5-b})\nds_write_b128 v10, {vr(204+4*b,4)} offset:{LVS + b*1024}")
    A("""s_waitcnt lgkmcnt(0)
    ds_write_b32 v252, v253
    s_mov_b32 s56, 0""")
    A.label("H_LW")
    A(f"""ds_read_b128 v[188:191], v254
    s_add_u32 s56, s56, 1
    s_waitcnt lgkmcnt(0)
    v_xor_b32 v188, s80, v188
    v_xor_b32 v189, s80, v189
    v_xor_b32 v190, s80, v190
    v_xor_b32 v191, s80, v191
    v_or3_b32 v188, v188, v189, v190
    v_or_b32 v188, v188, v191
    v_cmp_eq_u32 vcc, 0, v188
    s_cmp_gt_u32 s56, {SPIN*50}
    s_cbranch_scc1 H_LOK
    s_cmp_eq_u64 vcc, -1
    s_cbranch_scc1 H_LOK
    s_sleep 1
    s_branch H_LW""")
    A.label("H_LOK")
    for b in range(10):
        A(f"ds_read_b128 {vr(20+4*b,4)}, v11 offset:{LK + b*1024}")
    A("s_waitcnt vmcnt(0)")
A(f"s_setprio {OPT['aprio2']}")
if OPT.get("noattn"): A("s_branch H_AFIN")
A("s_cmp_lt_u32 s51, 4")
A("s_cbranch_scc1 H_SLOW")
n0 = PR.n
gen_cd.gen_attn(A, False, "AF", PR, "sc1", setup=False, bar=OPT["defer"] >= 4, loads=not SH, shared=SH)
A.label("H_AFIN")
PR.stamp()
A(f"""s_lshl_b32 s57, s51, 12
s_lshl_b32 s58, s50, 7
s_add_u32 s57, s57, s58
s_add_u32 s57, s57, {WS_FO}
v_mov_b32 v9, 0
v_mov_b32 v10, s80
s_waitcnt vmcnt(0)
s_mov_b64 exec, 1
buffer_store_dword v10, v9, s[20:23], s57 offen sc1
s_mov_b64 exec, -1""")
PR.stamp()
PR.dump(2)
A.label("L_END")
A("s_endpgm")
gather_slow()
A.label("H_SLOW")
PR.n = n0
gen_cd.gen_attn(A, True, "AS", PR, "sc1", setup=False, bar=OPT["defer"] >= 4, loads=not SH, shared=SH)
A("s_branch H_AFIN")
A.label("L_M")
PR.n = 0
A("s_waitcnt lgkmcnt(0)")
PR.stamp(True); PR.stamp()
ws_srd()
if OPT["codepf"]:
    A("s_getpc_b64 s[24:25]")
    A.label("L_PC")
    A(f"""s_sub_u32 s24, s24, L_PC-{NAME}
    s_subb_u32 s25, s25, 0
    s_mov_b32 s26, L_CODE_END-{NAME}
    s_mov_b32 s27, 0x20000
    s_lshr_b32 s57, s2, 3
    s_lshl_b32 s57, s57, 2
    s_add_u32 s57, s57, s14
    s_lshl_b32 s57, s57, 9
    v_lshlrev_b32 v16, 7, v1
    s_mov_b64 exec, 15
    buffer_load_dword v31, v16, s[24:27], s57 offen
    s_mov_b64 exec, -1""")
vXa = [2, 3, 4, 5]; vWa = [6, 7, 8, 9, 10]; vWb = [11, 12, 13, 14, 15]
P = 32; QQ = 60; ACC = 88
A("s_setprio 2")
A("""s_and_b32 s12, s14, 1
s_lshr_b32 s13, s14, 1
v_and_b32 v16, 31, v1
v_lshrrev_b32 v17, 5, v1
v_bfe_u32 v18, v1, 1, 3
v_xor_b32 v17, v17, v18
v_lshlrev_b32 v17, 4, v17
v_lshlrev_b32 v16, 7, v16
v_add_u32 v16, v16, v17
s_lshl_b32 s57, s12, 13
v_add_u32 v2, s57, v16
v_xor_b32 v3, 32, v2
v_xor_b32 v4, 64, v2
v_xor_b32 v5, 96, v2""")
A(f"""v_lshrrev_b32 v16, 5, v1
v_lshlrev_b32 v16, 10, v16
v_bfe_u32 v17, v1, 2, 2
v_lshlrev_b32 v17, 6, v17
v_add_u32 v16, v16, v17
v_and_b32 v17, 3, v1
v_lshlrev_b32 v17, 3, v17
v_add_u32 v16, v16, v17
v_add_u32 v16, {WR}, v16
v_bfe_u32 v17, v1, 4, 1
s_sub_u32 s57, 2, s50
s_lshl_b32 s57, s57, 12
v_mul_u32_u24 v18, s57, v17
v_xor_b32 v19, s13, v17
v_lshlrev_b32 v19, 5, v19
v_add3_u32 v18, v18, v19, v16
v_lshlrev_b32 v19, 5, v17
s_lshl_b32 s57, s13, 9
v_add3_u32 v19, v19, s57, v16
s_cmp_eq_u32 s50, 1
s_cselect_b64 vcc, -1, 0""")
for n in range(5):
    fo = (n >> 1) * 4096 + (n & 1) * 512
    qo = n * 4096
    if n < 2: A(f"v_add_u32 v{vWa[n]}, {fo}, v18")
    elif n == 4: A(f"v_add_u32 v{vWa[n]}, {qo}, v19")
    else:
        A(f"v_add_u32 v20, {fo}, v18\nv_add_u32 v21, {qo}, v19\nv_cndmask_b32 v{vWa[n]}, v20, v21, vcc")
for n in range(5): A(f"v_add_u32 v{vWb[n]}, {4*WSL}, v{vWa[n]}")
def reads(s, kk, dst):
    xs = (s >> 1) % 3; q4 = (s & 1) * 2 + kk; sl = s % 5
    def xr(tt): return f"ds_read_b128 {vr(dst+4*tt,4)}, v{vXa[q4]} offset:{XR + xs*XS + tt*4096}"
    def wr(n, sec):
        a, o = (vWa[n], sl * WSL) if sl < 4 else (vWb[n], 0)
        return f"ds_read_b64_tr_b16 {vr(dst+8+4*n+2*sec,2)}, v{a} offset:{o + kk*2048 + sec*256}"
    R = [xr(0), wr(0, 0), wr(0, 1), xr(1)]
    for n in range(1, 5): R += [wr(n, 0), wr(n, 1)]
    return R
need = {0: 2, 1: 3, 2: 5, 4: 7, 6: 9, 8: 11}
def substep(cur, R, first=False):
    issued = 0
    for j in range(10):
        n, tt = j >> 1, j & 1
        if j in need: A(f"s_waitcnt lgkmcnt({min(15, 11 - need[j] + issued)})")
        a = ACC + 16 * (2 * n + tt)
        c = "0" if first else vr(a, 16)
        A(f"v_mfma_f32_32x32x16_bf16 {vr(a,16)}, {vr(cur+8+4*n,4)}, {vr(cur+4*tt,4)}, {c}")
        k = 2 if j < 2 else 1
        for r in R[issued:issued + k]: A(r)
        issued += len(R[issued:issued + k])
A(f"""v_and_b32 v16, 31, v1
v_lshlrev_b32 v22, 5, v16
s_lshl_b32 s57, s12, 11
s_add_u32 s57, s57, {EX_TOK}
v_add_u32 v22, s57, v22
v_and_b32 v16, 15, v1
s_sub_u32 s57, 2, s50
s_lshl_b32 s57, s57, 6
v_mul_u32_u24 v18, s57, v17
v_xor_b32 v19, s13, v17
v_lshlrev_b32 v19, 4, v19
v_add3_u32 v18, v18, v19, v16
v_lshlrev_b32 v18, 2, v18
v_and_b32 v19, 31, v1
s_lshl_b32 s57, s13, 5
v_add_u32 v19, s57, v19
v_lshlrev_b32 v19, 2, v19""")
for n in range(5):
    fo = EX_COL + ((n >> 1) * 64 + (n & 1) * 32) * 4
    qo = EX_COL + n * 256
    if n < 2: A(f"v_add_u32 v{23+n}, {fo}, v18")
    elif n == 4: A(f"v_add_u32 v{23+n}, {qo}, v19")
    else:
        A(f"v_add_u32 v20, {fo}, v18\nv_add_u32 v21, {qo}, v19\nv_cndmask_b32 v{23+n}, v20, v21, vcc")
A(f"""s_lshl_b32 s57, s47, 2
s_lshl_b32 s58, s12, 1
s_add_u32 s57, s57, s58
s_mul_i32 s70, s57, {112*1024}
s_lshl_b32 s59, s53, 12
s_add_u32 s70, s70, s59
s_lshl_b32 s59, s13, 10
s_add_u32 s70, s70, s59
s_add_u32 s70, s70, {WS_H}
s_lshl_b32 s59, s54, 2
s_lshl_b32 s60, s13, 1
s_add_u32 s59, s59, s60
s_lshl_b32 s71, s59, 6
s_add_u32 s71, s71, s57
s_lshl_b32 s71, s71, 10
s_lshl_b32 s57, s57, 7
s_lshl_b32 s72, s59, 1
s_add_u32 s72, s72, s57
s_lshl_b32 s72, s72, 5
s_add_u32 s72, s72, {WS_FQ}
s_lshl_b32 s73, s48, 3
s_lshl_b32 s60, s13, 2
s_add_u32 s73, s73, s60
s_add_u32 s73, s73, s57
s_lshl_b32 s73, s73, 5
s_add_u32 s73, s73, {WS_FH}
s_add_u32 s74, s73, 4096
s_load_dwordx2 s[24:25], s[0:1], 48
s_load_dwordx2 s[28:29], s[0:1], 16
s_load_dwordx2 s[36:37], s[0:1], 56
s_waitcnt lgkmcnt(0)""")
if OPT["tlb"]:
    A("""v_lshlrev_b32 v16, 21, v1
    v_mov_b32 v17, 0
    s_mov_b64 exec, 0x1ff
    buffer_load_dword v30, v16, s[20:23], 0 offen sc1
    s_mov_b64 exec, 1
    global_load_dword v30, v17, s[36:37] sc1
    global_load_dword v30, v17, s[24:25]
    global_load_dword v30, v17, s[28:29]
    s_mov_b64 exec, -1""")
A("s_waitcnt vmcnt(0)")
A("s_barrier")
PR.stamp()
for r in reads(0, 0, P): A(r)
A.raw(".p2align 3")
for s in range(16):
    substep(P, reads(s, 1, QQ), first=(s == 0))
    A("s_barrier")
    if s < 15: substep(QQ, reads(s + 1, 0, P))
    else:
        R = [f"ds_read_b128 {vr(P,4)}, v22", f"ds_read_b128 {vr(P+4,4)}, v22 offset:1024",
             f"ds_read_b128 v[16:19], v22 offset:16", f"ds_read_b128 v[28:31], v22 offset:1040"]
        R += [f"ds_read_b32 v{P+8+4*n}, v{23+n}" for n in range(5)]
        substep(QQ, R)
    if s in (11,): PR.stamp()
A("s_waitcnt lgkmcnt(0)")
A("s_barrier")
PR.stamp()
A(f"""v_mov_b32 v248, v{P+2}
v_mov_b32 v249, v{P+3}
v_mov_b32 v250, v16
v_mov_b32 v251, v17
v_mov_b32 v252, v{P+6}
v_mov_b32 v253, v{P+7}
v_mov_b32 v254, v28
v_mov_b32 v255, v29
v_cmp_gt_u32 vcc, 32, v1
v_readfirstlane_b32 s80, v18
v_mov_b32 v{P+2}, 0
v_mov_b32 v{P+3}, 0
v_mov_b32 v{P+6}, 0
v_mov_b32 v{P+7}, 0
v_cndmask_b32 v{P}, 0, v{P}, vcc
v_cndmask_b32 v{P+1}, 0, v{P+1}, vcc
v_cndmask_b32 v{P+4}, 0, v{P+4}, vcc
v_cndmask_b32 v{P+5}, 0, v{P+5}, vcc""")
for n in (4, 3, 2, 1, 0):
    w = P + 8 + 4 * n
    A(f"v_mov_b32 v{w+1}, v{w}\nv_mov_b32 v{w+2}, 0\nv_mov_b32 v{w+3}, 0")
for n in (4, 3, 2, 1, 0):
    for tt in range(2):
        a = ACC + 16 * (2 * n + tt)
        A(f"v_mfma_f32_32x32x16_bf16 {vr(a,16)}, {vr(P+8+4*n,4)}, {vr(P+4*tt,4)}, {vr(a,16)}")
A(f"""v_lshlrev_b32 v2, 4, v1
v_and_b32 v3, 31, v1
v_lshlrev_b32 v3, 5, v3
v_lshrrev_b32 v4, 5, v1
v_lshlrev_b32 v4, 4, v4
v_add_u32 v3, v3, v4
v_lshlrev_b32 v8, 8, v1
v_mov_b32 v9, s80""")
T = QQ
for tt in range(2):
    for k in range(3):
        A(f"v_mov_b32 v{68+6*tt+2*k}, v{248+4*tt+1+k}\nv_mov_b32 v{69+6*tt+2*k}, v{248+4*tt+1+k}")
def ffn(n, tt):
    a = ACC + 16 * (2 * n + tt); c = 68 + 6 * tt
    for r in range(0, 8, 2): A(f"v_pk_mul_f32 {vr(T+r,2)}, {vr(a+r,2)}, {vr(a+r,2)}")
    for r in range(0, 8, 2): A(f"v_pk_fma_f32 {vr(T+r,2)}, {vr(T+r,2)}, {vr(c+2,2)}, {vr(c,2)}")
    for r in range(0, 8, 2): A(f"v_pk_mul_f32 {vr(T+r,2)}, {vr(T+r,2)}, {vr(a+r,2)}")
    for r in range(8): A(f"v_exp_f32 v{T+r}, v{T+r}")
    for r in range(0, 8, 2): A(f"v_pk_mul_f32 {vr(a+r,2)}, {vr(a+r,2)}, {vr(a+8+r,2)}")
    for r in range(0, 8, 2): A(f"v_pk_fma_f32 {vr(T+r,2)}, {vr(T+r,2)}, {vr(c+4,2)}, {vr(c+4,2)}")
    for r in range(8): A(f"v_rcp_f32 v{T+r}, v{T+r}")
    A("s_nop 0")
    for r in range(0, 8, 2): A(f"v_pk_mul_f32 {vr(a+r,2)}, {vr(a+r,2)}, {vr(T+r,2)}")
    for d in range(4): A(f"v_cvt_pk_bf16_f32 v{a+8+d}, v{a+2*d}, v{a+2*d+1}")
def ffn_st(n, tt):
    a = ACC + 16 * (2 * n + tt)
    A(f"s_add_u32 s63, s70, {2048*n + tt*112*1024}")
    A(f"buffer_store_dwordx4 {vr(a+8,4)}, v2, s[20:23], s63 offen sc1")
def qkv(n, zoff):
    A(f"""s_add_u32 s60, s54, {zoff}
    s_cmp_lt_u32 s60, 8
    s_mov_b32 s62, {f32(0.25*LOG2E)}
    s_cselect_b32 s62, s62, 1.0
    v_mul_f32 v4, s62, v248
    v_mul_f32 v6, s62, v252
    v_mul_f32 v5, s62, v248
    v_mul_f32 v7, s62, v252""")
    for tt in range(2):
        a = ACC + 16 * (2 * n + tt)
        for r in range(0, 16, 2): A(f"v_pk_mul_f32 {vr(a+r,2)}, {vr(a+r,2)}, {vr(4+2*tt,2)}")
        for d in range(8): A(f"v_cvt_pk_bf16_f32 v{a+d}, v{a+2*d}, v{a+2*d+1}")
        A(f"s_add_u32 s63, s71, {zoff*4*65536 + tt*1024}")
        A(f"buffer_store_dwordx4 {vr(a,4)}, v2, s[20:23], s63 offen sc1")
        A(f"s_add_u32 s63, s63, 65536")
        A(f"buffer_store_dwordx4 {vr(a+4,4)}, v2, s[20:23], s63 offen sc1")
def flag(vm, mask, soff, imm=0, voff=8):
    A(f"s_waitcnt vmcnt({vm})\ns_mov_b64 exec, {mask}\nbuffer_store_dword v9, v{voff}, s[20:23], s{soff} offen offset:{imm} sc1\ns_mov_b64 exec, -1")
A("s_cmp_eq_u32 s50, 1")
A("s_cbranch_scc1 M_TC")
def ffs(n, tt): ffn(n, tt); ffn_st(n, tt)
DF = OPT["defer"]
qkv(4, 0)
if DF:
    ffn(3, 0); ffn(3, 1)
    A("s_barrier")
    ffn(2, 0); ffn(2, 1)
    if DF == 5: flag(0, 1, 72)
    if DF >= 2: ffn(1, 0); ffn(1, 1)
    if DF != 5: flag(0, 1, 72)
    nq = PR.n; PR.stamp()
    if DF >= 3: ffn(0, 0); ffn(0, 1)
    if DF >= 4: A("s_barrier")
    for n in (3, 2):
        for tt in range(2): ffn_st(n, tt)
    if DF == 1: ffs(1, 0); ffs(1, 1); ffs(0, 0); ffs(0, 1)
    elif DF == 2: ffn_st(1, 0); ffn_st(1, 1); ffs(0, 0); ffs(0, 1)
    else: ffn_st(1, 0); ffn_st(1, 1); ffn_st(0, 0); ffn_st(0, 1)
    if not OPT["safe"]: flag(4, 1, 73)
else:
    ffs(3, 0); ffs(3, 1)
    A("s_barrier")
    ffs(2, 0); ffs(2, 1)
    flag(4, 1, 72)
    ffs(1, 0); ffs(1, 1); ffs(0, 0); ffs(0, 1)
    flag(4, 1, 73)
A("s_branch M_TJ")
A.label("M_TC")
qkv(4, 2); qkv(3, 1); qkv(2, 0)
A("s_barrier")
if DF:
    order = [(1, 0), (1, 1), (0, 0), (0, 1)]
    for t in order[:OPT["cq"]]: ffn(*t)
    flag(0, 7, 72)
    PR.n = nq; PR.stamp()
    for t in order[OPT["cq"]:]: ffn(*t)
    if DF >= 4: A("s_barrier")
    ffn_st(1, 0); ffn_st(1, 1); ffn_st(0, 0); ffn_st(0, 1)
else:
    ffs(1, 0); ffs(1, 1); ffs(0, 0); ffs(0, 1)
    flag(4, 7, 72)
A.label("M_TJ")
PR.stamp()
A("s_mov_b32 s15, s14")
d_setup_w()
XRr, BF, WF, AD, AS = 8, 16, 80, 96, 160
BD, NS = 8, 36
flag(0, 0x10001, 73) if OPT["safe"] == 1 else flag(0, 1, 74)
PR.stamp()
DQ = VQ(A)
A(f"""s_and_b32 s57, s2, 6
s_lshl_b32 s50, s57, 1
s_and_b32 s57, s2, 1
s_lshl_b32 s57, s57, 4
s_add_u32 s50, s50, s57
s_lshr_b32 s57, s2, 3
s_and_b32 s57, s57, 3
s_add_u32 s50, s50, s57
s_lshr_b32 s51, s2, 5
v_lshlrev_b32 v3, 4, v1
s_lshl_b32 s55, s50, 13
s_lshl_b32 s57, s15, 10
s_add_u32 s55, s55, s57
s_add_u32 s55, s55, {WS_FH}
s_add_u32 s75, s55, 4096
v_min_u32 v226, 5, v1
v_lshlrev_b32 v226, 7, v226
v_min_u32 v227, 7, v1
v_lshlrev_b32 v227, 7, v227""")
ld0 = "buffer_load_dword v228, v226, s[20:23], s55 offen sc1"
ld1 = "buffer_load_dword v228, v227, s[20:23], s75 offen sc1"
if OPT["safe"] == 2: ld0 = ld1
RP = OPT["rpf"]
for k in range(RP):
    st = WD + k
    A(f"s_lshl_b32 s44, s{UFB[st>>2]}, 14\ns_add_u32 s44, s44, s40")
    if st & 3: A(f"s_add_u32 s44, s44, {(st&3)*16384}")
    A(f"s_add_u32 s45, s44, 8192")
    A(f"buffer_load_dwordx4 {vr(160+8*k,4)}, v2, s[24:27], s44 offen")
    A(f"buffer_load_dwordx4 {vr(164+8*k,4)}, v2, s[24:27], s45 offen")
if OPT["ms"]: A(f"s_sleep {OPT['ms']}")
A(ld0)
A(f"""s_lshl_b32 s57, s50, 1
s_and_b32 s58, s15, 1
s_add_u32 s59, s57, s58
s_xor_b32 s58, s58, 1
s_add_u32 s57, s57, s58
s_mul_i32 s64, s59, {112*1024}
s_add_u32 s64, s64, {WS_H}
s_mul_i32 s65, s57, {112*1024}
s_add_u32 s65, s65, {WS_H}
s_lshl_b32 s58, s15, 13
s_add_u32 s58, s58, {WS_O}
s_lshl_b32 s67, s59, 15
s_add_u32 s67, s67, s58
s_lshl_b32 s53, s57, 15
s_add_u32 s53, s53, s58
v_and_b32 v6, 31, v1
v_lshlrev_b32 v6, 10, v6
v_lshrrev_b32 v7, 5, v1
v_lshlrev_b32 v7, 4, v7
v_add_u32 v224, v6, v7
s_lshl_b32 s54, s59, 15
s_lshl_b32 s57, s51, 7
s_add_u32 s54, s54, s57
s_lshr_b32 s57, s15, 1
s_lshl_b32 s57, s57, 6
s_add_u32 s54, s54, s57
v_lshrrev_b32 v6, 5, v1
v_lshlrev_b32 v6, 8, v6
v_bfe_u32 v7, v1, 2, 2
v_lshlrev_b32 v7, 6, v7
v_add_u32 v6, v6, v7
v_and_b32 v7, 3, v1
v_lshlrev_b32 v7, 3, v7
v_add_u32 v6, v6, v7
v_bfe_u32 v7, v1, 4, 1
v_lshlrev_b32 v7, 5, v7
v_add_u32 v6, v6, v7
s_lshl_b32 s57, s57, 3
v_add_u32 v6, s57, v6
v_xor_b32 v7, 512, v6
v_add_u32 v4, s43, v6
v_add_u32 v5, s43, v7
v_add_u32 v232, 0x10000, v4
v_add_u32 v233, 0x10000, v5
v_add_u32 v234, 0x20000, v4
v_add_u32 v235, 0x20000, v5
s_mov_b32 s32, s4
s_mov_b32 s33, s5
s_mov_b32 s34, 0x200000
s_mov_b32 s35, 0x20000
s_mov_b32 s38, 0x200000
s_mov_b32 s39, 0x20000
s_setprio {OPT['dprio']}""")
if OPT["xs"] == 99:
    A("buffer_load_dwordx4 v[8:11], v224, s[32:35], s54 offen\nbuffer_load_dwordx4 v[12:15], v224, s[32:35], s54 offen offset:32\ns_waitcnt vmcnt(2)")
else:
    A("s_waitcnt vmcnt(0)")
PR.stamp()
spin(A, "MH0", ld0, 228)
PR.stamp()
def htouch(lvl):
    if not OPT["htouch"]: return
    A(f"""v_bfe_u32 v229, v1, 2, 2
    v_lshlrev_b32 v230, 13, v229
    s_mul_i32 s57, s15, {24*1024}
    s_add_u32 s57, s57, {4096 if lvl == 0 else 0}
    v_add_u32 v230, s57, v230
    s_lshl_b32 s58, s15, 12
    s_add_u32 s58, s58, {96*1024}
    v_mov_b32 v231, {'s58' if lvl else 's57'}
    v_cmp_eq_u32 vcc, 3, v229
    v_and_b32 v229, 3, v1
    v_lshlrev_b32 v229, 10, v229
    v_cndmask_b32 v230, v230, v231, vcc
    v_add_u32 v230, v230, v229
    v_bfe_u32 v229, v1, 4, 1
    v_mul_u32_u24 v229, {112*1024}, v229
    v_add_u32 v230, v230, v229
    s_min_u32 s57, s64, s65
    s_lshl_b32 s58, s51, 7
    s_add_u32 s57, s57, s58
    s_mov_b32 exec_hi, 0
    buffer_load_dword v248, v230, s[20:23], s57 offen sc1
    s_mov_b64 exec, -1""")
    DQ.add("HT", 1)
htouch(0)
def issb(s):
    r = BF + 8 * (s % BD)
    if s < 28:
        o = [f"s_lshl_b32 s48, s{UFB[s>>2]}, 10", "s_add_u32 s49, s48, s65", "s_add_u32 s48, s48, s64"] if (s & 3) == 0 else []
    else:
        o = [f"s_add_u32 s48, s67, {(s-28)*1024}", f"s_add_u32 s49, s53, {(s-28)*1024}"] if (s & 3) == 0 else []
    DQ.add(f"B{s}", 2)
    return [o + [f"buffer_load_dwordx4 {vr(r,4)}, v3, s[20:23], s48 offen offset:{(s&3)*1024} sc1"],
            [f"buffer_load_dwordx4 {vr(r+4,4)}, v3, s[20:23], s49 offen offset:{(s&3)*1024} sc1"]]
for s in range(BD - 1): emit(issb(s))
def wtouch2():
    A(f"""v_lshrrev_b32 v229, 4, v1
    v_mov_b32 v230, s{UFB[3]}
    v_mov_b32 v231, s{UFB[4]}
    v_cmp_eq_u32 vcc, 1, v229
    s_lshr_b32 s57, s2, 3
    s_and_b32 s57, s57, 3
    v_cndmask_b32 v230, v230, v231, vcc
    v_mov_b32 v231, s{UFB[5]}
    v_cmp_eq_u32 vcc, 2, v229
    s_lshl_b32 s57, s57, 10
    s_add_u32 s58, s57, s40
    v_cndmask_b32 v230, v230, v231, vcc
    v_mov_b32 v231, s{UFB[6]}
    v_cmp_eq_u32 vcc, 3, v229
    v_and_b32 v229, 15, v1
    v_lshlrev_b32 v229, 12, v229
    v_cndmask_b32 v230, v230, v231, vcc
    v_lshlrev_b32 v230, 14, v230
    v_add_u32 v230, v230, v229
    buffer_load_dword v246, v230, s[24:27], s58 offen
    v_lshlrev_b32 v229, 12, v1
    s_add_u32 s58, s57, s42
    s_mov_b32 exec_hi, 0
    buffer_load_dword v247, v229, s[28:31], s58 offen
    s_mov_b64 exec, -1""")
    DQ.add("WT", 2)
if OPT["wt2"] == 1: wtouch2()
def xload():
    A(f"buffer_load_dwordx4 {vr(XRr,4)}, v224, s[32:35], s54 offen")
    A(f"buffer_load_dwordx4 {vr(XRr+4,4)}, v224, s[32:35], s54 offen offset:32")
    DQ.add("X", 2)
if not OPT["xs"]: xload()
def rdw(s):
    slot = s % WD; w = WF + 8 * (s & 1)
    hi, lo = DREG[slot] >> 16, DREG[slot] & 0xffff
    vb = [4, 232, 234][hi]
    return [f"ds_read_b64_tr_b16 {vr(w+4*u+2*sec,2)}, v{vb+u} offset:{lo+sec*1024}" for u in range(2) for sec in range(2)]
for i in rdw(0): A(i)
DQ.wait("B0")
L1S = OPT["l1s"]
def tB(sp): return max(sp - (BD - 1), L1S) if (sp >= 12 and OPT['safe'] != 2) else sp - (BD - 1)
def xaddr(base3, which, a, qd):
    k = (a - 1) * 4 + qd
    reg = DREG[(8 if which == 0 else 0) + (k >> 1)] + (k & 1) * 1024
    return base3[reg >> 16], reg & 0xffff
def dump(which, acc):
    for a in range(1, 4):
        for qd in range(4):
            vb, off = xaddr([236, 6, 7], which, a, qd)
            A(f"ds_write_b128 v{vb}, {vr(acc+16*a+4*qd,4)} offset:{off}")
def fetch(which, acc):
    for a in range(1, 4):
        b = 237 + 3 * (a - 1)
        for qd in range(4):
            vb, off = xaddr([b, b + 1, b + 2], which, a, qd)
            A(f"ds_read_b128 {vr(acc+16*a+4*qd,4)}, v{vb} offset:{off}")
def sum4(acc):
    for r in range(0, 16, 2):
        A(f"v_pk_add_f32 {vr(acc+r,2)}, {vr(acc+r,2)}, {vr(acc+16+r,2)}\nv_pk_add_f32 {vr(acc+32+r,2)}, {vr(acc+32+r,2)}, {vr(acc+48+r,2)}")
    for r in range(0, 16, 2): A(f"v_pk_add_f32 {vr(acc+r,2)}, {vr(acc+r,2)}, {vr(acc+32+r,2)}")
for s in range(NS):
    w = WF + 8 * (s & 1); b = BF + 8 * (s % BD)
    acc = AD if s < 28 else AS
    if s == 12: PR.stamp()
    if s == 28:
        PR.stamp()
        A("s_nop 7\ns_nop 1")
        dump(0, AD)
        DQ.wait("PO")
        A("""v_cmp_eq_u32 vcc, s80, v228
        s_mov_b32 s46, 0
        s_cmp_eq_u64 vcc, -1
        s_cbranch_scc1 M_OOK
        s_mov_b32 s46, 1""")
        A(ld2)
        A("s_call_b64 s[66:67], M_GATE" if False else "s_call_b64 s[70:71], M_GATE")
        A("s_waitcnt vmcnt(0)")
        spin(A, "MO", ld2, 228)
        A.label("M_OOK")
        PR.stamp()
        for sp in range(28, 36): emit(issb(sp))
        A("s_cmp_eq_u32 s46, 1\ns_cbranch_scc1 M_GDONE\ns_call_b64 s[70:71], M_GATE")
        A.label("M_GDONE")
        DQ.wait("B28")
    if s + 1 < NS:
        DQ.wait([f"W{s+1}", f"B{s+1}"])
        for i in rdw(s + 1): A(i)
        A("s_waitcnt lgkmcnt(4)")
    else:
        A("s_waitcnt lgkmcnt(0)")
    if OPT["safe"] == 2 and s == OPT["h2"]: htouch(1)
    if s == L1S - 3 and OPT["safe"] != 2:
        A(ld1); DQ.add("P1", 1)
    if s == L1S and OPT["safe"] != 2:
        DQ.wait("P1")
        spin(A, "MH1", ld1, 228)
        htouch(1)
    if s == 0:
        A("v_add_u32 v236, s43, v3\nv_add_u32 v6, 0x10000, v236\nv_add_u32 v7, 0x20000, v236")
    if s == 20:
        for a in range(1, 4):
            bb = 237 + 3 * (a - 1)
            A(f"s_xor_b32 s57, s15, {a}\ns_lshl_b32 s57, s57, 11\nv_add_u32 v{bb}, s57, v3\nv_add_u32 v{bb+1}, 0x10000, v{bb}\nv_add_u32 v{bb+2}, 0x20000, v{bb}")
    if OPT["xs"] and s == OPT["xs"]: xload()
    if s == 25:
        A(f"""s_lshl_b32 s55, s50, 12
        s_lshl_b32 s57, s15, 10
        s_add_u32 s55, s55, s57
        s_add_u32 s55, s55, {WS_FO}""")
        ld2 = "buffer_load_dword v228, v227, s[20:23], s55 offen sc1"
        A(ld2); DQ.add("PO", 1)
    grp = []
    for sp in range(BD - 1, 28):
        if tB(sp) == s: grp += issb(sp)
    if 1 <= s <= RP:
        reg = DREG[s - 1]; vb = [236, 6, 7][reg >> 16]
        grp += [[f"ds_write_b128 v{vb}, {vr(160+8*(s-1),4)} offset:{reg & 0xffff}"], [f"ds_write_b128 v{vb}, {vr(164+8*(s-1),4)} offset:{(reg & 0xffff)+1024}"]]
    elif s >= 1 and s + WD - 1 < NS: grp += issw(s + WD - 1, DQ)
    per = [grp[(len(grp) * a) // 4:(len(grp) * (a + 1)) // 4] for a in range(4)]
    for a in range(4):
        u, tt = a >> 1, a & 1
        r = acc + 16 * a
        c = "0" if s in (0, 28) else vr(r, 16)
        A(f"v_mfma_f32_32x32x16_bf16 {vr(r,16)}, {vr(w+4*u,4)}, {vr(b+4*tt,4)}, {c}")
        for g in per[a]:
            for i in g: A(i)
PR.stamp()
A("s_nop 7\ns_nop 1")
dump(1, AS)
A("s_waitcnt lgkmcnt(0)")
A("s_barrier")
fetch(1, AS)
A("s_waitcnt lgkmcnt(0)")
sum4(AS)
for r in range(0, 16, 2): A(f"v_pk_fma_f32 {vr(AD+r,2)}, {vr(AD+r,2)}, {vr(AS+r,2)}, {vr(AD+32+r,2)}")
for d in range(8): A(f"v_cvt_pk_bf16_f32 v{XRr+d}, v{AD+2*d}, v{AD+2*d+1}")
A("s_nop 1")
for j in range(2):
    A(f"v_permlane32_swap_b32 v{XRr+4*j}, v{XRr+4*j+2}\nv_permlane32_swap_b32 v{XRr+4*j+1}, v{XRr+4*j+3}")
osc = "sc1" if OPT["osc"] else ""
A(f"buffer_store_dwordx4 {vr(XRr,4)}, v224, s[36:39], s54 offen {osc}")
A(f"buffer_store_dwordx4 {vr(XRr+4,4)}, v224, s[36:39], s54 offen offset:32 {osc}")
PR.stamp()
PR.dump(2)
A("s_endpgm")
def gate():
    A("s_waitcnt lgkmcnt(0)")
    A("s_barrier")
    fetch(0, AD)
    for j in range(2):
        A(f"v_permlane32_swap_b32 v{XRr+4*j}, v{XRr+4*j+2}\nv_permlane32_swap_b32 v{XRr+4*j+1}, v{XRr+4*j+3}")
    A("s_waitcnt lgkmcnt(0)")
    sum4(AD)
    T = AD + 16
    for r in range(16): A(f"v_mul_f32 v{T+r}, {f32(-LOG2E)}, v{AD+r}")
    for r in range(16): A(f"v_exp_f32 v{T+r}, v{T+r}")
    for d in range(8): A(f"v_lshlrev_b32 v{T+16+2*d}, 16, v{XRr+d}\nv_and_b32 v{T+17+2*d}, 0xffff0000, v{XRr+d}")
    for r in range(16): A(f"v_add_f32 v{T+r}, 1.0, v{T+r}")
    for r in range(16): A(f"v_rcp_f32 v{T+r}, v{T+r}")
    A("s_nop 0")
    for r in range(0, 16, 2): A(f"v_pk_mul_f32 {vr(AD+r,2)}, {vr(AD+r,2)}, {vr(T+r,2)}")
A.label("M_GATE")
gate()
A("s_setpc_b64 s[70:71]")
A.label("L_CODE_END")
A.raw('.section .rodata,"a"')
A.raw(kernel_desc(NAME, 256))
txt = A.text()
if OPT.get("plainst"):
    import re
    txt = re.sub(r"(buffer_store_dwordx4 .*s63 offen) sc1", r"\1", txt)
if OPT.get("align", 1):
    import align
    txt = align.align(txt)
print(txt)
```
